```python
import torch

def _softmax(x, axis=-1):
    return torch.softmax(x, dim=axis)

def _gelu(x):
    return torch.nn.functional.gelu(x, approximate='tanh')

def _silu(x):
    return torch.nn.functional.silu(x)

def _sigmoid(x):
    return torch.sigmoid(x)

def _layernorm(x, axis=-1, eps=1e-05):
    m = x.mean(dim=axis, keepdim=True)
    v = x.var(dim=axis, keepdim=True, unbiased=False)
    return (x - m) / torch.sqrt(v + eps)

def _scatter_add(tgt, idx, src, axis=0):
    return tgt.clone().index_add_(axis, idx, src)

def _segment_sum(src, seg, n):
    out = torch.zeros((n,) + src.shape[1:], dtype=src.dtype)
    return out.index_add_(0, seg, src)

def _pad(x, pw):
    flat = tuple((v for pair in reversed(pw) for v in pair))
    return torch.nn.functional.pad(x, flat)
kernel_name = 'standalone__tensor_product_equiv_equiformer__graph'

def setup_inputs():

    _w = lambda a: (lambda t: t.to(torch.bfloat16) if t.is_floating_point() else t)(torch.as_tensor(a))
    N, deg, C, De = (10000, 64, 64, max(4, 1))
    E = N * deg
    src = (lambda lo, hi, *s: torch.randint(lo, hi, s))(0, N, E).to(torch.int64)
    dst = (lambda lo, hi, *s: torch.randint(lo, hi, s))(0, N, E).to(torch.int64)
    rvec = (lambda *s: torch.randn(*s, dtype=torch.bfloat16) * 0.05)(E, 3).to(float)
    rn = (torch.linalg.norm(rvec, dim=-1, keepdim=True) + 1e-06).to(float)
    rhat = (rvec / rn).to(float)
    eps = torch.zeros((3, 3, 3), dtype=float)
    eps[0, 1, 2] = eps[1, 2, 0] = eps[2, 0, 1] = 1.0
    eps[0, 2, 1] = eps[2, 1, 0] = eps[1, 0, 2] = -1.0
    return {'x': _w((lambda *s: torch.randn(*s, dtype=torch.bfloat16) * 0.4)(N, 4 * C).to(float)), 'rhat': _w(rhat), 'e_attr': _w((lambda *s: torch.randn(*s, dtype=torch.bfloat16) * 0.4)(E, De).to(float)), 'src': _w(src), 'dst': _w(dst), 'w_rad': _w((lambda *s: torch.randn(*s, dtype=torch.bfloat16) * 0.4)(De, 5 * C).to(float)), 'w_si0': _w((lambda *s: torch.randn(*s, dtype=torch.bfloat16) * 0.4)(2 * C, C).to(float)), 'w_si1': _w((lambda *s: torch.randn(*s, dtype=torch.bfloat16) * 0.05)(3 * C, C).to(float)), 'cg_eps': _w(eps)}

def reference(x, rhat, e_attr, src, dst, w_rad, w_si0, w_si1, cg_eps):
    N = x.shape[0]
    C = w_si0.shape[1]
    E = rhat.shape[0]
    x0 = x[:, :C].clone()
    x1 = x[:, C:].reshape(N, 3, C)
    R = (e_attr @ w_rad).reshape(E, 5, C)
    f0 = x0[src]
    f1 = x1[src]
    Y1 = rhat
    p00_0 = f0 * R[:, 0, :]
    p11_0 = torch.einsum('ejc,ej->ec', f1, Y1) * R[:, 1, :]
    p01_1 = torch.einsum('ec,ej->ejc', f0, Y1) * R[:, 2, :][:, None, :]
    p10_1 = f1 * R[:, 3, :][:, None, :]
    p11_1 = torch.einsum('ijk,ekc,ej->eic', cg_eps, f1, Y1) * R[:, 4, :][:, None, :]
    m0 = torch.concatenate([p00_0, p11_0], axis=-1) @ w_si0
    m1 = torch.einsum('ejp,pc->ejc', torch.concatenate([p01_1, p10_1, p11_1], axis=-1), w_si1)
    agg0 = _segment_sum(m0, dst, N)
    agg1 = _segment_sum(m1.reshape(E, 3 * C), dst, N).reshape(N, 3, C)
    gate = _sigmoid(agg0)
    out1 = agg1 * gate[:, None, :]
    return torch.concatenate([agg0, out1.reshape(N, 3 * C)], axis=-1)
```

```python
import sys

P = int(sys.argv[1]) if len(sys.argv) > 1 else 2
OUTFILE = sys.argv[2] if len(sys.argv) > 2 else "standalone__tensor_product_equiv_equiformer__graph.s"

NAME = "standalone__tensor_product_equiv_equiformer__graph"
N = 10000
E = 640000
NWG = 256
CH = 2500
BINM = 1677
WS_REC = 0
WS_KEY = 10240000
WS_TAB = 10880000
WS_WF = WS_TAB + 256 * 1024
WS_END = WS_WF + 40 * 1024

lines = []
def o(s=""):
    lines.append(s)
def L(s):
    lines.append(s + ":")
def vr(a, n):
    return f"v[{a}:{a+n-1}]"
def sr(a, n):
    return f"s[{a}:{a+n-1}]"

def srd(d, lo, hi, nbytes):
    o(f"    s_mov_b32 s{d}, s{lo}")
    o(f"    s_and_b32 s{d+1}, s{hi}, 0xffff")
    o(f"    s_mov_b32 s{d+2}, {nbytes}")
    o(f"    s_mov_b32 s{d+3}, 0x00020000")

K1_LDS_CNT = 0
K1_LDS_START = 1024
K1_LDS_KEY = 2048
K1_LDS_REC = 4608
K1_LDS = K1_LDS_REC + 40960

RC = 3072
SLOTCAP = 3328
COEF = 0
OFFS = SLOTCAP * 32
WRAD = OFFS + SLOTCAP * 4
MASK = WRAD + 16384
CNT = MASK + 2112
BASE = CNT + 512
MISC = BASE + 512
K2_LDS = MISC + 64
OUTT = OFFS
OUT_STRIDE = 528
assert 48 * OUT_STRIDE <= WRAD + 16384 - OFFS

o(f"; @launch kernel=tp_part_kernel grid=({NWG},1,1) block=(640,1,1) lds={K1_LDS}")
o(f"; @launch kernel=tp_main_kernel grid=({NWG},1,1) block=(512,1,1) lds={K2_LDS}")
o('.amdgcn_target "amdgcn-amd-amdhsa--gfx950"')
o(".text")

def gen_k1():
    o(".globl tp_part_kernel")
    o(".p2align 8")
    o(".type tp_part_kernel,@function")
    L("tp_part_kernel")
    o(f"    s_cmp_ge_u32 s2, {NWG}")
    o("    s_cbranch_scc1 K1_END")
    o("    s_load_dwordx4 s[4:7], s[0:1], 8")
    o("    s_load_dwordx4 s[8:11], s[0:1], 24")
    o("    s_load_dwordx4 s[12:15], s[0:1], 48")
    o("    s_load_dwordx2 s[16:17], s[0:1], 88   ; ws")
    D, S, EA, RA, RB = 4, 8, 12, 20, 24
    BN, RK, ST = 28, 32, 36
    T = 40
    WFR = 48
    C = 56
    o("    v_lshlrev_b32 v1, 2, v0               ; tid*4")
    o("    v_mov_b32 v2, 0")
    o("    v_cmp_gt_u32 vcc, 256, v0")
    o("    s_and_saveexec_b64 s[18:19], vcc")
    o(f"    ds_write_b32 v1, v2 offset:{K1_LDS_CNT}")
    o("    s_mov_b64 exec, s[18:19]")
    o(f"    s_mul_i32 s3, s2, {CH}")
    o("    v_add_u32 v2, s3, v1")
    o("    v_lshlrev_b32 v3, 2, v2")
    o(f"    v_lshlrev_b32 v{T}, 3, v2")
    o(f"    v_mul_u32_u24 v{T+1}, 6, v2")
    o("    v_lshrrev_b32 v70, 6, v0")
    o("    s_nop 0")
    o("    v_readfirstlane_b32 s50, v70")
    o("    s_waitcnt lgkmcnt(0)")
    srd(20, 10, 11, E * 4)
    srd(24, 8, 9, E * 4)
    srd(28, 6, 7, E * 8)
    srd(32, 4, 5, E * 6)
    o(f"    buffer_load_dwordx4 {vr(D,4)}, v3, s[20:23], 0 offen")
    o(f"    buffer_load_dwordx4 {vr(S,4)}, v3, s[24:27], 0 offen")
    o(f"    buffer_load_dwordx4 {vr(EA,4)}, v{T}, s[28:31], 0 offen")
    o(f"    buffer_load_dwordx4 {vr(EA+4,4)}, v{T}, s[28:31], 0 offen offset:16")
    o(f"    buffer_load_dwordx3 {vr(RA,3)}, v{T+1}, s[32:35], 0 offen")
    o(f"    buffer_load_dwordx3 {vr(RB,3)}, v{T+1}, s[32:35], 0 offen offset:12")
    o(f"    s_mul_i32 s36, s2, {CH*16}")
    o("    s_add_u32 s36, s16, s36")
    o("    s_addc_u32 s37, s17, 0")
    o("    s_and_b32 s37, s37, 0xffff")
    o(f"    s_mov_b32 s38, {CH*16}")
    o("    s_mov_b32 s39, 0x00020000")
    o(f"    s_add_u32 s40, s3, {WS_KEY}")
    o("    s_add_u32 s40, s16, s40")
    o("    s_addc_u32 s41, s17, 0")
    o("    s_and_b32 s41, s41, 0xffff")
    o(f"    s_mov_b32 s42, {CH}")
    o("    s_mov_b32 s43, 0x00020000")
    srd(44, 16, 17, WS_END)
    o("    s_mul_i32 s51, s2, 26                 ; f/10 for f<40: (f*26)>>8")
    o("    s_lshr_b32 s51, s51, 8                ; t")
    o("    s_mul_i32 s52, s51, 10")
    o("    s_sub_u32 s52, s2, s52                ; f%10")
    o("    s_lshl_b32 s52, s52, 5")
    o("    s_cmp_lt_u32 s52, 128")
    o("    s_cselect_b32 s56, s12, s14")
    o("    s_cselect_b32 s57, s13, s15")
    o("    s_movk_i32 s58, 16384")
    o("    s_cselect_b32 s58, s58, 24576")
    o("    s_cselect_b32 s53, 0, 128")
    o("    s_and_b32 s57, s57, 0xffff")
    o("    s_mov_b32 s59, 0x00020000")
    o("    s_sub_u32 s52, s52, s53")
    o("    s_cmp_lt_u32 s2, 40")
    o("    s_cselect_b32 s54, 1, 0")
    o("    s_cmp_eq_u32 s50, 0")
    o("    s_cselect_b32 s54, s54, 0")
    o("    s_cmp_eq_u32 s54, 0")
    o("    s_cbranch_scc1 K1_NOFRAG1")
    o("    v_lshrrev_b32 v70, 4, v0")
    o("    v_lshlrev_b32 v70, 10, v70            ; 8g*128")
    o("    v_and_b32 v71, 15, v0")
    o("    v_lshl_add_u32 v70, v71, 1, v70")
    o("    s_lshl_b32 s52, s52, 7")
    o("    s_lshl_b32 s53, s51, 5")
    o("    s_add_u32 s52, s52, s53")
    o("    v_add_u32 v70, s52, v70")
    for i in range(8):
        o(f"    buffer_load_ushort v{WFR+i}, v70, s[56:59], 0 offen offset:{i*128}")
    o("    s_waitcnt vmcnt(0)")
    for p in range(4):
        o(f"    v_lshl_or_b32 v{WFR+p}, v{WFR+2*p+1}, 16, v{WFR+2*p}")
    o("    s_lshl_b32 s52, s2, 10")
    o(f"    s_add_u32 s52, s52, {WS_WF}")
    o("    v_lshlrev_b32 v70, 4, v0")
    o(f"    buffer_store_dwordx4 {vr(WFR,4)}, v70, s[44:47], s52 offen")
    L("K1_NOFRAG1")
    o("    s_waitcnt lgkmcnt(0)")
    o("    s_barrier")
    o(f"    v_cmp_gt_u32 vcc, {CH//4}, v0")
    o("    s_and_saveexec_b64 s[18:19], vcc")
    o("    s_mov_b64 s[60:61], exec")
    o("    v_mov_b32 v2, 1")
    o("    s_waitcnt vmcnt(5)")
    for j in range(4):
        o(f"    v_mul_u32_u24 v{BN+j}, {BINM}, v{D+j}")
    for j in range(4):
        o(f"    v_lshrrev_b32 v{BN+j}, 14, v{BN+j}")
    for j in range(4):
        o(f"    v_and_b32 v{BN+j}, 0x3fc, v{BN+j}")
    for j in range(4):
        o(f"    ds_add_rtn_u32 v{RK+j}, v{BN+j}, v2 offset:{K1_LDS_CNT}")
    o("    s_mov_b64 exec, s[18:19]")
    o("    v_and_b32 v70, 63, v0")
    o("    v_lshlrev_b32 v70, 4, v70             ; lane*16")
    o("    s_waitcnt lgkmcnt(0)")
    o("    s_barrier")
    o(f"    ds_read_b128 {vr(C,4)}, v70 offset:{K1_LDS_CNT}")
    o("    s_waitcnt lgkmcnt(0)")
    o(f"    v_add_u32 v64, v{C}, v{C+1}           ; c0+c1")
    o(f"    v_add_u32 v65, v64, v{C+2}            ; +c2")
    o(f"    v_add_u32 v66, v65, v{C+3}            ; total")
    o("    v_mov_b32 v67, v66")
    o("    s_nop 1")
    for sh in (1, 2, 4, 8):
        o(f"    v_add_u32_dpp v67, v67, v67 row_shr:{sh} row_mask:0xf bank_mask:0xf bound_ctrl:0")
        o("    s_nop 1")
    o("    v_add_u32_dpp v67, v67, v67 row_bcast:15 row_mask:0xa bank_mask:0xf")
    o("    s_nop 1")
    o("    v_add_u32_dpp v67, v67, v67 row_bcast:31 row_mask:0xc bank_mask:0xf")
    o("    s_nop 1")
    o("    v_sub_u32 v60, v67, v66               ; exclusive")
    o(f"    v_add_u32 v61, v60, v{C}")
    o("    v_add_u32 v62, v60, v64")
    o("    v_add_u32 v63, v60, v65")
    o(f"    ds_write_b128 v70, v[60:63] offset:{K1_LDS_START}")
    o("    s_cmp_lg_u32 s50, 1")
    o("    s_cbranch_scc1 K1_NOTAB")
    for j in range(4):
        o(f"    v_lshl_or_b32 v{72+j}, v{C+j}, 16, v{60+j}")
    o("    s_lshl_b32 s52, s2, 10")
    o(f"    s_add_u32 s52, s52, {WS_TAB}")
    o("    buffer_store_dwordx4 v[72:75], v70, s[44:47], s52 offen")
    L("K1_NOTAB")
    o("    s_mov_b64 exec, s[60:61]")
    for j in range(4):
        o(f"    ds_read_b32 v{ST+j}, v{BN+j} offset:{K1_LDS_START}")
    o("    s_mov_b32 s62, 0x05040100")
    o("    s_mov_b32 s63, 0x05040302")
    o("    s_waitcnt vmcnt(0)")
    o(f"    v_alignbit_b32 v{T}, v{RA+2}, v{RA+1}, 16")
    o(f"    v_perm_b32 v{T+1}, v{S+1}, v{RA+2}, s63")
    o(f"    v_perm_b32 v{RA+1}, v{S}, v{RA+1}, s62")
    o(f"    v_alignbit_b32 v{T+2}, v{RB+2}, v{RB+1}, 16")
    o(f"    v_perm_b32 v{T+3}, v{S+3}, v{RB+2}, s63")
    o(f"    v_perm_b32 v{RB+1}, v{S+2}, v{RB+1}, s62")
    o("    s_waitcnt lgkmcnt(0)")
    for j in range(4):
        o(f"    v_add_u32 v{ST+j}, v{ST+j}, v{RK+j}     ; pos")
    for j in range(4):
        o(f"    v_lshlrev_b32 v{RK+j}, 4, v{ST+j}")
        o(f"    v_add_u32 v{RK+j}, {K1_LDS_REC}, v{RK+j}")
    yp = [RA, T, RB, T + 2]
    for j in range(4):
        o(f"    ds_write2_b64 v{RK+j}, {vr(EA+2*j,2)}, {vr(yp[j],2)} offset0:0 offset1:1")
        o(f"    ds_write_b8 v{ST+j}, v{D+j} offset:{K1_LDS_KEY}")
    o("    s_mov_b64 exec, s[18:19]")
    o("    v_lshlrev_b32 v70, 4, v0              ; tid*16")
    o("    s_waitcnt lgkmcnt(0)")
    o("    s_barrier")
    for r in range(4):
        o(f"    ds_read_b128 {vr(4+4*r,4)}, v70 offset:{K1_LDS_REC + r*10240}")
    o(f"    ds_read_b32 v20, v1 offset:{K1_LDS_KEY}")
    for r in range(1, 4):
        o(f"    v_add_u32 v{70+r}, {r*10240}, v70")
    for r in range(4):
        o(f"    s_waitcnt lgkmcnt({4-r})")
        o(f"    buffer_store_dwordx4 {vr(4+4*r,4)}, v{70+r}, s[36:39], 0 offen")
    o("    s_waitcnt lgkmcnt(0)")
    o("    buffer_store_dword v20, v1, s[40:43], 0 offen")
    L("K1_END")
    o("    s_endpgm")

def gen_k2():
    Lr, F, ACC, Q = 0, 64, 96, 160
    A, AM, LTHI, LTLO, VO, W = 200, 204, 208, 212, 216, 224
    vA, vO, vN16, vMask, vW, vEnds, t0, t1 = 240, 241, 242, 243, 244, 245, 246, 247
    vP, vVal, vLen, vTid = 248, 249, 250, 251
    sX, sWS, sOUT, sWR = 20, 24, 28, 32
    sN0, sNN, sWave, sM, sR0 = 36, 37, 38, 39, 40
    sPermLo, sPermHi = 41, 42
    sBrem, sBase, sSeg, sK, sLo, sHi, sRel, sFirst = 43, 44, 45, 46, 47, 48, 49, 50
    sSeg0, sK0, sLo0, sHi0, sRel0 = 51, 52, 53, 54, 55
    sT, sT2, sT3 = 56, 57, 58
    sMr = 59
    sEx = 60
    sSave = 72
    sHiMask = 74

    o(".globl tp_main_kernel")
    o(".p2align 8")
    o(".type tp_main_kernel,@function")
    L("tp_main_kernel")
    o(f"    s_cmp_ge_u32 s2, {NWG}")
    o("    s_cbranch_scc1 K2_END")
    o("    s_load_dwordx2 s[4:5], s[0:1], 0      ; x")
    o("    s_load_dwordx2 s[6:7], s[0:1], 40     ; w_rad")
    o("    s_load_dwordx2 s[8:9], s[0:1], 72     ; out")
    o("    s_load_dwordx2 s[10:11], s[0:1], 88   ; ws")
    o(f"    v_mov_b32 v{vTid}, v0")
    o("    v_lshrrev_b32 v1, 6, v0")
    o("    v_and_b32 v2, 63, v0                  ; lane")
    o(f"    v_readfirstlane_b32 s{sWave}, v1")
    o("    v_lshrrev_b32 v3, 4, v2               ; g")
    o("    v_and_b32 v4, 15, v0                  ; n")
    o(f"    s_lshl_b32 s{sT}, s2, 16")
    o(f"    s_add_u32 s{sT}, s{sT}, {BINM-1}")
    o(f"    s_mul_hi_u32 s{sN0}, s{sT}, 0x27144e")
    o(f"    s_add_u32 s{sT}, s{sT}, 0x10000")
    o(f"    s_mul_hi_u32 s{sT}, s{sT}, 0x27144e")
    o(f"    s_min_u32 s{sT}, s{sT}, {N}")
    o(f"    s_sub_u32 s{sNN}, s{sT}, s{sN0}")
    o(f"    s_mov_b32 s{sPermLo}, 0x05040100")
    o(f"    s_mov_b32 s{sPermHi}, 0x07060302")
    o(f"    s_mov_b32 s{sHiMask}, 0xffff0000")
    o("    v_lshrrev_b32 v5, 1, v0")
    o("    v_lshlrev_b32 v6, 10, v5")
    o(f"    s_lshl_b32 s{sT}, s2, 2")
    o(f"    s_add_u32 s{sT}, s{sT}, {WS_TAB}")
    o(f"    s_lshr_b32 s{sT2}, s{sWave}, 2")
    o(f"    s_lshl_b32 s{sT2}, s{sT2}, 1          ; 2h")
    o("    v_lshrrev_b32 v7, 3, v4")
    o("    v_lshl_add_u32 v7, v3, 2, v7")
    o(f"    v_add_u32 v7, s{sT2}, v7              ; idx 0..15")
    o("    v_mov_b32 v8, 0xC4123330")
    o("    v_mov_b32 v9, 0x1C4241C2")
    o("    v_cmp_lt_u32 vcc, 7, v7")
    o("    v_and_b32 v7, 7, v7")
    o("    v_lshlrev_b32 v7, 2, v7")
    o("    v_cndmask_b32 v8, v8, v9, vcc")
    o("    v_lshrrev_b32 v8, v7, v8")
    o("    v_and_b32 v9, 7, v8                   ; path")
    o("    v_lshlrev_b32 v10, 28, v8")
    o("    v_and_b32 v10, 0x80000000, v10")
    o("    v_and_b32 v11, 7, v4")
    o("    v_lshlrev_b32 v11, 4, v11             ; 8*(n&7)*2 bytes")
    o("    v_lshl_add_u32 v11, v9, 7, v11        ; + path*128")
    o(f"    s_and_b32 s{sT3}, s{sWave}, 3")
    o(f"    s_mul_i32 s{sT2}, s{sT3}, 640")
    o("    s_waitcnt lgkmcnt(0)")
    srd(sWS, 10, 11, WS_END)
    o(f"    buffer_load_dword v12, v6, {sr(sWS,4)}, s{sT} offen")
    srd(sWR, 6, 7, 2560)
    o(f"    buffer_load_dwordx4 v[16:19], v11, {sr(sWR,4)}, s{sT2} offen")
    srd(sX, 4, 5, N * 512)
    o(f"    s_lshl_b32 s{sT}, s{sN0}, 9")
    o(f"    s_add_u32 s{sOUT}, s8, s{sT}")
    o(f"    s_addc_u32 s{sOUT+1}, s9, 0")
    o(f"    s_and_b32 s{sOUT+1}, s{sOUT+1}, 0xffff")
    o(f"    s_lshl_b32 s{sOUT+2}, s{sNN}, 9")
    o(f"    s_mov_b32 s{sOUT+3}, 0x00020000")
    o(f"    v_lshlrev_b32 v{vN16}, 4, v4")
    o(f"    v_lshlrev_b32 v{vMask}, 4, v3")
    o(f"    v_add_u32 v{vMask}, {MASK}, v{vMask}")
    o(f"    v_lshlrev_b32 v{vW}, 4, v2")
    o(f"    v_add_u32 v{vW}, {WRAD}, v{vW}")
    for i in range(40):
        o(f"    v_mov_b32 v{Q+i}, 0")
    o("    v_lshrrev_b32 v20, 2, v0")
    o("    v_and_b32 v21, 3, v0")
    o("    v_sub_u32 v20, v20, v21")
    o("    v_add_u32 v20, 3, v20")
    o("    v_lshrrev_b32 v20, 2, v20             ; c")
    o("    v_mov_b32 v22, 0xffff")
    o(f"    v_mov_b32 v23, s{sHiMask}")
    for p in range(4):
        o(f"    v_cmp_lt_u32 vcc, {2*p}, v20")
        o("    s_nop 1")
        o(f"    v_cndmask_b32 v{24+p}, 0, v22, vcc")
        o(f"    v_cmp_lt_u32 vcc, {2*p+1}, v20")
        o("    s_nop 1")
        o("    v_cndmask_b32 v21, 0, v23, vcc")
        o(f"    v_or_b32 v{24+p}, v{24+p}, v21")
    o("    v_lshlrev_b32 v20, 4, v0")
    o(f"    v_add_u32 v20, {MASK}, v20")
    o("    v_cmp_gt_u32 vcc, 132, v0")
    o(f"    s_and_saveexec_b64 {sr(sSave,2)}, vcc")
    o("    ds_write_b128 v20, v[24:27]")
    o(f"    s_mov_b64 exec, {sr(sSave,2)}")
    o("    v_mov_b32 v20, 0")
    o(f"    v_mov_b32 v21, {MISC}")
    o("    ds_write_b32 v21, v20")
    o("    s_waitcnt vmcnt(0)")
    o(f"    s_lshr_b32 s{sT2}, s{sWave}, 2")
    o(f"    s_lshl_b32 s{sT2}, s{sT2}, 13         ; h*8*1024")
    o(f"    s_lshl_b32 s{sT3}, s{sT3}, 2          ; d*4")
    o(f"    s_add_u32 s{sT2}, s{sT2}, s{sT3}")
    o(f"    v_add_u32 v20, s{sT2}, v{vW}")
    for j in range(8):
        if j % 2 == 0:
            o(f"    v_lshlrev_b32 v21, 16, v{16+j//2}")
        else:
            o(f"    v_and_b32 v21, s{sHiMask}, v{16+j//2}")
        o("    v_xor_b32 v21, v21, v10")
        o(f"    ds_write_b32 v20, v21 offset:{j*1024}")
    o("    v_and_b32 v13, 0xffff, v12            ; start")
    o(f"    v_lshrrev_b32 v{vLen}, 16, v12")
    o(f"    s_movk_i32 s{sT}, {CH}")
    o(f"    v_mad_u32_u24 v{vVal}, v5, s{sT}, v13")
    o("    v_and_b32 v14, 1, v0                  ; par")
    o("    v_cmp_eq_u32 vcc, 0, v14")
    o("    s_nop 1")
    o(f"    v_cndmask_b32 v15, 0, v{vLen}, vcc")
    o("    s_nop 1")
    for sh in (1, 2, 4, 8):
        o(f"    v_add_u32_dpp v15, v15, v15 row_shr:{sh} row_mask:0xf bank_mask:0xf bound_ctrl:0")
        o("    s_nop 1")
    o("    v_add_u32_dpp v15, v15, v15 row_bcast:15 row_mask:0xa bank_mask:0xf")
    o("    s_nop 1")
    o("    v_add_u32_dpp v15, v15, v15 row_bcast:31 row_mask:0xc bank_mask:0xf")
    o("    s_waitcnt lgkmcnt(0)")
    o("    s_barrier")
    o(f"    v_readlane_b32 s{sT}, v15, 63")
    o(f"    v_mov_b32 v21, {MISC}")
    o("    s_nop 0")
    o(f"    v_mov_b32 v20, s{sT}")
    o("    s_mov_b64 exec, 1")
    o("    ds_add_rtn_u32 v22, v21, v20")
    o("    s_waitcnt lgkmcnt(0)")
    o(f"    v_readfirstlane_b32 s{sT}, v22")
    o("    s_mov_b64 exec, -1")
    o(f"    v_sub_u32 v{vP}, v15, v{vLen}")
    o("    s_nop 0")
    o(f"    v_add_u32 v{vP}, s{sT}, v{vP}")
    o(f"    s_mov_b32 s{sR0}, 0")

    L("K2_ROUND")
    o(f"    v_lshlrev_b32 v0, 4, v{vTid}")
    o(f"    v_add_u32 v1, {OFFS}, v0")
    for i in range(4):
        o(f"    v_mov_b32 v{4+i}, 0")
    o("    ds_write_b128 v1, v[4:7]")
    o(f"    v_cmp_gt_u32 vcc, {(SLOTCAP*4-8192)//16}, v{vTid}")
    o(f"    s_and_saveexec_b64 {sr(sSave,2)}, vcc")
    o("    ds_write_b128 v1, v[4:7] offset:8192")
    o(f"    v_cmp_gt_u32 vcc, 32, v{vTid}")
    o("    s_and_b64 exec, exec, vcc")
    o(f"    v_add_u32 v1, {CNT}, v0")
    o("    ds_write_b128 v1, v[4:7]")
    o(f"    s_mov_b64 exec, {sr(sSave,2)}")
    o(f"    v_sub_u32 v8, s{sR0}, v{vP}            ; R0-P")
    o("    v_max_i32 v9, 0, v8                   ; jstart")
    o(f"    v_add_u32 v10, {RC}, v8")
    o(f"    v_min_i32 v10, v10, v{vLen}            ; jend")
    o(f"    v_and_b32 v11, 1, v{vTid}")
    o("    v_add_u32 v9, v9, v11                 ; j")
    o("    v_sub_u32 v12, v9, v8                 ; j + P - R0")
    o("    v_lshlrev_b32 v12, 2, v12")
    o(f"    v_add_u32 v13, v{vVal}, v9             ; value")
    L("K2_EXP")
    o("    v_cmp_lt_i32 vcc, v9, v10")
    o("    s_and_b64 exec, exec, vcc")
    o("    s_cbranch_execz K2_EXPD")
    o("    ds_write_b32 v12, v13")
    o("    v_add_u32 v9, 2, v9")
    o("    v_add_u32 v12, 8, v12")
    o("    v_add_u32 v13, 2, v13")
    o("    s_branch K2_EXP")
    L("K2_EXPD")
    o("    s_mov_b64 exec, -1")
    o("    s_waitcnt lgkmcnt(0)")
    o("    s_barrier")
    o(f"    v_mov_b32 v1, {MISC}")
    o("    ds_read_b32 v2, v1")
    o(f"    v_lshlrev_b32 v0, 2, v{vTid}")
    LI = 8
    for q in range(0, 6, 2):
        o(f"    ds_read2st64_b32 {vr(LI+q,2)}, v0 offset0:{q*8} offset1:{q*8+8}")
    o("    s_waitcnt lgkmcnt(3)")
    o(f"    v_readfirstlane_b32 s{sM}, v2")
    o("    s_nop 3")
    o(f"    s_sub_u32 s{sMr}, s{sM}, s{sR0}")
    o(f"    s_min_u32 s{sMr}, s{sMr}, {RC}")
    R = 16
    KY = 40
    RKK = 46
    SO = 52
    C2 = 64
    TM = 88
    o("    s_waitcnt lgkmcnt(0)")
    o(f"    s_mov_b32 s{sT2}, {WS_KEY}")
    for q in range(6):
        o(f"    v_add_u32 v1, {512*q}, v{vTid}")
        o(f"    v_cmp_gt_u32 vcc, s{sMr}, v1")
        o(f"    s_and_b64 {sr(sEx+2*q,2)}, vcc, -1")
    for q in range(6):
        o(f"    v_lshlrev_b32 v{SO+q}, 4, v{LI+q}")
    for q in range(6):
        o(f"    s_mov_b64 exec, {sr(sEx+2*q,2)}")
        o(f"    s_cbranch_execz K2_LDD")
        o(f"    buffer_load_dwordx4 {vr(R+4*q,4)}, v{SO+q}, {sr(sWS,4)}, 0 offen")
        o(f"    buffer_load_ubyte v{KY+q}, v{LI+q}, {sr(sWS,4)}, s{sT2} offen")
    L("K2_LDD")
    o("    s_mov_b64 exec, -1")
    o("    v_mov_b32 v2, 1")
    if P == 2:
        thr = [5000]
    elif P == 3:
        thr = [3334, 6667]
    else:
        thr = []
    o("    s_waitcnt vmcnt(0)")
    for q in range(6):
        o(f"    s_mov_b64 exec, {sr(sEx+2*q,2)}")
        k = KY + q
        r3 = R + 4 * q + 3
        o(f"    v_subrev_u32 v{k}, s{sN0}, v{k}        ; key-n0")
        o(f"    v_bfe_u32 v{TM}, v{k}, 3, 5            ; k")
        o(f"    v_and_b32 v{k}, 7, v{k}               ; wave")
        o(f"    v_lshlrev_b32 v{k}, 6, v{k}")
        o(f"    v_lshl_add_u32 v{k}, v{TM}, 2, v{k}")
        for th in thr:
            o(f"    v_cmp_le_u32 vcc, {th << 16}, v{r3}")
            o(f"    v_add_u32 v{TM}, 20, v{k}")
            o("    s_nop 0")
            o(f"    v_cndmask_b32 v{k}, v{k}, v{TM}, vcc")
        o(f"    v_add_u32 v{k}, {CNT}, v{k}")
        o(f"    ds_add_rtn_u32 v{RKK+q}, v{k}, v2")
    for q in range(6):
        o(f"    s_mov_b64 exec, {sr(sEx+2*q,2)}")
        r0 = R + 4 * q
        c2 = C2 + 4 * q
        a0, a1, a2, a3, y0, y1, y2, m0, m1 = range(TM, TM + 9)
        o(f"    v_lshrrev_b32 v{SO+q}, 16, v{r0+3}")
        o(f"    v_lshlrev_b32 v{SO+q}, 9, v{SO+q}       ; src*512")
        o(f"    v_lshlrev_b32 v{a0}, 16, v{r0}")
        o(f"    v_and_b32 v{a1}, s{sHiMask}, v{r0}")
        o(f"    v_lshlrev_b32 v{a2}, 16, v{r0+1}")
        o(f"    v_and_b32 v{a3}, s{sHiMask}, v{r0+1}")
        o(f"    v_lshlrev_b32 v{y0}, 16, v{r0+2}")
        o(f"    v_and_b32 v{y1}, s{sHiMask}, v{r0+2}")
        o(f"    v_lshlrev_b32 v{y2}, 16, v{r0+3}")
        dsts = [(r0 + 2, r0 + 3), (c2, c2 + 1), (c2 + 2, c2 + 3)]
        for u, y in enumerate((y0, y1, y2)):
            o(f"    v_mul_f32 v{m0}, v{a0}, v{y}")
            o(f"    v_mul_f32 v{m1}, v{a1}, v{y}")
            o(f"    v_cvt_pk_bf16_f32 v{dsts[u][0]}, v{m0}, v{m1}")
            o(f"    v_mul_f32 v{m0}, v{a2}, v{y}")
            o(f"    v_mul_f32 v{m1}, v{a3}, v{y}")
            o(f"    v_cvt_pk_bf16_f32 v{dsts[u][1]}, v{m0}, v{m1}")
    o("    s_mov_b64 exec, -1")
    o(f"    v_and_b32 v0, 63, v{vTid}")
    o("    v_lshlrev_b32 v1, 2, v0")
    o(f"    v_add_u32 v1, {CNT}, v1")
    o("    s_waitcnt lgkmcnt(0)")
    o("    s_barrier")
    c0, c1, i0, i1, tt0, tt1, e0, e1 = 2, 3, 4, 5, 6, 7, 8, 9
    o(f"    ds_read2st64_b32 v[{c0}:{c1}], v1 offset0:0 offset1:1")
    o("    s_waitcnt lgkmcnt(0)")
    o(f"    v_mov_b32 v{i0}, v{c0}")
    o(f"    v_mov_b32 v{i1}, v{c1}")
    o("    s_nop 0")
    for sh in (1, 2, 4, 8):
        o(f"    v_add_u32_dpp v{i0}, v{i0}, v{i0} row_shr:{sh} row_mask:0xf bank_mask:0xf bound_ctrl:0")
        o(f"    v_add_u32_dpp v{i1}, v{i1}, v{i1} row_shr:{sh} row_mask:0xf bank_mask:0xf bound_ctrl:0")
        o("    s_nop 0")
    o(f"    v_mov_b32_dpp v{tt0}, v{i0} row_newbcast:15 row_mask:0xf bank_mask:0xf")
    o(f"    v_mov_b32_dpp v{tt1}, v{i1} row_newbcast:15 row_mask:0xf bank_mask:0xf")
    o(f"    v_add_u32 v{e0}, 31, v{tt0}")
    o(f"    v_add_u32 v{e1}, 31, v{tt1}")
    o(f"    v_and_b32 v{e0}, 0xffffffe0, v{e0}")
    o(f"    v_and_b32 v{e1}, 0xffffffe0, v{e1}")
    o(f"    v_mov_b32 v10, v{e0}")
    o(f"    v_mov_b32 v11, v{e1}")
    o(f"    v_add_u32_dpp v{e0}, v{e0}, v{e0} row_bcast:15 row_mask:0xa bank_mask:0xf")
    o(f"    v_add_u32_dpp v{e1}, v{e1}, v{e1} row_bcast:15 row_mask:0xa bank_mask:0xf")
    o("    s_nop 0")
    o(f"    v_add_u32_dpp v{e0}, v{e0}, v{e0} row_bcast:31 row_mask:0xc bank_mask:0xf")
    o(f"    v_add_u32_dpp v{e1}, v{e1}, v{e1} row_bcast:31 row_mask:0xc bank_mask:0xf")
    o("    s_nop 0")
    o(f"    v_readlane_b32 s{sT}, v{e0}, 63")
    o("    s_nop 1")
    o(f"    v_add_u32 v{e1}, s{sT}, v{e1}")
    o(f"    v_sub_u32 v12, v{e0}, v{tt0}")
    o(f"    v_sub_u32 v13, v{e1}, v{tt1}")
    o(f"    v_add_u32 v12, v12, v{i0}")
    o(f"    v_add_u32 v13, v13, v{i1}")
    o(f"    v_sub_u32 v14, v12, v{c0}")
    o(f"    v_sub_u32 v15, v13, v{c1}")
    o(f"    ds_write2st64_b32 v1, v14, v15 offset0:2 offset1:3")
    for q in range(6):
        o(f"    s_mov_b64 exec, {sr(sEx+2*q,2)}")
        o(f"    ds_read_b32 v{KY+q}, v{KY+q} offset:512")
    o("    s_mov_b64 exec, -1")
    o(f"    s_cmp_lt_u32 s{sWave}, 4")
    o("    s_cselect_b64 vcc, -1, 0")
    o(f"    v_cndmask_b32 v12, v13, v12, vcc")
    o(f"    v_cndmask_b32 v{e0}, v{e1}, v{e0}, vcc")
    o(f"    v_cndmask_b32 v10, v11, v10, vcc        ; padded")
    o(f"    v_cndmask_b32 v{tt0}, v{tt1}, v{tt0}, vcc   ; total")
    o(f"    s_and_b32 s{sSeg}, s{sWave}, 3")
    o(f"    s_lshl_b32 s{sSeg}, s{sSeg}, 4")
    o("    s_nop 0")
    o(f"    v_readlane_b32 s{sT}, v{e0}, s{sSeg}")
    o(f"    v_readlane_b32 s{sT2}, v10, s{sSeg}")
    o(f"    v_readlane_b32 s{sT3}, v{tt0}, s{sSeg}")
    o("    s_nop 3")
    o(f"    s_sub_u32 s{sT}, s{sT}, s{sT2}")
    o(f"    s_sub_u32 s{sLo}, s{sT2}, s{sT3}        ; pad")
    o(f"    s_lshr_b32 s{sBrem}, s{sT2}, 5")
    o(f"    v_subrev_u32 v{vEnds}, s{sT}, v12")
    o("    v_and_b32 v13, 15, v0")
    o(f"    v_cmp_le_u32 vcc, {5*P}, v13")
    o("    v_mov_b32 v13, 0x7fffffff")
    o("    s_nop 0")
    o(f"    v_cndmask_b32 v{vEnds}, v{vEnds}, v13, vcc")
    o("    v_lshrrev_b32 v13, 4, v0              ; g")
    o("    v_and_b32 v14, 12, v0                 ; 4r")
    o("    v_add_u32 v14, v14, v13")
    o("    v_and_b32 v15, 3, v0")
    o("    v_lshlrev_b32 v15, 3, v15")
    o(f"    v_lshl_add_u32 v{vA}, v14, 5, v15")
    o(f"    s_lshl_b32 s{sT2}, s{sT}, 5")
    o(f"    v_add_u32 v{vA}, s{sT2}, v{vA}")
    o(f"    s_lshl_b32 s{sT2}, s{sT}, 2")
    o(f"    s_add_u32 s{sT2}, s{sT2}, {OFFS}")
    o(f"    v_lshl_add_u32 v{vO}, v13, 5, s{sT2}")
    o("    s_waitcnt lgkmcnt(0)")
    for q in range(6):
        o(f"    s_mov_b64 exec, {sr(sEx+2*q,2)}")
        sl = KY + q
        o(f"    v_add_u32 v{sl}, v{sl}, v{RKK+q}        ; slot")
        o(f"    v_lshlrev_b32 v{TM}, 5, v{sl}")
        o(f"    ds_write_b128 v{TM}, {vr(R+4*q,4)}")
        o(f"    ds_write_b128 v{TM}, {vr(C2+4*q,4)} offset:16")
        o(f"    v_and_b32 v{TM+1}, 3, v{sl}")
        o(f"    v_bfe_u32 v{TM+2}, v{sl}, 2, 3")
        o(f"    v_lshl_add_u32 v{TM+1}, v{TM+1}, 3, v{TM+2}")
        o(f"    v_and_b32 v{TM+2}, 0xffffffe0, v{sl}")
        o(f"    v_add_u32 v{TM+1}, v{TM+1}, v{TM+2}")
        o(f"    v_lshlrev_b32 v{TM+1}, 2, v{TM+1}")
        o(f"    v_add_u32 v{TM+1}, {OFFS}, v{TM+1}")
        o(f"    ds_write_b32 v{TM+1}, v{SO+q}")
    o("    s_mov_b64 exec, -1")
    o("    s_waitcnt lgkmcnt(0)")
    o("    s_barrier")

    o(f"    s_cmp_eq_u32 s{sBrem}, 0")
    o("    s_cbranch_scc1 K2_STREAM_DONE")
    o(f"    ds_read_b128 {vr(VO,4)}, v{vO}")
    o(f"    ds_read_b128 {vr(VO+4,4)}, v{vO} offset:16")
    o(f"    s_mov_b32 s{sBase}, 0")
    o(f"    s_mov_b32 s{sK}, 0")
    o(f"    s_mov_b32 s{sFirst}, 1")
    o(f"    s_lshr_b32 s{sT}, s{sLo}, 2")
    o("    s_waitcnt lgkmcnt(0)")
    for i in range(8):
        o(f"    v_add_u32 v{VO+i}, v{VO+i}, v{vN16}")
    for i in range(8):
        o(f"    s_cmp_gt_u32 s{sT}, {i}")
        o(f"    s_cbranch_scc1 K2_INIT_Z{i}")
        o(f"    buffer_load_dwordx4 {vr(Lr+4*i,4)}, v{VO+i}, {sr(sX,4)}, 0 offen")
        o(f"    buffer_load_dwordx4 {vr(Lr+32+4*i,4)}, v{VO+i}, {sr(sX,4)}, 0 offen offset:256")
        o(f"    s_branch K2_INIT_N{i}")
        L(f"K2_INIT_Z{i}")
        for jj in range(4):
            o(f"    v_mov_b32 v{Lr+4*i+jj}, 0")
            o(f"    v_mov_b32 v{Lr+32+4*i+jj}, 0")
        L(f"K2_INIT_N{i}")
    o("    s_waitcnt vmcnt(0)")

    def mask_reads():
        o(f"    s_lshl_b32 s{sT}, s{sHi}, 6")
        o(f"    s_lshl_b32 s{sT2}, s{sLo}, 6")
        o(f"    v_add_u32 v{t0}, s{sT}, v{vMask}")
        o(f"    v_add_u32 v{t1}, s{sT2}, v{vMask}")
        o(f"    ds_read_b128 {vr(LTHI,4)}, v{t0}")
        o(f"    ds_read_b128 {vr(LTLO,4)}, v{t1}")

    def make_am():
        for p in range(4):
            o(f"    v_bitop3_b32 v{AM+p}, v{A+p}, v{LTHI+p}, v{LTLO+p} bitop3:0x40")
        o("    s_nop 1")

    def mfmas(h, zero):
        for j in range(8):
            acc = vr(ACC + 32 * h + 4 * j, 4)
            o(f"    v_mfma_f32_16x16x32_bf16 {acc}, {vr(AM,4)}, {vr(F+4*j,4)}, {'0' if zero else acc}")

    o(".p2align 3")
    L("K2_LOOP")
    o(f"    ds_read_b128 {vr(VO,4)}, v{vO} offset:128")
    o(f"    ds_read_b128 {vr(VO+4,4)}, v{vO} offset:144")
    o(f"    ds_read_b64_tr_b16 {vr(A,2)}, v{vA}")
    o(f"    ds_read_b64_tr_b16 {vr(A+2,2)}, v{vA} offset:512")
    o(f"    v_readlane_b32 s{sRel}, v{vEnds}, s{sSeg}")
    o(f"    s_mov_b32 s{sSeg0}, s{sSeg}")
    o(f"    s_mov_b32 s{sK0}, s{sK}")
    o(f"    s_mov_b32 s{sLo0}, s{sLo}")
    o("    s_nop 0")
    o(f"    s_sub_u32 s{sRel}, s{sRel}, s{sBase}")
    o(f"    s_min_u32 s{sHi}, s{sRel}, 32")
    o(f"    s_mov_b32 s{sRel0}, s{sRel}")
    o(f"    s_mov_b32 s{sHi0}, s{sHi}")
    mask_reads()
    o("    s_waitcnt lgkmcnt(4)")
    for i in range(8):
        o(f"    v_add_u32 v{VO+i}, v{VO+i}, v{vN16}")
    for h in range(2):
        if h == 1:
            o(f"    s_mov_b32 s{sSeg}, s{sSeg0}")
            o(f"    s_mov_b32 s{sK}, s{sK0}")
            o(f"    s_mov_b32 s{sLo}, s{sLo0}")
            o(f"    s_mov_b32 s{sRel}, s{sRel0}")
            o(f"    s_mov_b32 s{sHi}, s{sHi0}")
            mask_reads()
        o(f"    s_cmp_eq_u32 s{sBrem}, 1")
        if h == 0:
            o("    s_cbranch_scc0 K2_NL")
            o("    s_waitcnt vmcnt(0)")
            L("K2_NL")
        o("    s_waitcnt vmcnt(8)")
        for p in range(4):
            a = Lr + 32 * h + 8 * p
            b = a + 4
            for w in range(4):
                o(f"    v_perm_b32 v{F+4*(2*w)+p}, v{b+w}, v{a+w}, s{sPermLo}")
                o(f"    v_perm_b32 v{F+4*(2*w+1)+p}, v{b+w}, v{a+w}, s{sPermHi}")
            o(f"    s_cbranch_scc1 K2_SK{h}{p}")
            off = " offset:256" if h else ""
            o(f"    buffer_load_dwordx4 {vr(a,4)}, v{VO+2*p}, {sr(sX,4)}, 0 offen{off}")
            o(f"    buffer_load_dwordx4 {vr(b,4)}, v{VO+2*p+1}, {sr(sX,4)}, 0 offen{off}")
            L(f"K2_SK{h}{p}")
        o("    s_waitcnt lgkmcnt(0)")
        make_am()
        o(f"    s_cmp_eq_u32 s{sFirst}, 1")
        o(f"    s_cbranch_scc1 K2_Z{h}")
        mfmas(h, False)
        L(f"K2_CHK{h}")
        o(f"    s_cmp_gt_u32 s{sRel}, 32")
        o(f"    s_cbranch_scc1 K2_DONE{h}")
        o(f"    s_add_u32 s{sSeg}, s{sSeg}, 1")
        o(f"    s_mov_b32 s{sLo}, s{sHi}")
        o(f"    v_readlane_b32 s{sRel}, v{vEnds}, s{sSeg}")
        for j in range(4):
            o(f"    ds_read_b128 {vr(W+4*j,4)}, v{vW} offset:{(h*8+j)*1024}")
        o(f"    s_sub_u32 s{sRel}, s{sRel}, s{sBase}")
        o(f"    s_min_u32 s{sHi}, s{sRel}, 32")
        mask_reads()
        for j in range(8):
            acc = ACC + 32 * h + 4 * j
            wq = W + 4 * (j % 4)
            if j < 4:
                cnt = 5
            else:
                cnt = 7 - j
            o(f"    s_waitcnt lgkmcnt({cnt})")
            o(f"    v_mul_f32 v{acc}, v{wq}, v{acc}")
            for d in range(1, 4):
                o(f"    v_fmac_f32 v{acc}, v{wq+d}, v{acc+d}")
            if j < 4:
                o(f"    ds_read_b128 {vr(wq,4)}, v{vW} offset:{(h*8+j+4)*1024}")
        for k in range(5):
            if k < 4:
                o(f"    s_cmp_lg_u32 s{sK}, {k}")
                o(f"    s_cbranch_scc1 K2_V{h}{k+1}")
            for p in range(4):
                qq = Q + 8 * k + 4 * h + p
                lo = ACC + 32 * h + 8 * p
                hi = lo + 4
                o(f"    v_lshlrev_b32 v{lo+1}, 16, v{qq}")
                o(f"    v_and_b32 v{hi+1}, s{sHiMask}, v{qq}")
                o(f"    v_add_f32 v{lo}, v{lo}, v{lo+1}")
                o(f"    v_add_f32 v{hi}, v{hi}, v{hi+1}")
                o(f"    v_cvt_pk_bf16_f32 v{qq}, v{lo}, v{hi}")
            if k < 4:
                o(f"    s_add_u32 s{sK}, s{sK}, 1")
                o(f"    s_branch K2_VD{h}")
                L(f"K2_V{h}{k+1}")
            else:
                o(f"    s_mov_b32 s{sK}, 0")
        L(f"K2_VD{h}")
        make_am()
        L(f"K2_Z{h}")
        mfmas(h, True)
        o(f"    s_branch K2_CHK{h}")
        L(f"K2_DONE{h}")
    o(f"    s_add_u32 s{sBase}, s{sBase}, 32")
    o(f"    s_mov_b32 s{sLo}, 0")
    o(f"    s_mov_b32 s{sFirst}, 0")
    o(f"    v_add_u32 v{vA}, 1024, v{vA}")
    o(f"    v_add_u32 v{vO}, 128, v{vO}")
    o(f"    s_sub_u32 s{sBrem}, s{sBrem}, 1")
    o(f"    s_cmp_lg_u32 s{sBrem}, 0")
    o("    s_cbranch_scc1 K2_LOOP")
    L("K2_STREAM_DONE")
    o(f"    s_add_u32 s{sR0}, s{sR0}, {RC}")
    o(f"    s_cmp_ge_u32 s{sR0}, s{sM}")
    o("    s_cbranch_scc1 K2_POST")
    o("    s_waitcnt lgkmcnt(0)")
    o("    s_barrier")
    o("    s_branch K2_ROUND")

    L("K2_POST")
    o(f"    v_and_b32 v{t0}, 63, v{vTid}")
    o(f"    v_lshlrev_b32 v{t1}, 4, v{t0}           ; lane*16")
    o(f"    s_cmp_ge_u32 s{sWave}, 4")
    o("    s_cbranch_scc1 K2_NOWF")
    o(f"    s_mul_i32 s{sT}, s{sWave}, 10240")
    o(f"    s_add_u32 s{sT}, s{sT}, {WS_WF}")
    for f in range(10):
        if f == 4 or f == 8:
            o(f"    s_add_u32 s{sT}, s{sT}, 4096")
        o(f"    buffer_load_dwordx4 {vr(4*f,4)}, v{t1}, {sr(sWS,4)}, s{sT} offen offset:{(f%4)*1024}")
    L("K2_NOWF")
    o(f"    v_and_b32 v{A}, 15, v{t0}")
    o(f"    v_xor_b32 v{A}, s{sWave}, v{A}")
    o(f"    v_xor_b32 v{A+1}, 8, v{A}")
    o(f"    v_lshrrev_b32 v{A+2}, 4, v{t0}")
    o(f"    v_lshlrev_b32 v{A+2}, 9, v{A+2}")
    o(f"    s_lshl_b32 s{sT}, s{sWave}, 11")
    o(f"    v_add_u32 v{A+2}, s{sT}, v{A+2}")
    o(f"    v_lshl_add_u32 v{A}, v{A}, 4, v{A+2}")
    o(f"    v_lshl_add_u32 v{A+1}, v{A+1}, 4, v{A+2}")
    o(f"    v_add_u32 v{A+2}, 0x10000, v{A}")
    o("    s_waitcnt lgkmcnt(0)")
    o("    s_barrier")
    for k in range(5):
        for h in range(2):
            if k < 4:
                o(f"    ds_write_b128 v{A+(k&1)}, {vr(Q+8*k+4*h,4)} offset:{k*16384+h*256}")
            else:
                o(f"    ds_write_b128 v{A+2}, {vr(Q+8*k+4*h,4)} offset:{h*256}")
    o(f"    v_and_b32 v{AM}, 15, v{t0}              ; nn")
    o(f"    v_lshrrev_b32 v{AM+1}, 4, v{t0}         ; g'")
    o(f"    v_xor_b32 v{AM+1}, v{AM+1}, v{AM}")
    o(f"    v_lshlrev_b32 v{AM+2}, 11, v{AM}")
    for i, cb in enumerate((0, 4, 8, 12)):
        o(f"    v_xor_b32 v{AM+3}, {cb}, v{AM+1}")
        o(f"    v_lshl_add_u32 v{LTHI+i}, v{AM+3}, 4, v{AM+2}")
    o(f"    s_movk_i32 s{sT}, {OUT_STRIDE}")
    o(f"    v_mul_u32_u24 v{LTLO}, s{sT}, v{AM}")
    o(f"    v_lshrrev_b32 v{AM+1}, 4, v{t0}")
    o(f"    v_lshl_add_u32 v{LTLO}, v{AM+1}, 3, v{LTLO}")
    o(f"    s_lshl_b32 s{sT}, s{sWave}, 5")
    o(f"    s_add_u32 s{sT}, s{sT}, {OUTT}")
    o(f"    v_add_u32 v{LTLO}, s{sT}, v{LTLO}")
    o("    s_waitcnt lgkmcnt(0)")
    o("    s_barrier                             ; B5: Q dumped")
    o(f"    s_cmp_ge_u32 s{sWave}, 4")
    o("    s_cbranch_scc1 K2_NOGEMM")
    o("    s_waitcnt vmcnt(0)")
    pairs = [
        [((0, 0), 0), ((1, 1), 1), ((2, 2), 1), ((3, 3), 1)],
        [((1, 0), 2), ((0, 1), 3), ((2, 3), 4), ((3, 2), 4)],
        [((2, 0), 2), ((0, 2), 3), ((3, 1), 4), ((1, 3), 4)],
        [((3, 0), 2), ((0, 3), 3), ((1, 2), 4), ((2, 1), 4)],
    ]
    BB = [64, 96]
    DD = 128
    o(f"    s_mov_b32 s{sT2}, 0xbfb8aa3b           ; -log2(e)")
    def bread(blk, buf, idx):
        pi, ks = idx // 2, idx % 2
        (u, v), mat = pairs[blk][pi]
        cbi = (v & 1) * 2 + ks
        off = ((4 * u + v) >> 1) * 256
        o(f"    ds_read_b128 {vr(BB[buf]+8*pi+4*ks,4)}, v{LTHI+cbi} offset:{off}")
    for T in range(3):
        if T == 0:
            for idx in range(8):
                bread(0, 0, idx)
        for blk in range(4):
            buf = blk & 1
            last = (blk == 3 and T == 2)
            if blk == 3 and T < 2:
                for i in range(4):
                    o(f"    v_add_u32 v{LTHI+i}, 0x8000, v{LTHI+i}")
            for idx in range(8):
                pi, ks = idx // 2, idx % 2
                (u, v), mat = pairs[blk][pi]
                cnt = (7 - idx) if last else 7
                o(f"    s_waitcnt lgkmcnt({cnt})")
                d = vr(DD + 4 * blk, 4)
                o(f"    v_mfma_f32_16x16x32_bf16 {d}, {vr(4*(2*mat+ks),4)}, {vr(BB[buf]+8*pi+4*ks,4)}, {'0' if idx == 0 else d}")
                if not last:
                    bread((blk + 1) % 4, buf ^ 1, idx)
        G = 144
        for r in range(4):
            o(f"    v_mul_f32 v{G+r}, s{sT2}, v{DD+r}")
        for r in range(4):
            o(f"    v_exp_f32 v{G+r}, v{G+r}")
        for r in range(4):
            o(f"    v_add_f32 v{G+r}, 1.0, v{G+r}")
        for r in range(4):
            o(f"    v_rcp_f32 v{G+r}, v{G+r}")
        o(f"    v_cvt_pk_bf16_f32 v{G+4}, v{DD}, v{DD+1}")
        o(f"    v_cvt_pk_bf16_f32 v{G+5}, v{DD+2}, v{DD+3}")
        for blk in range(1, 4):
            for r in range(4):
                o(f"    v_mul_f32 v{DD+4*blk+r}, v{DD+4*blk+r}, v{G+r}")
            o(f"    v_cvt_pk_bf16_f32 v{G+4+2*blk}, v{DD+4*blk}, v{DD+4*blk+1}")
            o(f"    v_cvt_pk_bf16_f32 v{G+5+2*blk}, v{DD+4*blk+2}, v{DD+4*blk+3}")
        for blk in range(4):
            o(f"    ds_write_b64 v{LTLO}, {vr(G+4+2*blk,2)} offset:{T*16*OUT_STRIDE + blk*128}")
        o("    s_waitcnt lgkmcnt(0)")
    L("K2_NOGEMM")
    o(f"    v_lshrrev_b32 v0, 5, v{vTid}")
    o(f"    v_and_b32 v1, 31, v{vTid}")
    o(f"    s_movk_i32 s{sT}, {OUT_STRIDE}")
    o(f"    v_mul_u32_u24 v2, s{sT}, v0")
    o("    v_lshl_add_u32 v2, v1, 4, v2")
    o(f"    v_add_u32 v2, {OUTT}, v2")
    o(f"    v_lshlrev_b32 v3, 4, v{vTid}")
    o("    s_waitcnt lgkmcnt(0)")
    o("    s_barrier")
    for r in range(3):
        o(f"    ds_read_b128 {vr(4+4*r,4)}, v2 offset:{r*16*OUT_STRIDE}")
    o("    v_add_u32 v16, 8192, v3")
    o("    v_add_u32 v17, 16384, v3")
    for r in range(3):
        if r == 2:
            o(f"    s_cmp_ge_u32 s{sWave}, 4")
            o("    s_cbranch_scc1 K2_END")
        o(f"    s_waitcnt lgkmcnt({2-r})")
        o(f"    buffer_store_dwordx4 {vr(4+4*r,4)}, v{[3,16,17][r]}, {sr(sOUT,4)}, 0 offen")
    L("K2_END")
    o("    s_endpgm")

gen_k1()
gen_k2()

o('.section .rodata,"a"')
def kd(name, vgpr, sgpr):
    o(".p2align 6")
    o(f".amdhsa_kernel {name}")
    o(f"  .amdhsa_next_free_vgpr {vgpr}")
    o(f"  .amdhsa_next_free_sgpr {sgpr}")
    o(f"  .amdhsa_accum_offset {(vgpr+3)//4*4}")
    o("  .amdhsa_group_segment_fixed_size 0")
    o("  .amdhsa_kernarg_size 96")
    o("  .amdhsa_user_sgpr_count 2")
    o("  .amdhsa_user_sgpr_kernarg_segment_ptr 1")
    o("  .amdhsa_system_sgpr_workgroup_id_x 1")
    o("  .amdhsa_float_denorm_mode_32 3")
    o(".end_amdhsa_kernel")
kd("tp_part_kernel", 80, 72)
kd("tp_main_kernel", 256, 80)

open(OUTFILE, "w").write("\n".join(lines) + "\n")
print("wrote", OUTFILE, len(lines), "lines")
```

```python
import sys, os

P = int(sys.argv[1]) if len(sys.argv) > 1 else 2
OUTFILE = sys.argv[2] if len(sys.argv) > 2 else "standalone__tensor_product_equiv_equiformer__graph.s"
STAMP = int(os.environ.get("STAMP", "0"))
K1ST = os.environ.get("K1ST", "")
K1LD2 = os.environ.get("K1LD2", "")
K1LD = os.environ.get("K1LD", "")
EXP = os.environ.get("EXP", "")
VW = int(os.environ.get("VW", "48"))
PRIO = [int(t) for t in os.environ.get("PRIO", "").split(",") if t]
XPF = int(os.environ.get("XPF", "0"))

N = 10000
E = 640000
NWG = 256
CH = 2500
BINM = 1677
PHM = (P << 23) // 10000
WS_REC = 0
WS_KEY = 10240000
WS_TAB = 10880000
WS_T2 = WS_TAB + 256 * 1024
WS_WF = WS_T2 + 256 * 8192
WS_END = WS_WF + 40 * 1024

lines = []
def o(s=""):
    lines.append(s)
def L(s):
    lines.append(s + ":")
def vr(a, n):
    return f"v[{a}:{a+n-1}]"
def sr(a, n):
    return f"s[{a}:{a+n-1}]"
def srd(d, lo, hi, nbytes):
    o(f"    s_mov_b32 s{d}, s{lo}")
    o(f"    s_and_b32 s{d+1}, s{hi}, 0xffff")
    o(f"    s_mov_b32 s{d+2}, {nbytes}")
    o(f"    s_mov_b32 s{d+3}, 0x00020000")

STV = 255
def stamp(i, vreg=STV):
    if STAMP:
        o("    s_memrealtime s[100:101]")
        o("    s_waitcnt lgkmcnt(0)")
        o(f"    v_writelane_b32 v{vreg}, s100, {i}")
def stamp_dump(wsl, wsh, wave_sgpr, nwaves, base, vreg=STV):
    if not STAMP:
        return
    o("    s_waitcnt lgkmcnt(0) vmcnt(0)")
    o("    s_mov_b64 exec, 0xffff")
    o(f"    s_mul_i32 s4, s2, {nwaves}")
    o(f"    s_add_u32 s4, s4, s{wave_sgpr}")
    o("    s_lshl_b32 s4, s4, 6")
    o(f"    s_add_u32 s4, s4, {base}")
    o(f"    s_mov_b32 s8, s{wsl}")
    o(f"    s_and_b32 s9, s{wsh}, 0xffff")
    o("    s_mov_b32 s10, 0x8000000")
    o("    s_mov_b32 s11, 0x00020000")
    o("    v_mbcnt_lo_u32_b32 v0, -1, 0")
    o("    v_lshl_add_u32 v0, v0, 2, s4")
    o(f"    buffer_store_dword v{vreg}, v0, s[8:11], 0 offen")
    o("    s_waitcnt vmcnt(0)")

K1_CNT = 0
K1_START = 1024
K1_KEY = 2048
K1_T2 = 4608
K1_REC = K1_T2 + 8192
K1_LDS = K1_REC + 40960

SLOTCAP = 3072
RAW = 0
RING = RAW + SLOTCAP * 16
RBLK = 1152
ZERO = RING + 8 * 3 * RBLK
MASK = ZERO + 1024
CNT = MASK + 512
BASE = CNT + 512
MISC = BASE + 512
SD = MISC + 64
SDS = 1440
K2_LDS = SD + 48 * SDS
OUTT = RAW
OUT_STRIDE = 528
assert K2_LDS <= 163840, K2_LDS
assert SD % 16 == 0

o(f"; @launch kernel=tp_part_kernel grid=({NWG},1,1) block=(640,1,1) lds={K1_LDS}")
o(f"; @launch kernel=tp_main_kernel grid=({NWG},1,1) block=(512,1,1) lds={K2_LDS}")
o('.amdgcn_target "amdgcn-amd-amdhsa--gfx950"')
o(".text")

def gen_k1():
    SV = 79
    o(".globl tp_part_kernel")
    o(".p2align 8")
    o(".type tp_part_kernel,@function")
    L("tp_part_kernel")
    o(f"    s_cmp_ge_u32 s2, {NWG}")
    o("    s_cbranch_scc1 K1_END")
    stamp(0, SV)
    o("    s_load_dwordx4 s[4:7], s[0:1], 8")
    o("    s_load_dwordx4 s[8:11], s[0:1], 24")
    o("    s_load_dwordx4 s[12:15], s[0:1], 48")
    o("    s_load_dwordx2 s[16:17], s[0:1], 88   ; ws")
    o("    s_load_dwordx2 s[64:65], s[0:1], 0    ; x")
    D, S, EA, RA, RB = 4, 8, 12, 20, 24
    BN, RK, ST = 28, 32, 36
    T = 40
    WFR = 48
    C = 56
    o("    v_lshlrev_b32 v1, 2, v0               ; tid*4")
    o("    v_mov_b32 v2, 0")
    o("    v_cmp_gt_u32 vcc, 256, v0")
    o("    s_and_saveexec_b64 s[18:19], vcc")
    o(f"    ds_write_b32 v1, v2 offset:{K1_CNT}")
    o("    s_mov_b64 exec, s[18:19]")
    o(f"    s_mul_i32 s3, s2, {CH}")
    o("    v_add_u32 v2, s3, v1")
    o("    v_lshlrev_b32 v3, 2, v2")
    o(f"    v_lshlrev_b32 v{T}, 3, v2")
    o(f"    v_mul_u32_u24 v{T+1}, 6, v2")
    o("    v_lshrrev_b32 v70, 6, v0")
    o("    s_nop 0")
    o("    v_readfirstlane_b32 s50, v70")
    o("    s_waitcnt lgkmcnt(0)")
    stamp(1, SV)
    srd(20, 10, 11, E * 4)
    srd(24, 8, 9, E * 4)
    o(f"    buffer_load_dwordx4 {vr(D,4)}, v3, s[20:23], 0 offen {K1LD}")
    o(f"    buffer_load_dwordx4 {vr(S,4)}, v3, s[24:27], 0 offen {K1LD}")
    srd(28, 6, 7, E * 8)
    srd(32, 4, 5, E * 6)
    o(f"    buffer_load_dwordx4 {vr(EA,4)}, v{T}, s[28:31], 0 offen {K1LD2}")
    o(f"    buffer_load_dwordx4 {vr(EA+4,4)}, v{T}, s[28:31], 0 offen offset:16 {K1LD2}")
    o(f"    buffer_load_dwordx3 {vr(RA,3)}, v{T+1}, s[32:35], 0 offen {K1LD2}")
    o(f"    buffer_load_dwordx3 {vr(RB,3)}, v{T+1}, s[32:35], 0 offen offset:12 {K1LD2}")
    nextra = 0
    if XPF:
        srd(68, 64, 65, N * 512)
        o(f"    s_mul_i32 s66, s2, 20000")
        o("    v_lshlrev_b32 v71, 5, v0")
        o("    v_add_u32 v71, s66, v71")
        o("    buffer_load_dwordx2 v[76:77], v71, s[68:71], 0 offen")
        nextra = 1
    o(f"    s_mul_i32 s36, s2, {CH*16}")
    o("    s_add_u32 s36, s16, s36")
    o("    s_addc_u32 s37, s17, 0")
    o("    s_and_b32 s37, s37, 0xffff")
    o(f"    s_mov_b32 s38, {CH*16}")
    o("    s_mov_b32 s39, 0x00020000")
    o(f"    s_add_u32 s40, s3, {WS_KEY}")
    o("    s_add_u32 s40, s16, s40")
    o("    s_addc_u32 s41, s17, 0")
    o("    s_and_b32 s41, s41, 0xffff")
    o(f"    s_mov_b32 s42, {CH}")
    o("    s_mov_b32 s43, 0x00020000")
    srd(44, 16, 17, WS_END)
    o("    s_mul_i32 s51, s2, 26")
    o("    s_lshr_b32 s51, s51, 8                ; t")
    o("    s_mul_i32 s52, s51, 10")
    o("    s_sub_u32 s52, s2, s52                ; q")
    o("    s_cmp_lt_u32 s52, 4")
    o("    s_cselect_b32 s56, s12, s14")
    o("    s_cselect_b32 s57, s13, s15")
    o("    s_movk_i32 s58, 16384")
    o("    s_cselect_b32 s58, s58, 24576")
    o("    s_and_b32 s57, s57, 0xffff")
    o("    s_mov_b32 s59, 0x00020000")
    o("    s_cmp_lt_u32 s2, 40")
    o("    s_cselect_b32 s54, 1, 0")
    o("    s_cmp_eq_u32 s50, 0")
    o("    s_cselect_b32 s54, s54, 0")
    o("    s_cmp_eq_u32 s54, 0")
    o("    s_cbranch_scc1 K1_NOFRAG")
    o("    v_lshrrev_b32 v70, 4, v0              ; g'")
    o("    v_and_b32 v71, 15, v0")
    o("    v_lshlrev_b32 v71, 1, v71")
    o("    s_lshl_b32 s53, s51, 5")
    o("    v_add_u32 v71, s53, v71               ; (16t+m)*2")
    o("    s_cmp_ge_u32 s52, 8")
    o("    s_cbranch_scc1 K1_FRAGX")
    o("    s_and_b32 s53, s52, 1")
    o("    s_lshl_b32 s53, s53, 5")
    o("    s_bfe_u32 s55, s52, 0x10001           ; (q>>1)&1")
    o("    s_add_u32 s53, s53, s55")
    o("    s_lshl_b32 s53, s53, 7")
    o("    v_lshl_add_u32 v71, v70, 10, v71")
    o("    v_add_u32 v71, s53, v71")
    o("    v_add_u32 v72, 8192, v71")
    for i in range(8):
        o(f"    buffer_load_ushort v{WFR+i}, v{71+(i&1)}, s[56:59], 0 offen offset:{(i>>1)*256}")
    o("    s_branch K1_FRAGW")
    L("K1_FRAGX")
    o("    s_and_b32 s53, s52, 1")
    o("    s_add_u32 s53, s53, 128")
    o("    s_lshl_b32 s53, s53, 7")
    o("    v_lshl_add_u32 v71, v70, 11, v71")
    o("    v_add_u32 v71, s53, v71")
    for i in range(8):
        o(f"    buffer_load_ushort v{WFR+i}, v71, s[56:59], 0 offen offset:{i*256}")
    L("K1_FRAGW")
    o("    s_waitcnt vmcnt(0)")
    for p in range(4):
        o(f"    v_lshl_or_b32 v{WFR+p}, v{WFR+2*p+1}, 16, v{WFR+2*p}")
    o("    s_lshl_b32 s52, s2, 10")
    o(f"    s_add_u32 s52, s52, {WS_WF}")
    o("    v_lshlrev_b32 v70, 4, v0")
    o(f"    buffer_store_dwordx4 {vr(WFR,4)}, v70, s[44:47], s52 offen")
    L("K1_NOFRAG")
    o("    s_waitcnt lgkmcnt(0)")
    o("    s_barrier")
    o(f"    v_cmp_gt_u32 vcc, {CH//4}, v0")
    o("    s_and_saveexec_b64 s[18:19], vcc")
    o("    s_mov_b64 s[60:61], exec")
    o("    v_mov_b32 v2, 1")
    o(f"    s_waitcnt vmcnt({5+nextra})")
    stamp(2, SV)
    for j in range(4):
        o(f"    v_mul_u32_u24 v{D+j}, {BINM}, v{D+j}")
    for j in range(4):
        o(f"    v_lshrrev_b32 v{BN+j}, 14, v{D+j}")
    for j in range(4):
        o(f"    v_and_b32 v{BN+j}, 0x3fc, v{BN+j}")
    for j in range(4):
        o(f"    ds_add_rtn_u32 v{RK+j}, v{BN+j}, v2 offset:{K1_CNT}")
    for j in range(4):
        o(f"    v_and_b32 v{D+j}, 0xffff, v{D+j}")
        o(f"    v_mul_u32_u24 v{D+j}, 40018, v{D+j}")
        o(f"    v_bfe_u32 v{ST+j}, v{D+j}, 26, 3       ; local&7")
        o(f"    v_lshrrev_b32 v{D+j}, 29, v{D+j}       ; local>>3")
        o(f"    v_lshl_add_u32 v{D+j}, v{ST+j}, 4, v{D+j}")
    if P > 1:
        o(f"    s_waitcnt vmcnt({4+nextra})")
        for j in range(4):
            o(f"    v_mul_u32_u24 v{ST+j}, {PHM}, v{S+j}")
            o(f"    v_lshrrev_b32 v{ST+j}, 23, v{ST+j}")
            o(f"    v_mad_u32_u24 v{D+j}, v{ST+j}, 5, v{D+j}")
    o("    s_waitcnt lgkmcnt(0)")
    for j in range(4):
        o(f"    v_and_b32 v{ST+j}, 15, v{RK+j}")
        o(f"    v_bfe_u32 v64, v{RK+j}, 4, 1")
        o(f"    v_lshl_add_u32 v{ST+j}, v{ST+j}, 1, v64")
        o(f"    v_lshl_add_u32 v{ST+j}, v{BN+j}, 3, v{ST+j}")
        o(f"    ds_write_b8 v{ST+j}, v{D+j} offset:{K1_T2}")
    o("    s_mov_b64 exec, s[18:19]")
    o("    v_and_b32 v70, 63, v0")
    o("    v_lshlrev_b32 v70, 4, v70             ; lane*16")
    o("    v_lshlrev_b32 v71, 4, v0              ; tid*16")
    o("    s_waitcnt lgkmcnt(0)")
    o("    s_barrier")
    stamp(3, SV)
    o(f"    ds_read_b128 {vr(C,4)}, v70 offset:{K1_CNT}")
    o(f"    ds_read_b128 {vr(WFR,4)}, v71 offset:{K1_T2}")
    o("    s_waitcnt lgkmcnt(1)")
    o(f"    v_add_u32 v64, v{C}, v{C+1}")
    o(f"    v_add_u32 v65, v64, v{C+2}")
    o(f"    v_add_u32 v66, v65, v{C+3}")
    o("    v_mov_b32 v67, v66")
    o("    s_nop 1")
    for sh in (1, 2, 4, 8):
        o(f"    v_add_u32_dpp v67, v67, v67 row_shr:{sh} row_mask:0xf bank_mask:0xf bound_ctrl:0")
        o("    s_nop 1")
    o("    v_add_u32_dpp v67, v67, v67 row_bcast:15 row_mask:0xa bank_mask:0xf")
    o("    s_nop 1")
    o("    v_add_u32_dpp v67, v67, v67 row_bcast:31 row_mask:0xc bank_mask:0xf")
    o("    s_nop 1")
    o("    v_sub_u32 v60, v67, v66")
    o(f"    v_add_u32 v61, v60, v{C}")
    o("    v_add_u32 v62, v60, v64")
    o("    v_add_u32 v63, v60, v65")
    o(f"    ds_write_b128 v70, v[60:63] offset:{K1_START}")
    o("    s_cmp_lt_u32 s50, 8")
    o("    s_cbranch_scc1 K1_T2OUT")
    o("    s_cmp_lg_u32 s50, 8")
    o("    s_cbranch_scc1 K1_NOTAB")
    for j in range(4):
        o(f"    v_lshl_or_b32 v{72+j}, v{C+j}, 16, v{60+j}")
    o("    s_lshl_b32 s52, s2, 10")
    o(f"    s_add_u32 s52, s52, {WS_TAB}")
    o(f"    buffer_store_dwordx4 v[72:75], v70, s[44:47], s52 offen {K1ST}")
    o("    s_branch K1_NOTAB")
    L("K1_T2OUT")
    o("    s_lshl_b32 s52, s2, 13")
    o(f"    s_add_u32 s52, s52, {WS_T2}")
    o("    s_waitcnt lgkmcnt(1)")
    o(f"    buffer_store_dwordx4 {vr(WFR,4)}, v71, s[44:47], s52 offen {K1ST}")
    L("K1_NOTAB")
    o("    s_mov_b64 exec, s[60:61]")
    for j in range(4):
        o(f"    ds_read_b32 v{ST+j}, v{BN+j} offset:{K1_START}")
    o("    s_mov_b32 s62, 0x05040100")
    o("    s_mov_b32 s63, 0x05040302")
    o("    s_waitcnt vmcnt(0)")
    stamp(4, SV)
    o(f"    v_alignbit_b32 v{T}, v{RA+2}, v{RA+1}, 16")
    o(f"    v_perm_b32 v{T+1}, v{S+1}, v{RA+2}, s63")
    o(f"    v_perm_b32 v{RA+1}, v{S}, v{RA+1}, s62")
    o(f"    v_alignbit_b32 v{T+2}, v{RB+2}, v{RB+1}, 16")
    o(f"    v_perm_b32 v{T+3}, v{S+3}, v{RB+2}, s63")
    o(f"    v_perm_b32 v{RB+1}, v{S+2}, v{RB+1}, s62")
    o("    s_waitcnt lgkmcnt(0)")
    for j in range(4):
        o(f"    v_add_u32 v{ST+j}, v{ST+j}, v{RK+j}     ; pos")
    for j in range(4):
        o(f"    v_lshlrev_b32 v{RK+j}, 4, v{ST+j}")
        o(f"    v_add_u32 v{RK+j}, {K1_REC}, v{RK+j}")
    yp = [RA, T, RB, T + 2]
    for j in range(4):
        o(f"    ds_write2_b64 v{RK+j}, {vr(EA+2*j,2)}, {vr(yp[j],2)} offset0:0 offset1:1")
        o(f"    ds_write_b8 v{ST+j}, v{D+j} offset:{K1_KEY}")
    o("    s_mov_b64 exec, s[18:19]")
    for r in range(1, 4):
        o(f"    v_add_u32 v{71+r}, {r*10240}, v71")
    o("    s_waitcnt lgkmcnt(0)")
    o("    s_barrier")
    stamp(5, SV)
    for r in range(4):
        o(f"    ds_read_b128 {vr(4+4*r,4)}, v71 offset:{K1_REC + r*10240}")
    o(f"    ds_read_b32 v20, v1 offset:{K1_KEY}")
    for r in range(4):
        o(f"    s_waitcnt lgkmcnt({4-r})")
        o(f"    buffer_store_dwordx4 {vr(4+4*r,4)}, v{71+r}, s[36:39], 0 offen {K1ST}")
    o("    s_waitcnt lgkmcnt(0)")
    o("    buffer_store_dword v20, v1, s[40:43], 0 offen")
    stamp(6, SV)
    if STAMP:
        o("    s_waitcnt vmcnt(0)")
    stamp(7, SV)
    stamp_dump(16, 17, 50, 10, 64 << 20, SV)
    L("K1_END")
    o("    s_endpgm")

def gen_k2():
    B, ACC, S, W = 0, 64, 128, 183
    A = [204, 208]
    AM, LTHI, LTLO = 212, 216, 220
    VO = [224, 228]
    RR = 232
    CO = AM
    CT = LTHI
    vAbase, vSel, vVbase, vRaw, vCw, vVw, vN4, vMask, vEnds, vAcur, vVr, vPar, t0, t1, vLane = range(236, 251)
    sX, sWS, sOUT, sWR = 12, 16, 20, 24
    sBin, sNN, sWave, sMode, sJlo, sMax = 28, 29, 30, 31, 32, 33
    sNs, sGen, sCnt, sSeg, sK, sLo, sHi, sRel, sRet, sRem = range(34, 44)
    sR0, sR1, sR2 = 44, 45, 46
    sT, sT2, sT3 = 47, 48, 49
    sSave = 50
    sAny2 = 52
    sM1 = 56
    sM2 = 72

    def accr(v, u, d):
        cc = 2 * (d >> 1) + (u >> 1)
        e = 2 * (u & 1) + (d & 1)
        return ACC + 16 * v + 4 * cc + e
    def wreg(p, d):
        return W + 4 * p + d

    o(".globl tp_main_kernel")
    o(".p2align 8")
    o(".type tp_main_kernel,@function")
    L("tp_main_kernel")
    o(f"    s_cmp_ge_u32 s2, {NWG}")
    o("    s_cbranch_scc1 K2_END")
    stamp(0)
    o("    s_load_dwordx2 s[4:5], s[0:1], 0      ; x")
    o("    s_load_dwordx2 s[6:7], s[0:1], 40     ; w_rad")
    o("    s_load_dwordx2 s[8:9], s[0:1], 72     ; out")
    o("    s_load_dwordx2 s[10:11], s[0:1], 88   ; ws")
    o("    v_lshrrev_b32 v1, 6, v0")
    o(f"    v_and_b32 v{vLane}, 63, v0")
    o(f"    v_readfirstlane_b32 s{sWave}, v1")
    o(f"    s_and_b32 s{sBin}, s2, 7")
    o(f"    s_lshl_b32 s{sBin}, s{sBin}, 5")
    o(f"    s_lshr_b32 s{sT}, s2, 3")
    o(f"    s_add_u32 s{sBin}, s{sBin}, s{sT}")
    HD, KY, RK1, RK2, AD1, AD2, RO, TM = 64, 72, 80, 88, 96, 104, 112, 120
    vW0, vJ = 126, 127
    def lane_prep():
        o(f"    v_lshrrev_b32 v{vW0}, 4, v{vLane}")
        o(f"    s_lshl_b32 s{sT}, s{sWave}, 5")
        o(f"    v_add_u32 v{vW0}, s{sT}, v{vW0}")
        o(f"    v_and_b32 v{vJ}, 15, v{vLane}")
        o(f"    v_lshlrev_b32 v{TM}, 10, v{vW0}")
    def hdr_loads():
        o(f"    s_lshl_b32 s{sT}, s{sBin}, 2")
        o(f"    s_add_u32 s{sT}, s{sT}, {WS_TAB}")
        for i in range(8):
            o(f"    buffer_load_dword v{HD+i}, v{TM}, {sr(sWS,4)}, s{sT} offen")
            if i < 7:
                o(f"    s_add_u32 s{sT}, s{sT}, 4096")
    lane_prep()
    o(f"    v_lshlrev_b32 v{TM+1}, 13, v{vW0}")
    o(f"    v_lshl_add_u32 v{TM+1}, v{vJ}, 1, v{TM+1}")
    o(f"    v_and_b32 v{TM+2}, 31, v{vLane}")
    o(f"    v_lshlrev_b32 v{vN4}, 2, v{TM+2}")
    o(f"    v_lshrrev_b32 v{TM+3}, 5, v{vLane}      ; g = l>>5")
    o(f"    v_lshl_add_u32 v{TM+2}, v{TM+3}, 1, v{vN4}   ; c*2")
    o("    s_waitcnt lgkmcnt(0)")
    stamp(1)
    srd(sWS, 10, 11, WS_END)
    hdr_loads()
    o(f"    s_lshl_b32 s{sT}, s{sBin}, 5")
    o(f"    s_add_u32 s{sT}, s{sT}, {WS_T2}")
    for i in range(8):
        o(f"    buffer_load_ushort v{KY+i}, v{TM+1}, {sr(sWS,4)}, s{sT} offen")
        if i < 7:
            o(f"    s_add_u32 s{sT}, s{sT}, 32768")
    srd(sWR, 6, 7, 2560)
    for p in range(5):
        for d in range(4):
            o(f"    buffer_load_ushort v{wreg(p,d)}, v{TM+2}, {sr(sWR,4)}, 0 offen offset:{d*640+p*128}")
    srd(sX, 4, 5, N * 512)
    o(f"    s_lshl_b32 s{sT}, s{sBin}, 16")
    o(f"    s_add_u32 s{sT}, s{sT}, {BINM-1}")
    o(f"    s_mul_hi_u32 s{sT2}, s{sT}, 0x27144e     ; n0")
    o(f"    s_add_u32 s{sT}, s{sT}, 0x10000")
    o(f"    s_mul_hi_u32 s{sT}, s{sT}, 0x27144e")
    o(f"    s_min_u32 s{sT}, s{sT}, {N}")
    o(f"    s_sub_u32 s{sNN}, s{sT}, s{sT2}")
    o(f"    s_lshl_b32 s{sT}, s{sT2}, 9")
    o(f"    s_add_u32 s{sOUT}, s8, s{sT}")
    o(f"    s_addc_u32 s{sOUT+1}, s9, 0")
    o(f"    s_and_b32 s{sOUT+1}, s{sOUT+1}, 0xffff")
    o(f"    s_lshl_b32 s{sOUT+2}, s{sNN}, 9")
    o(f"    s_mov_b32 s{sOUT+3}, 0x00020000")
    o(f"    s_mov_b32 s{sMode}, 0")
    o(f"    s_mov_b32 s{sJlo}, 0")
    nz = (SD - ZERO) // 4
    o("    v_mov_b32 v2, 0")
    o("    v_lshlrev_b32 v3, 2, v0")
    o(f"    v_add_u32 v3, {ZERO}, v3")
    o("    v_subrev_u32 v4, 256, v0")
    o("    v_lshrrev_b32 v5, 3, v4")
    o("    v_bfe_u32 v6, v4, 2, 1")
    o("    v_and_b32 v7, 3, v4")
    o("    v_lshl_add_u32 v6, v7, 1, v6          ; 2r+g")
    o("    v_cmp_lt_u32 s[50:51], v6, v5")
    o("    v_cmp_gt_u32 vcc, 128, v4")
    o("    s_nop 1")
    o("    s_and_b64 vcc, vcc, s[50:51]")
    o("    s_nop 1")
    o("    v_cndmask_b32 v2, 0, -1, vcc")
    o("    ds_write_b32 v3, v2")
    o("    v_mov_b32 v2, 0")
    o(f"    v_mov_b32 v3, {MISC}")
    o("    ds_write_b32 v3, v2")
    for i in range(55):
        o(f"    v_mov_b32 v{S+i}, 0")
    o(f"    s_mul_i32 s{sT}, s{sWave}, {3*RBLK}")
    o(f"    s_add_u32 s{sT}, s{sT}, {RING}")
    o(f"    v_bfe_u32 v2, v{vLane}, 3, 1             ; rho>>1")
    o(f"    v_lshl_add_u32 v2, v2, 1, v{TM+3}        ; 2(rho>>1)+g")
    o(f"    v_bfe_u32 v3, v{vLane}, 1, 1             ; c>>1")
    o(f"    v_bfe_u32 v4, v{vLane}, 4, 1             ; q&1")
    o("    v_lshl_add_u32 v3, v4, 1, v3          ; cc")
    o("    v_lshlrev_b32 v3, 3, v3")
    o("    v_lshl_add_u32 v2, v2, 5, v3")
    o(f"    v_add_u32 v2, s{sT}, v2")
    o(f"    v_bfe_u32 v3, v{vLane}, 2, 1             ; rho&1")
    o(f"    v_and_b32 v4, 1, v{vLane}                ; s / parity")
    o("    v_cmp_eq_u32 vcc, v3, v4")
    o(f"    v_mov_b32 v5, {ZERO}")
    o(f"    v_sub_u32 v{vPar}, 0, v4                 ; 0 or ~0")
    o(f"    v_cndmask_b32 v{vAbase}, v5, v2, vcc")
    o(f"    v_cndmask_b32 v{vSel}, 0, 1, vcc")
    o(f"    s_add_u32 s{sT2}, s{sT}, 1024")
    o(f"    v_lshl_add_u32 v{vVbase}, v{TM+3}, 4, s{sT2}")
    o(f"    v_lshl_add_u32 v{vCw}, v{vLane}, 4, s{sT}")
    o(f"    v_lshrrev_b32 v2, 4, v{vLane}")
    o(f"    v_bfe_u32 v3, v{vLane}, 1, 1             ; g = sigma&1")
    o(f"    v_bfe_u32 v4, v{vLane}, 2, 2             ; r = (sigma>>1)&3")
    o("    v_lshl_add_u32 v3, v2, 1, v3")
    o("    v_lshl_add_u32 v3, v3, 2, v4")
    o(f"    v_lshl_add_u32 v{vVw}, v3, 2, s{sT2}")
    o(f"    v_lshlrev_b32 v{vMask}, 4, v{TM+3}")
    o(f"    v_add_u32 v{vMask}, {MASK}, v{vMask}")
    o("    s_waitcnt lgkmcnt(0)")
    o("    s_barrier")
    o("    s_waitcnt vmcnt(20)")
    stamp(2)
    o(f"    v_add_u32 v{TM+1}, 16, v{vJ}")
    o(f"    s_movk_i32 s{sT}, {CH}")
    o(f"    v_mad_u32_u24 v{TM+2}, v{vW0}, s{sT}, v{vJ}   ; w0*2500 + j")
    o(f"    v_mov_b32 v{TM+4}, 0")
    for i in range(8):
        o(f"    v_lshrrev_b32 v{TM}, 16, v{HD+i}         ; len")
        o(f"    v_and_b32 v{RO+i}, 0xffff, v{HD+i}")
        o(f"    v_cmp_lt_u32 {sr(sM1+2*i,2)}, v{vJ}, v{TM}")
        o(f"    v_cmp_lt_u32 {sr(sM2+2*i,2)}, v{TM+1}, v{TM}")
        o(f"    v_add_u32 v{RO+i}, v{RO+i}, v{TM+2}")
        o(f"    v_max_u32 v{TM+4}, v{TM+4}, v{TM}")
        o(f"    v_lshlrev_b32 v{RO+i}, 4, v{RO+i}")
        o(f"    s_mov_b64 exec, {sr(sM1+2*i,2)}")
        o(f"    s_cbranch_execz K2_NR{i}")
        o(f"    s_mov_b32 s{sT}, {i*4*CH*16}")
        o(f"    buffer_load_dwordx4 {vr(4*i,4)}, v{RO+i}, {sr(sWS,4)}, s{sT} offen")
        L(f"K2_NR{i}")
        o("    s_mov_b64 exec, -1")
    o(f"    s_or_b64 {sr(sAny2,2)}, {sr(sM2,2)}, {sr(sM2+2,2)}")
    for i in range(2, 8):
        o(f"    s_or_b64 {sr(sAny2,2)}, {sr(sAny2,2)}, {sr(sM2+2*i,2)}")
    o("    s_cbranch_scc0 K2_NO2A")
    for i in range(8):
        o(f"    s_mov_b64 exec, {sr(sM2+2*i,2)}")
        o(f"    s_cbranch_execz K2_NR2{i}")
        o(f"    s_mov_b32 s{sT}, {i*4*CH*16}")
        o(f"    buffer_load_dwordx4 {vr(32+4*i,4)}, v{RO+i}, {sr(sWS,4)}, s{sT} offen offset:256")
        L(f"K2_NR2{i}")
    o("    s_mov_b64 exec, -1")
    L("K2_NO2A")
    o(f"    v_mov_b32 v{TM}, {MISC}")
    o(f"    v_cmp_eq_u32 vcc, 0, v{vJ}")
    o("    s_mov_b64 exec, vcc")
    o(f"    ds_max_u32 v{TM}, v{TM+4}")
    o("    s_mov_b64 exec, -1")
    L("K2_RANK")
    o(f"    v_mov_b32 v{TM}, 1")
    for i in range(8):
        o(f"    v_and_b32 v{AD1+i}, 0x7f, v{KY+i}")
        o(f"    v_lshlrev_b32 v{AD1+i}, 2, v{AD1+i}")
        o(f"    v_add_u32 v{AD1+i}, {CNT}, v{AD1+i}")
    for i in range(8):
        o(f"    s_mov_b64 exec, {sr(sM1+2*i,2)}")
        o(f"    ds_add_rtn_u32 v{RK1+i}, v{AD1+i}, v{TM}")
    o(f"    s_cmp_eq_u64 {sr(sAny2,2)}, 0")
    o("    s_cbranch_scc1 K2_NO2B")
    o("    s_waitcnt lgkmcnt(4)")
    for i in range(8):
        o(f"    s_mov_b64 exec, {sr(sM2+2*i,2)}")
        o(f"    v_bfe_u32 v{AD2+i}, v{KY+i}, 8, 7")
        o(f"    v_lshlrev_b32 v{AD2+i}, 2, v{AD2+i}")
        o(f"    v_add_u32 v{AD2+i}, {CNT}, v{AD2+i}")
        o(f"    ds_add_rtn_u32 v{RK2+i}, v{AD2+i}, v{TM}")
    L("K2_NO2B")
    o("    s_mov_b64 exec, -1")
    c0, c1, i0, i1, tt0, tt1, e0, e1, p0, p1, a0, a1, b0, b1, ad, mx = range(204, 220)
    o(f"    v_lshlrev_b32 v{ad}, 2, v{vLane}")
    o(f"    v_add_u32 v{ad}, {CNT}, v{ad}")
    o(f"    v_mov_b32 v{mx}, {MISC}")
    o("    s_waitcnt lgkmcnt(0)")
    o("    s_barrier")
    stamp(3)
    o(f"    ds_read2st64_b32 v[{c0}:{c1}], v{ad} offset0:0 offset1:1")
    o(f"    ds_read_b32 v{mx}, v{mx}")
    o("    s_waitcnt lgkmcnt(0)")
    o(f"    v_mov_b32 v{i0}, v{c0}")
    o(f"    v_mov_b32 v{i1}, v{c1}")
    o(f"    v_readfirstlane_b32 s{sMax}, v{mx}")
    for sh in (1, 2, 4, 8):
        o(f"    v_add_u32_dpp v{i0}, v{i0}, v{i0} row_shr:{sh} row_mask:0xf bank_mask:0xf bound_ctrl:0")
        o(f"    v_add_u32_dpp v{i1}, v{i1}, v{i1} row_shr:{sh} row_mask:0xf bank_mask:0xf bound_ctrl:0")
        o("    s_nop 0")
    o(f"    v_mov_b32_dpp v{tt0}, v{i0} row_newbcast:15 row_mask:0xf bank_mask:0xf")
    o(f"    v_mov_b32_dpp v{tt1}, v{i1} row_newbcast:15 row_mask:0xf bank_mask:0xf")
    o(f"    v_add_u32 v{e0}, 7, v{tt0}")
    o(f"    v_add_u32 v{e1}, 7, v{tt1}")
    o(f"    v_and_b32 v{e0}, -8, v{e0}")
    o(f"    v_and_b32 v{e1}, -8, v{e1}")
    o(f"    v_mov_b32 v{p0}, v{e0}")
    o(f"    v_mov_b32 v{p1}, v{e1}")
    o(f"    v_add_u32_dpp v{e0}, v{e0}, v{e0} row_bcast:15 row_mask:0xa bank_mask:0xf")
    o(f"    v_add_u32_dpp v{e1}, v{e1}, v{e1} row_bcast:15 row_mask:0xa bank_mask:0xf")
    o("    s_nop 0")
    o(f"    v_add_u32_dpp v{e0}, v{e0}, v{e0} row_bcast:31 row_mask:0xc bank_mask:0xf")
    o(f"    v_add_u32_dpp v{e1}, v{e1}, v{e1} row_bcast:31 row_mask:0xc bank_mask:0xf")
    o("    s_nop 0")
    o(f"    v_readlane_b32 s{sT}, v{e0}, 63")
    o(f"    v_readlane_b32 s{sT2}, v{e1}, 63")
    o(f"    v_sub_u32 v{a0}, v{e0}, v{tt0}")
    o(f"    v_add_u32 v{e1}, s{sT}, v{e1}")
    o(f"    v_add_u32 v{a0}, v{a0}, v{i0}")
    o(f"    v_sub_u32 v{a1}, v{e1}, v{tt1}")
    o(f"    v_add_u32 v{a1}, v{a1}, v{i1}")
    o(f"    v_sub_u32 v{b0}, v{a0}, v{c0}")
    o(f"    v_sub_u32 v{b1}, v{a1}, v{c1}")
    o(f"    ds_write2st64_b32 v{ad}, v{b0}, v{b1} offset0:2 offset1:3")
    o(f"    s_add_u32 s{sT}, s{sT}, s{sT2}")
    o(f"    s_cmp_gt_u32 s{sT}, {SLOTCAP-96}")
    o(f"    s_cselect_b32 s{sT}, 1, 0")
    o(f"    s_cmp_gt_u32 s{sMax}, 32")
    o(f"    s_cselect_b32 s{sT}, 1, s{sT}")
    o(f"    s_cmp_gt_u32 s{sT}, s{sMode}")
    o("    s_cbranch_scc1 K2_GOSLOW")
    for i in range(8):
        o(f"    ds_read_b32 v{AD1+i}, v{AD1+i} offset:512")
    o(f"    s_cmp_eq_u64 {sr(sAny2,2)}, 0")
    o("    s_cbranch_scc1 K2_NO2C")
    o("    s_waitcnt lgkmcnt(4)")
    for i in range(8):
        o(f"    s_mov_b64 exec, {sr(sM2+2*i,2)}")
        o(f"    ds_read_b32 v{AD2+i}, v{AD2+i} offset:512")
    o("    s_mov_b64 exec, -1")
    L("K2_NO2C")
    o(f"    s_cmp_lt_u32 s{sWave}, 4")
    o("    s_cselect_b64 vcc, -1, 0")
    o(f"    v_cndmask_b32 v{a0}, v{a1}, v{a0}, vcc")
    o(f"    v_cndmask_b32 v{e0}, v{e1}, v{e0}, vcc")
    o(f"    v_cndmask_b32 v{p0}, v{p1}, v{p0}, vcc")
    o(f"    v_cndmask_b32 v{tt0}, v{tt1}, v{tt0}, vcc")
    o(f"    s_and_b32 s{sSeg}, s{sWave}, 3")
    o(f"    s_lshl_b32 s{sSeg}, s{sSeg}, 4")
    o("    s_nop 0")
    o(f"    v_readlane_b32 s{sT}, v{e0}, s{sSeg}")
    o(f"    v_readlane_b32 s{sT2}, v{p0}, s{sSeg}")
    o(f"    v_readlane_b32 s{sT3}, v{tt0}, s{sSeg}")
    o(f"    v_and_b32 v{b0}, 15, v{vLane}")
    o(f"    v_cmp_le_u32 vcc, {5*P}, v{b0}")
    o(f"    v_mov_b32 v{b0}, 0x7fffffff")
    o(f"    s_sub_u32 s{sT}, s{sT}, s{sT2}")
    o(f"    s_sub_u32 s{sLo}, s{sT2}, s{sT3}         ; pad")
    o(f"    s_lshr_b32 s{sNs}, s{sT2}, 3")
    o(f"    v_subrev_u32 v{vEnds}, s{sT}, v{a0}")
    o(f"    v_cndmask_b32 v{vEnds}, v{vEnds}, v{b0}, vcc")
    o(f"    v_lshrrev_b32 v{vRaw}, 1, v{vLane}")
    o(f"    v_add_u32 v{vRaw}, s{sT}, v{vRaw}")
    o(f"    v_lshlrev_b32 v{vRaw}, 4, v{vRaw}")
    if RAW:
        o(f"    v_add_u32 v{vRaw}, {RAW}, v{vRaw}")
    o("    s_waitcnt lgkmcnt(0)")
    for i in range(8):
        o(f"    v_add_lshl_u32 v{AD1+i}, v{AD1+i}, v{RK1+i}, 4")
    o("    s_waitcnt vmcnt(0)")
    stamp(4)
    for i in range(8):
        o(f"    s_mov_b64 exec, {sr(sM1+2*i,2)}")
        o(f"    ds_write_b128 v{AD1+i}, {vr(4*i,4)} offset:{RAW}")
    o(f"    s_cmp_eq_u64 {sr(sAny2,2)}, 0")
    o("    s_cbranch_scc1 K2_NO2D")
    for i in range(8):
        o(f"    s_mov_b64 exec, {sr(sM2+2*i,2)}")
        o(f"    v_add_lshl_u32 v{AD2+i}, v{AD2+i}, v{RK2+i}, 4")
        o(f"    ds_write_b128 v{AD2+i}, {vr(32+4*i,4)} offset:{RAW}")
    L("K2_NO2D")
    o("    s_mov_b64 exec, -1")
    o(f"    s_cmp_lg_u32 s{sJlo}, 0")
    o("    s_cbranch_scc1 K2_WDONE")
    for i in range(20):
        o(f"    v_lshlrev_b32 v{W+i}, 16, v{W+i}")
    L("K2_WDONE")
    o("    s_waitcnt lgkmcnt(0)")
    o("    s_barrier")
    stamp(5)
    if STAMP:
        o("    s_memtime s[100:101]")
        o("    s_waitcnt lgkmcnt(0)")
        o(f"    v_writelane_b32 v{STV}, s100, 12")
    if "prio" in EXP:
        o(f"    s_cmp_lt_u32 s{sWave}, 4")
        o("    s_cbranch_scc1 K2_NOPRIO")
        o("    s_setprio 1")
        L("K2_NOPRIO")

    def convert(ringoff_sgpr, rr=RR):
        a0_, a1_, y0, y1, y2, m0, m1, vo = range(CT, CT + 8)
        o(f"    v_bitop3_b32 v{CO}, v{vPar}, v{rr+1}, v{rr} bitop3:0xca")
        o(f"    v_lshlrev_b32 v{y0}, 16, v{rr+2}")
        o(f"    v_lshlrev_b32 v{a0_}, 16, v{CO}")
        o(f"    v_and_b32 v{a1_}, 0xffff0000, v{CO}")
        o(f"    v_and_b32 v{y1}, 0xffff0000, v{rr+2}")
        o(f"    v_lshlrev_b32 v{y2}, 16, v{rr+3}")
        for u, y in enumerate((y0, y1, y2)):
            o(f"    v_mul_f32 v{m0}, v{a0_}, v{y}")
            o(f"    v_mul_f32 v{m1}, v{a1_}, v{y}")
            o(f"    v_cvt_pk_bf16_f32 v{CO+1+u}, v{m0}, v{m1}")
        o(f"    v_lshrrev_b32 v{vo}, 7, v{rr+3}")
        o(f"    v_and_b32 v{vo}, 0x1fffe00, v{vo}")
        o(f"    v_add_u32 v{m0}, s{ringoff_sgpr}, v{vCw}")
        o(f"    v_add_u32 v{m1}, s{ringoff_sgpr}, v{vVw}")
        o(f"    ds_write_b128 v{m0}, {vr(CO,4)}")
        o(f"    ds_write_b32 v{m1}, v{vo}")

    def loads(x, vo):
        order = [(v, r) for r in range(4) for v in range(4)] if "rowmajor" in EXP else [(v, r) for v in range(4) for r in range(4)]
        for v, r in order:
                o(f"    buffer_load_dword v{B+16*x+4*v+r}, v{vo+r}, {sr(sX,4)}, 0 offen offset:{v*128}")

    def mfmas(x, areg, zero):
        for v in range(4):
            acc = vr(ACC + 16 * v, 16)
            if "nomfma" not in EXP:
                o(f"    v_mfma_f32_32x32x16_bf16 {acc}, {vr(areg,4)}, {vr(B+16*x+4*v,4)}, {'0' if zero else acc}")

    def mask_reads(both):
        o(f"    s_lshl_b32 s{sT}, s{sHi}, 5")
        o(f"    v_add_u32 v{t0}, s{sT}, v{vMask}")
        o(f"    ds_read_b128 {vr(LTHI,4)}, v{t0}")
        if both:
            o(f"    s_lshl_b32 s{sT2}, s{sLo}, 5")
            o(f"    v_add_u32 v{t1}, s{sT2}, v{vMask}")
            o(f"    ds_read_b128 {vr(LTLO,4)}, v{t1}")

    o(f"    s_cmp_eq_u32 s{sNs}, 0")
    o("    s_cbranch_scc1 K2_STREAM_DONE")
    o(f"    ds_read_b128 {vr(RR,4)}, v{vRaw}")
    o(f"    ds_read_b128 {vr(A[0],4)}, v{vRaw} offset:512")
    if PRIO:
        o("    s_setprio 3")
    o(f"    s_mov_b32 s{sR0}, 0")
    o(f"    s_mov_b32 s{sR1}, {RBLK}")
    o(f"    s_mov_b32 s{sR2}, {2*RBLK}")
    o(f"    s_mov_b32 s{sK}, 0")
    o("    s_waitcnt lgkmcnt(1)")
    convert(sR0)
    for x in range(4):
        o(f"    ds_read_b128 {vr(ACC+4*x,4)}, v{vVbase} offset:{x*32}")
    o("    s_waitcnt lgkmcnt(6)")
    convert(sR1, A[0])
    o(f"    v_add_u32 v{vRaw}, 1024, v{vRaw}         ; -> block 2")
    o("    s_waitcnt lgkmcnt(2)")
    for i in range(16):
        o(f"    v_add_u32 v{ACC+i}, v{ACC+i}, v{vN4}")
    for x in range(4):
        if x:
            o(f"    s_cmp_le_u32 s{sNs}, {x}")
            o("    s_cbranch_scc1 K2_INITD")
        loads(x, ACC + 4 * x)
    L("K2_INITD")
    o(f"    v_mov_b32 v{vAcur}, v{vAbase}")
    o(f"    v_add_u32 v{vVr}, s{sR1}, v{vVbase}")
    o(f"    ds_read_b64_tr_b16 {vr(A[0],2)}, v{vAcur}")
    o(f"    ds_read_b64_tr_b16 {vr(A[0]+2,2)}, v{vAcur} offset:128")
    o(f"    ds_read_b128 {vr(VO[0],4)}, v{vVr}")
    o(f"    s_mov_b32 s{sGen}, 0")
    o(f"    s_mov_b32 s{sCnt}, 0")
    o(f"    s_mov_b32 s{sRet}, 4")

    o(".p2align 3")
    L("K2_LOOP")
    for x in range(4):
        a_cur, a_nxt = A[x & 1], A[(x + 1) & 1]
        v_cur, v_nxt = VO[x & 1], VO[(x + 1) & 1]
        if x == 3:
            o(f"    v_mad_u32_u24 v{vAcur}, v{vSel}, s{sR1}, v{vAbase}")
            o(f"    v_add_u32 v{vVr}, s{sR2}, v{vVbase}")
        nx = (x + 1) & 3
        o(f"    ds_read_b64_tr_b16 {vr(a_nxt,2)}, v{vAcur} offset:{nx*256}")
        o(f"    ds_read_b64_tr_b16 {vr(a_nxt+2,2)}, v{vAcur} offset:{nx*256+128}")
        o(f"    ds_read_b128 {vr(v_nxt,4)}, v{vVr} offset:{nx*32}")
        o(f"    s_sub_u32 s{sCnt}, s{sCnt}, 1")
        o("    s_waitcnt lgkmcnt(3)")
        for r in range(4):
            o(f"    v_add_u32 v{v_cur+r}, v{v_cur+r}, v{vN4}")
        o(f"    s_cbranch_scc1 K2_GEN{x}")
        o(f"    s_waitcnt vmcnt({VW})")
        if "rowmajor" in EXP:
            for v in range(4):
                acc = vr(ACC + 16 * v, 16)
                if "nomfma" not in EXP:
                    o(f"    v_mfma_f32_32x32x16_bf16 {acc}, {vr(a_cur,4)}, {vr(B+16*x+4*v,4)}, {acc}")
            loads(x, v_cur)
        else:
          for v in range(4):
            acc = vr(ACC + 16 * v, 16)
            if "nomfma" not in EXP:
                o(f"    v_mfma_f32_32x32x16_bf16 {acc}, {vr(a_cur,4)}, {vr(B+16*x+4*v,4)}, {acc}")
            for r in range(4):
                o(f"    buffer_load_dword v{B+16*x+4*v+r}, v{v_cur+r}, {sr(sX,4)}, 0 offen offset:{v*128}")
        L(f"K2_NEXT{x}")
        if x == 0:
            o(f"    ds_read_b128 {vr(RR,4)}, v{vRaw}")
            o(f"    v_add_u32 v{vRaw}, 512, v{vRaw}")
        if x == 1:
            convert(sR2)
        if x == 3:
            o(f"    s_mov_b32 s{sT}, s{sR0}")
            o(f"    s_mov_b32 s{sR0}, s{sR1}")
            o(f"    s_mov_b32 s{sR1}, s{sR2}")
            o(f"    s_mov_b32 s{sR2}, s{sT}")
            o("    s_branch K2_LOOP")

    for x in range(4):
        a_cur = A[x & 1]
        v_cur = VO[x & 1]
        L(f"K2_GEN{x}")
        o(f"    v_readlane_b32 s{sRel}, v{vEnds}, s{sSeg}")
        o(f"    s_sub_u32 s{sRem}, s{sNs}, s{sGen}")
        o(f"    s_lshl_b32 s{sT3}, s{sGen}, 3")
        o(f"    s_cmp_ge_u32 s{sRem}, 4")
        o(f"    s_cbranch_scc1 K2_GW{x}")
        o("    s_waitcnt vmcnt(0)")
        L(f"K2_GW{x}")
        o(f"    s_sub_u32 s{sRel}, s{sRel}, s{sT3}")
        o(f"    s_min_u32 s{sHi}, s{sRel}, 8")
        if x == 0:
            o(f"    s_cmp_eq_u32 s{sRet}, 4")
            o("    s_cbranch_scc0 K2_NF0")
            mask_reads(True)
            o(f"    s_waitcnt vmcnt({VW})")
            o("    s_branch K2_POST0")
            L("K2_NF0")
        o(f"    s_cmp_gt_u32 s{sRel}, 7")
        o(f"    s_cbranch_scc0 K2_GM{x}")
        o(f"    s_waitcnt vmcnt({VW})")
        mfmas(x, a_cur, False)
        o(f"    s_branch K2_CHK{x}")
        L(f"K2_GM{x}")
        mask_reads(False)
        o(f"    s_waitcnt vmcnt({VW}) lgkmcnt(0)")
        for r in range(4):
            o(f"    v_and_b32 v{AM+r}, v{a_cur+r}, v{LTHI+r}")
        o("    s_nop 1")
        mfmas(x, AM, False)
        L(f"K2_EP{x}")
        o(f"    s_mov_b32 s{sRet}, {x}")
        o("    s_branch K2_EPI")
        L(f"K2_POST{x}")
        o("    s_waitcnt lgkmcnt(0)")
        for r in range(4):
            o(f"    v_bitop3_b32 v{AM+r}, v{a_cur+r}, v{LTHI+r}, v{LTLO+r} bitop3:0x40")
        o(f"    s_mov_b32 s{sRet}, {x}")
        o("    s_nop 0")
        mfmas(x, AM, True)
        L(f"K2_CHK{x}")
        o(f"    s_cmp_le_u32 s{sRel}, 8")
        o(f"    s_cbranch_scc1 K2_EP{x}")
        o(f"    s_cmp_le_u32 s{sRem}, 4")
        o(f"    s_cbranch_scc1 K2_NL{x}")
        loads(x, v_cur)
        L(f"K2_NL{x}")
        o(f"    s_cmp_eq_u32 s{sRem}, 1")
        o("    s_cbranch_scc1 K2_STREAM_DONE")
        o(f"    s_sub_u32 s{sT}, s{sRel}, 1")
        o(f"    s_lshr_b32 s{sT}, s{sT}, 3")
        o(f"    s_sub_i32 s{sT2}, s{sRem}, 4")
        o(f"    s_max_i32 s{sT2}, s{sT2}, 1")
        o(f"    s_min_u32 s{sT}, s{sT}, s{sT2}")
        o(f"    s_add_u32 s{sGen}, s{sGen}, s{sT}")
        o(f"    s_sub_u32 s{sCnt}, s{sT}, 1")
        o(f"    s_branch K2_NEXT{x}")

    L("K2_EPI")
    o(f"    s_add_u32 s{sSeg}, s{sSeg}, 1")
    if PRIO:
        o(f"    s_and_b32 s{sT}, s{sSeg}, 15")
        for lvl, th in zip((2, 1, 0), PRIO):
            o(f"    s_cmp_lg_u32 s{sT}, {th}")
            o(f"    s_cbranch_scc1 K2_PR{lvl}")
            o(f"    s_setprio {lvl}")
            L(f"K2_PR{lvl}")
    o(f"    s_mov_b32 s{sLo}, s{sHi}")
    o(f"    v_readlane_b32 s{sRel}, v{vEnds}, s{sSeg}")
    o("    s_nop 3")
    o(f"    s_sub_u32 s{sRel}, s{sRel}, s{sT3}")
    o(f"    s_min_u32 s{sHi}, s{sRel}, 8")
    mask_reads(True)
    o("    s_nop 3")
    terms = []
    terms.append((0, 0, 0, 0, 1))
    for j in range(3):
        terms.append((2 + j, 2, 0, j + 1, 1))
    cross = {(2, 3): (0, 1), (3, 2): (0, -1), (3, 1): (1, 1), (1, 3): (1, -1), (1, 2): (2, 1), (2, 1): (2, -1)}
    for v in range(1, 4):
        terms.append((5 + v - 1, 3, v, 0, 1))
        for u in range(1, 4):
            if u == v:
                terms.append((1, 1, v, u, 1))
            else:
                i, sg = cross[(u, v)]
                terms.append((8 + i, 4, v, u, sg))
    for k in range(5):
        if k < 4:
            o(f"    s_cmp_lg_u32 s{sK}, {k}")
            o(f"    s_cbranch_scc1 K2_V{k+1}")
        for v in range(4):
            tv = [t for t in terms if t[2] == v]
            for d in range(4):
                for (si, p, v_, u, sg) in tv:
                    sreg = S + 11 * k + si
                    if "noepi" in EXP:
                        continue
                    if sg > 0:
                        o(f"    v_fmac_f32 v{sreg}, v{wreg(p,d)}, v{accr(v,u,d)}")
                    else:
                        o(f"    v_fma_f32 v{sreg}, -v{wreg(p,d)}, v{accr(v,u,d)}, v{sreg}")
        if k < 4:
            o(f"    s_add_u32 s{sK}, s{sK}, 1")
            o("    s_branch K2_VD")
            L(f"K2_V{k+1}")
        else:
            o(f"    s_mov_b32 s{sK}, 0")
    L("K2_VD")
    for x in range(3):
        o(f"    s_cmp_eq_u32 s{sRet}, {x}")
        o(f"    s_cbranch_scc1 K2_POST{x}")
    o("    s_branch K2_POST3")

    L("K2_GOSLOW")
    o(f"    s_mov_b32 s{sMode}, 1")
    o("    s_waitcnt vmcnt(0)")
    L("K2_SLOW_ROUND")
    o("    s_waitcnt lgkmcnt(0)")
    o("    s_barrier")
    o(f"    v_lshlrev_b32 v2, 2, v{vLane}")
    o(f"    v_add_u32 v2, {CNT}, v2")
    o("    v_mov_b32 v3, 0")
    o("    ds_write2st64_b32 v2, v3, v3 offset0:0 offset1:1")
    lane_prep()
    hdr_loads()
    o("    s_waitcnt lgkmcnt(0)")
    o("    s_barrier")
    o(f"    v_add_u32 v{TM+1}, s{sJlo}, v{vJ}")
    o(f"    s_movk_i32 s{sT}, {CH}")
    o(f"    v_mad_u32_u24 v{TM+2}, v{vW0}, s{sT}, v{TM+1}")
    o(f"    v_cmp_gt_u32 {sr(sSave,2)}, 8, v{vJ}")
    o(f"    s_mov_b64 {sr(sAny2,2)}, 0")
    o("    s_waitcnt vmcnt(0)")
    for i in range(8):
        o(f"    v_lshrrev_b32 v{TM}, 16, v{HD+i}")
        o(f"    v_and_b32 v{AD2+i}, 0xffff, v{HD+i}")
        o(f"    v_cmp_lt_u32 vcc, v{TM+1}, v{TM}")
        o(f"    v_add_u32 v{AD2+i}, v{AD2+i}, v{TM+2}")
        o(f"    v_lshlrev_b32 v{RO+i}, 4, v{AD2+i}")
        o(f"    v_mov_b32 v{KY+i}, 0")
        o(f"    s_and_b64 {sr(sM1+2*i,2)}, vcc, {sr(sSave,2)}")
        o(f"    s_mov_b64 exec, {sr(sM1+2*i,2)}")
        o(f"    s_cbranch_execz K2_SR{i}")
        o(f"    s_mov_b32 s{sT}, {i*4*CH*16}")
        o(f"    s_mov_b32 s{sT2}, {WS_KEY + i*4*CH}")
        o(f"    buffer_load_dwordx4 {vr(4*i,4)}, v{RO+i}, {sr(sWS,4)}, s{sT} offen")
        o(f"    buffer_load_ubyte v{KY+i}, v{AD2+i}, {sr(sWS,4)}, s{sT2} offen")
        L(f"K2_SR{i}")
        o("    s_mov_b64 exec, -1")
    o("    s_waitcnt vmcnt(0)")
    o("    s_branch K2_RANK")

    L("K2_STREAM_DONE")
    o(f"    s_cmp_eq_u32 s{sMode}, 0")
    o("    s_cbranch_scc1 K2_POSTG")
    o(f"    s_add_u32 s{sJlo}, s{sJlo}, 8")
    o(f"    s_cmp_lt_u32 s{sJlo}, s{sMax}")
    o("    s_cbranch_scc1 K2_SLOW_ROUND")

    L("K2_POSTG")
    stamp(6)
    if STAMP:
        o("    s_memtime s[100:101]")
        o("    s_waitcnt lgkmcnt(0)")
        o(f"    v_writelane_b32 v{STV}, s100, 13")
    o(f"    v_lshlrev_b32 v{t1}, 4, v{vLane}")
    o(f"    s_cmp_ge_u32 s{sWave}, 4")
    o("    s_cbranch_scc1 K2_NOWF")
    o(f"    s_mul_i32 s{sT}, s{sWave}, 10240")
    o(f"    s_add_u32 s{sT}, s{sT}, {WS_WF}")
    for f in range(10):
        if f == 4 or f == 8:
            o(f"    s_add_u32 s{sT}, s{sT}, 4096")
        o(f"    buffer_load_dwordx4 {vr(4*f,4)}, v{t1}, {sr(sWS,4)}, s{sT} offen offset:{(f%4)*1024}")
    L("K2_NOWF")
    o(f"    s_mul_i32 s{sT}, s{sWave}, {SDS}")
    o(f"    s_add_u32 s{sT}, s{sT}, {SD}")
    o(f"    v_lshl_add_u32 v{A[0]}, v{vLane}, 2, s{sT}")
    o(f"    s_add_u32 s{sT}, s{sT}, 1024")
    o(f"    v_lshl_add_u32 v{A[0]+1}, v{vLane}, 1, s{sT}")
    assert (8 * SDS) % 256 == 0
    ku = 8 * SDS // 256
    for k in range(5):
        s_ = S + 11 * k
        tq = 208 + 6 * (k & 1)
        o(f"    v_cvt_pk_bf16_f32 v{tq}, v{s_}, v{s_+1}")
        for j in range(3):
            o(f"    v_cvt_pk_bf16_f32 v{tq+1+j}, v{s_+2+j}, v{s_+5+j}")
        o(f"    v_cvt_pk_bf16_f32 v{tq+4}, v{s_+8}, v{s_+9}")
        o(f"    v_cvt_pk_bf16_f32 v{tq+5}, v{s_+10}, v{s_+10}")
        o(f"    ds_write2st64_b32 v{A[0]}, v{tq}, v{tq+1} offset0:{k*ku} offset1:{k*ku+1}")
        o(f"    ds_write2st64_b32 v{A[0]}, v{tq+2}, v{tq+3} offset0:{k*ku+2} offset1:{k*ku+3}")
        o(f"    ds_write_b16 v{A[0]+1}, v{tq+4} offset:{k*8*SDS}")
        o(f"    ds_write_b16_d16_hi v{A[0]+1}, v{tq+4} offset:{k*8*SDS+128}")
        o(f"    ds_write_b16 v{A[0]+1}, v{tq+5} offset:{k*8*SDS+256}")
    vB_, vOt = 224, 225
    o(f"    v_and_b32 v{t0}, 15, v{vLane}")
    o(f"    v_lshrrev_b32 v{t1}, 4, v{vLane}")
    o(f"    v_mul_u32_u24 v{vB_}, {SDS}, v{t0}")
    o(f"    v_lshl_add_u32 v{vB_}, v{t1}, 4, v{vB_}")
    o(f"    v_add_u32 v{vB_}, {SD}, v{vB_}")
    o(f"    v_mul_u32_u24 v{vOt}, {OUT_STRIDE}, v{t0}")
    o(f"    v_lshl_add_u32 v{vOt}, v{t1}, 3, v{vOt}")
    o(f"    s_lshl_b32 s{sT}, s{sWave}, 5")
    o(f"    s_add_u32 s{sT}, s{sT}, {OUTT}")
    o(f"    v_add_u32 v{vOt}, s{sT}, v{vOt}")
    o("    s_waitcnt lgkmcnt(0)")
    o("    s_barrier")
    stamp(7)
    o(f"    s_cmp_ge_u32 s{sWave}, 4")
    o("    s_cbranch_scc1 K2_NOGEMM")
    seq = []
    for T in range(3):
        for blk in range(4):
            items = [(ks if blk == 0 else 4 + ks, blk * 256 + 64 * ks) for ks in range(4)]
            if blk:
                items += [(8 + ks, 1024 + 128 * (blk - 1) + 64 * ks) for ks in range(2)]
            for n_, (f, off) in enumerate(items):
                seq.append((T, blk, f, T * 16 * SDS + off, n_ == 0))
    BB = 64
    NB_ = 12
    DEPTH = 10
    DDs = [128, 144]
    G = 160
    def bread(i):
        o(f"    ds_read_b128 {vr(BB+4*(i%NB_),4)}, v{vB_} offset:{seq[i][3]}")
    for i in range(DEPTH):
        bread(i)
    o(f"    v_mov_b32 v{G+16}, 0xbfb8aa3b           ; -log2(e)")
    o("    s_waitcnt vmcnt(0)")
    def finish(T):
        DD = DDs[T & 1]
        for r in range(4):
            o(f"    v_mul_f32 v{G+r}, v{G+16}, v{DD+r}")
        for r in range(4):
            o(f"    v_exp_f32 v{G+r}, v{G+r}")
        for r in range(4):
            o(f"    v_add_f32 v{G+r}, 1.0, v{G+r}")
        for r in range(4):
            o(f"    v_rcp_f32 v{G+r}, v{G+r}")
        Rr = 184 + 8 * T
        o(f"    v_cvt_pk_bf16_f32 v{Rr}, v{DD}, v{DD+1}")
        o(f"    v_cvt_pk_bf16_f32 v{Rr+1}, v{DD+2}, v{DD+3}")
        for blk in range(1, 4):
            for r in range(4):
                o(f"    v_mul_f32 v{DD+4*blk+r}, v{DD+4*blk+r}, v{G+r}")
            o(f"    v_cvt_pk_bf16_f32 v{Rr+2*blk}, v{DD+4*blk}, v{DD+4*blk+1}")
            o(f"    v_cvt_pk_bf16_f32 v{Rr+1+2*blk}, v{DD+4*blk+2}, v{DD+4*blk+3}")
    n = len(seq)
    pend_w = 0
    for i, (T, blk, f, off, first) in enumerate(seq):
        cnt = min(i + DEPTH, n) - 1 - i
        o(f"    s_waitcnt lgkmcnt({cnt})")
        d = vr(DDs[T & 1] + 4 * blk, 4)
        o(f"    v_mfma_f32_16x16x32_bf16 {d}, {vr(4*f,4)}, {vr(BB+4*(i%NB_),4)}, {'0' if first else d}")
        if i + DEPTH < n:
            bread(i + DEPTH)
        if i + 1 == n or seq[i + 1][0] != T:
            finish(T)
    for T in range(3):
        for blk in range(4):
            o(f"    ds_write_b64 v{vOt}, {vr(184+8*T+2*blk,2)} offset:{T*16*OUT_STRIDE + blk*128}")
    L("K2_NOGEMM")
    o(f"    s_lshl_b32 s{sT}, s{sWave}, 6")
    o(f"    v_add_u32 v4, s{sT}, v{vLane}            ; tid")
    o("    v_lshrrev_b32 v0, 5, v4")
    o("    v_and_b32 v1, 31, v4")
    o(f"    v_mul_u32_u24 v2, {OUT_STRIDE}, v0")
    o("    v_lshl_add_u32 v2, v1, 4, v2")
    if OUTT:
        o(f"    v_add_u32 v2, {OUTT}, v2")
    o("    v_lshlrev_b32 v3, 4, v4")
    o("    v_add_u32 v16, 8192, v3")
    o("    v_add_u32 v17, 16384, v3")
    o("    s_waitcnt lgkmcnt(0)")
    o("    s_barrier")
    stamp(8)
    for r in range(3):
        o(f"    ds_read_b128 {vr(4+4*r,4)}, v2 offset:{r*16*OUT_STRIDE}")
    for r in range(3):
        if r == 2:
            o(f"    s_cmp_ge_u32 s{sWave}, 4")
            o("    s_cbranch_scc1 K2_FIN")
        o(f"    s_waitcnt lgkmcnt({2-r})")
        o(f"    buffer_store_dwordx4 {vr(4+4*r,4)}, v{[3,16,17][r]}, {sr(sOUT,4)}, 0 offen")
    L("K2_FIN")
    if STAMP:
        o("    s_waitcnt vmcnt(0)")
    stamp(9)
    stamp_dump(sWS, sWS + 1, sWave, 8, 65 << 20)
    L("K2_END")
    o("    s_endpgm")

gen_k1()
gen_k2()

o('.section .rodata,"a"')
def kd(name, vgpr, sgpr):
    o(".p2align 6")
    o(f".amdhsa_kernel {name}")
    o(f"  .amdhsa_next_free_vgpr {vgpr}")
    o(f"  .amdhsa_next_free_sgpr {sgpr}")
    o(f"  .amdhsa_accum_offset {(vgpr+3)//4*4}")
    o("  .amdhsa_group_segment_fixed_size 0")
    o("  .amdhsa_kernarg_size 96")
    o("  .amdhsa_user_sgpr_count 2")
    o("  .amdhsa_user_sgpr_kernarg_segment_ptr 1")
    o("  .amdhsa_system_sgpr_workgroup_id_x 1")
    o("  .amdhsa_float_denorm_mode_32 3")
    o(".end_amdhsa_kernel")
kd("tp_part_kernel", 80, 102 if STAMP else 72)
kd("tp_main_kernel", 256, 102 if STAMP else 90)

open(OUTFILE, "w").write("\n".join(lines) + "\n")
print("wrote", OUTFILE, len(lines), "lines; K2 LDS", K2_LDS)
```

```python
import sys, os

P = int(sys.argv[1]) if len(sys.argv) > 1 else 2
OUTFILE = sys.argv[2] if len(sys.argv) > 2 else "standalone__tensor_product_equiv_equiformer__graph.s"
STAMP = int(os.environ.get("STAMP", "0"))
K1ST = os.environ.get("K1ST", "sc1")
K1LD2 = os.environ.get("K1LD2", "nt")
OUTST = os.environ.get("OUTST", "")
K1LD = os.environ.get("K1LD", "nt")
EXP = os.environ.get("EXP", "")
NEARLY = int(os.environ.get("NEARLY", "3"))
K1PF = int(os.environ.get("K1PF", "0"))
PF0 = int(os.environ.get("PF0", "0"))
PFPOS = os.environ.get("PFPOS", "a")
IDXN = int(os.environ.get("IDXN", "0"))
IDXN2 = int(os.environ.get("IDXN2", "3"))
CPF = int(os.environ.get("CPF", "0"))
VW = int(os.environ.get("VW", "48"))
PRIO = [int(t) for t in os.environ.get("PRIO", "").split(",") if t]
XPF = int(os.environ.get("XPF", "0"))

N = 10000
E = 640000
NWG = 256
CH = 2500
BINM = 1677
PHM = (P << 23) // 10000
WS_REC = 0
WS_KEY = 10240000
WS_TAB = 10880000
WS_T2 = WS_TAB + 256 * 1024
WS_WF = WS_T2 + 256 * 8192
WS_WR = WS_WF + 40 * 1024
WS_END = WS_WR + 5 * 1024

lines = []
def o(s=""):
    lines.append(s)
def L(s):
    lines.append(s + ":")
def vr(a, n):
    return f"v[{a}:{a+n-1}]"
def sr(a, n):
    return f"s[{a}:{a+n-1}]"
def srd(d, lo, hi, nbytes):
    o(f"    s_mov_b32 s{d}, s{lo}")
    o(f"    s_and_b32 s{d+1}, s{hi}, 0xffff")
    o(f"    s_mov_b32 s{d+2}, {nbytes}")
    o(f"    s_mov_b32 s{d+3}, 0x00020000")

STV = 183
def stamp(i, vreg=STV):
    if STAMP:
        o("    s_memrealtime s[100:101]")
        o("    s_waitcnt lgkmcnt(0)")
        o(f"    v_writelane_b32 v{vreg}, s100, {i}")
def stamp_dump(wsl, wsh, wave_sgpr, nwaves, base, vreg=STV):
    if not STAMP:
        return
    o("    s_waitcnt lgkmcnt(0) vmcnt(0)")
    o("    s_mov_b64 exec, 0xffff")
    o(f"    s_mul_i32 s4, s2, {nwaves}")
    o(f"    s_add_u32 s4, s4, s{wave_sgpr}")
    o("    s_lshl_b32 s4, s4, 6")
    o(f"    s_add_u32 s4, s4, {base}")
    o(f"    s_mov_b32 s8, s{wsl}")
    o(f"    s_and_b32 s9, s{wsh}, 0xffff")
    o("    s_mov_b32 s10, 0x8000000")
    o("    s_mov_b32 s11, 0x00020000")
    o("    v_mbcnt_lo_u32_b32 v0, -1, 0")
    o("    v_lshl_add_u32 v0, v0, 2, s4")
    o(f"    buffer_store_dword v{vreg}, v0, s[8:11], 0 offen")
    o("    s_waitcnt vmcnt(0)")

K1_CNT = 0
K1_START = 1024
K1_KEY = 2048
K1_T2 = 4608
K1_REC = K1_T2 + 8192
K1_LDS = K1_REC + 40960

SLOTCAP = 3072
RAW = 0
RING = RAW + SLOTCAP * 16
RBLK = 1152
MASK = RING + 8 * 3 * RBLK
CNT = MASK + 1024
BASE = CNT + 512
MISC = BASE + 512
SD = MISC + 64
SDS = 1440
K2_LDS = SD + 48 * SDS
OUTT = RAW
OUT_STRIDE = 528
assert K2_LDS <= 163840, K2_LDS
assert SD % 16 == 0

o(f"; @launch kernel=tp_part_kernel grid=({NWG},1,1) block=(704,1,1) lds={K1_LDS}")
o(f"; @launch kernel=tp_main_kernel grid=({NWG},1,1) block=(512,1,1) lds={K2_LDS}")
o('.amdgcn_target "amdgcn-amd-amdhsa--gfx950"')
o(".text")

def gen_k1():
    SV = 79
    o(".globl tp_part_kernel")
    o(".p2align 8")
    o(".type tp_part_kernel,@function")
    L("tp_part_kernel")
    o(f"    s_cmp_ge_u32 s2, {NWG}")
    o("    s_cbranch_scc1 K1_END")
    stamp(0, SV)
    o("    s_load_dwordx4 s[4:7], s[0:1], 8")
    o("    s_load_dwordx4 s[8:11], s[0:1], 24")
    o("    s_load_dwordx2 s[16:17], s[0:1], 88   ; ws")
    D, S, EA, RA, RB = 4, 8, 12, 20, 24
    BN, RK, ST = 28, 32, 36
    T = 40
    WFR = 48
    C = 56
    o("    v_lshrrev_b32 v70, 6, v0")
    o("    v_lshlrev_b32 v1, 2, v0               ; tid*4")
    o("    v_readfirstlane_b32 s50, v70")
    o(f"    s_mul_i32 s3, s2, {CH}")
    o("    v_add_u32 v2, s3, v1")
    o("    v_lshlrev_b32 v3, 2, v2")
    o(f"    v_lshlrev_b32 v{T}, 3, v2")
    o(f"    v_mul_u32_u24 v{T+1}, 6, v2")
    o("    s_cmp_eq_u32 s50, 10")
    o("    s_cbranch_scc1 K1_AUX")
    o("    s_waitcnt lgkmcnt(0)")
    stamp(1, SV)
    srd(20, 10, 11, E * 4)
    o(f"    buffer_load_dwordx4 {vr(D,4)}, v3, s[20:23], 0 offen {K1LD}")
    srd(24, 8, 9, E * 4)
    o(f"    buffer_load_dwordx4 {vr(S,4)}, v3, s[24:27], 0 offen {K1LD}")
    srd(28, 6, 7, E * 8)
    o(f"    buffer_load_dwordx4 {vr(EA,4)}, v{T}, s[28:31], 0 offen {K1LD2}")
    o(f"    buffer_load_dwordx4 {vr(EA+4,4)}, v{T}, s[28:31], 0 offen offset:16 {K1LD2}")
    srd(32, 4, 5, E * 6)
    o(f"    buffer_load_dwordx3 {vr(RA,3)}, v{T+1}, s[32:35], 0 offen {K1LD2}")
    o(f"    buffer_load_dwordx3 {vr(RB,3)}, v{T+1}, s[32:35], 0 offen offset:12 {K1LD2}")
    o("    v_lshlrev_b32 v71, 4, v0              ; tid*16")
    o("    v_and_b32 v70, 63, v0")
    o("    v_lshlrev_b32 v70, 4, v70             ; lane*16")
    o("    s_cmp_lt_u32 s50, 8")
    o("    s_cselect_b32 s51, -1, 0")
    for i in range(4):
        o(f"    v_mov_b32 v{60+i}, s51")
    o("    s_cbranch_scc0 K1_INIT2")
    o(f"    ds_write_b128 v71, v[60:63] offset:{K1_T2}")
    o("    s_branch K1_INIT3")
    L("K1_INIT2")
    o(f"    ds_write_b128 v70, v[60:63] offset:{K1_CNT}")
    L("K1_INIT3")
    o(f"    s_mul_i32 s36, s2, {CH*16}")
    o("    s_add_u32 s36, s16, s36")
    o("    s_addc_u32 s37, s17, 0")
    o("    s_and_b32 s37, s37, 0xffff")
    o(f"    s_mov_b32 s38, {CH*16}")
    o("    s_mov_b32 s39, 0x00020000")
    o(f"    s_add_u32 s40, s3, {WS_KEY}")
    o("    s_add_u32 s40, s16, s40")
    o("    s_addc_u32 s41, s17, 0")
    o("    s_and_b32 s41, s41, 0xffff")
    o(f"    s_mov_b32 s42, {CH}")
    o("    s_mov_b32 s43, 0x00020000")
    srd(44, 16, 17, WS_END)
    o("    s_mov_b32 s62, 0x05040100")
    o("    s_mov_b32 s63, 0x05040302")
    for r in range(1, 4):
        o(f"    v_add_u32 v{71+r}, {r*10240}, v71")
    o("    s_waitcnt lgkmcnt(0)")
    o("    s_barrier")
    o(f"    v_cmp_gt_u32 vcc, {CH//4}, v0")
    o("    s_mov_b64 s[60:61], vcc")
    o("    s_mov_b64 exec, vcc")
    o("    v_mov_b32 v2, 1")
    o("    s_waitcnt vmcnt(5)")
    stamp(2, SV)
    for j in range(4):
        o(f"    v_mul_u32_u24 v{D+j}, {BINM}, v{D+j}")
    for j in range(4):
        o(f"    v_lshrrev_b32 v{BN+j}, 14, v{D+j}")
    for j in range(4):
        o(f"    v_and_b32 v{BN+j}, 0x3fc, v{BN+j}")
    for j in range(4):
        o(f"    ds_add_rtn_u32 v{RK+j}, v{BN+j}, v2 offset:{K1_CNT}")
    o("    s_mov_b64 exec, -1")
    o("    s_waitcnt lgkmcnt(0)")
    o("    s_barrier")
    stamp(3, SV)
    o(f"    ds_read_b128 {vr(C,4)}, v70 offset:{K1_CNT}")
    for j in range(4):
        o(f"    v_and_b32 v{D+j}, 0xffff, v{D+j}")
        o(f"    v_mul_u32_u24 v{D+j}, 40018, v{D+j}")
        o(f"    v_bfe_u32 v{ST+j}, v{D+j}, 26, 3       ; local&7")
        o(f"    v_lshrrev_b32 v{D+j}, 29, v{D+j}       ; local>>3")
        o(f"    v_lshl_add_u32 v{D+j}, v{ST+j}, 4, v{D+j}")
    o("    s_waitcnt lgkmcnt(0)")
    o(f"    v_add_u32 v64, v{C}, v{C+1}")
    o(f"    v_add_u32 v65, v64, v{C+2}")
    o(f"    v_add_u32 v66, v65, v{C+3}")
    o("    v_mov_b32 v67, v66")
    fill = []
    for j in range(4):
        fill.append(f"    v_min_u32 v{WFR+j}, 29, v{RK+j}")
        fill.append(f"    v_lshlrev_b32 v{WFR+j}, 1, v{WFR+j}")
        fill.append(f"    v_subrev_u32 v{WFR+4+j}, 29, v{WFR+j}")
        fill.append(f"    v_min_u32 v{WFR+j}, v{WFR+j}, v{WFR+4+j}")
    def two():
        o(fill.pop(0)); o(fill.pop(0))
    two()
    for sh in (1, 2, 4, 8):
        o(f"    v_add_u32_dpp v67, v67, v67 row_shr:{sh} row_mask:0xf bank_mask:0xf bound_ctrl:0")
        two()
    o("    v_add_u32_dpp v67, v67, v67 row_bcast:15 row_mask:0xa bank_mask:0xf")
    two()
    o("    v_add_u32_dpp v67, v67, v67 row_bcast:31 row_mask:0xc bank_mask:0xf")
    o("    v_sub_u32 v60, v67, v66")
    o(f"    v_add_u32 v61, v60, v{C}")
    o("    v_add_u32 v62, v60, v64")
    o("    v_add_u32 v63, v60, v65")
    o(f"    ds_write_b128 v70, v[60:63] offset:{K1_START}")
    for j in range(4):
        o(f"    ds_read_b32 v{ST+j}, v{BN+j} offset:{K1_START}")
    while fill:
        o(fill.pop(0))
    for j in range(4):
        o(f"    v_lshl_add_u32 v{WFR+j}, v{BN+j}, 3, v{WFR+j}")
    o("    s_cmp_lg_u32 s50, 9")
    o("    s_cbranch_scc1 K1_NOTAB")
    o("    v_lshlrev_b32 v68, 3, v70")
    for j in range(4):
        o(f"    v_cmp_lt_u32 vcc, 30, v{C+j}")
        o(f"    v_or_b32 v69, 0x8000, v{60+j}")
        o(f"    v_lshl_or_b32 v{C+j}, v{C+j}, 16, v{60+j}")
        o(f"    v_cndmask_b32 v69, v{60+j}, v69, vcc")
        o(f"    ds_write_b16 v68, v69 offset:{K1_T2 + 32*j + 30}")
    L("K1_NOTAB")
    o("    s_mov_b64 exec, s[60:61]")
    if P > 1:
        o("    s_waitcnt vmcnt(4)")
        for j in range(4):
            o(f"    v_mul_u32_u24 v{WFR+4+j}, {PHM}, v{S+j}")
            o(f"    v_lshrrev_b32 v{WFR+4+j}, 23, v{WFR+4+j}")
            o(f"    v_mad_u32_u24 v{D+j}, v{WFR+4+j}, 5, v{D+j}")
    for j in range(4):
        o(f"    ds_write_b8 v{WFR+j}, v{D+j} offset:{K1_T2}")
    o("    s_waitcnt lgkmcnt(4)")
    for j in range(4):
        o(f"    v_add_u32 v{ST+j}, v{ST+j}, v{RK+j}     ; pos")
    for j in range(4):
        o(f"    ds_write_b8 v{ST+j}, v{D+j} offset:{K1_KEY}")
    for j in range(4):
        o(f"    v_lshlrev_b32 v{RK+j}, 4, v{ST+j}")
        o(f"    v_add_u32 v{RK+j}, {K1_REC}, v{RK+j}")
    o("    s_waitcnt vmcnt(1)")
    o(f"    v_alignbit_b32 v{T}, v{RA+2}, v{RA+1}, 16")
    o(f"    v_perm_b32 v{T+1}, v{S+1}, v{RA+2}, s63")
    o(f"    v_perm_b32 v{RA+1}, v{S}, v{RA+1}, s62")
    yp = [RA, T, RB, T + 2]
    for j in range(2):
        o(f"    ds_write2_b64 v{RK+j}, {vr(EA+2*j,2)}, {vr(yp[j],2)} offset0:0 offset1:1")
    o("    s_waitcnt vmcnt(0)")
    stamp(4, SV)
    o(f"    v_alignbit_b32 v{T+2}, v{RB+2}, v{RB+1}, 16")
    o(f"    v_perm_b32 v{T+3}, v{S+3}, v{RB+2}, s63")
    o(f"    v_perm_b32 v{RB+1}, v{S+2}, v{RB+1}, s62")
    for j in range(2, 4):
        o(f"    ds_write2_b64 v{RK+j}, {vr(EA+2*j,2)}, {vr(yp[j],2)} offset0:0 offset1:1")
    o("    s_mov_b64 exec, -1")
    o("    s_waitcnt lgkmcnt(0)")
    o("    s_barrier")
    stamp(5, SV)
    for r in range(4):
        o(f"    ds_read_b128 {vr(4+4*r,4)}, v71 offset:{K1_REC + r*10240}")
    o(f"    ds_read_b128 {vr(24,4)}, v71 offset:{K1_T2}")
    o(f"    ds_read_b32 v20, v1 offset:{K1_KEY}")
    for r in range(4):
        o(f"    s_waitcnt lgkmcnt({5-r})")
        o(f"    buffer_store_dwordx4 {vr(4+4*r,4)}, v{71+r}, s[36:39], 0 offen {K1ST}")
    o("    s_cmp_lt_u32 s50, 8")
    o("    s_cbranch_scc0 K1_NT2")
    o("    s_lshl_b32 s52, s2, 13")
    o(f"    s_add_u32 s52, s52, {WS_T2}")
    o("    s_waitcnt lgkmcnt(1)")
    o(f"    buffer_store_dwordx4 {vr(24,4)}, v71, s[44:47], s52 offen {K1ST}")
    L("K1_NT2")
    o("    s_cmp_lg_u32 s50, 9")
    o("    s_cbranch_scc1 K1_NT1")
    o("    s_lshl_b32 s52, s2, 10")
    o(f"    s_add_u32 s52, s52, {WS_TAB}")
    o(f"    buffer_store_dwordx4 {vr(C,4)}, v70, s[44:47], s52 offen {K1ST}")
    L("K1_NT1")
    o("    s_waitcnt lgkmcnt(0)")
    o("    buffer_store_dword v20, v1, s[40:43], 0 offen")
    stamp(6, SV)
    if STAMP:
        o("    s_waitcnt vmcnt(0)")
    stamp(7, SV)
    stamp_dump(16, 17, 50, 10, 64 << 20, SV)
    L("K1_END")
    o("    s_endpgm")
    L("K1_AUX")
    o("    s_cmp_ge_u32 s2, 45")
    o("    s_cbranch_scc1 K1_END")
    o("    s_load_dwordx2 s[18:19], s[0:1], 40   ; w_rad")
    o("    s_load_dwordx4 s[12:15], s[0:1], 48")
    o("    v_and_b32 v0, 63, v0")
    o("    s_waitcnt lgkmcnt(0)")
    srd(44, 16, 17, WS_END)
    o("    s_cmp_ge_u32 s2, 40")
    o("    s_cbranch_scc1 K1_AUXR")
    o("    s_mul_i32 s51, s2, 26")
    o("    s_lshr_b32 s51, s51, 8                ; t")
    o("    s_mul_i32 s52, s51, 10")
    o("    s_sub_u32 s52, s2, s52                ; q")
    o("    s_cmp_lt_u32 s52, 4")
    o("    s_cselect_b32 s56, s12, s14")
    o("    s_cselect_b32 s57, s13, s15")
    o("    s_movk_i32 s58, 16384")
    o("    s_cselect_b32 s58, s58, 24576")
    o("    s_and_b32 s57, s57, 0xffff")
    o("    s_mov_b32 s59, 0x00020000")
    o("    v_lshrrev_b32 v70, 4, v0              ; g'")
    o("    v_and_b32 v71, 15, v0")
    o("    v_lshlrev_b32 v71, 1, v71")
    o("    s_lshl_b32 s53, s51, 5")
    o("    v_add_u32 v71, s53, v71               ; (16t+m)*2")
    o("    s_cmp_ge_u32 s52, 8")
    o("    s_cbranch_scc1 K1_FRAGX")
    o("    s_and_b32 s53, s52, 1")
    o("    s_lshl_b32 s53, s53, 5")
    o("    s_bfe_u32 s55, s52, 0x10001           ; (q>>1)&1")
    o("    s_add_u32 s53, s53, s55")
    o("    s_lshl_b32 s53, s53, 7")
    o("    v_lshl_add_u32 v71, v70, 10, v71")
    o("    v_add_u32 v71, s53, v71")
    o("    v_add_u32 v72, 8192, v71")
    for i in range(8):
        o(f"    buffer_load_ushort v{WFR+i}, v{71+(i&1)}, s[56:59], 0 offen offset:{(i>>1)*256}")
    o("    s_branch K1_FRAGW")
    L("K1_FRAGX")
    o("    s_and_b32 s53, s52, 1")
    o("    s_add_u32 s53, s53, 128")
    o("    s_lshl_b32 s53, s53, 7")
    o("    v_lshl_add_u32 v71, v70, 11, v71")
    o("    v_add_u32 v71, s53, v71")
    for i in range(8):
        o(f"    buffer_load_ushort v{WFR+i}, v71, s[56:59], 0 offen offset:{i*256}")
    L("K1_FRAGW")
    o("    s_waitcnt vmcnt(0)")
    for p in range(4):
        o(f"    v_lshl_or_b32 v{WFR+p}, v{WFR+2*p+1}, 16, v{WFR+2*p}")
    o("    s_branch K1_AUXS")
    L("K1_AUXR")
    srd(56, 18, 19, 2560)
    o("    v_and_b32 v70, 31, v0")
    o("    v_lshrrev_b32 v71, 5, v0")
    o("    v_lshlrev_b32 v70, 2, v70")
    o("    v_lshl_add_u32 v70, v71, 1, v70")
    o("    s_sub_u32 s52, s2, 40")
    o("    s_lshl_b32 s52, s52, 7")
    o("    v_add_u32 v70, s52, v70")
    for d in range(4):
        o(f"    buffer_load_ushort v{WFR+d}, v70, s[56:59], 0 offen offset:{d*640}")
    o("    s_waitcnt vmcnt(0)")
    for d in range(4):
        o(f"    v_lshlrev_b32 v{WFR+d}, 16, v{WFR+d}")
    L("K1_AUXS")
    o("    s_lshl_b32 s52, s2, 10")
    o(f"    s_add_u32 s52, s52, {WS_WF}")
    o("    v_lshlrev_b32 v70, 4, v0")
    o(f"    buffer_store_dwordx4 {vr(WFR,4)}, v70, s[44:47], s52 offen")
    o("    s_endpgm")

def gen_k2():
    B, ACC, S, W = 0, 64, 128, 184
    A = [204, 208]
    VO = [212, 220]
    LT, AM1, AM2 = 228, 232, 236
    RR = 240
    ZR = 244
    vA, vV, vRaw, vCw, vVw, vN4, vMask, vEnds, vPar, vIdx = range(246, 256)
    vLane = 125
    sX, sWS, sOUT, sWR = 12, 16, 20, 24
    sBin, sNN, sWave, sMode, sJlo, sMax = 28, 29, 30, 31, 32, 33
    sNs, sGen, sCnt, sSeg, sK, sLo, sHi, sRel, sRet, sRem = range(34, 44)
    sD0, sD1, sD2 = 44, 45, 46
    sEnd, sNext = 54, 55
    sT, sT2, sT3 = 47, 48, 49
    sSave = 50
    sAny2 = 52
    sM1 = 56
    sM2 = 72
    sLM = 24
    sOv = 26

    def accr(v, u, d):
        cc = 2 * (d >> 1) + (u >> 1)
        e = 2 * (u & 1) + (d & 1)
        return ACC + 16 * v + 4 * cc + e
    def wreg(p, d):
        return W + 4 * p + d

    o(".globl tp_main_kernel")
    o(".p2align 8")
    o(".type tp_main_kernel,@function")
    L("tp_main_kernel")
    o(f"    s_cmp_ge_u32 s2, {NWG}")
    o("    s_cbranch_scc1 K2_END")
    stamp(0)
    o("    s_load_dwordx2 s[4:5], s[0:1], 0      ; x")
    o("    s_load_dwordx2 s[8:9], s[0:1], 72     ; out")
    o("    s_load_dwordx2 s[10:11], s[0:1], 88   ; ws")
    o("    v_lshrrev_b32 v1, 6, v0")
    o(f"    v_and_b32 v{vLane}, 63, v0")
    o(f"    v_readfirstlane_b32 s{sWave}, v1")
    o(f"    s_and_b32 s{sBin}, s2, 7")
    o(f"    s_lshl_b32 s{sBin}, s{sBin}, 5")
    o(f"    s_lshr_b32 s{sT}, s2, 3")
    o(f"    s_add_u32 s{sBin}, s{sBin}, s{sT}")
    HD, KY, RK1, RK2, AD1, AD2, RO, TM = 64, 72, 80, 88, 96, 104, 112, 120
    vW0, vJ = 126, 127

    def prefetch0():
        o(f"    s_lshr_b32 s{sT}, s2, 3")
        o(f"    s_lshl_b32 s{sT}, s{sT}, 3")
        o(f"    s_add_u32 s{sT}, s{sT}, s{sWave}")
        o(f"    s_lshl_b32 s{sT}, s{sT}, 13")
        o(f"    v_lshl_add_u32 v{RR}, v{vLane}, 7, s{sT}")
        for i in range(PF0):
            o(f"    buffer_load_dword v{RR+1}, v{RR}, {sr(sX,4)}, 0 offen")
            if i + 1 < PF0:
                o(f"    v_add_u32 v{RR}, {256*8192}, v{RR}")
    def w_loads():
        o(f"    s_mov_b32 s{sT}, {WS_WR}")
        for p in range(5):
            if p == 4:
                o(f"    s_add_u32 s{sT}, s{sT}, 4096")
            o(f"    buffer_load_dwordx4 {vr(W+4*p,4)}, v{TM+1}, {sr(sWS,4)}, s{sT} offen offset:{(p%4)*1024}")
    def lane_id():
        o(f"    v_mbcnt_lo_u32_b32 v{vLane}, -1, 0")
        o(f"    v_mbcnt_hi_u32_b32 v{vLane}, -1, v{vLane}")
    def lane_prep():
        o(f"    v_lshrrev_b32 v{vW0}, 4, v{vLane}")
        o(f"    s_lshl_b32 s{sT}, s{sWave}, 5")
        o(f"    v_add_u32 v{vW0}, s{sT}, v{vW0}")
        o(f"    v_and_b32 v{vJ}, 15, v{vLane}")
        o(f"    v_lshlrev_b32 v{TM}, 10, v{vW0}")
    def hdr_loads():
        o(f"    s_lshl_b32 s{sT}, s{sBin}, 2")
        o(f"    s_add_u32 s{sT}, s{sT}, {WS_TAB}")
        for i in range(8):
            o(f"    buffer_load_dword v{HD+i}, v{TM}, {sr(sWS,4)}, s{sT} offen")
            if i < 7:
                o(f"    s_add_u32 s{sT}, s{sT}, 4096")
    lane_prep()
    o(f"    v_lshlrev_b32 v{TM+1}, 13, v{vW0}")
    o(f"    v_lshl_add_u32 v{TM+1}, v{vJ}, 1, v{TM+1}")
    o(f"    s_lshl_b32 s{sT}, s{sBin}, 5")
    o(f"    s_add_u32 s{sT}, s{sT}, {WS_T2}")
    o("    s_waitcnt lgkmcnt(0)")
    stamp(1)
    srd(sWS, 10, 11, WS_END)
    for i in range(8):
        o(f"    buffer_load_ushort v{KY+i}, v{TM+1}, {sr(sWS,4)}, s{sT} offen")
        if i < 7:
            o(f"    s_add_u32 s{sT}, s{sT}, 32768")
    srd(sX, 4, 5, N * 512)
    o(f"    v_and_b32 v{TM+2}, 31, v{vLane}")
    o(f"    v_lshlrev_b32 v{vN4}, 2, v{TM+2}")
    o(f"    v_lshrrev_b32 v{TM+3}, 5, v{vLane}      ; g = l>>5")
    o(f"    s_lshl_b32 s{sT}, s{sBin}, 16")
    o(f"    s_add_u32 s{sT}, s{sT}, {BINM-1}")
    o(f"    s_mul_hi_u32 s{sT2}, s{sT}, 0x27144e     ; n0")
    o(f"    s_add_u32 s{sT}, s{sT}, 0x10000")
    o(f"    s_mul_hi_u32 s{sT}, s{sT}, 0x27144e")
    o(f"    s_min_u32 s{sT}, s{sT}, {N}")
    o(f"    s_sub_u32 s{sNN}, s{sT}, s{sT2}")
    o(f"    s_lshl_b32 s{sT}, s{sT2}, 9")
    o(f"    s_add_u32 s{sOUT}, s8, s{sT}")
    o(f"    s_addc_u32 s{sOUT+1}, s9, 0")
    o(f"    s_and_b32 s{sOUT+1}, s{sOUT+1}, 0xffff")
    o(f"    s_lshl_b32 s{sOUT+2}, s{sNN}, 9")
    o(f"    s_mov_b32 s{sOUT+3}, 0x00020000")
    o(f"    s_mov_b32 s{sMode}, 0")
    o(f"    s_mov_b32 s{sJlo}, 0")
    o("    v_lshrrev_b32 v5, 3, v0               ; e")
    o("    v_and_b32 v6, 7, v0")
    o("    v_lshlrev_b32 v6, 1, v6               ; 8ha+2p")
    o("    v_sub_u32 v5, v5, v6                  ; e-(8ha+2p)")
    o("    v_med3_i32 v5, v5, 0, 2")
    o("    v_lshlrev_b32 v5, 4, v5")
    o("    v_mov_b32 v6, -1")
    o("    v_mov_b32 v7, 0")
    o("    v_lshlrev_b64 v[6:7], v5, v[6:7]")
    o("    v_cmp_gt_u32 vcc, 256, v0")
    o("    v_lshlrev_b32 v3, 2, v0")
    o(f"    v_add_u32 v3, {MASK}, v3")
    o("    v_cndmask_b32 v2, 0, v7, vcc")
    o("    ds_write_b32 v3, v2")
    o("    v_mov_b32 v2, 0")
    o(f"    v_mov_b32 v3, {MISC}")
    o("    ds_write2_b32 v3, v2, v2 offset0:0 offset1:1")
    for i in range(55):
        o(f"    v_mov_b32 v{S+i}, 0")
    o(f"    v_mov_b32 v{ZR}, 0")
    o(f"    v_mov_b32 v{ZR+1}, 0")
    o(f"    v_and_b32 v4, 1, v{vLane}")
    o(f"    v_sub_u32 v{vPar}, 0, v4")
    o(f"    v_bfe_u32 v4, v{vLane}, 2, 1")
    o(f"    v_mul_u32_u24 v{vIdx}, 0x5555, v4")
    o(f"    v_add_u32 v{vIdx}, 0x8888, v{vIdx}       ; 0x8888 / 0xdddd")
    o(f"    v_lshlrev_b32 v{vMask}, 4, v{TM+3}")
    o(f"    v_add_u32 v{vMask}, {MASK}, v{vMask}")
    o("    s_waitcnt lgkmcnt(0)")
    o(f"    s_movk_i32 s{sT}, {CH}")
    o(f"    v_mad_u32_u24 v{TM+2}, v{vW0}, s{sT}, v{vJ}   ; w0*2500 + j")
    o(f"    s_mov_b32 s{sLM}, 0x7fff7fff")
    o(f"    s_mov_b32 s{sLM+1}, 0x7fff7fff")
    o(f"    s_mov_b64 {sr(sOv,2)}, -1")
    o(f"    s_mov_b64 {sr(sAny2,2)}, 0")
    o(f"    v_mov_b32 v{TM+4}, {CNT}")
    o(f"    v_lshlrev_b32 v{TM+1}, 4, v{vLane}")
    o("    s_barrier")
    def rec_load(i):
        o(f"    s_mov_b32 s{sT}, {i*4*CH*16}")
        o(f"    buffer_load_dwordx4 {vr(4*i,4)}, v{RO+i}, {sr(sWS,4)}, s{sT} offen")
    o(f"    v_mov_b32 v{TM}, 1")
    for i in range(8):
        o(f"    s_waitcnt vmcnt({7 - i + min(i, NEARLY)})")
        if i == 0:
            stamp(2)
        o(f"    v_mov_b32_dpp v{RO+i}, v{KY+i} row_newbcast:15 row_mask:0xf bank_mask:0xf")
        o(f"    v_and_b32 v{AD1+i}, 0xff, v{KY+i}")
        o(f"    v_and_b32 v{RO+i}, 0xfff, v{RO+i}")
        o(f"    v_cmp_gt_u32 vcc, 0x80, v{AD1+i}")
        o(f"    v_add_lshl_u32 v{RO+i}, v{RO+i}, v{TM+2}, 4")
        o(f"    v_lshl_add_u32 v{AD1+i}, v{AD1+i}, 2, v{TM+4}")
        o(f"    s_and_b64 {sr(sM1+2*i,2)}, vcc, {sr(sLM,2)}")
        if i < NEARLY:
            rec_load(i)
        o(f"    v_cmp_gt_u32 vcc, 0x8000, v{KY+i}")
        o(f"    s_mov_b64 exec, {sr(sM1+2*i,2)}")
        o(f"    ds_add_rtn_u32 v{RK1+i}, v{AD1+i}, v{TM}")
        o("    s_mov_b64 exec, -1")
        o(f"    s_and_b64 {sr(sM2+2*i,2)}, vcc, {sr(sLM,2)}")
        o(f"    s_and_b64 {sr(sOv,2)}, {sr(sOv,2)}, vcc")
        o(f"    s_or_b64 {sr(sAny2,2)}, {sr(sAny2,2)}, {sr(sM2+2*i,2)}")
    o("    s_cbranch_scc0 K2_NO2B")
    o("    s_waitcnt lgkmcnt(4)")
    for i in range(8):
        o(f"    s_mov_b64 exec, {sr(sM2+2*i,2)}")
        o(f"    s_cbranch_execz K2_NK2{i}")
        o(f"    v_lshrrev_b32 v{AD2+i}, 8, v{KY+i}")
        o(f"    v_lshl_add_u32 v{AD2+i}, v{AD2+i}, 2, v{TM+4}")
        o(f"    ds_add_rtn_u32 v{RK2+i}, v{AD2+i}, v{TM}")
        L(f"K2_NK2{i}")
    o("    s_mov_b64 exec, -1")
    L("K2_NO2B")
    o(f"    s_or_b64 {sr(sOv,2)}, {sr(sOv,2)}, {sr(sLM,2)}")
    o(f"    s_cmp_eq_u64 {sr(sOv,2)}, -1")
    o("    s_cbranch_scc1 K2_RANKD")
    o(f"    v_mov_b32 v{TM}, {MISC}")
    o(f"    ds_write_b32 v{TM}, v{TM}")
    L("K2_RANKD")
    c0, c1, i0, i1, tt0, tt1, e0, e1, p0, p1, a0, a1, b0, b1, ad, mx = range(204, 220)
    o(f"    v_lshlrev_b32 v{ad}, 2, v{vLane}")
    o(f"    v_add_u32 v{ad}, {CNT}, v{ad}")
    o(f"    v_mov_b32 v{mx}, {MISC}")
    o("    s_waitcnt lgkmcnt(0)")
    o("    s_barrier")
    stamp(3)
    o(f"    ds_read2st64_b32 v[{c0}:{c1}], v{ad} offset0:0 offset1:1")
    o(f"    ds_read_b32 v{mx}, v{mx}")
    o(f"    s_cmp_lg_u32 s{sMode}, 0")
    o("    s_cbranch_scc1 K2_NOLATE")
    for i in range(NEARLY, NEARLY + 2):
        rec_load(i)
    L("K2_NOLATE")
    o("    s_waitcnt lgkmcnt(0)")
    o(f"    v_mov_b32 v{i0}, v{c0}")
    o(f"    v_mov_b32 v{i1}, v{c1}")
    o(f"    v_readfirstlane_b32 s{sT3}, v{mx}")
    for sh in (1, 2, 4, 8):
        o(f"    v_add_u32_dpp v{i0}, v{i0}, v{i0} row_shr:{sh} row_mask:0xf bank_mask:0xf bound_ctrl:0")
        o(f"    v_add_u32_dpp v{i1}, v{i1}, v{i1} row_shr:{sh} row_mask:0xf bank_mask:0xf bound_ctrl:0")
        o("    s_nop 0")
    o(f"    v_mov_b32_dpp v{tt0}, v{i0} row_newbcast:15 row_mask:0xf bank_mask:0xf")
    o(f"    v_mov_b32_dpp v{tt1}, v{i1} row_newbcast:15 row_mask:0xf bank_mask:0xf")
    o(f"    v_add_u32 v{e0}, 15, v{tt0}")
    o(f"    v_add_u32 v{e1}, 15, v{tt1}")
    o(f"    v_and_b32 v{e0}, -16, v{e0}")
    o(f"    v_and_b32 v{e1}, -16, v{e1}")
    o(f"    v_mov_b32 v{p0}, v{e0}")
    o(f"    v_mov_b32 v{p1}, v{e1}")
    o(f"    v_add_u32_dpp v{e0}, v{e0}, v{e0} row_bcast:15 row_mask:0xa bank_mask:0xf")
    o(f"    v_add_u32_dpp v{e1}, v{e1}, v{e1} row_bcast:15 row_mask:0xa bank_mask:0xf")
    o("    s_nop 0")
    o(f"    v_add_u32_dpp v{e0}, v{e0}, v{e0} row_bcast:31 row_mask:0xc bank_mask:0xf")
    o(f"    v_add_u32_dpp v{e1}, v{e1}, v{e1} row_bcast:31 row_mask:0xc bank_mask:0xf")
    o("    s_nop 0")
    o(f"    v_readlane_b32 s{sT}, v{e0}, 63")
    o(f"    v_readlane_b32 s{sT2}, v{e1}, 63")
    o(f"    v_sub_u32 v{a0}, v{e0}, v{tt0}")
    o(f"    v_add_u32 v{e1}, s{sT}, v{e1}")
    o(f"    v_add_u32 v{a0}, v{a0}, v{i0}")
    o(f"    v_sub_u32 v{a1}, v{e1}, v{tt1}")
    o(f"    v_add_u32 v{a1}, v{a1}, v{i1}")
    o(f"    v_sub_u32 v{b0}, v{a0}, v{c0}")
    o(f"    v_sub_u32 v{b1}, v{a1}, v{c1}")
    o(f"    ds_write2st64_b32 v{ad}, v{b0}, v{b1} offset0:2 offset1:3")
    o(f"    s_add_u32 s{sT}, s{sT}, s{sT2}")
    o(f"    s_cmp_gt_u32 s{sT}, {SLOTCAP-96}")
    o(f"    s_cselect_b32 s{sT}, 1, 0")
    o(f"    s_cmp_lg_u32 s{sT3}, 0")
    o(f"    s_cselect_b32 s{sT}, 1, s{sT}")
    o(f"    s_cmp_gt_u32 s{sT}, s{sMode}")
    o("    s_cbranch_scc1 K2_GOSLOW")
    for i in range(8):
        o(f"    ds_read_b32 v{AD1+i}, v{AD1+i} offset:512")
    o(f"    s_cmp_lg_u32 s{sMode}, 0")
    o("    s_cbranch_scc1 K2_NO2C")
    for i in range(NEARLY + 2, 8):
        rec_load(i)
    w_loads()
    o(f"    s_cmp_eq_u64 {sr(sAny2,2)}, 0")
    o("    s_cbranch_scc1 K2_NO2C")
    o("    s_waitcnt lgkmcnt(4)")
    for i in range(8):
        o(f"    s_mov_b64 exec, {sr(sM2+2*i,2)}")
        o(f"    s_cbranch_execz K2_NR2{i}")
        o(f"    s_mov_b32 s{sT}, {i*4*CH*16}")
        o(f"    buffer_load_dwordx4 {vr(32+4*i,4)}, v{RO+i}, {sr(sWS,4)}, s{sT} offen offset:240")
        o(f"    ds_read_b32 v{AD2+i}, v{AD2+i} offset:512")
        L(f"K2_NR2{i}")
    o("    s_mov_b64 exec, -1")
    L("K2_NO2C")
    o(f"    s_cmp_lt_u32 s{sWave}, 4")
    o("    s_cselect_b64 vcc, -1, 0")
    o(f"    v_cndmask_b32 v{a0}, v{a1}, v{a0}, vcc")
    o(f"    v_cndmask_b32 v{e0}, v{e1}, v{e0}, vcc")
    o(f"    v_cndmask_b32 v{p0}, v{p1}, v{p0}, vcc")
    o(f"    v_cndmask_b32 v{tt0}, v{tt1}, v{tt0}, vcc")
    o(f"    s_and_b32 s{sSeg}, s{sWave}, 3")
    o(f"    s_lshl_b32 s{sSeg}, s{sSeg}, 4")
    o("    s_nop 0")
    o(f"    v_readlane_b32 s{sT}, v{e0}, s{sSeg}")
    o(f"    v_readlane_b32 s{sT2}, v{p0}, s{sSeg}")
    o(f"    v_readlane_b32 s{sT3}, v{tt0}, s{sSeg}")
    o(f"    v_and_b32 v{b0}, 15, v{vLane}")
    o(f"    v_cmp_le_u32 vcc, {5*P}, v{b0}")
    o(f"    v_mov_b32 v{b0}, 0x7fffffff")
    o(f"    s_sub_u32 s{sT}, s{sT}, s{sT2}")
    o(f"    s_sub_u32 s{sLo}, s{sT2}, s{sT3}         ; pad")
    o(f"    s_lshr_b32 s{sNs}, s{sT2}, 4")
    o(f"    v_subrev_u32 v{vEnds}, s{sT}, v{a0}")
    o(f"    v_cndmask_b32 v{vEnds}, v{vEnds}, v{b0}, vcc")
    o(f"    v_lshrrev_b32 v{vRaw}, 1, v{vLane}")
    o(f"    v_add_u32 v{vRaw}, s{sT}, v{vRaw}")
    o(f"    v_lshlrev_b32 v{vRaw}, 4, v{vRaw}")
    if RAW:
        o(f"    v_add_u32 v{vRaw}, {RAW}, v{vRaw}")
    o(f"    s_mul_i32 s{sT}, s{sWave}, {3*RBLK}")
    o(f"    s_add_u32 s{sT}, s{sT}, {RING}")
    o(f"    s_add_u32 s{sT2}, s{sT}, 1024")
    o(f"    v_lshrrev_b32 v{b0}, 5, v{vLane}         ; ha / g")
    o(f"    v_bfe_u32 v{b1}, v{vLane}, 2, 2          ; rho")
    o(f"    v_lshl_add_u32 v{b1}, v{b0}, 3, v{b1}")
    o(f"    v_bfe_u32 v{c0}, v{vLane}, 1, 1")
    o(f"    v_bfe_u32 v{c1}, v{vLane}, 4, 1")
    o(f"    v_lshl_add_u32 v{c0}, v{c1}, 1, v{c0}")
    o(f"    v_lshl_add_u32 v{c0}, v{c0}, 3, s{sT}")
    o(f"    v_lshl_add_u32 v{vA}, v{b1}, 5, v{c0}")
    o(f"    v_lshl_add_u32 v{vV}, v{b0}, 4, s{sT2}")
    o(f"    v_lshl_add_u32 v{vCw}, v{vLane}, 4, s{sT}")
    o(f"    v_lshrrev_b32 v{b0}, 1, v{vLane}")
    o(f"    v_lshl_add_u32 v{vVw}, v{b0}, 2, s{sT2}")
    o("    s_waitcnt lgkmcnt(0)")
    for i in range(8):
        o(f"    v_add_lshl_u32 v{AD1+i}, v{AD1+i}, v{RK1+i}, 4")
    stamp(4)
    for i in range(8):
        o(f"    s_mov_b64 exec, {sr(sM1+2*i,2)}")
        o(f"    s_waitcnt vmcnt({12-i})")
        o(f"    ds_write_b128 v{AD1+i}, {vr(4*i,4)} offset:{RAW}")
    o("    s_waitcnt vmcnt(0)")
    o(f"    s_cmp_eq_u64 {sr(sAny2,2)}, 0")
    o("    s_cbranch_scc1 K2_NO2D")
    for i in range(8):
        o(f"    s_mov_b64 exec, {sr(sM2+2*i,2)}")
        o(f"    s_cbranch_execz K2_NS2{i}")
        o(f"    v_add_lshl_u32 v{AD2+i}, v{AD2+i}, v{RK2+i}, 4")
        o(f"    ds_write_b128 v{AD2+i}, {vr(32+4*i,4)} offset:{RAW}")
        L(f"K2_NS2{i}")
    L("K2_NO2D")
    o("    s_mov_b64 exec, -1")
    o("    s_waitcnt lgkmcnt(0)")
    o("    s_barrier")
    stamp(5)
    if STAMP:
        o("    s_memtime s[100:101]")
        o("    s_waitcnt lgkmcnt(0)")
        o(f"    v_writelane_b32 v{STV}, s100, 12")
    if "prio" in EXP:
        o(f"    s_cmp_lt_u32 s{sWave}, 4")
        o("    s_cbranch_scc1 K2_NOPRIO")
        o("    s_setprio 1")
        L("K2_NOPRIO")

    def convert(ct, rr=RR, off=0):
        CO = AM1
        a0_, a1_, y0, y1, y2, m0, m1, vo = range(ct, ct + 8)
        o(f"    v_bitop3_b32 v{CO}, v{vPar}, v{rr+1}, v{rr} bitop3:0xca")
        o(f"    v_lshlrev_b32 v{y0}, 16, v{rr+2}")
        o(f"    v_lshlrev_b32 v{a0_}, 16, v{CO}")
        o(f"    v_and_b32 v{a1_}, 0xffff0000, v{CO}")
        o(f"    v_and_b32 v{y1}, 0xffff0000, v{rr+2}")
        o(f"    v_lshlrev_b32 v{y2}, 16, v{rr+3}")
        for u, y in enumerate((y0, y1, y2)):
            o(f"    v_mul_f32 v{m0}, v{a0_}, v{y}")
            o(f"    v_mul_f32 v{m1}, v{a1_}, v{y}")
            o(f"    v_cvt_pk_bf16_f32 v{CO+1+u}, v{m0}, v{m1}")
        o(f"    v_lshrrev_b32 v{vo}, 7, v{rr+3}")
        o(f"    v_and_b32 v{vo}, {hex(int(os.environ.get('SRCMASK','0x1fffe00'),16))}, v{vo}")
        o(f"    ds_write_b128 v{vCw}, {vr(CO,4)} offset:{off}")
        o(f"    ds_write_b32 v{vVw}, v{vo} offset:{off}")

    def loads_tile(x, v, vo):
        for r in range(8):
            o(f"    buffer_load_dword v{B+32*x+8*v+r}, v{vo+r}, {sr(sX,4)}, 0 offen offset:{v*128}")
    def smf(x, v, areg):
        if "q1" in EXP and v != 0:
            return
        if "q2" in EXP and v >= 2:
            return
        if "nomfma" not in EXP:
            o(f"    v_smfmac_f32_32x32x32_bf16 {vr(ACC+16*v,16)}, {vr(areg,4)}, {vr(B+32*x+8*v,8)}, v{vIdx}")
    def zero_tile(v):
        if "nomfma" not in EXP or "keepz" in EXP:
            o(f"    v_mfma_f32_32x32x8_bf16 {vr(ACC+16*v,16)}, {vr(ZR,2)}, {vr(ZR,2)}, 0")
    def mask_read(dst, sreg, tmp):
        o(f"    s_lshl_b32 s{sT}, s{sreg}, 5")
        o(f"    v_add_u32 v{tmp}, s{sT}, v{vMask}")
        o(f"    ds_read_b128 {vr(dst,4)}, v{tmp}")
    terms = [(0, 0, 0, 0, 1)] + [(2 + j, 2, 0, j + 1, 1) for j in range(3)]
    cross = {(2, 3): (0, 1), (3, 2): (0, -1), (3, 1): (1, 1), (1, 3): (1, -1), (1, 2): (2, 1), (2, 1): (2, -1)}
    for v in range(1, 4):
        terms.append((5 + v - 1, 3, v, 0, 1))
        for u in range(1, 4):
            if u == v:
                terms.append((1, 1, v, u, 1))
            else:
                i, sg = cross[(u, v)]
                terms.append((8 + i, 4, v, u, sg))
    def fmas(v):
        if "noepi" in EXP:
            return
        o(f"    s_set_gpr_idx_on s{sK}, 0xc")
        if IDXN2 >= 0:
            o(f"    s_nop {IDXN2}")
        tv = [t for t in terms if t[2] == v]
        for d in range(4):
            for (si, p, v_, u, sg) in tv:
                sreg = S + si
                if sg > 0:
                    o(f"    v_fmac_f32 v{sreg}, v{wreg(p,d)}, v{accr(v,u,d)}")
                else:
                    o(f"    v_fma_f32 v{sreg}, -v{wreg(p,d)}, v{accr(v,u,d)}, v{sreg}")
        o("    s_set_gpr_idx_off")
        o(f"    s_nop {IDXN}")
    def next_k():
        o(f"    s_add_u32 s{sK}, s{sK}, 11")
        o(f"    s_cmp_eq_u32 s{sK}, 55")
        o(f"    s_cselect_b32 s{sK}, 0, s{sK}")
    def schedule_next():
        o(f"    s_sub_u32 s{sT}, s{sEnd}, 1")
        o(f"    s_and_b32 s{sHi}, s{sT}, 15")
        o(f"    s_add_u32 s{sHi}, s{sHi}, 1")
        o(f"    s_lshr_b32 s{sT}, s{sT}, 4")
        o(f"    s_sub_i32 s{sT2}, s{sNs}, 2")
        o(f"    s_add_u32 s{sT3}, s{sGen}, 1")
        o(f"    s_max_i32 s{sT2}, s{sT2}, s{sT3}")
        o(f"    s_min_u32 s{sGen}, s{sT}, s{sT2}")
        o(f"    s_sub_u32 s{sCnt}, s{sGen}, s{sT3}")

    o(f"    s_cmp_eq_u32 s{sNs}, 0")
    o("    s_cbranch_scc1 K2_STREAM_DONE")
    o(f"    ds_read_b128 {vr(RR,4)}, v{vRaw}")
    o(f"    ds_read_b128 {vr(A[0],4)}, v{vRaw} offset:512")
    if PRIO:
        o("    s_setprio 3")
    o(f"    s_mov_b32 s{sD0}, {RBLK}")
    o(f"    s_mov_b32 s{sD1}, {RBLK}")
    o(f"    s_mov_b32 s{sD2}, {-2*RBLK}")
    o(f"    s_mov_b32 s{sK}, 0")
    for v in range(4):
        zero_tile(v)
    o("    s_waitcnt lgkmcnt(1)")
    convert(VO[1])
    o(f"    ds_read_b128 {vr(VO[0],4)}, v{vV}")
    o(f"    ds_read_b128 {vr(VO[0]+4,4)}, v{vV} offset:32")
    o("    s_waitcnt lgkmcnt(4)")
    convert(VO[1], A[0], RBLK)
    o(f"    ds_read_b128 {vr(VO[1],4)}, v{vV} offset:64")
    o(f"    ds_read_b128 {vr(VO[1]+4,4)}, v{vV} offset:96")
    o(f"    v_add_u32 v{vRaw}, 1024, v{vRaw}")
    o(f"    v_add_u32 v{vCw}, {2*RBLK}, v{vCw}")
    o(f"    v_add_u32 v{vVw}, {2*RBLK}, v{vVw}")
    o(f"    v_add_u32 v{vV}, {RBLK}, v{vV}")
    o("    s_waitcnt lgkmcnt(4)")
    for r in range(8):
        o(f"    v_add_u32 v{VO[0]+r}, v{VO[0]+r}, v{vN4}")
    for v in range(4):
        loads_tile(0, v, VO[0])
    o(f"    s_cmp_eq_u32 s{sNs}, 1")
    o("    s_cbranch_scc1 K2_INITD")
    o("    s_waitcnt lgkmcnt(0)")
    for r in range(8):
        o(f"    v_add_u32 v{VO[1]+r}, v{VO[1]+r}, v{vN4}")
    for v in range(4):
        if v == 3:
            o("    s_waitcnt vmcnt(55)")
        loads_tile(1, v, VO[1])
    L("K2_INITD")
    o(f"    v_readlane_b32 s{sEnd}, v{vEnds}, s{sSeg}")
    o(f"    ds_read_b64_tr_b16 {vr(A[0],2)}, v{vA}")
    o(f"    ds_read_b64_tr_b16 {vr(A[0]+2,2)}, v{vA} offset:128")
    o(f"    ds_read_b128 {vr(VO[0],4)}, v{vV}")
    o(f"    ds_read_b128 {vr(VO[0]+4,4)}, v{vV} offset:32")
    o(f"    s_mov_b32 s{sGen}, 0")
    o(f"    s_mov_b32 s{sCnt}, 0")

    o(".p2align 3")
    L("K2_LOOP")
    for x in range(2):
        a_cur, a_nxt = A[x], A[x ^ 1]
        v_cur, v_nxt = VO[x], VO[x ^ 1]
        if x == 1:
            o(f"    v_add_u32 v{vA}, s{sD0}, v{vA}")
            o(f"    v_add_u32 v{vV}, s{sD1}, v{vV}")
        nx = x ^ 1
        if x == 0:
            o(f"    ds_read_b128 {vr(RR,4)}, v{vRaw}")
        o(f"    ds_read_b64_tr_b16 {vr(a_nxt,2)}, v{vA} offset:{nx*512}")
        o(f"    ds_read_b64_tr_b16 {vr(a_nxt+2,2)}, v{vA} offset:{nx*512+128}")
        o(f"    ds_read_b128 {vr(v_nxt,4)}, v{vV} offset:{nx*64}")
        o(f"    ds_read_b128 {vr(v_nxt+4,4)}, v{vV} offset:{nx*64+32}")
        o(f"    s_sub_u32 s{sCnt}, s{sCnt}, 1")
        o(f"    s_waitcnt lgkmcnt({5 if x == 0 else 4})")
        for r in range(8):
            o(f"    v_add_u32 v{v_cur+r}, v{v_cur+r}, v{vN4}")
        o(f"    s_cbranch_scc1 K2_SP{x}")
        for v in range(4):
            o("    s_waitcnt vmcnt(55)")
            smf(x, v, a_cur)
            loads_tile(x, v, v_cur)
        L(f"K2_NEXT{x}")
        if x == 0:
            o("    s_waitcnt lgkmcnt(4)")
            convert(v_cur)
            o(f"    v_add_u32 v{vRaw}, 512, v{vRaw}")
            o(f"    v_add_u32 v{vCw}, s{sD2}, v{vCw}")
            o(f"    v_add_u32 v{vVw}, s{sD2}, v{vVw}")
        else:
            o(f"    s_mov_b32 s{sT}, s{sD0}")
            o(f"    s_mov_b32 s{sD0}, s{sD1}")
            o(f"    s_mov_b32 s{sD1}, s{sD2}")
            o(f"    s_mov_b32 s{sD2}, s{sT}")
            o("    s_branch K2_LOOP")

    for x in range(2):
        a_cur = A[x]
        v_cur = VO[x]
        L(f"K2_SP{x}")
        o(f"    s_add_u32 s{sT}, s{sSeg}, 1")
        o(f"    v_readlane_b32 s{sNext}, v{vEnds}, s{sT}")
        o(f"    s_sub_u32 s{sRem}, s{sNs}, s{sGen}")
        o(f"    s_lshl_b32 s{sT3}, s{sGen}, 4")
        o(f"    s_cmp_le_u32 s{sRem}, 2")
        o(f"    s_cbranch_scc1 K2_GEN{x}")
        o(f"    s_cmp_eq_u32 s{sGen}, 0")
        o(f"    s_cbranch_scc1 K2_GEN{x}")
        o(f"    s_add_u32 s{sT2}, s{sT3}, 16")
        o(f"    s_cmp_le_u32 s{sNext}, s{sT2}")
        o(f"    s_cbranch_scc1 K2_GEN{x}")
        for r in range(4):
            o(f"    v_and_b32 v{AM1+r}, v{a_cur+r}, v{LT+r}")
        for r in range(4):
            o(f"    v_bitop3_b32 v{AM2+r}, v{a_cur+r}, v{LT+r}, v{LT+r} bitop3:0x30")
        o("    s_waitcnt vmcnt(31)")
        for v in range(4):
            smf(x, v, AM1)
        o(f"    s_mov_b32 s{sSeg}, s{sT}")
        o(f"    s_mov_b32 s{sEnd}, s{sNext}")
        schedule_next()
        mask_read(LT, sHi, a_cur)
        for v in range(4):
            fmas(v)
            zero_tile(v)
            smf(x, v, AM2)
            loads_tile(x, v, v_cur)
        next_k()
        o(f"    s_branch K2_NEXT{x}")
        L(f"K2_GEN{x}")
        o(f"    s_cmp_ge_u32 s{sRem}, 2")
        o(f"    s_cbranch_scc1 K2_GW{x}")
        o("    s_waitcnt vmcnt(0)")
        L(f"K2_GW{x}")
        o(f"    s_cmp_eq_u32 s{sGen}, 0")
        o(f"    s_cselect_b32 s{sLo}, s{sLo}, 0")
        L(f"K2_GL{x}")
        o(f"    s_sub_u32 s{sRel}, s{sEnd}, s{sT3}")
        o(f"    s_min_u32 s{sHi}, s{sRel}, 16")
        mask_read(LT, sHi, AM1)
        mask_read(AM2, sLo, AM1 + 1)
        o("    s_waitcnt vmcnt(31) lgkmcnt(0)")
        for r in range(4):
            o(f"    v_bitop3_b32 v{AM1+r}, v{a_cur+r}, v{LT+r}, v{AM2+r} bitop3:0x40")
        o("    s_nop 1")
        for v in range(4):
            smf(x, v, AM1)
        o(f"    s_cmp_gt_u32 s{sRel}, 16")
        o(f"    s_cbranch_scc1 K2_GD{x}")
        o(f"    s_mov_b32 s{sRet}, {x}")
        o("    s_branch K2_EPI")
        L(f"K2_GD{x}")
        o(f"    s_cmp_le_u32 s{sRem}, 2")
        o(f"    s_cbranch_scc1 K2_NL{x}")
        for v in range(4):
            loads_tile(x, v, v_cur)
        L(f"K2_NL{x}")
        o(f"    s_cmp_eq_u32 s{sRem}, 1")
        o("    s_cbranch_scc1 K2_STREAM_DONE")
        schedule_next()
        mask_read(LT, sHi, AM1)
        o(f"    s_branch K2_NEXT{x}")

    L("K2_EPI")
    o(f"    s_add_u32 s{sSeg}, s{sSeg}, 1")
    o(f"    s_mov_b32 s{sLo}, s{sHi}")
    o(f"    v_readlane_b32 s{sEnd}, v{vEnds}, s{sSeg}")
    o("    s_nop 7")
    for v in range(4):
        fmas(v)
        zero_tile(v)
    next_k()
    o(f"    s_cmp_eq_u32 s{sRet}, 0")
    o("    s_cbranch_scc1 K2_GL0")
    o("    s_branch K2_GL1")

    L("K2_GOSLOW")
    o(f"    s_mov_b32 s{sMode}, 1")
    w_loads()
    o("    s_waitcnt vmcnt(0)")
    L("K2_SLOW_ROUND")
    o("    s_waitcnt lgkmcnt(0)")
    o("    s_barrier")
    o("    s_nop 7")
    lane_id()
    o(f"    v_lshlrev_b32 v2, 2, v{vLane}")
    o(f"    v_add_u32 v2, {CNT}, v2")
    o("    v_mov_b32 v3, 0")
    o("    ds_write2st64_b32 v2, v3, v3 offset0:0 offset1:1")
    lane_prep()
    hdr_loads()
    o(f"    v_add_u32 v{TM+1}, s{sJlo}, v{vJ}")
    o(f"    s_movk_i32 s{sT}, {CH}")
    o(f"    v_mad_u32_u24 v{TM+2}, v{vW0}, s{sT}, v{TM+1}")
    o(f"    v_cmp_gt_u32 {sr(sSave,2)}, 8, v{vJ}")
    o(f"    s_mov_b64 {sr(sAny2,2)}, 0")
    o(f"    v_mov_b32 v{TM+3}, 0")
    o("    s_waitcnt vmcnt(0)")
    for i in range(8):
        o(f"    v_lshrrev_b32 v{TM}, 16, v{HD+i}")
        o(f"    v_and_b32 v{AD2+i}, 0xffff, v{HD+i}")
        o(f"    v_cmp_lt_u32 vcc, v{TM+1}, v{TM}")
        o(f"    v_add_u32 v{AD2+i}, v{AD2+i}, v{TM+2}")
        o(f"    v_lshlrev_b32 v{RO+i}, 4, v{AD2+i}")
        o(f"    v_max_u32 v{TM+3}, v{TM+3}, v{TM}")
        o(f"    v_mov_b32 v{AD1+i}, 0")
        o(f"    s_and_b64 {sr(sM1+2*i,2)}, vcc, {sr(sSave,2)}")
        o(f"    s_mov_b64 exec, {sr(sM1+2*i,2)}")
        o(f"    s_cbranch_execz K2_SR{i}")
        o(f"    s_mov_b32 s{sT}, {i*4*CH*16}")
        o(f"    s_mov_b32 s{sT2}, {WS_KEY + i*4*CH}")
        o(f"    buffer_load_dwordx4 {vr(4*i,4)}, v{RO+i}, {sr(sWS,4)}, s{sT} offen")
        o(f"    buffer_load_ubyte v{AD1+i}, v{AD2+i}, {sr(sWS,4)}, s{sT2} offen")
        L(f"K2_SR{i}")
        o("    s_mov_b64 exec, -1")
    o(f"    v_mov_b32 v{TM}, {MISC+4}")
    o(f"    ds_max_u32 v{TM}, v{TM+3}")
    o(f"    v_mov_b32 v{TM+4}, {CNT}")
    o("    s_waitcnt vmcnt(0) lgkmcnt(0)")
    o("    s_barrier")
    o(f"    ds_read_b32 v{TM}, v{TM}")
    o("    s_waitcnt lgkmcnt(0)")
    o(f"    v_readfirstlane_b32 s{sMax}, v{TM}")
    o(f"    v_mov_b32 v{TM}, 1")
    for i in range(8):
        o(f"    v_lshl_add_u32 v{AD1+i}, v{AD1+i}, 2, v{TM+4}")
    for i in range(8):
        o(f"    s_mov_b64 exec, {sr(sM1+2*i,2)}")
        o(f"    ds_add_rtn_u32 v{RK1+i}, v{AD1+i}, v{TM}")
    o("    s_mov_b64 exec, -1")
    o("    s_branch K2_RANKD")

    L("K2_STREAM_DONE")
    o(f"    s_cmp_eq_u32 s{sMode}, 0")
    o("    s_cbranch_scc1 K2_POSTG")
    o(f"    s_add_u32 s{sJlo}, s{sJlo}, 8")
    o(f"    s_cmp_lt_u32 s{sJlo}, s{sMax}")
    o("    s_cbranch_scc1 K2_SLOW_ROUND")

    L("K2_POSTG")
    stamp(6)
    if STAMP:
        o("    s_memtime s[100:101]")
        o("    s_waitcnt lgkmcnt(0)")
        o(f"    v_writelane_b32 v{STV}, s100, 13")
    t0, t1 = 226, 227
    vLane = 246
    o(f"    v_mbcnt_lo_u32_b32 v{vLane}, -1, 0")
    o(f"    v_mbcnt_hi_u32_b32 v{vLane}, -1, v{vLane}")
    o(f"    v_lshlrev_b32 v{t1}, 4, v{vLane}")
    o(f"    s_cmp_ge_u32 s{sWave}, 4")
    o("    s_cbranch_scc1 K2_NOWF")
    o(f"    s_mul_i32 s{sT}, s{sWave}, 10240")
    o(f"    s_add_u32 s{sT}, s{sT}, {WS_WF}")
    for f in range(10):
        if f == 4 or f == 8:
            o(f"    s_add_u32 s{sT}, s{sT}, 4096")
        o(f"    buffer_load_dwordx4 {vr(4*f,4)}, v{t1}, {sr(sWS,4)}, s{sT} offen offset:{(f%4)*1024}")
    L("K2_NOWF")
    o(f"    s_mul_i32 s{sT}, s{sWave}, {SDS}")
    o(f"    s_add_u32 s{sT}, s{sT}, {SD}")
    o(f"    v_lshl_add_u32 v{A[0]}, v{vLane}, 2, s{sT}")
    o(f"    s_add_u32 s{sT}, s{sT}, 1024")
    o(f"    v_lshl_add_u32 v{A[0]+1}, v{vLane}, 1, s{sT}")
    assert (8 * SDS) % 256 == 0
    ku = 8 * SDS // 256
    for k in range(5):
        s_ = S + 11 * k
        tq = 208 + 6 * (k & 1)
        o(f"    v_cvt_pk_bf16_f32 v{tq}, v{s_}, v{s_+1}")
        for j in range(3):
            o(f"    v_cvt_pk_bf16_f32 v{tq+1+j}, v{s_+2+j}, v{s_+5+j}")
        o(f"    v_cvt_pk_bf16_f32 v{tq+4}, v{s_+8}, v{s_+9}")
        o(f"    v_cvt_pk_bf16_f32 v{tq+5}, v{s_+10}, v{s_+10}")
        o(f"    ds_write2st64_b32 v{A[0]}, v{tq}, v{tq+1} offset0:{k*ku} offset1:{k*ku+1}")
        o(f"    ds_write2st64_b32 v{A[0]}, v{tq+2}, v{tq+3} offset0:{k*ku+2} offset1:{k*ku+3}")
        o(f"    ds_write_b16 v{A[0]+1}, v{tq+4} offset:{k*8*SDS}")
        o(f"    ds_write_b16_d16_hi v{A[0]+1}, v{tq+4} offset:{k*8*SDS+128}")
        o(f"    ds_write_b16 v{A[0]+1}, v{tq+5} offset:{k*8*SDS+256}")
    vB_, vOt = 224, 225
    o(f"    v_and_b32 v{t0}, 15, v{vLane}")
    o(f"    v_lshrrev_b32 v{t1}, 4, v{vLane}")
    o(f"    v_mul_u32_u24 v{vB_}, {SDS}, v{t0}")
    o(f"    v_lshl_add_u32 v{vB_}, v{t1}, 4, v{vB_}")
    o(f"    v_add_u32 v{vB_}, {SD}, v{vB_}")
    o(f"    v_mul_u32_u24 v{vOt}, {OUT_STRIDE}, v{t0}")
    o(f"    v_lshl_add_u32 v{vOt}, v{t1}, 3, v{vOt}")
    o(f"    s_lshl_b32 s{sT}, s{sWave}, 5")
    o(f"    s_add_u32 s{sT}, s{sT}, {OUTT}")
    o(f"    v_add_u32 v{vOt}, s{sT}, v{vOt}")
    o("    s_waitcnt lgkmcnt(0)")
    o("    s_barrier")
    stamp(7)
    o(f"    s_cmp_ge_u32 s{sWave}, 4")
    o("    s_cbranch_scc1 K2_NOGEMM")
    seq = []
    for T in range(3):
        for blk in range(4):
            items = [(ks if blk == 0 else 4 + ks, blk * 256 + 64 * ks) for ks in range(4)]
            if blk:
                items += [(8 + ks, 1024 + 128 * (blk - 1) + 64 * ks) for ks in range(2)]
            for n_, (f, off) in enumerate(items):
                seq.append((T, blk, f, T * 16 * SDS + off, n_ == 0))
    BB = 64
    NB_ = 12
    DEPTH = 10
    DDs = [128, 144]
    G = 160
    def bread(i):
        o(f"    ds_read_b128 {vr(BB+4*(i%NB_),4)}, v{vB_} offset:{seq[i][3]}")
    for i in range(DEPTH):
        bread(i)
    o(f"    v_mov_b32 v{G+16}, 0xbfb8aa3b           ; -log2(e)")
    o("    s_waitcnt vmcnt(0)")
    def finish(T):
        DD = DDs[T & 1]
        for r in range(4):
            o(f"    v_mul_f32 v{G+r}, v{G+16}, v{DD+r}")
        for r in range(4):
            o(f"    v_exp_f32 v{G+r}, v{G+r}")
        for r in range(4):
            o(f"    v_add_f32 v{G+r}, 1.0, v{G+r}")
        for r in range(4):
            o(f"    v_rcp_f32 v{G+r}, v{G+r}")
        Rr = 228 + 8 * T - (0 if T < 2 else 244 - 186)
        o(f"    v_cvt_pk_bf16_f32 v{Rr}, v{DD}, v{DD+1}")
        o(f"    v_cvt_pk_bf16_f32 v{Rr+1}, v{DD+2}, v{DD+3}")
        for blk in range(1, 4):
            for r in range(4):
                o(f"    v_mul_f32 v{DD+4*blk+r}, v{DD+4*blk+r}, v{G+r}")
            o(f"    v_cvt_pk_bf16_f32 v{Rr+2*blk}, v{DD+4*blk}, v{DD+4*blk+1}")
            o(f"    v_cvt_pk_bf16_f32 v{Rr+1+2*blk}, v{DD+4*blk+2}, v{DD+4*blk+3}")
    n = len(seq)
    pend_w = 0
    for i, (T, blk, f, off, first) in enumerate(seq):
        cnt = min(i + DEPTH, n) - 1 - i
        o(f"    s_waitcnt lgkmcnt({cnt})")
        d = vr(DDs[T & 1] + 4 * blk, 4)
        o(f"    v_mfma_f32_16x16x32_bf16 {d}, {vr(4*f,4)}, {vr(BB+4*(i%NB_),4)}, {'0' if first else d}")
        if i + DEPTH < n:
            bread(i + DEPTH)
        if i + 1 == n or seq[i + 1][0] != T:
            finish(T)
    for T in range(3):
        for blk in range(4):
            o(f"    ds_write_b64 v{vOt}, {vr(228 + 8 * T - (0 if T < 2 else 244 - 186) + 2*blk,2)} offset:{T*16*OUT_STRIDE + blk*128}")
    L("K2_NOGEMM")
    o(f"    s_lshl_b32 s{sT}, s{sWave}, 6")
    o(f"    v_add_u32 v4, s{sT}, v{vLane}            ; tid")
    o("    v_lshrrev_b32 v0, 5, v4")
    o("    v_and_b32 v1, 31, v4")
    o(f"    v_mul_u32_u24 v2, {OUT_STRIDE}, v0")
    o("    v_lshl_add_u32 v2, v1, 4, v2")
    if OUTT:
        o(f"    v_add_u32 v2, {OUTT}, v2")
    o("    v_lshlrev_b32 v3, 4, v4")
    o("    v_add_u32 v16, 8192, v3")
    o("    v_add_u32 v17, 16384, v3")
    o("    s_waitcnt lgkmcnt(0)")
    o("    s_barrier")
    stamp(8)
    for r in range(3):
        o(f"    ds_read_b128 {vr(4+4*r,4)}, v2 offset:{r*16*OUT_STRIDE}")
    for r in range(3):
        if r == 2:
            o(f"    s_cmp_ge_u32 s{sWave}, 4")
            o("    s_cbranch_scc1 K2_FIN")
        o(f"    s_waitcnt lgkmcnt({2-r})")
        o(f"    buffer_store_dwordx4 {vr(4+4*r,4)}, v{[3,16,17][r]}, {sr(sOUT,4)}, 0 offen {OUTST}")
    L("K2_FIN")
    if STAMP:
        o("    s_waitcnt vmcnt(0)")
    stamp(9)
    stamp_dump(sWS, sWS + 1, sWave, 8, 65 << 20)
    L("K2_END")
    o("    s_endpgm")
    L("CODE_END")

gen_k1()
gen_k2()

o('.section .rodata,"a"')
def kd(name, vgpr, sgpr):
    o(".p2align 6")
    o(f".amdhsa_kernel {name}")
    o(f"  .amdhsa_next_free_vgpr {vgpr}")
    o(f"  .amdhsa_next_free_sgpr {sgpr}")
    o(f"  .amdhsa_accum_offset {(vgpr+3)//4*4}")
    o("  .amdhsa_group_segment_fixed_size 0")
    o("  .amdhsa_kernarg_size 96")
    o("  .amdhsa_user_sgpr_count 2")
    o("  .amdhsa_user_sgpr_kernarg_segment_ptr 1")
    o("  .amdhsa_system_sgpr_workgroup_id_x 1")
    o("  .amdhsa_float_denorm_mode_32 3")
    o(".end_amdhsa_kernel")
kd("tp_part_kernel", 80, 102 if STAMP else 72)
kd("tp_main_kernel", 256, 102 if STAMP else 90)

open(OUTFILE, "w").write("\n".join(lines) + "\n")
print("wrote", OUTFILE, len(lines), "lines; K2 LDS", K2_LDS)
```

```python
import sys, os

P = int(sys.argv[1]) if len(sys.argv) > 1 else 2
OUTFILE = sys.argv[2] if len(sys.argv) > 2 else "standalone__tensor_product_equiv_equiformer__graph.s"
STAMP = int(os.environ.get("STAMP", "0"))
K1ST = os.environ.get("K1ST", "sc1")
K1LD2 = os.environ.get("K1LD2", "nt")
OUTST = os.environ.get("OUTST", "sc1")
K1LD = os.environ.get("K1LD", "nt")
EXP = os.environ.get("EXP", "")
XEND = os.environ.get("XEND", "")
NEARLY = int(os.environ.get("NEARLY", "4"))
K1PF = int(os.environ.get("K1PF", "0"))
PF0 = int(os.environ.get("PF0", "0"))
PFPOS = os.environ.get("PFPOS", "a")
IDXN = int(os.environ.get("IDXN", "0"))
IDXN2 = int(os.environ.get("IDXN2", "3"))
CPF = int(os.environ.get("CPF", "0"))
VW = int(os.environ.get("VW", "48"))
PRIO = [int(t) for t in os.environ.get("PRIO", "").split(",") if t]
XPF = int(os.environ.get("XPF", "0"))

N = 10000
E = 640000
NWG = 256
CH = 2500
BINM = 1677
PHM = (P << 23) // 10000
WS_REC = 0
WS_KEY = 10240000
WS_TAB = 10880000
WS_T2 = WS_TAB + 256 * 1024
WS_WF = WS_T2 + 256 * 8192
WS_WR = WS_WF + 40 * 1024
WS_END = WS_WR + 5 * 1024

lines = []
def o(s=""):
    lines.append(s)
def L(s):
    lines.append(s + ":")
def vr(a, n):
    return f"v[{a}:{a+n-1}]"
def sr(a, n):
    return f"s[{a}:{a+n-1}]"
def srd(d, lo, hi, nbytes):
    o(f"    s_mov_b32 s{d}, s{lo}")
    o(f"    s_and_b32 s{d+1}, s{hi}, 0xffff")
    o(f"    s_mov_b32 s{d+2}, {nbytes}")
    o(f"    s_mov_b32 s{d+3}, 0x00020000")

STV = 183
def stamp(i, vreg=STV):
    if STAMP:
        o("    s_memrealtime s[100:101]")
        o("    s_waitcnt lgkmcnt(0)")
        o(f"    v_writelane_b32 v{vreg}, s100, {i}")
def stamp_dump(wsl, wsh, wave_sgpr, nwaves, base, vreg=STV):
    if not STAMP:
        return
    o("    s_waitcnt lgkmcnt(0) vmcnt(0)")
    o("    s_mov_b64 exec, 0xffff")
    o(f"    s_mul_i32 s4, s2, {nwaves}")
    o(f"    s_add_u32 s4, s4, s{wave_sgpr}")
    o("    s_lshl_b32 s4, s4, 6")
    o(f"    s_add_u32 s4, s4, {base}")
    o(f"    s_mov_b32 s8, s{wsl}")
    o(f"    s_and_b32 s9, s{wsh}, 0xffff")
    o("    s_mov_b32 s10, 0x8000000")
    o("    s_mov_b32 s11, 0x00020000")
    o("    v_mbcnt_lo_u32_b32 v0, -1, 0")
    o("    v_lshl_add_u32 v0, v0, 2, s4")
    o(f"    buffer_store_dword v{vreg}, v0, s[8:11], 0 offen")
    o("    s_waitcnt vmcnt(0)")

K1_CNT = 0
K1_START = 1024
K1_KEY = 2048
K1_T2 = 4608
K1_REC = K1_T2 + 8192
K1_LDS = K1_REC + 40960

SLOTCAP = 3072
RAW = 0
RING = RAW + SLOTCAP * 16
RBLK = 1152
MASK = RING + 8 * 3 * RBLK
CNT = MASK + 1024
BASE = CNT + 512
MISC = BASE + 512
SD = MISC + 64
SDS = 1440
K2_LDS = SD + 48 * SDS
OUTT = RAW
OUT_STRIDE = 528
assert K2_LDS <= 163840, K2_LDS
assert SD % 16 == 0

o(f"; @launch kernel=tp_part_kernel grid=({NWG},1,1) block=(704,1,1) lds={K1_LDS}")
o(f"; @launch kernel=tp_main_kernel grid=({NWG},1,1) block=(512,1,1) lds={K2_LDS}")
o('.amdgcn_target "amdgcn-amd-amdhsa--gfx950"')
o(".text")

def gen_k1():
    SV = 79
    o(".globl tp_part_kernel")
    o(".p2align 8")
    o(".type tp_part_kernel,@function")
    L("tp_part_kernel")
    o(f"    s_cmp_ge_u32 s2, {NWG}")
    o("    s_cbranch_scc1 K1_END")
    stamp(0, SV)
    o("    s_load_dwordx4 s[4:7], s[0:1], 8")
    o("    s_load_dwordx4 s[8:11], s[0:1], 24")
    o("    s_load_dwordx2 s[16:17], s[0:1], 88   ; ws")
    o("    s_load_dwordx2 s[64:65], s[0:1], 0    ; x")
    def xtouch():
        o("    s_cmp_ge_u32 s50, 3")
        o("    s_cbranch_scc1 K1_NOX")
        srd(68, 64, 65, N * 512)
        o("    s_mul_i32 s66, s2, 20000")
        o("    s_and_b32 s66, s66, 0xffffff80")
        o("    v_lshl_add_u32 v77, v0, 7, s66")
        o("    v_cmp_gt_u32 vcc, 158, v0")
        o("    s_and_b64 exec, exec, vcc")
        o("    buffer_load_dword v78, v77, s[68:71], 0 offen")
        o("    s_mov_b64 exec, -1")
        L("K1_NOX")
    D, S, EA, RA, RB = 4, 8, 12, 20, 24
    BN, RK, ST = 28, 32, 36
    T = 40
    WFR = 48
    C = 56
    o("    v_lshrrev_b32 v70, 6, v0")
    o("    v_lshlrev_b32 v1, 2, v0               ; tid*4")
    o("    v_readfirstlane_b32 s50, v70")
    o(f"    s_mul_i32 s3, s2, {CH}")
    o("    v_add_u32 v2, s3, v1")
    o("    v_lshlrev_b32 v3, 2, v2")
    o(f"    v_lshlrev_b32 v{T}, 3, v2")
    o(f"    v_mul_u32_u24 v{T+1}, 6, v2")
    o("    s_cmp_eq_u32 s50, 10")
    o("    s_cbranch_scc1 K1_AUX")
    o("    s_waitcnt lgkmcnt(0)")
    stamp(1, SV)
    srd(20, 10, 11, E * 4)
    o(f"    buffer_load_dwordx4 {vr(D,4)}, v3, s[20:23], 0 offen {K1LD}")
    srd(24, 8, 9, E * 4)
    o(f"    buffer_load_dwordx4 {vr(S,4)}, v3, s[24:27], 0 offen {K1LD}")
    srd(28, 6, 7, E * 8)
    o(f"    buffer_load_dwordx4 {vr(EA,4)}, v{T}, s[28:31], 0 offen {K1LD2}")
    o(f"    buffer_load_dwordx4 {vr(EA+4,4)}, v{T}, s[28:31], 0 offen offset:16 {K1LD2}")
    srd(32, 4, 5, E * 6)
    o(f"    buffer_load_dwordx3 {vr(RA,3)}, v{T+1}, s[32:35], 0 offen {K1LD2}")
    o(f"    buffer_load_dwordx3 {vr(RB,3)}, v{T+1}, s[32:35], 0 offen offset:12 {K1LD2}")
    o("    v_lshlrev_b32 v71, 4, v0              ; tid*16")
    o("    v_and_b32 v70, 63, v0")
    o("    v_lshlrev_b32 v70, 4, v70             ; lane*16")
    o("    s_cmp_lt_u32 s50, 8")
    o("    s_cselect_b32 s51, -1, 0")
    for i in range(4):
        o(f"    v_mov_b32 v{60+i}, s51")
    o("    s_cbranch_scc0 K1_INIT2")
    o(f"    ds_write_b128 v71, v[60:63] offset:{K1_T2}")
    o("    s_branch K1_INIT3")
    L("K1_INIT2")
    o(f"    ds_write_b128 v70, v[60:63] offset:{K1_CNT}")
    L("K1_INIT3")
    o(f"    s_mul_i32 s36, s2, {CH*16}")
    o("    s_add_u32 s36, s16, s36")
    o("    s_addc_u32 s37, s17, 0")
    o("    s_and_b32 s37, s37, 0xffff")
    o(f"    s_mov_b32 s38, {CH*16}")
    o("    s_mov_b32 s39, 0x00020000")
    o(f"    s_add_u32 s40, s3, {WS_KEY}")
    o("    s_add_u32 s40, s16, s40")
    o("    s_addc_u32 s41, s17, 0")
    o("    s_and_b32 s41, s41, 0xffff")
    o(f"    s_mov_b32 s42, {CH}")
    o("    s_mov_b32 s43, 0x00020000")
    srd(44, 16, 17, WS_END)
    o("    s_mov_b32 s62, 0x05040100")
    o("    s_mov_b32 s63, 0x05040302")
    for r in range(1, 4):
        o(f"    v_add_u32 v{71+r}, {r*10240}, v71")
    o("    s_waitcnt lgkmcnt(0)")
    o("    s_barrier")
    o(f"    v_cmp_gt_u32 vcc, {CH//4}, v0")
    o("    s_mov_b64 s[60:61], vcc")
    o("    s_mov_b64 exec, vcc")
    o("    v_mov_b32 v2, 1")
    o("    s_waitcnt vmcnt(5)")
    stamp(2, SV)
    for j in range(4):
        o(f"    v_mul_u32_u24 v{D+j}, {BINM}, v{D+j}")
    for j in range(4):
        o(f"    v_lshrrev_b32 v{BN+j}, 14, v{D+j}")
    for j in range(4):
        o(f"    v_and_b32 v{BN+j}, 0x3fc, v{BN+j}")
    for j in range(4):
        o(f"    ds_add_rtn_u32 v{RK+j}, v{BN+j}, v2 offset:{K1_CNT}")
    o("    s_mov_b64 exec, -1")
    o("    s_waitcnt lgkmcnt(0)")
    o("    s_barrier")
    stamp(3, SV)
    o(f"    ds_read_b128 {vr(C,4)}, v70 offset:{K1_CNT}")
    for j in range(4):
        o(f"    v_and_b32 v{D+j}, 0xffff, v{D+j}")
        o(f"    v_mul_u32_u24 v{D+j}, 40018, v{D+j}")
        o(f"    v_bfe_u32 v{ST+j}, v{D+j}, 26, 3       ; local&7")
        o(f"    v_lshrrev_b32 v{D+j}, 29, v{D+j}       ; local>>3")
        o(f"    v_lshl_add_u32 v{D+j}, v{ST+j}, 4, v{D+j}")
    o("    s_waitcnt lgkmcnt(0)")
    o(f"    v_add_u32 v64, v{C}, v{C+1}")
    o(f"    v_add_u32 v65, v64, v{C+2}")
    o(f"    v_add_u32 v66, v65, v{C+3}")
    o("    v_mov_b32 v67, v66")
    fill = []
    for j in range(4):
        fill.append(f"    v_min_u32 v{WFR+j}, 29, v{RK+j}")
        fill.append(f"    v_lshlrev_b32 v{WFR+j}, 1, v{WFR+j}")
        fill.append(f"    v_subrev_u32 v{WFR+4+j}, 29, v{WFR+j}")
        fill.append(f"    v_min_u32 v{WFR+j}, v{WFR+j}, v{WFR+4+j}")
    def two():
        o(fill.pop(0)); o(fill.pop(0))
    two()
    for sh in (1, 2, 4, 8):
        o(f"    v_add_u32_dpp v67, v67, v67 row_shr:{sh} row_mask:0xf bank_mask:0xf bound_ctrl:0")
        two()
    o("    v_add_u32_dpp v67, v67, v67 row_bcast:15 row_mask:0xa bank_mask:0xf")
    two()
    o("    v_add_u32_dpp v67, v67, v67 row_bcast:31 row_mask:0xc bank_mask:0xf")
    o("    v_sub_u32 v60, v67, v66")
    o(f"    v_add_u32 v61, v60, v{C}")
    o("    v_add_u32 v62, v60, v64")
    o("    v_add_u32 v63, v60, v65")
    o(f"    ds_write_b128 v70, v[60:63] offset:{K1_START}")
    for j in range(4):
        o(f"    ds_read_b32 v{ST+j}, v{BN+j} offset:{K1_START}")
    while fill:
        o(fill.pop(0))
    for j in range(4):
        o(f"    v_lshl_add_u32 v{WFR+j}, v{BN+j}, 3, v{WFR+j}")
    o("    s_cmp_lg_u32 s50, 9")
    o("    s_cbranch_scc1 K1_NOTAB")
    o("    v_lshlrev_b32 v68, 3, v70")
    for j in range(4):
        o(f"    v_cmp_lt_u32 vcc, 30, v{C+j}")
        o(f"    v_or_b32 v69, 0x8000, v{60+j}")
        o(f"    v_lshl_or_b32 v{C+j}, v{C+j}, 16, v{60+j}")
        o(f"    v_cndmask_b32 v69, v{60+j}, v69, vcc")
        o(f"    ds_write_b16 v68, v69 offset:{K1_T2 + 32*j + 30}")
    L("K1_NOTAB")
    o("    s_mov_b64 exec, s[60:61]")
    if P > 1:
        o("    s_waitcnt vmcnt(4)")
        for j in range(4):
            o(f"    v_mul_u32_u24 v{WFR+4+j}, {PHM}, v{S+j}")
            o(f"    v_lshrrev_b32 v{WFR+4+j}, 23, v{WFR+4+j}")
            o(f"    v_mad_u32_u24 v{D+j}, v{WFR+4+j}, 5, v{D+j}")
    for j in range(4):
        o(f"    ds_write_b8 v{WFR+j}, v{D+j} offset:{K1_T2}")
    o("    s_waitcnt lgkmcnt(4)")
    for j in range(4):
        o(f"    v_add_u32 v{ST+j}, v{ST+j}, v{RK+j}     ; pos")
    for j in range(4):
        o(f"    ds_write_b8 v{ST+j}, v{D+j} offset:{K1_KEY}")
    for j in range(4):
        o(f"    v_lshlrev_b32 v{RK+j}, 4, v{ST+j}")
        o(f"    v_add_u32 v{RK+j}, {K1_REC}, v{RK+j}")
    o("    s_waitcnt vmcnt(1)")
    o(f"    v_alignbit_b32 v{T}, v{RA+2}, v{RA+1}, 16")
    o(f"    v_perm_b32 v{T+1}, v{S+1}, v{RA+2}, s63")
    o(f"    v_perm_b32 v{RA+1}, v{S}, v{RA+1}, s62")
    yp = [RA, T, RB, T + 2]
    for j in range(2):
        o(f"    ds_write2_b64 v{RK+j}, {vr(EA+2*j,2)}, {vr(yp[j],2)} offset0:0 offset1:1")
    o("    s_waitcnt vmcnt(0)")
    stamp(4, SV)
    o(f"    v_alignbit_b32 v{T+2}, v{RB+2}, v{RB+1}, 16")
    o(f"    v_perm_b32 v{T+3}, v{S+3}, v{RB+2}, s63")
    o(f"    v_perm_b32 v{RB+1}, v{S+2}, v{RB+1}, s62")
    for j in range(2, 4):
        o(f"    ds_write2_b64 v{RK+j}, {vr(EA+2*j,2)}, {vr(yp[j],2)} offset0:0 offset1:1")
    o("    s_mov_b64 exec, -1")
    o("    s_waitcnt lgkmcnt(0)")
    o("    s_barrier")
    stamp(5, SV)
    if XEND == "mid":
        xtouch()
    for r in range(4):
        o(f"    ds_read_b128 {vr(4+4*r,4)}, v71 offset:{K1_REC + r*10240}")
    o(f"    ds_read_b128 {vr(24,4)}, v71 offset:{K1_T2}")
    o(f"    ds_read_b32 v20, v1 offset:{K1_KEY}")
    for r in range(4):
        o(f"    s_waitcnt lgkmcnt({5-r})")
        o(f"    buffer_store_dwordx4 {vr(4+4*r,4)}, v{71+r}, s[36:39], 0 offen {K1ST}")
    o("    s_cmp_lt_u32 s50, 8")
    o("    s_cbranch_scc0 K1_NT2")
    o("    s_lshl_b32 s52, s2, 13")
    o(f"    s_add_u32 s52, s52, {WS_T2}")
    o("    s_waitcnt lgkmcnt(1)")
    o(f"    buffer_store_dwordx4 {vr(24,4)}, v71, s[44:47], s52 offen {K1ST}")
    L("K1_NT2")
    o("    s_cmp_lg_u32 s50, 9")
    o("    s_cbranch_scc1 K1_NT1")
    o("    s_lshl_b32 s52, s2, 10")
    o(f"    s_add_u32 s52, s52, {WS_TAB}")
    o(f"    buffer_store_dwordx4 {vr(C,4)}, v70, s[44:47], s52 offen {K1ST}")
    L("K1_NT1")
    o("    s_waitcnt lgkmcnt(0)")
    o("    buffer_store_dword v20, v1, s[40:43], 0 offen")
    if XEND == "end":
        xtouch()
    stamp(6, SV)
    if STAMP:
        o("    s_waitcnt vmcnt(0)")
    stamp(7, SV)
    stamp_dump(16, 17, 50, 10, 64 << 20, SV)
    L("K1_END")
    o("    s_endpgm")
    L("K1_AUX")
    o("    s_cmp_ge_u32 s2, 45")
    o("    s_cbranch_scc1 K1_END")
    o("    s_load_dwordx2 s[18:19], s[0:1], 40   ; w_rad")
    o("    s_load_dwordx4 s[12:15], s[0:1], 48")
    o("    v_and_b32 v0, 63, v0")
    o("    s_waitcnt lgkmcnt(0)")
    srd(44, 16, 17, WS_END)
    o("    s_cmp_ge_u32 s2, 40")
    o("    s_cbranch_scc1 K1_AUXR")
    o("    s_mul_i32 s51, s2, 26")
    o("    s_lshr_b32 s51, s51, 8                ; t")
    o("    s_mul_i32 s52, s51, 10")
    o("    s_sub_u32 s52, s2, s52                ; q")
    o("    s_cmp_lt_u32 s52, 4")
    o("    s_cselect_b32 s56, s12, s14")
    o("    s_cselect_b32 s57, s13, s15")
    o("    s_movk_i32 s58, 16384")
    o("    s_cselect_b32 s58, s58, 24576")
    o("    s_and_b32 s57, s57, 0xffff")
    o("    s_mov_b32 s59, 0x00020000")
    o("    v_lshrrev_b32 v70, 4, v0              ; g'")
    o("    v_and_b32 v71, 15, v0")
    o("    v_lshlrev_b32 v71, 1, v71")
    o("    s_lshl_b32 s53, s51, 5")
    o("    v_add_u32 v71, s53, v71               ; (16t+m)*2")
    o("    s_cmp_ge_u32 s52, 8")
    o("    s_cbranch_scc1 K1_FRAGX")
    o("    s_and_b32 s53, s52, 1")
    o("    s_lshl_b32 s53, s53, 5")
    o("    s_bfe_u32 s55, s52, 0x10001           ; (q>>1)&1")
    o("    s_add_u32 s53, s53, s55")
    o("    s_lshl_b32 s53, s53, 7")
    o("    v_lshl_add_u32 v71, v70, 10, v71")
    o("    v_add_u32 v71, s53, v71")
    o("    v_add_u32 v72, 8192, v71")
    for i in range(8):
        o(f"    buffer_load_ushort v{WFR+i}, v{71+(i&1)}, s[56:59], 0 offen offset:{(i>>1)*256}")
    o("    s_branch K1_FRAGW")
    L("K1_FRAGX")
    o("    s_and_b32 s53, s52, 1")
    o("    s_add_u32 s53, s53, 128")
    o("    s_lshl_b32 s53, s53, 7")
    o("    v_lshl_add_u32 v71, v70, 11, v71")
    o("    v_add_u32 v71, s53, v71")
    for i in range(8):
        o(f"    buffer_load_ushort v{WFR+i}, v71, s[56:59], 0 offen offset:{i*256}")
    L("K1_FRAGW")
    o("    s_waitcnt vmcnt(0)")
    for p in range(4):
        o(f"    v_lshl_or_b32 v{WFR+p}, v{WFR+2*p+1}, 16, v{WFR+2*p}")
    o("    s_branch K1_AUXS")
    L("K1_AUXR")
    srd(56, 18, 19, 2560)
    o("    v_and_b32 v70, 31, v0")
    o("    v_lshrrev_b32 v71, 5, v0")
    o("    v_lshlrev_b32 v70, 2, v70")
    o("    v_lshl_add_u32 v70, v71, 1, v70")
    o("    s_sub_u32 s52, s2, 40")
    o("    s_lshl_b32 s52, s52, 7")
    o("    v_add_u32 v70, s52, v70")
    for d in range(4):
        o(f"    buffer_load_ushort v{WFR+d}, v70, s[56:59], 0 offen offset:{d*640}")
    o("    s_waitcnt vmcnt(0)")
    for d in range(4):
        o(f"    v_lshlrev_b32 v{WFR+d}, 16, v{WFR+d}")
    L("K1_AUXS")
    o("    s_lshl_b32 s52, s2, 10")
    o(f"    s_add_u32 s52, s52, {WS_WF}")
    o("    v_lshlrev_b32 v70, 4, v0")
    o(f"    buffer_store_dwordx4 {vr(WFR,4)}, v70, s[44:47], s52 offen")
    o("    s_endpgm")

def gen_k2():
    B, ACC, S, W = 0, 64, 128, 184
    A = [204, 208]
    VO = [212, 220]
    LT, AM1, AM2 = 228, 232, 236
    RR = 240
    ZR = 244
    vA, vV, vRaw, vCw, vVw, vN4, vMask, vEnds, vPar, vIdx = range(246, 256)
    vLane = 125
    sX, sWS, sOUT, sWR = 12, 16, 20, 24
    sBin, sNN, sWave, sMode, sJlo, sMax = 28, 29, 30, 31, 32, 33
    sNs, sGen, sCnt, sSeg, sK, sLo, sHi, sRel, sRet, sRem = range(34, 44)
    sD0, sD1, sD2 = 44, 45, 46
    sEnd, sNext = 54, 55
    sT, sT2, sT3 = 47, 48, 49
    sSave = 50
    sAny2 = 52
    sM1 = 56
    sM2 = 72
    sLM = 24
    sOv = 26

    def accr(v, u, d):
        cc = 2 * (d >> 1) + (u >> 1)
        e = 2 * (u & 1) + (d & 1)
        return ACC + 16 * v + 4 * cc + e
    def wreg(p, d):
        return W + 4 * p + d

    o(".globl tp_main_kernel")
    o(".p2align 8")
    o(".type tp_main_kernel,@function")
    L("tp_main_kernel")
    o(f"    s_cmp_ge_u32 s2, {NWG}")
    o("    s_cbranch_scc1 K2_END")
    stamp(0)
    o("    s_load_dwordx2 s[4:5], s[0:1], 0      ; x")
    o("    s_load_dwordx2 s[8:9], s[0:1], 72     ; out")
    o("    s_load_dwordx2 s[10:11], s[0:1], 88   ; ws")
    o("    v_lshrrev_b32 v1, 6, v0")
    o(f"    v_and_b32 v{vLane}, 63, v0")
    o(f"    v_readfirstlane_b32 s{sWave}, v1")
    o(f"    s_and_b32 s{sBin}, s2, 7")
    o(f"    s_lshl_b32 s{sBin}, s{sBin}, 5")
    o(f"    s_lshr_b32 s{sT}, s2, 3")
    o(f"    s_add_u32 s{sBin}, s{sBin}, s{sT}")
    HD, KY, RK1, RK2, AD1, AD2, RO, TM = 64, 72, 80, 88, 96, 104, 112, 120
    vW0, vJ = 126, 127

    def prefetch0():
        o(f"    s_lshr_b32 s{sT}, s2, 3")
        o(f"    s_lshl_b32 s{sT}, s{sT}, 3")
        o(f"    s_add_u32 s{sT}, s{sT}, s{sWave}")
        o(f"    s_lshl_b32 s{sT}, s{sT}, 13")
        o(f"    v_lshl_add_u32 v{RR}, v{vLane}, 7, s{sT}")
        for i in range(PF0):
            o(f"    buffer_load_dword v{RR+1}, v{RR}, {sr(sX,4)}, 0 offen")
            if i + 1 < PF0:
                o(f"    v_add_u32 v{RR}, {256*8192}, v{RR}")
    def w_loads():
        o(f"    s_mov_b32 s{sT}, {WS_WR}")
        for p in range(5):
            if p == 4:
                o(f"    s_add_u32 s{sT}, s{sT}, 4096")
            o(f"    buffer_load_dwordx4 {vr(W+4*p,4)}, v{TM+1}, {sr(sWS,4)}, s{sT} offen offset:{(p%4)*1024}")
    def lane_id():
        o(f"    v_mbcnt_lo_u32_b32 v{vLane}, -1, 0")
        o(f"    v_mbcnt_hi_u32_b32 v{vLane}, -1, v{vLane}")
    def lane_prep():
        o(f"    v_lshrrev_b32 v{vW0}, 4, v{vLane}")
        o(f"    s_lshl_b32 s{sT}, s{sWave}, 5")
        o(f"    v_add_u32 v{vW0}, s{sT}, v{vW0}")
        o(f"    v_and_b32 v{vJ}, 15, v{vLane}")
        o(f"    v_lshlrev_b32 v{TM}, 10, v{vW0}")
    def hdr_loads():
        o(f"    s_lshl_b32 s{sT}, s{sBin}, 2")
        o(f"    s_add_u32 s{sT}, s{sT}, {WS_TAB}")
        for i in range(8):
            o(f"    buffer_load_dword v{HD+i}, v{TM}, {sr(sWS,4)}, s{sT} offen")
            if i < 7:
                o(f"    s_add_u32 s{sT}, s{sT}, 4096")
    lane_prep()
    o(f"    v_lshlrev_b32 v{TM+1}, 13, v{vW0}")
    o(f"    v_lshl_add_u32 v{TM+1}, v{vJ}, 1, v{TM+1}")
    o(f"    s_lshl_b32 s{sT}, s{sBin}, 5")
    o(f"    s_add_u32 s{sT}, s{sT}, {WS_T2}")
    o("    s_waitcnt lgkmcnt(0)")
    stamp(1)
    srd(sWS, 10, 11, WS_END)
    for i in range(8):
        o(f"    buffer_load_ushort v{KY+i}, v{TM+1}, {sr(sWS,4)}, s{sT} offen")
        if i < 7:
            o(f"    s_add_u32 s{sT}, s{sT}, 32768")
    srd(sX, 4, 5, N * 512)
    o(f"    v_and_b32 v{TM+2}, 31, v{vLane}")
    o(f"    v_lshlrev_b32 v{vN4}, 2, v{TM+2}")
    o(f"    v_lshrrev_b32 v{TM+3}, 5, v{vLane}      ; g = l>>5")
    o(f"    s_lshl_b32 s{sT}, s{sBin}, 16")
    o(f"    s_add_u32 s{sT}, s{sT}, {BINM-1}")
    o(f"    s_mul_hi_u32 s{sT2}, s{sT}, 0x27144e     ; n0")
    o(f"    s_add_u32 s{sT}, s{sT}, 0x10000")
    o(f"    s_mul_hi_u32 s{sT}, s{sT}, 0x27144e")
    o(f"    s_min_u32 s{sT}, s{sT}, {N}")
    o(f"    s_sub_u32 s{sNN}, s{sT}, s{sT2}")
    o(f"    s_lshl_b32 s{sT}, s{sT2}, 9")
    o(f"    s_add_u32 s{sOUT}, s8, s{sT}")
    o(f"    s_addc_u32 s{sOUT+1}, s9, 0")
    o(f"    s_and_b32 s{sOUT+1}, s{sOUT+1}, 0xffff")
    o(f"    s_lshl_b32 s{sOUT+2}, s{sNN}, 9")
    o(f"    s_mov_b32 s{sOUT+3}, 0x00020000")
    o(f"    s_mov_b32 s{sMode}, 0")
    o(f"    s_mov_b32 s{sJlo}, 0")
    o("    v_lshrrev_b32 v5, 3, v0               ; e")
    o("    v_and_b32 v6, 7, v0")
    o("    v_lshlrev_b32 v6, 1, v6               ; 8ha+2p")
    o("    v_sub_u32 v5, v5, v6                  ; e-(8ha+2p)")
    o("    v_med3_i32 v5, v5, 0, 2")
    o("    v_lshlrev_b32 v5, 4, v5")
    o("    v_mov_b32 v6, -1")
    o("    v_mov_b32 v7, 0")
    o("    v_lshlrev_b64 v[6:7], v5, v[6:7]")
    o("    v_cmp_gt_u32 vcc, 256, v0")
    o("    v_lshlrev_b32 v3, 2, v0")
    o(f"    v_add_u32 v3, {MASK}, v3")
    o("    v_cndmask_b32 v2, 0, v7, vcc")
    o("    ds_write_b32 v3, v2")
    o("    v_mov_b32 v2, 0")
    o(f"    v_mov_b32 v3, {MISC}")
    o("    ds_write2_b32 v3, v2, v2 offset0:0 offset1:1")
    for i in range(55):
        o(f"    v_mov_b32 v{S+i}, 0")
    o(f"    v_mov_b32 v{ZR}, 0")
    o(f"    v_mov_b32 v{ZR+1}, 0")
    o(f"    v_and_b32 v4, 1, v{vLane}")
    o(f"    v_sub_u32 v{vPar}, 0, v4")
    o(f"    v_bfe_u32 v4, v{vLane}, 2, 1")
    o(f"    v_mul_u32_u24 v{vIdx}, 0x5555, v4")
    o(f"    v_add_u32 v{vIdx}, 0x8888, v{vIdx}       ; 0x8888 / 0xdddd")
    o(f"    v_lshlrev_b32 v{vMask}, 4, v{TM+3}")
    o(f"    v_add_u32 v{vMask}, {MASK}, v{vMask}")
    o("    s_waitcnt lgkmcnt(0)")
    o(f"    s_movk_i32 s{sT}, {CH}")
    o(f"    v_mad_u32_u24 v{TM+2}, v{vW0}, s{sT}, v{vJ}   ; w0*2500 + j")
    o(f"    s_mov_b32 s{sLM}, 0x7fff7fff")
    o(f"    s_mov_b32 s{sLM+1}, 0x7fff7fff")
    o(f"    s_mov_b64 {sr(sOv,2)}, -1")
    o(f"    s_mov_b64 {sr(sAny2,2)}, 0")
    o(f"    v_mov_b32 v{TM+4}, {CNT}")
    o(f"    v_lshlrev_b32 v{TM+1}, 4, v{vLane}")
    o("    s_barrier")
    def rec_load(i):
        o(f"    s_mov_b32 s{sT}, {i*4*CH*16}")
        o(f"    buffer_load_dwordx4 {vr(4*i,4)}, v{RO+i}, {sr(sWS,4)}, s{sT} offen")
    o(f"    v_mov_b32 v{TM}, 1")
    for i in range(8):
        o(f"    s_waitcnt vmcnt({7 - i + min(i, NEARLY)})")
        if i == 0:
            stamp(2)
        o(f"    v_mov_b32_dpp v{RO+i}, v{KY+i} row_newbcast:15 row_mask:0xf bank_mask:0xf")
        o(f"    v_and_b32 v{AD1+i}, 0xff, v{KY+i}")
        o(f"    v_and_b32 v{RO+i}, 0xfff, v{RO+i}")
        o(f"    v_cmp_gt_u32 vcc, 0x80, v{AD1+i}")
        o(f"    v_add_lshl_u32 v{RO+i}, v{RO+i}, v{TM+2}, 4")
        o(f"    v_lshl_add_u32 v{AD1+i}, v{AD1+i}, 2, v{TM+4}")
        o(f"    s_and_b64 {sr(sM1+2*i,2)}, vcc, {sr(sLM,2)}")
        if i < NEARLY:
            rec_load(i)
        o(f"    v_cmp_gt_u32 vcc, 0x8000, v{KY+i}")
        o(f"    s_mov_b64 exec, {sr(sM1+2*i,2)}")
        o(f"    ds_add_rtn_u32 v{RK1+i}, v{AD1+i}, v{TM}")
        o("    s_mov_b64 exec, -1")
        o(f"    s_and_b64 {sr(sM2+2*i,2)}, vcc, {sr(sLM,2)}")
        o(f"    s_and_b64 {sr(sOv,2)}, {sr(sOv,2)}, vcc")
        o(f"    s_or_b64 {sr(sAny2,2)}, {sr(sAny2,2)}, {sr(sM2+2*i,2)}")
    o("    s_cbranch_scc0 K2_NO2B")
    o("    s_waitcnt lgkmcnt(4)")
    for i in range(8):
        o(f"    s_mov_b64 exec, {sr(sM2+2*i,2)}")
        o(f"    s_cbranch_execz K2_NK2{i}")
        o(f"    v_lshrrev_b32 v{AD2+i}, 8, v{KY+i}")
        o(f"    v_lshl_add_u32 v{AD2+i}, v{AD2+i}, 2, v{TM+4}")
        o(f"    ds_add_rtn_u32 v{RK2+i}, v{AD2+i}, v{TM}")
        L(f"K2_NK2{i}")
    o("    s_mov_b64 exec, -1")
    L("K2_NO2B")
    o(f"    s_or_b64 {sr(sOv,2)}, {sr(sOv,2)}, {sr(sLM,2)}")
    o(f"    s_cmp_eq_u64 {sr(sOv,2)}, -1")
    o("    s_cbranch_scc1 K2_RANKD")
    o(f"    v_mov_b32 v{TM}, {MISC}")
    o(f"    ds_write_b32 v{TM}, v{TM}")
    L("K2_RANKD")
    c0, c1, i0, i1, tt0, tt1, e0, e1, p0, p1, a0, a1, b0, b1, ad, mx = range(204, 220)
    o(f"    v_lshlrev_b32 v{ad}, 2, v{vLane}")
    o(f"    v_add_u32 v{ad}, {CNT}, v{ad}")
    o(f"    v_mov_b32 v{mx}, {MISC}")
    o("    s_waitcnt lgkmcnt(0)")
    o("    s_barrier")
    stamp(3)
    o(f"    ds_read2st64_b32 v[{c0}:{c1}], v{ad} offset0:0 offset1:1")
    o(f"    ds_read_b32 v{mx}, v{mx}")
    o(f"    s_cmp_lg_u32 s{sMode}, 0")
    o("    s_cbranch_scc1 K2_NOLATE")
    for i in range(NEARLY, NEARLY + 2):
        rec_load(i)
    L("K2_NOLATE")
    o("    s_waitcnt lgkmcnt(0)")
    o(f"    v_mov_b32 v{i0}, v{c0}")
    o(f"    v_mov_b32 v{i1}, v{c1}")
    o(f"    v_readfirstlane_b32 s{sT3}, v{mx}")
    for sh in (1, 2, 4, 8):
        o(f"    v_add_u32_dpp v{i0}, v{i0}, v{i0} row_shr:{sh} row_mask:0xf bank_mask:0xf bound_ctrl:0")
        o(f"    v_add_u32_dpp v{i1}, v{i1}, v{i1} row_shr:{sh} row_mask:0xf bank_mask:0xf bound_ctrl:0")
        o("    s_nop 0")
    o(f"    v_mov_b32_dpp v{tt0}, v{i0} row_newbcast:15 row_mask:0xf bank_mask:0xf")
    o(f"    v_mov_b32_dpp v{tt1}, v{i1} row_newbcast:15 row_mask:0xf bank_mask:0xf")
    o(f"    v_add_u32 v{e0}, 15, v{tt0}")
    o(f"    v_add_u32 v{e1}, 15, v{tt1}")
    o(f"    v_and_b32 v{e0}, -16, v{e0}")
    o(f"    v_and_b32 v{e1}, -16, v{e1}")
    o(f"    v_mov_b32 v{p0}, v{e0}")
    o(f"    v_mov_b32 v{p1}, v{e1}")
    o(f"    v_add_u32_dpp v{e0}, v{e0}, v{e0} row_bcast:15 row_mask:0xa bank_mask:0xf")
    o(f"    v_add_u32_dpp v{e1}, v{e1}, v{e1} row_bcast:15 row_mask:0xa bank_mask:0xf")
    o("    s_nop 0")
    o(f"    v_add_u32_dpp v{e0}, v{e0}, v{e0} row_bcast:31 row_mask:0xc bank_mask:0xf")
    o(f"    v_add_u32_dpp v{e1}, v{e1}, v{e1} row_bcast:31 row_mask:0xc bank_mask:0xf")
    o("    s_nop 0")
    o(f"    v_readlane_b32 s{sT}, v{e0}, 63")
    o(f"    v_readlane_b32 s{sT2}, v{e1}, 63")
    o(f"    v_sub_u32 v{a0}, v{e0}, v{tt0}")
    o(f"    v_add_u32 v{e1}, s{sT}, v{e1}")
    o(f"    v_add_u32 v{a0}, v{a0}, v{i0}            ; absolute end slot of entry")
    o(f"    v_sub_u32 v{a1}, v{e1}, v{tt1}")
    o(f"    v_add_u32 v{a1}, v{a1}, v{i1}")
    o(f"    v_sub_u32 v{b0}, v{a0}, v{c0}")
    o(f"    v_sub_u32 v{b1}, v{a1}, v{c1}")
    o(f"    ds_write2st64_b32 v{ad}, v{b0}, v{b1} offset0:2 offset1:3")
    o(f"    s_add_u32 s{sT}, s{sT}, s{sT2}")
    o(f"    s_cmp_gt_u32 s{sT}, {SLOTCAP-96}")
    o(f"    s_cselect_b32 s{sT}, 1, 0")
    o(f"    s_cmp_lg_u32 s{sT3}, 0")
    o(f"    s_cselect_b32 s{sT}, 1, s{sT}")
    o(f"    s_cmp_gt_u32 s{sT}, s{sMode}")
    o("    s_cbranch_scc1 K2_GOSLOW")
    for i in range(8):
        o(f"    ds_read_b32 v{AD1+i}, v{AD1+i} offset:512")
    o(f"    s_cmp_lg_u32 s{sMode}, 0")
    o("    s_cbranch_scc1 K2_NO2C")
    for i in range(NEARLY + 2, 8):
        rec_load(i)
    w_loads()
    o(f"    s_cmp_eq_u64 {sr(sAny2,2)}, 0")
    o("    s_cbranch_scc1 K2_NO2C")
    o("    s_waitcnt lgkmcnt(4)")
    for i in range(8):
        o(f"    s_mov_b64 exec, {sr(sM2+2*i,2)}")
        o(f"    s_cbranch_execz K2_NR2{i}")
        o(f"    s_mov_b32 s{sT}, {i*4*CH*16}")
        o(f"    buffer_load_dwordx4 {vr(32+4*i,4)}, v{RO+i}, {sr(sWS,4)}, s{sT} offen offset:240")
        o(f"    ds_read_b32 v{AD2+i}, v{AD2+i} offset:512")
        L(f"K2_NR2{i}")
    o("    s_mov_b64 exec, -1")
    L("K2_NO2C")
    o(f"    s_cmp_lt_u32 s{sWave}, 4")
    o("    s_cselect_b64 vcc, -1, 0")
    o(f"    v_cndmask_b32 v{a0}, v{a1}, v{a0}, vcc")
    o(f"    v_cndmask_b32 v{e0}, v{e1}, v{e0}, vcc")
    o(f"    v_cndmask_b32 v{p0}, v{p1}, v{p0}, vcc")
    o(f"    v_cndmask_b32 v{tt0}, v{tt1}, v{tt0}, vcc")
    o(f"    s_and_b32 s{sSeg}, s{sWave}, 3")
    o(f"    s_lshl_b32 s{sSeg}, s{sSeg}, 4")
    o("    s_nop 0")
    o(f"    v_readlane_b32 s{sT}, v{e0}, s{sSeg}")
    o(f"    v_readlane_b32 s{sT2}, v{p0}, s{sSeg}")
    o(f"    v_readlane_b32 s{sT3}, v{tt0}, s{sSeg}")
    o(f"    v_and_b32 v{b0}, 15, v{vLane}")
    o(f"    v_cmp_le_u32 vcc, {5*P}, v{b0}")
    o(f"    v_mov_b32 v{b0}, 0x7fffffff")
    o(f"    s_sub_u32 s{sT}, s{sT}, s{sT2}")
    o(f"    s_sub_u32 s{sLo}, s{sT2}, s{sT3}         ; pad")
    o(f"    s_lshr_b32 s{sNs}, s{sT2}, 4")
    o(f"    v_subrev_u32 v{vEnds}, s{sT}, v{a0}")
    o(f"    v_cndmask_b32 v{vEnds}, v{vEnds}, v{b0}, vcc")
    o(f"    v_lshrrev_b32 v{vRaw}, 1, v{vLane}")
    o(f"    v_add_u32 v{vRaw}, s{sT}, v{vRaw}")
    o(f"    v_lshlrev_b32 v{vRaw}, 4, v{vRaw}")
    if RAW:
        o(f"    v_add_u32 v{vRaw}, {RAW}, v{vRaw}")
    o(f"    s_mul_i32 s{sT}, s{sWave}, {3*RBLK}")
    o(f"    s_add_u32 s{sT}, s{sT}, {RING}")
    o(f"    s_add_u32 s{sT2}, s{sT}, 1024")
    o(f"    v_lshrrev_b32 v{b0}, 5, v{vLane}         ; ha / g")
    o(f"    v_bfe_u32 v{b1}, v{vLane}, 2, 2          ; rho")
    o(f"    v_lshl_add_u32 v{b1}, v{b0}, 3, v{b1}")
    o(f"    v_bfe_u32 v{c0}, v{vLane}, 1, 1")
    o(f"    v_bfe_u32 v{c1}, v{vLane}, 4, 1")
    o(f"    v_lshl_add_u32 v{c0}, v{c1}, 1, v{c0}")
    o(f"    v_lshl_add_u32 v{c0}, v{c0}, 3, s{sT}")
    o(f"    v_lshl_add_u32 v{vA}, v{b1}, 5, v{c0}")
    o(f"    v_lshl_add_u32 v{vV}, v{b0}, 4, s{sT2}")
    o(f"    v_lshl_add_u32 v{vCw}, v{vLane}, 4, s{sT}")
    o(f"    v_lshrrev_b32 v{b0}, 1, v{vLane}")
    o(f"    v_lshl_add_u32 v{vVw}, v{b0}, 2, s{sT2}")
    o("    s_waitcnt lgkmcnt(0)")
    for i in range(8):
        o(f"    v_add_lshl_u32 v{AD1+i}, v{AD1+i}, v{RK1+i}, 4")
    stamp(4)
    for i in range(8):
        o(f"    s_mov_b64 exec, {sr(sM1+2*i,2)}")
        o(f"    s_waitcnt vmcnt({12-i})")
        o(f"    ds_write_b128 v{AD1+i}, {vr(4*i,4)} offset:{RAW}")
    o("    s_waitcnt vmcnt(0)")
    o(f"    s_cmp_eq_u64 {sr(sAny2,2)}, 0")
    o("    s_cbranch_scc1 K2_NO2D")
    for i in range(8):
        o(f"    s_mov_b64 exec, {sr(sM2+2*i,2)}")
        o(f"    s_cbranch_execz K2_NS2{i}")
        o(f"    v_add_lshl_u32 v{AD2+i}, v{AD2+i}, v{RK2+i}, 4")
        o(f"    ds_write_b128 v{AD2+i}, {vr(32+4*i,4)} offset:{RAW}")
        L(f"K2_NS2{i}")
    L("K2_NO2D")
    o("    s_mov_b64 exec, -1")
    o("    s_waitcnt lgkmcnt(0)")
    o("    s_barrier")
    stamp(5)
    if STAMP:
        o("    s_memtime s[100:101]")
        o("    s_waitcnt lgkmcnt(0)")
        o(f"    v_writelane_b32 v{STV}, s100, 12")
    if "prio" in EXP:
        o(f"    s_cmp_lt_u32 s{sWave}, 4")
        o("    s_cbranch_scc1 K2_NOPRIO")
        o("    s_setprio 1")
        L("K2_NOPRIO")

    def convert(ct, rr=RR, off=0):
        CO = AM1
        a0_, a1_, y0, y1, y2, m0, m1, vo = range(ct, ct + 8)
        o(f"    v_bitop3_b32 v{CO}, v{vPar}, v{rr+1}, v{rr} bitop3:0xca")
        o(f"    v_lshlrev_b32 v{y0}, 16, v{rr+2}")
        o(f"    v_lshlrev_b32 v{a0_}, 16, v{CO}")
        o(f"    v_and_b32 v{a1_}, 0xffff0000, v{CO}")
        o(f"    v_and_b32 v{y1}, 0xffff0000, v{rr+2}")
        o(f"    v_lshlrev_b32 v{y2}, 16, v{rr+3}")
        for u, y in enumerate((y0, y1, y2)):
            o(f"    v_mul_f32 v{m0}, v{a0_}, v{y}")
            o(f"    v_mul_f32 v{m1}, v{a1_}, v{y}")
            o(f"    v_cvt_pk_bf16_f32 v{CO+1+u}, v{m0}, v{m1}")
        o(f"    v_lshrrev_b32 v{vo}, 7, v{rr+3}")
        o(f"    v_and_b32 v{vo}, {hex(int(os.environ.get('SRCMASK','0x1fffe00'),16))}, v{vo}")
        o(f"    ds_write_b128 v{vCw}, {vr(CO,4)} offset:{off}")
        o(f"    ds_write_b32 v{vVw}, v{vo} offset:{off}")

    def loads_tile(x, v, vo):
        for r in range(8):
            o(f"    buffer_load_dword v{B+32*x+8*v+r}, v{vo+r}, {sr(sX,4)}, 0 offen offset:{v*128}")
    def smf(x, v, areg):
        if "q1" in EXP and v != 0:
            return
        if "q2" in EXP and v >= 2:
            return
        if "nomfma" not in EXP:
            o(f"    v_smfmac_f32_32x32x32_bf16 {vr(ACC+16*v,16)}, {vr(areg,4)}, {vr(B+32*x+8*v,8)}, v{vIdx}")
    def zero_tile(v):
        if "nomfma" not in EXP or "keepz" in EXP:
            o(f"    v_mfma_f32_32x32x8_bf16 {vr(ACC+16*v,16)}, {vr(ZR,2)}, {vr(ZR,2)}, 0")
    def mask_read(dst, sreg, tmp):
        o(f"    s_lshl_b32 s{sT}, s{sreg}, 5")
        o(f"    v_add_u32 v{tmp}, s{sT}, v{vMask}")
        o(f"    ds_read_b128 {vr(dst,4)}, v{tmp}")
    terms = [(0, 0, 0, 0, 1)] + [(2 + j, 2, 0, j + 1, 1) for j in range(3)]
    cross = {(2, 3): (0, 1), (3, 2): (0, -1), (3, 1): (1, 1), (1, 3): (1, -1), (1, 2): (2, 1), (2, 1): (2, -1)}
    for v in range(1, 4):
        terms.append((5 + v - 1, 3, v, 0, 1))
        for u in range(1, 4):
            if u == v:
                terms.append((1, 1, v, u, 1))
            else:
                i, sg = cross[(u, v)]
                terms.append((8 + i, 4, v, u, sg))
    def fmas(v):
        if "noepi" in EXP:
            return
        o(f"    s_set_gpr_idx_on s{sK}, 0xc")
        if IDXN2 >= 0:
            o(f"    s_nop {IDXN2}")
        tv = [t for t in terms if t[2] == v]
        for d in range(4):
            for (si, p, v_, u, sg) in tv:
                sreg = S + si
                if sg > 0:
                    o(f"    v_fmac_f32 v{sreg}, v{wreg(p,d)}, v{accr(v,u,d)}")
                else:
                    o(f"    v_fma_f32 v{sreg}, -v{wreg(p,d)}, v{accr(v,u,d)}, v{sreg}")
        o("    s_set_gpr_idx_off")
        o(f"    s_nop {IDXN}")
    def next_k():
        o(f"    s_add_u32 s{sK}, s{sK}, 11")
        o(f"    s_cmp_eq_u32 s{sK}, 55")
        o(f"    s_cselect_b32 s{sK}, 0, s{sK}")
    def schedule_next():
        o(f"    s_sub_u32 s{sT}, s{sEnd}, 1")
        o(f"    s_and_b32 s{sHi}, s{sT}, 15")
        o(f"    s_add_u32 s{sHi}, s{sHi}, 1")
        o(f"    s_lshr_b32 s{sT}, s{sT}, 4")
        o(f"    s_sub_i32 s{sT2}, s{sNs}, 2")
        o(f"    s_add_u32 s{sT3}, s{sGen}, 1")
        o(f"    s_max_i32 s{sT2}, s{sT2}, s{sT3}")
        o(f"    s_min_u32 s{sGen}, s{sT}, s{sT2}")
        o(f"    s_sub_u32 s{sCnt}, s{sGen}, s{sT3}")

    o(f"    s_cmp_eq_u32 s{sNs}, 0")
    o("    s_cbranch_scc1 K2_STREAM_DONE")
    o(f"    ds_read_b128 {vr(RR,4)}, v{vRaw}")
    o(f"    ds_read_b128 {vr(A[0],4)}, v{vRaw} offset:512")
    if PRIO:
        o("    s_setprio 3")
    o(f"    s_mov_b32 s{sD0}, {RBLK}                ; delta for vA at end of this batch")
    o(f"    s_mov_b32 s{sD1}, {RBLK}")
    o(f"    s_mov_b32 s{sD2}, {-2*RBLK}")
    o(f"    s_mov_b32 s{sK}, 0")
    for v in range(4):
        zero_tile(v)
    o("    s_waitcnt lgkmcnt(1)")
    convert(VO[1])
    o(f"    ds_read_b128 {vr(VO[0],4)}, v{vV}")
    o(f"    ds_read_b128 {vr(VO[0]+4,4)}, v{vV} offset:32")
    o("    s_waitcnt lgkmcnt(4)")
    convert(VO[1], A[0], RBLK)
    o(f"    ds_read_b128 {vr(VO[1],4)}, v{vV} offset:64")
    o(f"    ds_read_b128 {vr(VO[1]+4,4)}, v{vV} offset:96")
    o(f"    v_add_u32 v{vRaw}, 1024, v{vRaw}")
    o(f"    v_add_u32 v{vCw}, {2*RBLK}, v{vCw}")
    o(f"    v_add_u32 v{vVw}, {2*RBLK}, v{vVw}")
    o(f"    v_add_u32 v{vV}, {RBLK}, v{vV}")
    o("    s_waitcnt lgkmcnt(4)")
    for r in range(8):
        o(f"    v_add_u32 v{VO[0]+r}, v{VO[0]+r}, v{vN4}")
    for v in range(4):
        loads_tile(0, v, VO[0])
    o(f"    s_cmp_eq_u32 s{sNs}, 1")
    o("    s_cbranch_scc1 K2_INITD")
    o("    s_waitcnt lgkmcnt(0)")
    for r in range(8):
        o(f"    v_add_u32 v{VO[1]+r}, v{VO[1]+r}, v{vN4}")
    for v in range(4):
        if v == 3:
            o("    s_waitcnt vmcnt(55)")
        loads_tile(1, v, VO[1])
    L("K2_INITD")
    o(f"    v_readlane_b32 s{sEnd}, v{vEnds}, s{sSeg}")
    o(f"    ds_read_b64_tr_b16 {vr(A[0],2)}, v{vA}")
    o(f"    ds_read_b64_tr_b16 {vr(A[0]+2,2)}, v{vA} offset:128")
    o(f"    ds_read_b128 {vr(VO[0],4)}, v{vV}")
    o(f"    ds_read_b128 {vr(VO[0]+4,4)}, v{vV} offset:32")
    o(f"    s_mov_b32 s{sGen}, 0")
    o(f"    s_mov_b32 s{sCnt}, 0")

    o(".p2align 3")
    L("K2_LOOP")
    for x in range(2):
        a_cur, a_nxt = A[x], A[x ^ 1]
        v_cur, v_nxt = VO[x], VO[x ^ 1]
        if x == 1:
            o(f"    v_add_u32 v{vA}, s{sD0}, v{vA}")
            o(f"    v_add_u32 v{vV}, s{sD1}, v{vV}")
        nx = x ^ 1
        if x == 0:
            o(f"    ds_read_b128 {vr(RR,4)}, v{vRaw}")
        o(f"    ds_read_b64_tr_b16 {vr(a_nxt,2)}, v{vA} offset:{nx*512}")
        o(f"    ds_read_b64_tr_b16 {vr(a_nxt+2,2)}, v{vA} offset:{nx*512+128}")
        o(f"    ds_read_b128 {vr(v_nxt,4)}, v{vV} offset:{nx*64}")
        o(f"    ds_read_b128 {vr(v_nxt+4,4)}, v{vV} offset:{nx*64+32}")
        o(f"    s_sub_u32 s{sCnt}, s{sCnt}, 1")
        o(f"    s_waitcnt lgkmcnt({5 if x == 0 else 4})")
        for r in range(8):
            o(f"    v_add_u32 v{v_cur+r}, v{v_cur+r}, v{vN4}")
        o(f"    s_cbranch_scc1 K2_SP{x}")
        for v in range(4):
            o("    s_waitcnt vmcnt(55)")
            smf(x, v, a_cur)
            loads_tile(x, v, v_cur)
        L(f"K2_NEXT{x}")
        if x == 0:
            o("    s_waitcnt lgkmcnt(4)")
            convert(v_cur)
            o(f"    v_add_u32 v{vRaw}, 512, v{vRaw}")
            o(f"    v_add_u32 v{vCw}, s{sD2}, v{vCw}")
            o(f"    v_add_u32 v{vVw}, s{sD2}, v{vVw}")
        else:
            o(f"    s_mov_b32 s{sT}, s{sD0}")
            o(f"    s_mov_b32 s{sD0}, s{sD1}")
            o(f"    s_mov_b32 s{sD1}, s{sD2}")
            o(f"    s_mov_b32 s{sD2}, s{sT}")
            o("    s_branch K2_LOOP")

    for x in range(2):
        a_cur = A[x]
        v_cur = VO[x]
        L(f"K2_SP{x}")
        o(f"    s_add_u32 s{sT}, s{sSeg}, 1")
        o(f"    v_readlane_b32 s{sNext}, v{vEnds}, s{sT}")
        o(f"    s_sub_u32 s{sRem}, s{sNs}, s{sGen}")
        o(f"    s_lshl_b32 s{sT3}, s{sGen}, 4")
        o(f"    s_cmp_le_u32 s{sRem}, 2")
        o(f"    s_cbranch_scc1 K2_GEN{x}")
        o(f"    s_cmp_eq_u32 s{sGen}, 0")
        o(f"    s_cbranch_scc1 K2_GEN{x}")
        o(f"    s_add_u32 s{sT2}, s{sT3}, 16")
        o(f"    s_cmp_le_u32 s{sNext}, s{sT2}")
        o(f"    s_cbranch_scc1 K2_GEN{x}")
        for r in range(4):
            o(f"    v_and_b32 v{AM1+r}, v{a_cur+r}, v{LT+r}")
        for r in range(4):
            o(f"    v_bitop3_b32 v{AM2+r}, v{a_cur+r}, v{LT+r}, v{LT+r} bitop3:0x30")
        o("    s_waitcnt vmcnt(31)")
        for v in range(4):
            smf(x, v, AM1)
        o(f"    s_mov_b32 s{sSeg}, s{sT}")
        o(f"    s_mov_b32 s{sEnd}, s{sNext}")
        schedule_next()
        mask_read(LT, sHi, a_cur)
        for v in range(4):
            fmas(v)
            zero_tile(v)
            smf(x, v, AM2)
            loads_tile(x, v, v_cur)
        next_k()
        o(f"    s_branch K2_NEXT{x}")
        L(f"K2_GEN{x}")
        o(f"    s_cmp_ge_u32 s{sRem}, 2")
        o(f"    s_cbranch_scc1 K2_GW{x}")
        o("    s_waitcnt vmcnt(0)")
        L(f"K2_GW{x}")
        o(f"    s_cmp_eq_u32 s{sGen}, 0")
        o(f"    s_cselect_b32 s{sLo}, s{sLo}, 0")
        L(f"K2_GL{x}")
        o(f"    s_sub_u32 s{sRel}, s{sEnd}, s{sT3}")
        o(f"    s_min_u32 s{sHi}, s{sRel}, 16")
        mask_read(LT, sHi, AM1)
        mask_read(AM2, sLo, AM1 + 1)
        o("    s_waitcnt vmcnt(31) lgkmcnt(0)")
        for r in range(4):
            o(f"    v_bitop3_b32 v{AM1+r}, v{a_cur+r}, v{LT+r}, v{AM2+r} bitop3:0x40")
        o("    s_nop 1")
        for v in range(4):
            smf(x, v, AM1)
        o(f"    s_cmp_gt_u32 s{sRel}, 16")
        o(f"    s_cbranch_scc1 K2_GD{x}")
        o(f"    s_mov_b32 s{sRet}, {x}")
        o("    s_branch K2_EPI")
        L(f"K2_GD{x}")
        o(f"    s_cmp_le_u32 s{sRem}, 2")
        o(f"    s_cbranch_scc1 K2_NL{x}")
        for v in range(4):
            loads_tile(x, v, v_cur)
        L(f"K2_NL{x}")
        o(f"    s_cmp_eq_u32 s{sRem}, 1")
        o("    s_cbranch_scc1 K2_STREAM_DONE")
        schedule_next()
        mask_read(LT, sHi, AM1)
        o(f"    s_branch K2_NEXT{x}")

    L("K2_EPI")
    o(f"    s_add_u32 s{sSeg}, s{sSeg}, 1")
    o(f"    s_mov_b32 s{sLo}, s{sHi}")
    o(f"    v_readlane_b32 s{sEnd}, v{vEnds}, s{sSeg}")
    o("    s_nop 7")
    for v in range(4):
        fmas(v)
        zero_tile(v)
    next_k()
    o(f"    s_cmp_eq_u32 s{sRet}, 0")
    o("    s_cbranch_scc1 K2_GL0")
    o("    s_branch K2_GL1")

    L("K2_GOSLOW")
    o(f"    s_mov_b32 s{sMode}, 1")
    w_loads()
    o("    s_waitcnt vmcnt(0)")
    L("K2_SLOW_ROUND")
    o("    s_waitcnt lgkmcnt(0)")
    o("    s_barrier")
    o("    s_nop 7")
    lane_id()
    o(f"    v_lshlrev_b32 v2, 2, v{vLane}")
    o(f"    v_add_u32 v2, {CNT}, v2")
    o("    v_mov_b32 v3, 0")
    o("    ds_write2st64_b32 v2, v3, v3 offset0:0 offset1:1")
    lane_prep()
    hdr_loads()
    o(f"    v_add_u32 v{TM+1}, s{sJlo}, v{vJ}")
    o(f"    s_movk_i32 s{sT}, {CH}")
    o(f"    v_mad_u32_u24 v{TM+2}, v{vW0}, s{sT}, v{TM+1}")
    o(f"    v_cmp_gt_u32 {sr(sSave,2)}, 8, v{vJ}")
    o(f"    s_mov_b64 {sr(sAny2,2)}, 0")
    o(f"    v_mov_b32 v{TM+3}, 0")
    o("    s_waitcnt vmcnt(0)")
    for i in range(8):
        o(f"    v_lshrrev_b32 v{TM}, 16, v{HD+i}")
        o(f"    v_and_b32 v{AD2+i}, 0xffff, v{HD+i}")
        o(f"    v_cmp_lt_u32 vcc, v{TM+1}, v{TM}")
        o(f"    v_add_u32 v{AD2+i}, v{AD2+i}, v{TM+2}")
        o(f"    v_lshlrev_b32 v{RO+i}, 4, v{AD2+i}")
        o(f"    v_max_u32 v{TM+3}, v{TM+3}, v{TM}")
        o(f"    v_mov_b32 v{AD1+i}, 0")
        o(f"    s_and_b64 {sr(sM1+2*i,2)}, vcc, {sr(sSave,2)}")
        o(f"    s_mov_b64 exec, {sr(sM1+2*i,2)}")
        o(f"    s_cbranch_execz K2_SR{i}")
        o(f"    s_mov_b32 s{sT}, {i*4*CH*16}")
        o(f"    s_mov_b32 s{sT2}, {WS_KEY + i*4*CH}")
        o(f"    buffer_load_dwordx4 {vr(4*i,4)}, v{RO+i}, {sr(sWS,4)}, s{sT} offen")
        o(f"    buffer_load_ubyte v{AD1+i}, v{AD2+i}, {sr(sWS,4)}, s{sT2} offen")
        L(f"K2_SR{i}")
        o("    s_mov_b64 exec, -1")
    o(f"    v_mov_b32 v{TM}, {MISC+4}")
    o(f"    ds_max_u32 v{TM}, v{TM+3}")
    o(f"    v_mov_b32 v{TM+4}, {CNT}")
    o("    s_waitcnt vmcnt(0) lgkmcnt(0)")
    o("    s_barrier")
    o(f"    ds_read_b32 v{TM}, v{TM}")
    o("    s_waitcnt lgkmcnt(0)")
    o(f"    v_readfirstlane_b32 s{sMax}, v{TM}")
    o(f"    v_mov_b32 v{TM}, 1")
    for i in range(8):
        o(f"    v_lshl_add_u32 v{AD1+i}, v{AD1+i}, 2, v{TM+4}")
    for i in range(8):
        o(f"    s_mov_b64 exec, {sr(sM1+2*i,2)}")
        o(f"    ds_add_rtn_u32 v{RK1+i}, v{AD1+i}, v{TM}")
    o("    s_mov_b64 exec, -1")
    o("    s_branch K2_RANKD")

    L("K2_STREAM_DONE")
    o(f"    s_cmp_eq_u32 s{sMode}, 0")
    o("    s_cbranch_scc1 K2_POSTG")
    o(f"    s_add_u32 s{sJlo}, s{sJlo}, 8")
    o(f"    s_cmp_lt_u32 s{sJlo}, s{sMax}")
    o("    s_cbranch_scc1 K2_SLOW_ROUND")

    L("K2_POSTG")
    stamp(6)
    if STAMP:
        o("    s_memtime s[100:101]")
        o("    s_waitcnt lgkmcnt(0)")
        o(f"    v_writelane_b32 v{STV}, s100, 13")
    t0, t1 = 226, 227
    vLane = 246
    o(f"    v_mbcnt_lo_u32_b32 v{vLane}, -1, 0")
    o(f"    v_mbcnt_hi_u32_b32 v{vLane}, -1, v{vLane}")
    o(f"    v_lshlrev_b32 v{t1}, 4, v{vLane}")
    o(f"    s_cmp_ge_u32 s{sWave}, 4")
    o("    s_cbranch_scc1 K2_NOWF")
    o(f"    s_mul_i32 s{sT}, s{sWave}, 10240")
    o(f"    s_add_u32 s{sT}, s{sT}, {WS_WF}")
    for f in range(10):
        if f == 4 or f == 8:
            o(f"    s_add_u32 s{sT}, s{sT}, 4096")
        o(f"    buffer_load_dwordx4 {vr(4*f,4)}, v{t1}, {sr(sWS,4)}, s{sT} offen offset:{(f%4)*1024}")
    L("K2_NOWF")
    o(f"    s_mul_i32 s{sT}, s{sWave}, {SDS}")
    o(f"    s_add_u32 s{sT}, s{sT}, {SD}")
    o(f"    v_lshl_add_u32 v{A[0]}, v{vLane}, 2, s{sT}")
    o(f"    s_add_u32 s{sT}, s{sT}, 1024")
    o(f"    v_lshl_add_u32 v{A[0]+1}, v{vLane}, 1, s{sT}")
    assert (8 * SDS) % 256 == 0
    ku = 8 * SDS // 256
    for k in range(5):
        s_ = S + 11 * k
        tq = 208 + 6 * (k & 1)
        o(f"    v_cvt_pk_bf16_f32 v{tq}, v{s_}, v{s_+1}")
        for j in range(3):
            o(f"    v_cvt_pk_bf16_f32 v{tq+1+j}, v{s_+2+j}, v{s_+5+j}")
        o(f"    v_cvt_pk_bf16_f32 v{tq+4}, v{s_+8}, v{s_+9}")
        o(f"    v_cvt_pk_bf16_f32 v{tq+5}, v{s_+10}, v{s_+10}")
        o(f"    ds_write2st64_b32 v{A[0]}, v{tq}, v{tq+1} offset0:{k*ku} offset1:{k*ku+1}")
        o(f"    ds_write2st64_b32 v{A[0]}, v{tq+2}, v{tq+3} offset0:{k*ku+2} offset1:{k*ku+3}")
        o(f"    ds_write_b16 v{A[0]+1}, v{tq+4} offset:{k*8*SDS}")
        o(f"    ds_write_b16_d16_hi v{A[0]+1}, v{tq+4} offset:{k*8*SDS+128}")
        o(f"    ds_write_b16 v{A[0]+1}, v{tq+5} offset:{k*8*SDS+256}")
    vB_, vOt = 224, 225
    o(f"    v_and_b32 v{t0}, 15, v{vLane}")
    o(f"    v_lshrrev_b32 v{t1}, 4, v{vLane}")
    o(f"    v_mul_u32_u24 v{vB_}, {SDS}, v{t0}")
    o(f"    v_lshl_add_u32 v{vB_}, v{t1}, 4, v{vB_}")
    o(f"    v_add_u32 v{vB_}, {SD}, v{vB_}")
    o(f"    v_mul_u32_u24 v{vOt}, {OUT_STRIDE}, v{t0}")
    o(f"    v_lshl_add_u32 v{vOt}, v{t1}, 3, v{vOt}")
    o(f"    s_lshl_b32 s{sT}, s{sWave}, 5")
    o(f"    s_add_u32 s{sT}, s{sT}, {OUTT}")
    o(f"    v_add_u32 v{vOt}, s{sT}, v{vOt}")
    o("    s_waitcnt lgkmcnt(0)")
    o("    s_barrier")
    stamp(7)
    o(f"    s_cmp_ge_u32 s{sWave}, 4")
    o("    s_cbranch_scc1 K2_NOGEMM")
    seq = []
    for T in range(3):
        for blk in range(4):
            items = [(ks if blk == 0 else 4 + ks, blk * 256 + 64 * ks) for ks in range(4)]
            if blk:
                items += [(8 + ks, 1024 + 128 * (blk - 1) + 64 * ks) for ks in range(2)]
            for n_, (f, off) in enumerate(items):
                seq.append((T, blk, f, T * 16 * SDS + off, n_ == 0))
    BB = 64
    NB_ = 12
    DEPTH = 10
    DDs = [128, 144]
    G = 160
    def bread(i):
        o(f"    ds_read_b128 {vr(BB+4*(i%NB_),4)}, v{vB_} offset:{seq[i][3]}")
    for i in range(DEPTH):
        bread(i)
    o(f"    v_mov_b32 v{G+16}, 0xbfb8aa3b           ; -log2(e)")
    o("    s_waitcnt vmcnt(0)")
    def finish(T):
        DD = DDs[T & 1]
        for r in range(4):
            o(f"    v_mul_f32 v{G+r}, v{G+16}, v{DD+r}")
        for r in range(4):
            o(f"    v_exp_f32 v{G+r}, v{G+r}")
        for r in range(4):
            o(f"    v_add_f32 v{G+r}, 1.0, v{G+r}")
        for r in range(4):
            o(f"    v_rcp_f32 v{G+r}, v{G+r}")
        Rr = 228 + 8 * T - (0 if T < 2 else 244 - 186)
        o(f"    v_cvt_pk_bf16_f32 v{Rr}, v{DD}, v{DD+1}")
        o(f"    v_cvt_pk_bf16_f32 v{Rr+1}, v{DD+2}, v{DD+3}")
        for blk in range(1, 4):
            for r in range(4):
                o(f"    v_mul_f32 v{DD+4*blk+r}, v{DD+4*blk+r}, v{G+r}")
            o(f"    v_cvt_pk_bf16_f32 v{Rr+2*blk}, v{DD+4*blk}, v{DD+4*blk+1}")
            o(f"    v_cvt_pk_bf16_f32 v{Rr+1+2*blk}, v{DD+4*blk+2}, v{DD+4*blk+3}")
    n = len(seq)
    pend_w = 0
    for i, (T, blk, f, off, first) in enumerate(seq):
        cnt = min(i + DEPTH, n) - 1 - i
        o(f"    s_waitcnt lgkmcnt({cnt})")
        d = vr(DDs[T & 1] + 4 * blk, 4)
        o(f"    v_mfma_f32_16x16x32_bf16 {d}, {vr(4*f,4)}, {vr(BB+4*(i%NB_),4)}, {'0' if first else d}")
        if i + DEPTH < n:
            bread(i + DEPTH)
        if i + 1 == n or seq[i + 1][0] != T:
            finish(T)
    for T in range(3):
        for blk in range(4):
            o(f"    ds_write_b64 v{vOt}, {vr(228 + 8 * T - (0 if T < 2 else 244 - 186) + 2*blk,2)} offset:{T*16*OUT_STRIDE + blk*128}")
    L("K2_NOGEMM")
    o(f"    s_lshl_b32 s{sT}, s{sWave}, 6")
    o(f"    v_add_u32 v4, s{sT}, v{vLane}            ; tid")
    o("    v_lshrrev_b32 v0, 5, v4")
    o("    v_and_b32 v1, 31, v4")
    o(f"    v_mul_u32_u24 v2, {OUT_STRIDE}, v0")
    o("    v_lshl_add_u32 v2, v1, 4, v2")
    if OUTT:
        o(f"    v_add_u32 v2, {OUTT}, v2")
    o("    v_lshlrev_b32 v3, 4, v4")
    o("    v_add_u32 v16, 8192, v3")
    o("    v_add_u32 v17, 16384, v3")
    o("    s_waitcnt lgkmcnt(0)")
    o("    s_barrier")
    stamp(8)
    for r in range(3):
        o(f"    ds_read_b128 {vr(4+4*r,4)}, v2 offset:{r*16*OUT_STRIDE}")
    for r in range(3):
        if r == 2:
            o(f"    s_cmp_ge_u32 s{sWave}, 4")
            o("    s_cbranch_scc1 K2_FIN")
        o(f"    s_waitcnt lgkmcnt({2-r})")
        o(f"    buffer_store_dwordx4 {vr(4+4*r,4)}, v{[3,16,17][r]}, {sr(sOUT,4)}, 0 offen {OUTST}")
    L("K2_FIN")
    if STAMP:
        o("    s_waitcnt vmcnt(0)")
    stamp(9)
    stamp_dump(sWS, sWS + 1, sWave, 8, 65 << 20)
    L("K2_END")
    o("    s_endpgm")
    L("CODE_END")

gen_k1()
gen_k2()

o('.section .rodata,"a"')
def kd(name, vgpr, sgpr):
    o(".p2align 6")
    o(f".amdhsa_kernel {name}")
    o(f"  .amdhsa_next_free_vgpr {vgpr}")
    o(f"  .amdhsa_next_free_sgpr {sgpr}")
    o(f"  .amdhsa_accum_offset {(vgpr+3)//4*4}")
    o("  .amdhsa_group_segment_fixed_size 0")
    o("  .amdhsa_kernarg_size 96")
    o("  .amdhsa_user_sgpr_count 2")
    o("  .amdhsa_user_sgpr_kernarg_segment_ptr 1")
    o("  .amdhsa_system_sgpr_workgroup_id_x 1")
    o("  .amdhsa_float_denorm_mode_32 3")
    o(".end_amdhsa_kernel")
kd("tp_part_kernel", 80, 102 if STAMP else 72)
kd("tp_main_kernel", 256, 102 if STAMP else 90)

open(OUTFILE, "w").write("\n".join(lines) + "\n")
print("wrote", OUTFILE, len(lines), "lines; K2 LDS", K2_LDS)
```

```python
import sys, os

P = 1
OUTFILE = sys.argv[1] if len(sys.argv) > 1 else "standalone__tensor_product_equiv_equiformer__graph.s"
STAMP = int(os.environ.get("STAMP", "0"))
K1ST = os.environ.get("K1ST", "sc1")
K1LD2 = os.environ.get("K1LD2", "nt")
OUTST = os.environ.get("OUTST", "sc1")
K1LD = os.environ.get("K1LD", "nt")
EXP = os.environ.get("EXP", "")
K1MAP = int(os.environ.get("K1MAP", "0"))
PK = int(os.environ.get("PK", "0"))
RMASK = int(os.environ.get("RMASK", "1"))
WLDS = int(os.environ.get("WLDS", "1"))
XEND = os.environ.get("XEND", "")
NEARLY = int(os.environ.get("NEARLY", "4"))
K1PF = int(os.environ.get("K1PF", "0"))
PF0 = int(os.environ.get("PF0", "1"))
PFPOS = os.environ.get("PFPOS", "d")
PFI = int(os.environ.get("PFI", "5"))
PFL = int(os.environ.get("PFL", "32"))
IDXN = int(os.environ.get("IDXN", "0"))
IDXN2 = int(os.environ.get("IDXN2", "3"))
CPF = int(os.environ.get("CPF", "2"))
VW = int(os.environ.get("VW", "48"))
PRIO = [int(t) for t in os.environ.get("PRIO", "2,3,4").split(",") if t]
XPF = int(os.environ.get("XPF", "0"))

N = 10000
E = 640000
NWG = 256
CH = 2500
BINM = 1677
PHM = (P << 23) // 10000
WS_REC = 0
WS_KEY = 10240000
WS_TAB = 10880000
WS_T2 = WS_TAB + 256 * 1024
WS_WF = WS_T2 + 256 * 8192
WS_WR = WS_WF + 40 * 1024
WS_S32 = WS_WR + 5 * 1024
WS_END = WS_S32 + 256 * 40 * 2816

lines = []
def o(s=""):
    lines.append(s)
def L(s):
    lines.append(s + ":")
def vr(a, n):
    return f"v[{a}:{a+n-1}]"
def sr(a, n):
    return f"s[{a}:{a+n-1}]"
def srd(d, lo, hi, nbytes):
    o(f"    s_mov_b32 s{d}, s{lo}")
    o(f"    s_and_b32 s{d+1}, s{hi}, 0xffff")
    o(f"    s_mov_b32 s{d+2}, {nbytes}")
    o(f"    s_mov_b32 s{d+3}, 0x00020000")

STV = 183
def stamp(i, vreg=STV):
    if STAMP:
        o("    s_memrealtime s[100:101]")
        o("    s_waitcnt lgkmcnt(0)")
        o(f"    v_writelane_b32 v{vreg}, s100, {i}")
def stamp_dump(wsl, wsh, wave_sgpr, nwaves, base, vreg=STV):
    if not STAMP:
        return
    o("    s_waitcnt lgkmcnt(0) vmcnt(0)")
    o("    s_mov_b64 exec, 0xffff")
    o(f"    s_mul_i32 s4, s2, {nwaves}")
    o(f"    s_add_u32 s4, s4, s{wave_sgpr}")
    o("    s_lshl_b32 s4, s4, 6")
    o(f"    s_add_u32 s4, s4, {base}")
    o(f"    s_mov_b32 s8, s{wsl}")
    o(f"    s_and_b32 s9, s{wsh}, 0xffff")
    o("    s_mov_b32 s10, 0x8000000")
    o("    s_mov_b32 s11, 0x00020000")
    o("    v_mbcnt_lo_u32_b32 v0, -1, 0")
    o("    v_lshl_add_u32 v0, v0, 2, s4")
    o(f"    buffer_store_dword v{vreg}, v0, s[8:11], 0 offen")
    o("    s_waitcnt vmcnt(0)")

K1_CNT = 0
K1_START = 1024
K1_KEY = 2048
K1_T2 = 4608
K1_REC = K1_T2 + 8192
K1_LDS = K1_REC + 40960

SLOTCAP = 3072
RAW = 0
RING = RAW + SLOTCAP * 16
RBLK = 1152
MASK = RING + 8 * 3 * RBLK
CNT = MASK + 1024
BASE = CNT + 512
MISC = BASE + 512
SD = MISC + 64
SDS = 1440
K2_LDS = SD + 48 * SDS
WST = SD + 40 * SDS
OUTT = RAW
OUT_STRIDE = 528
assert K2_LDS <= 163840, K2_LDS
assert SD % 16 == 0

o(f"; @launch kernel=tp_part_kernel grid=({NWG},1,1) block=(704,1,1) lds={K1_LDS}")
o(f"; @launch kernel=tp_main_kernel grid=({NWG},1,1) block=(512,1,1) lds={K2_LDS}")
o('.amdgcn_target "amdgcn-amd-amdhsa--gfx950"')
o(".text")

def gen_k1():
    SV = 79
    o(".globl tp_part_kernel")
    o(".p2align 8")
    o(".type tp_part_kernel,@function")
    L("tp_part_kernel")
    o(f"    s_cmp_ge_u32 s2, {NWG}")
    o("    s_cbranch_scc1 K1_END")
    if K1MAP:
        o("    s_and_b32 s3, s2, 7")
        o("    s_lshl_b32 s3, s3, 5")
        o("    s_lshr_b32 s2, s2, 3")
        o("    s_add_u32 s2, s2, s3")
    stamp(0, SV)
    o("    s_load_dwordx4 s[4:7], s[0:1], 8")
    o("    s_load_dwordx4 s[8:11], s[0:1], 24")
    o("    s_load_dwordx2 s[16:17], s[0:1], 88   ; ws")
    o("    s_load_dwordx2 s[64:65], s[0:1], 0    ; x")
    def code_pf():
        o("    s_cmp_lg_u32 s50, 8")
        o("    s_cbranch_scc1 K1_NOCPF")
        o("    s_getpc_b64 s[66:67]")
        L("K1_PC")
        o("    v_and_b32 v78, 3, v0")
        o("    s_lshr_b32 s68, s2, 3")
        o("    s_lshl_b32 s68, s68, 9")
        o("    v_lshl_add_u32 v78, v78, 7, s68")
        o(f"    v_min_u32 v77, CODE_END-K1_PC-4, v78")
        o("    s_mov_b64 exec, 15")
        o(f"    global_load_dword v76, v77, s[66:67]")
        o("    s_mov_b64 exec, -1")
        L("K1_NOCPF")
    def xtouch():
        o("    s_cmp_ge_u32 s50, 3")
        o("    s_cbranch_scc1 K1_NOX")
        srd(68, 64, 65, N * 512)
        o("    s_mul_i32 s66, s2, 20000")
        o("    s_and_b32 s66, s66, 0xffffff80")
        o("    v_lshl_add_u32 v77, v0, 7, s66")
        o("    v_cmp_gt_u32 vcc, 158, v0")
        o("    s_and_b64 exec, exec, vcc")
        o("    buffer_load_dword v78, v77, s[68:71], 0 offen")
        o("    s_mov_b64 exec, -1")
        L("K1_NOX")
    D, S, EA, RA, RB = 4, 8, 12, 20, 24
    BN, RK, ST = 28, 32, 36
    T = 40
    WFR = 48
    C = 56
    o("    v_lshrrev_b32 v70, 6, v0")
    o("    v_lshlrev_b32 v1, 2, v0               ; tid*4")
    o("    v_readfirstlane_b32 s50, v70")
    o(f"    s_mul_i32 s3, s2, {CH}")
    o("    v_add_u32 v2, s3, v1")
    o("    v_lshlrev_b32 v3, 2, v2")
    o(f"    v_lshlrev_b32 v{T}, 3, v2")
    o(f"    v_mul_u32_u24 v{T+1}, 6, v2")
    o("    s_cmp_eq_u32 s50, 10")
    o("    s_cbranch_scc1 K1_AUX")
    o("    s_waitcnt lgkmcnt(0)")
    stamp(1, SV)
    srd(20, 10, 11, E * 4)
    o(f"    buffer_load_dwordx4 {vr(D,4)}, v3, s[20:23], 0 offen {K1LD}")
    srd(24, 8, 9, E * 4)
    o(f"    buffer_load_dwordx4 {vr(S,4)}, v3, s[24:27], 0 offen {K1LD}")
    srd(28, 6, 7, E * 8)
    o(f"    buffer_load_dwordx4 {vr(EA,4)}, v{T}, s[28:31], 0 offen {K1LD2}")
    o(f"    buffer_load_dwordx4 {vr(EA+4,4)}, v{T}, s[28:31], 0 offen offset:16 {K1LD2}")
    srd(32, 4, 5, E * 6)
    o(f"    buffer_load_dwordx3 {vr(RA,3)}, v{T+1}, s[32:35], 0 offen {K1LD2}")
    o(f"    buffer_load_dwordx3 {vr(RB,3)}, v{T+1}, s[32:35], 0 offen offset:12 {K1LD2}")
    o("    v_lshlrev_b32 v71, 4, v0              ; tid*16")
    o("    v_and_b32 v70, 63, v0")
    o("    v_lshlrev_b32 v70, 4, v70             ; lane*16")
    o("    s_cmp_lt_u32 s50, 8")
    o("    s_cselect_b32 s51, -1, 0")
    for i in range(4):
        o(f"    v_mov_b32 v{60+i}, s51")
    o("    s_cbranch_scc0 K1_INIT2")
    o(f"    ds_write_b128 v71, v[60:63] offset:{K1_T2}")
    o("    s_branch K1_INIT3")
    L("K1_INIT2")
    o(f"    ds_write_b128 v70, v[60:63] offset:{K1_CNT}")
    L("K1_INIT3")
    o(f"    s_mul_i32 s36, s2, {CH*16}")
    o("    s_add_u32 s36, s16, s36")
    o("    s_addc_u32 s37, s17, 0")
    o("    s_and_b32 s37, s37, 0xffff")
    o(f"    s_mov_b32 s38, {CH*16}")
    o("    s_mov_b32 s39, 0x00020000")
    o(f"    s_add_u32 s40, s3, {WS_KEY}")
    o("    s_add_u32 s40, s16, s40")
    o("    s_addc_u32 s41, s17, 0")
    o("    s_and_b32 s41, s41, 0xffff")
    o(f"    s_mov_b32 s42, {CH}")
    o("    s_mov_b32 s43, 0x00020000")
    srd(44, 16, 17, WS_END)
    o("    s_mov_b32 s62, 0x05040100")
    o("    s_mov_b32 s63, 0x05040302")
    for r in range(1, 4):
        o(f"    v_add_u32 v{71+r}, {r*10240}, v71")
    o("    s_waitcnt lgkmcnt(0)")
    o("    s_barrier")
    if CPF == 1:
        code_pf()
    o(f"    v_cmp_gt_u32 vcc, {CH//4}, v0")
    o("    s_mov_b64 s[60:61], vcc")
    o("    s_mov_b64 exec, vcc")
    o("    v_mov_b32 v2, 1")
    o("    s_waitcnt vmcnt(5)")
    stamp(2, SV)
    for j in range(4):
        o(f"    v_mul_u32_u24 v{D+j}, {BINM}, v{D+j}")
    for j in range(4):
        o(f"    v_lshrrev_b32 v{BN+j}, 14, v{D+j}")
    for j in range(4):
        o(f"    v_and_b32 v{BN+j}, 0x3fc, v{BN+j}")
    for j in range(4):
        o(f"    ds_add_rtn_u32 v{RK+j}, v{BN+j}, v2 offset:{K1_CNT}")
    o("    s_mov_b64 exec, -1")
    o("    s_waitcnt lgkmcnt(0)")
    o("    s_barrier")
    stamp(3, SV)
    o(f"    ds_read_b128 {vr(C,4)}, v70 offset:{K1_CNT}")
    for j in range(4):
        o(f"    v_and_b32 v{D+j}, 0xffff, v{D+j}")
        o(f"    v_mul_u32_u24 v{D+j}, 40018, v{D+j}")
        o(f"    v_bfe_u32 v{ST+j}, v{D+j}, 26, 3       ; local&7")
        o(f"    v_lshrrev_b32 v{D+j}, 29, v{D+j}       ; local>>3")
        o(f"    v_lshl_add_u32 v{D+j}, v{ST+j}, 4, v{D+j}")
    o("    s_waitcnt lgkmcnt(0)")
    o(f"    v_add_u32 v64, v{C}, v{C+1}")
    o(f"    v_add_u32 v65, v64, v{C+2}")
    o(f"    v_add_u32 v66, v65, v{C+3}")
    o("    v_mov_b32 v67, v66")
    fill = []
    for j in range(4):
        fill.append(f"    v_min_u32 v{WFR+j}, 29, v{RK+j}")
        fill.append(f"    v_lshlrev_b32 v{WFR+j}, 1, v{WFR+j}")
        fill.append(f"    v_subrev_u32 v{WFR+4+j}, 29, v{WFR+j}")
        fill.append(f"    v_min_u32 v{WFR+j}, v{WFR+j}, v{WFR+4+j}")
    def two():
        o(fill.pop(0)); o(fill.pop(0))
    two()
    for sh in (1, 2, 4, 8):
        o(f"    v_add_u32_dpp v67, v67, v67 row_shr:{sh} row_mask:0xf bank_mask:0xf bound_ctrl:0")
        two()
    o("    v_add_u32_dpp v67, v67, v67 row_bcast:15 row_mask:0xa bank_mask:0xf")
    two()
    o("    v_add_u32_dpp v67, v67, v67 row_bcast:31 row_mask:0xc bank_mask:0xf")
    o("    v_sub_u32 v60, v67, v66")
    o(f"    v_add_u32 v61, v60, v{C}")
    o("    v_add_u32 v62, v60, v64")
    o("    v_add_u32 v63, v60, v65")
    o(f"    ds_write_b128 v70, v[60:63] offset:{K1_START}")
    for j in range(4):
        o(f"    ds_read_b32 v{ST+j}, v{BN+j} offset:{K1_START}")
    while fill:
        o(fill.pop(0))
    for j in range(4):
        o(f"    v_lshl_add_u32 v{WFR+j}, v{BN+j}, 3, v{WFR+j}")
    o("    s_cmp_lg_u32 s50, 9")
    o("    s_cbranch_scc1 K1_NOTAB")
    o("    v_lshlrev_b32 v68, 3, v70")
    for j in range(4):
        o(f"    v_cmp_lt_u32 vcc, 30, v{C+j}")
        o(f"    v_or_b32 v69, 0x8000, v{60+j}")
        o(f"    v_lshl_or_b32 v{C+j}, v{C+j}, 16, v{60+j}")
        o(f"    v_cndmask_b32 v69, v{60+j}, v69, vcc")
        o(f"    ds_write_b16 v68, v69 offset:{K1_T2 + 32*j + 30}")
    L("K1_NOTAB")
    o("    s_mov_b64 exec, s[60:61]")
    if P > 1:
        o("    s_waitcnt vmcnt(4)")
        for j in range(4):
            o(f"    v_mul_u32_u24 v{WFR+4+j}, {PHM}, v{S+j}")
            o(f"    v_lshrrev_b32 v{WFR+4+j}, 23, v{WFR+4+j}")
            o(f"    v_mad_u32_u24 v{D+j}, v{WFR+4+j}, 5, v{D+j}")
    for j in range(4):
        o(f"    ds_write_b8 v{WFR+j}, v{D+j} offset:{K1_T2}")
    o("    s_waitcnt lgkmcnt(4)")
    for j in range(4):
        o(f"    v_add_u32 v{ST+j}, v{ST+j}, v{RK+j}     ; pos")
    for j in range(4):
        o(f"    ds_write_b8 v{ST+j}, v{D+j} offset:{K1_KEY}")
    for j in range(4):
        o(f"    v_lshlrev_b32 v{RK+j}, 4, v{ST+j}")
        o(f"    v_add_u32 v{RK+j}, {K1_REC}, v{RK+j}")
    o("    s_waitcnt vmcnt(1)")
    o(f"    v_alignbit_b32 v{T}, v{RA+2}, v{RA+1}, 16")
    o(f"    v_perm_b32 v{T+1}, v{S+1}, v{RA+2}, s63")
    o(f"    v_perm_b32 v{RA+1}, v{S}, v{RA+1}, s62")
    yp = [RA, T, RB, T + 2]
    for j in range(2):
        o(f"    ds_write2_b64 v{RK+j}, {vr(EA+2*j,2)}, {vr(yp[j],2)} offset0:0 offset1:1")
    o("    s_waitcnt vmcnt(0)")
    stamp(4, SV)
    o(f"    v_alignbit_b32 v{T+2}, v{RB+2}, v{RB+1}, 16")
    o(f"    v_perm_b32 v{T+3}, v{S+3}, v{RB+2}, s63")
    o(f"    v_perm_b32 v{RB+1}, v{S+2}, v{RB+1}, s62")
    for j in range(2, 4):
        o(f"    ds_write2_b64 v{RK+j}, {vr(EA+2*j,2)}, {vr(yp[j],2)} offset0:0 offset1:1")
    o("    s_mov_b64 exec, -1")
    if CPF == 2:
        code_pf()
    o("    s_waitcnt lgkmcnt(0)")
    o("    s_barrier")
    stamp(5, SV)
    if XEND == "mid":
        xtouch()
    for r in range(4):
        o(f"    ds_read_b128 {vr(4+4*r,4)}, v71 offset:{K1_REC + r*10240}")
    o(f"    ds_read_b128 {vr(24,4)}, v71 offset:{K1_T2}")
    o(f"    ds_read_b32 v20, v1 offset:{K1_KEY}")
    for r in range(4):
        o(f"    s_waitcnt lgkmcnt({5-r})")
        o(f"    buffer_store_dwordx4 {vr(4+4*r,4)}, v{71+r}, s[36:39], 0 offen {K1ST}")
    o("    s_cmp_lt_u32 s50, 8")
    o("    s_cbranch_scc0 K1_NT2")
    o("    s_lshl_b32 s52, s2, 13")
    o(f"    s_add_u32 s52, s52, {WS_T2}")
    o("    s_waitcnt lgkmcnt(1)")
    o(f"    buffer_store_dwordx4 {vr(24,4)}, v71, s[44:47], s52 offen {K1ST}")
    L("K1_NT2")
    o("    s_cmp_lg_u32 s50, 9")
    o("    s_cbranch_scc1 K1_NT1")
    o("    s_lshl_b32 s52, s2, 10")
    o(f"    s_add_u32 s52, s52, {WS_TAB}")
    o(f"    buffer_store_dwordx4 {vr(C,4)}, v70, s[44:47], s52 offen {K1ST}")
    L("K1_NT1")
    o("    s_waitcnt lgkmcnt(0)")
    o("    buffer_store_dword v20, v1, s[40:43], 0 offen")
    if XEND == "end":
        xtouch()
    stamp(6, SV)
    if STAMP:
        o("    s_waitcnt vmcnt(0)")
    stamp(7, SV)
    stamp_dump(16, 17, 50, 10, 64 << 20, SV)
    L("K1_END")
    o("    s_endpgm")
    L("K1_AUX")
    o("    s_cmp_ge_u32 s2, 45")
    o("    s_cbranch_scc1 K1_END")
    o("    s_load_dwordx2 s[18:19], s[0:1], 40   ; w_rad")
    o("    s_load_dwordx4 s[12:15], s[0:1], 48")
    o("    v_and_b32 v0, 63, v0")
    o("    s_waitcnt lgkmcnt(0)")
    srd(44, 16, 17, WS_END)
    o("    s_cmp_ge_u32 s2, 40")
    o("    s_cbranch_scc1 K1_AUXR")
    o("    s_mul_i32 s51, s2, 26")
    o("    s_lshr_b32 s51, s51, 8                ; t")
    o("    s_mul_i32 s52, s51, 10")
    o("    s_sub_u32 s52, s2, s52                ; q")
    o("    s_cmp_lt_u32 s52, 4")
    o("    s_cselect_b32 s56, s12, s14")
    o("    s_cselect_b32 s57, s13, s15")
    o("    s_movk_i32 s58, 16384")
    o("    s_cselect_b32 s58, s58, 24576")
    o("    s_and_b32 s57, s57, 0xffff")
    o("    s_mov_b32 s59, 0x00020000")
    o("    v_lshrrev_b32 v70, 4, v0              ; g'")
    o("    v_and_b32 v71, 15, v0")
    o("    v_lshlrev_b32 v71, 1, v71")
    o("    s_lshl_b32 s53, s51, 5")
    o("    v_add_u32 v71, s53, v71               ; (16t+m)*2")
    o("    s_cmp_ge_u32 s52, 8")
    o("    s_cbranch_scc1 K1_FRAGX")
    o("    s_and_b32 s53, s52, 1")
    o("    s_lshl_b32 s53, s53, 5")
    o("    s_bfe_u32 s55, s52, 0x10001           ; (q>>1)&1")
    o("    s_add_u32 s53, s53, s55")
    o("    s_lshl_b32 s53, s53, 7")
    o("    v_lshl_add_u32 v71, v70, 10, v71")
    o("    v_add_u32 v71, s53, v71")
    o("    v_add_u32 v72, 8192, v71")
    for i in range(8):
        o(f"    buffer_load_ushort v{WFR+i}, v{71+(i&1)}, s[56:59], 0 offen offset:{(i>>1)*256}")
    o("    s_branch K1_FRAGW")
    L("K1_FRAGX")
    o("    s_and_b32 s53, s52, 1")
    o("    s_add_u32 s53, s53, 128")
    o("    s_lshl_b32 s53, s53, 7")
    o("    v_lshl_add_u32 v71, v70, 11, v71")
    o("    v_add_u32 v71, s53, v71")
    for i in range(8):
        o(f"    buffer_load_ushort v{WFR+i}, v71, s[56:59], 0 offen offset:{i*256}")
    L("K1_FRAGW")
    o("    s_waitcnt vmcnt(0)")
    for p in range(4):
        o(f"    v_lshl_or_b32 v{WFR+p}, v{WFR+2*p+1}, 16, v{WFR+2*p}")
    o("    s_branch K1_AUXS")
    L("K1_AUXR")
    srd(56, 18, 19, 2560)
    o("    v_and_b32 v70, 31, v0")
    o("    v_lshrrev_b32 v71, 5, v0")
    o("    v_lshlrev_b32 v70, 2, v70")
    o("    v_lshl_add_u32 v70, v71, 1, v70")
    o("    s_sub_u32 s52, s2, 40")
    o("    s_lshl_b32 s52, s52, 7")
    o("    v_add_u32 v70, s52, v70")
    for d in range(4):
        o(f"    buffer_load_ushort v{WFR+d}, v70, s[56:59], 0 offen offset:{d*640}")
    o("    s_waitcnt vmcnt(0)")
    for d in range(4):
        o(f"    v_lshlrev_b32 v{WFR+d}, 16, v{WFR+d}")
    L("K1_AUXS")
    o("    s_lshl_b32 s52, s2, 10")
    o(f"    s_add_u32 s52, s52, {WS_WF}")
    o("    v_lshlrev_b32 v70, 4, v0")
    o(f"    buffer_store_dwordx4 {vr(WFR,4)}, v70, s[44:47], s52 offen")
    o("    s_endpgm")

def gen_k2():
    B, ACC, S, W = 0, 64, 128, 184
    A = [204, 208]
    VO = [212, 220]
    LT, AM1, AM2 = 228, 232, 236
    RR = 240
    ZR = 244
    vA, vV, vRaw, vCw, vVw, vN4, vMask, vEnds, vPar, vIdx = range(246, 256)
    vLane = 125
    TT = 128
    vD4, vD2, vSa = 150, 151, 152
    TC = 154
    sX, sWS, sOUT, sWR = 12, 16, 20, 24
    sBin, sNN, sWave, sMode, sJlo, sMax = 28, 29, 30, 31, 32, 33
    sNs, sGen, sCnt, sSeg, sK, sLo, sHi, sRel, sRet, sRem = range(34, 44)
    sD0, sD1, sD2 = 44, 45, 46
    sEnd, sNext = 54, 55
    sFast = 38
    sT, sT2, sT3 = 47, 48, 49
    sSave = 50
    sAny2 = 52
    sM1 = 56
    sM2 = 72
    sLM = 24
    sOv = 26

    def accr(v, u, d):
        cc = 2 * (d >> 1) + (u >> 1)
        e = 2 * (u & 1) + (d & 1)
        return ACC + 16 * v + 4 * cc + e
    def wreg(p, d):
        return W + 4 * p + d

    o(".globl tp_main_kernel")
    o(f".p2align {os.environ.get('K2AL', '8')}")
    o(".type tp_main_kernel,@function")
    L("tp_main_kernel")
    o(f"    s_cmp_ge_u32 s2, {NWG}")
    o("    s_cbranch_scc1 K2_END")
    stamp(0)
    o("    s_load_dwordx2 s[4:5], s[0:1], 0      ; x")
    o("    s_load_dwordx2 s[8:9], s[0:1], 72     ; out")
    o("    s_load_dwordx2 s[10:11], s[0:1], 88   ; ws")
    o("    v_lshrrev_b32 v1, 6, v0")
    o(f"    v_and_b32 v{vLane}, 63, v0")
    o(f"    v_readfirstlane_b32 s{sWave}, v1")
    o(f"    s_and_b32 s{sBin}, s2, 7")
    o(f"    s_lshl_b32 s{sBin}, s{sBin}, 5")
    o(f"    s_lshr_b32 s{sT}, s2, 3")
    o(f"    s_add_u32 s{sBin}, s{sBin}, s{sT}")
    HD, KY, RK1, RK2, AD1, AD2, RO, TM = 64, 72, 80, 88, 96, 104, 112, 120
    vW0, vJ = 126, 127

    def prefetch0():
        o(f"    s_lshr_b32 s{sT}, s2, 3")
        o(f"    s_lshl_b32 s{sT}, s{sT}, 3")
        o(f"    s_add_u32 s{sT}, s{sT}, s{sWave}")
        o(f"    s_lshl_b32 s{sT}, s{sT}, 13")
        o(f"    v_lshl_add_u32 v160, v{vLane}, 7, s{sT}")
        if PFL < 64:
            o(f"    s_mov_b64 exec, {hex((1 << PFL) - 1)}")
        for i in range(PF0):
            o(f"    buffer_load_dword v161, v160, {sr(sX,4)}, 0 offen")
            if i + 1 < PF0:
                o(f"    v_add_u32 v160, {256*8192}, v160")
    def w_loads():
        if WLDS:
            return
        o(f"    s_mov_b32 s{sT}, {WS_WR}")
        for p in range(5):
            if p == 4:
                o(f"    s_add_u32 s{sT}, s{sT}, 4096")
            o(f"    buffer_load_dwordx4 {vr(W+4*p,4)}, v{TM+1}, {sr(sWS,4)}, s{sT} offen offset:{(p%4)*1024}")
    def dump_addr():
        o(f"    s_mul_i32 s{sT}, s{sWave}, {SDS}")
        o(f"    s_add_u32 s{sT}, s{sT}, {SD}")
        o(f"    v_lshl_add_u32 v{vD4}, v{vLane}, 2, s{sT}")
        o(f"    s_add_u32 s{sT}, s{sT}, 1024")
        o(f"    v_lshl_add_u32 v{vD2}, v{vLane}, 1, s{sT}")
        o(f"    s_mul_i32 s{sT}, s{sBin}, 40")
        o(f"    s_add_u32 s{sT}, s{sT}, s{sWave}")
        o(f"    s_mul_i32 s{sT}, s{sT}, 2816")
        o(f"    s_add_u32 s{sT}, s{sT}, {WS_S32}")
        o(f"    v_lshl_add_u32 v{vSa}, v{vLane}, 2, s{sT}")
    def lane_id():
        o(f"    v_mbcnt_lo_u32_b32 v{vLane}, -1, 0")
        o(f"    v_mbcnt_hi_u32_b32 v{vLane}, -1, v{vLane}")
    def lane_prep():
        o(f"    v_lshrrev_b32 v{vW0}, 4, v{vLane}")
        o(f"    s_lshl_b32 s{sT}, s{sWave}, 5")
        o(f"    v_add_u32 v{vW0}, s{sT}, v{vW0}")
        o(f"    v_and_b32 v{vJ}, 15, v{vLane}")
        o(f"    v_lshlrev_b32 v{TM}, 10, v{vW0}")
    def hdr_loads():
        o(f"    s_lshl_b32 s{sT}, s{sBin}, 2")
        o(f"    s_add_u32 s{sT}, s{sT}, {WS_TAB}")
        for i in range(8):
            o(f"    buffer_load_dword v{HD+i}, v{TM}, {sr(sWS,4)}, s{sT} offen")
            if i < 7:
                o(f"    s_add_u32 s{sT}, s{sT}, 4096")
    lane_prep()
    o(f"    v_lshlrev_b32 v{TM+1}, 13, v{vW0}")
    o(f"    v_lshl_add_u32 v{TM+1}, v{vJ}, 1, v{TM+1}")
    o(f"    s_lshl_b32 s{sT}, s{sBin}, 5")
    o(f"    s_add_u32 s{sT}, s{sT}, {WS_T2}")
    o("    s_waitcnt lgkmcnt(0)")
    stamp(1)
    srd(sWS, 10, 11, WS_END)
    for i in range(8):
        o(f"    buffer_load_ushort v{KY+i}, v{TM+1}, {sr(sWS,4)}, s{sT} offen")
        if i < 7:
            o(f"    s_add_u32 s{sT}, s{sT}, 32768")
    if WLDS:
        o(f"    v_lshlrev_b32 v{W+4}, 4, v0                 ; tid*16")
        o(f"    v_min_u32 v{W+4}, 5104, v{W+4}")
        o(f"    s_mov_b32 s{sT}, {WS_WR}")
        o(f"    buffer_load_dwordx4 {vr(W,4)}, v{W+4}, {sr(sWS,4)}, s{sT} offen")
    srd(sX, 4, 5, N * 512)
    o(f"    v_and_b32 v{TM+2}, 31, v{vLane}")
    o(f"    v_lshlrev_b32 v{vN4}, 2, v{TM+2}")
    o(f"    v_lshrrev_b32 v{TM+3}, 5, v{vLane}      ; g = l>>5")
    o(f"    s_lshl_b32 s{sT}, s{sBin}, 16")
    o(f"    s_add_u32 s{sT}, s{sT}, {BINM-1}")
    o(f"    s_mul_hi_u32 s{sT2}, s{sT}, 0x27144e     ; n0")
    o(f"    s_add_u32 s{sT}, s{sT}, 0x10000")
    o(f"    s_mul_hi_u32 s{sT}, s{sT}, 0x27144e")
    o(f"    s_min_u32 s{sT}, s{sT}, {N}")
    o(f"    s_sub_u32 s{sNN}, s{sT}, s{sT2}")
    o(f"    s_lshl_b32 s{sT}, s{sT2}, 9")
    o(f"    s_add_u32 s{sOUT}, s8, s{sT}")
    o(f"    s_addc_u32 s{sOUT+1}, s9, 0")
    o(f"    s_and_b32 s{sOUT+1}, s{sOUT+1}, 0xffff")
    o(f"    s_lshl_b32 s{sOUT+2}, s{sNN}, 9")
    o(f"    s_mov_b32 s{sOUT+3}, 0x00020000")
    o(f"    s_mov_b32 s{sMode}, 0")
    o(f"    s_mov_b32 s{sFast}, 0")
    o(f"    s_mov_b32 s{sJlo}, 0")
    o("    v_lshrrev_b32 v5, 3, v0               ; e")
    o("    v_and_b32 v6, 7, v0")
    o("    v_lshlrev_b32 v6, 1, v6               ; 8ha+2p")
    o("    v_sub_u32 v5, v5, v6                  ; e-(8ha+2p)")
    o("    v_med3_i32 v5, v5, 0, 2")
    o("    v_lshlrev_b32 v5, 4, v5")
    o("    v_mov_b32 v6, -1")
    o("    v_mov_b32 v7, 0")
    o("    v_lshlrev_b64 v[6:7], v5, v[6:7]")
    o("    v_cmp_gt_u32 vcc, 256, v0")
    o("    v_lshlrev_b32 v3, 2, v0")
    o(f"    v_add_u32 v3, {MASK}, v3")
    o("    v_cndmask_b32 v2, 0, v7, vcc")
    o("    ds_write_b32 v3, v2")
    o("    v_mov_b32 v2, 0")
    o(f"    v_mov_b32 v3, {MISC}")
    o("    ds_write2_b32 v3, v2, v2 offset0:0 offset1:1")
    o(f"    v_mov_b32 v{ZR}, 0")
    o(f"    v_mov_b32 v{ZR+1}, 0")
    o(f"    v_and_b32 v4, 1, v{vLane}")
    o(f"    v_sub_u32 v{vPar}, 0, v4")
    o(f"    v_bfe_u32 v4, v{vLane}, 2, 1")
    o(f"    v_mul_u32_u24 v{vIdx}, 0x5555, v4")
    o(f"    v_add_u32 v{vIdx}, 0x8888, v{vIdx}       ; 0x8888 / 0xdddd")
    o(f"    v_lshlrev_b32 v{vMask}, 4, v{TM+3}")
    o(f"    v_add_u32 v{vMask}, {MASK}, v{vMask}")
    o("    s_waitcnt lgkmcnt(0)")
    o(f"    s_movk_i32 s{sT}, {CH}")
    o(f"    v_mad_u32_u24 v{TM+2}, v{vW0}, s{sT}, v{vJ}   ; w0*2500 + j")
    o(f"    s_mov_b32 s{sLM}, 0x7fff7fff")
    o(f"    s_mov_b32 s{sLM+1}, 0x7fff7fff")
    o(f"    s_mov_b64 {sr(sOv,2)}, -1")
    o(f"    s_mov_b64 {sr(sAny2,2)}, 0")
    o(f"    v_mov_b32 v{TM+4}, {CNT}")
    o(f"    v_lshlrev_b32 v{TM+1}, 4, v{vLane}")
    o("    s_barrier")
    def rec_load(i):
        o(f"    s_mov_b32 s{sT}, {i*4*CH*16}")
        if RMASK:
            o(f"    s_or_b64 exec, {sr(sM1+2*i,2)}, 1")
        o(f"    buffer_load_dwordx4 {vr(4*i,4)}, v{RO+i}, {sr(sWS,4)}, s{sT} offen")
        if RMASK:
            o("    s_mov_b64 exec, -1")
    o(f"    v_mov_b32 v{TM}, 1")
    for i in range(8):
        o(f"    s_waitcnt vmcnt({7 - i + min(i, NEARLY) + WLDS})")
        if i == 0:
            stamp(2)
        o(f"    v_mov_b32_dpp v{RO+i}, v{KY+i} row_newbcast:15 row_mask:0xf bank_mask:0xf")
        o(f"    v_and_b32 v{AD1+i}, 0xff, v{KY+i}")
        o(f"    v_and_b32 v{RO+i}, 0xfff, v{RO+i}")
        o(f"    v_cmp_gt_u32 vcc, 0x80, v{AD1+i}")
        o(f"    v_add_lshl_u32 v{RO+i}, v{RO+i}, v{TM+2}, 4")
        o(f"    v_lshl_add_u32 v{AD1+i}, v{AD1+i}, 2, v{TM+4}")
        o(f"    s_and_b64 {sr(sM1+2*i,2)}, vcc, {sr(sLM,2)}")
        if i < NEARLY:
            rec_load(i)
        o(f"    v_cmp_gt_u32 vcc, 0x8000, v{KY+i}")
        o(f"    s_mov_b64 exec, {sr(sM1+2*i,2)}")
        o(f"    ds_add_rtn_u32 v{RK1+i}, v{AD1+i}, v{TM}")
        o("    s_mov_b64 exec, -1")
        o(f"    s_and_b64 {sr(sM2+2*i,2)}, vcc, {sr(sLM,2)}")
        o(f"    s_and_b64 {sr(sOv,2)}, {sr(sOv,2)}, vcc")
        o(f"    s_or_b64 {sr(sAny2,2)}, {sr(sAny2,2)}, {sr(sM2+2*i,2)}")
    o("    s_cbranch_scc0 K2_NO2B")
    o("    s_waitcnt lgkmcnt(4)")
    for i in range(8):
        o(f"    s_mov_b64 exec, {sr(sM2+2*i,2)}")
        o(f"    s_cbranch_execz K2_NK2{i}")
        o(f"    v_lshrrev_b32 v{AD2+i}, 8, v{KY+i}")
        o(f"    v_lshl_add_u32 v{AD2+i}, v{AD2+i}, 2, v{TM+4}")
        o(f"    ds_add_rtn_u32 v{RK2+i}, v{AD2+i}, v{TM}")
        L(f"K2_NK2{i}")
    o("    s_mov_b64 exec, -1")
    L("K2_NO2B")
    if WLDS:
        o(f"    v_add_u32 v{W+4}, {WST}, v{W+4}")
    o(f"    s_or_b64 {sr(sOv,2)}, {sr(sOv,2)}, {sr(sLM,2)}")
    o(f"    s_cmp_eq_u64 {sr(sOv,2)}, -1")
    o("    s_cbranch_scc1 K2_RANKD")
    o(f"    v_mov_b32 v{TM}, {MISC}")
    o(f"    ds_write_b32 v{TM}, v{TM}")
    L("K2_RANKD")
    c0, c1, i0, i1, tt0, tt1, e0, e1, p0, p1, a0, a1, b0, b1, ad, mx = range(204, 220)
    o(f"    v_lshlrev_b32 v{ad}, 2, v{vLane}")
    o(f"    v_add_u32 v{ad}, {CNT}, v{ad}")
    o(f"    v_mov_b32 v{mx}, {MISC}")
    o("    s_waitcnt lgkmcnt(0)")
    o("    s_barrier")
    stamp(3)
    o(f"    ds_read2st64_b32 v[{c0}:{c1}], v{ad} offset0:0 offset1:1")
    o(f"    ds_read_b32 v{mx}, v{mx}")
    o(f"    s_cmp_lg_u32 s{sMode}, 0")
    o("    s_cbranch_scc1 K2_NOLATE")
    for i in range(NEARLY, NEARLY + 2):
        rec_load(i)
    L("K2_NOLATE")
    o("    s_waitcnt lgkmcnt(0)")
    o(f"    v_mov_b32 v{i0}, v{c0}")
    o(f"    v_mov_b32 v{i1}, v{c1}")
    o(f"    v_readfirstlane_b32 s{sT3}, v{mx}")
    for sh in (1, 2, 4, 8):
        o(f"    v_add_u32_dpp v{i0}, v{i0}, v{i0} row_shr:{sh} row_mask:0xf bank_mask:0xf bound_ctrl:0")
        o(f"    v_add_u32_dpp v{i1}, v{i1}, v{i1} row_shr:{sh} row_mask:0xf bank_mask:0xf bound_ctrl:0")
        o("    s_nop 0")
    o(f"    v_mov_b32_dpp v{tt0}, v{i0} row_newbcast:15 row_mask:0xf bank_mask:0xf")
    o(f"    v_mov_b32_dpp v{tt1}, v{i1} row_newbcast:15 row_mask:0xf bank_mask:0xf")
    o(f"    v_add_u32 v{e0}, 15, v{tt0}")
    o(f"    v_add_u32 v{e1}, 15, v{tt1}")
    o(f"    v_and_b32 v{e0}, -16, v{e0}")
    o(f"    v_and_b32 v{e1}, -16, v{e1}")
    o(f"    v_mov_b32 v{p0}, v{e0}")
    o(f"    v_mov_b32 v{p1}, v{e1}")
    o(f"    v_add_u32_dpp v{e0}, v{e0}, v{e0} row_bcast:15 row_mask:0xa bank_mask:0xf")
    o(f"    v_add_u32_dpp v{e1}, v{e1}, v{e1} row_bcast:15 row_mask:0xa bank_mask:0xf")
    o("    s_nop 0")
    o(f"    v_add_u32_dpp v{e0}, v{e0}, v{e0} row_bcast:31 row_mask:0xc bank_mask:0xf")
    o(f"    v_add_u32_dpp v{e1}, v{e1}, v{e1} row_bcast:31 row_mask:0xc bank_mask:0xf")
    o("    s_nop 0")
    o(f"    v_readlane_b32 s{sT}, v{e0}, 63")
    o(f"    v_readlane_b32 s{sT2}, v{e1}, 63")
    o(f"    v_sub_u32 v{a0}, v{e0}, v{tt0}")
    o(f"    v_add_u32 v{e1}, s{sT}, v{e1}")
    o(f"    v_add_u32 v{a0}, v{a0}, v{i0}            ; absolute end slot of entry")
    o(f"    v_sub_u32 v{a1}, v{e1}, v{tt1}")
    o(f"    v_add_u32 v{a1}, v{a1}, v{i1}")
    o(f"    v_sub_u32 v{b0}, v{a0}, v{c0}")
    o(f"    v_sub_u32 v{b1}, v{a1}, v{c1}")
    o(f"    ds_write2st64_b32 v{ad}, v{b0}, v{b1} offset0:2 offset1:3")
    o(f"    s_add_u32 s{sT}, s{sT}, s{sT2}")
    o(f"    s_cmp_gt_u32 s{sT}, {SLOTCAP-96}")
    o(f"    s_cselect_b32 s{sT}, 1, 0")
    o(f"    s_cmp_lg_u32 s{sT3}, 0")
    o(f"    s_cselect_b32 s{sT}, 1, s{sT}")
    o(f"    s_cmp_gt_u32 s{sT}, s{sMode}")
    o("    s_cbranch_scc1 K2_GOSLOW")
    for i in range(8):
        o(f"    ds_read_b32 v{AD1+i}, v{AD1+i} offset:512")
    o(f"    s_cmp_lg_u32 s{sMode}, 0")
    o("    s_cbranch_scc1 K2_NO2C")
    for i in range(NEARLY + 2, 8):
        rec_load(i)
    w_loads()
    o(f"    s_cmp_eq_u64 {sr(sAny2,2)}, 0")
    o("    s_cbranch_scc1 K2_NO2C")
    o("    s_waitcnt lgkmcnt(4)")
    for i in range(8):
        o(f"    s_mov_b64 exec, {sr(sM2+2*i,2)}")
        o(f"    s_cbranch_execz K2_NR2{i}")
        o(f"    s_mov_b32 s{sT}, {i*4*CH*16}")
        o(f"    buffer_load_dwordx4 {vr(32+4*i,4)}, v{RO+i}, {sr(sWS,4)}, s{sT} offen offset:240")
        o(f"    ds_read_b32 v{AD2+i}, v{AD2+i} offset:512")
        L(f"K2_NR2{i}")
    o("    s_mov_b64 exec, -1")
    L("K2_NO2C")
    o(f"    s_cmp_lt_u32 s{sWave}, 4")
    o("    s_cselect_b64 vcc, -1, 0")
    o(f"    v_cndmask_b32 v{a0}, v{a1}, v{a0}, vcc")
    o(f"    v_cndmask_b32 v{e0}, v{e1}, v{e0}, vcc")
    o(f"    v_cndmask_b32 v{p0}, v{p1}, v{p0}, vcc")
    o(f"    v_cndmask_b32 v{tt0}, v{tt1}, v{tt0}, vcc")
    o(f"    s_and_b32 s{sSeg}, s{sWave}, 3")
    o(f"    s_lshl_b32 s{sSeg}, s{sSeg}, 4")
    o("    s_nop 0")
    o(f"    v_readlane_b32 s{sT}, v{e0}, s{sSeg}")
    o(f"    v_readlane_b32 s{sT2}, v{p0}, s{sSeg}")
    o(f"    v_readlane_b32 s{sT3}, v{tt0}, s{sSeg}")
    o(f"    v_and_b32 v{b0}, 15, v{vLane}")
    o(f"    v_cmp_le_u32 vcc, {5*P}, v{b0}")
    o(f"    v_mov_b32 v{b0}, 0x7fffffff")
    o(f"    s_sub_u32 s{sT}, s{sT}, s{sT2}")
    o(f"    s_sub_u32 s{sLo}, s{sT2}, s{sT3}         ; pad")
    o(f"    s_lshr_b32 s{sNs}, s{sT2}, 4")
    o(f"    v_subrev_u32 v{vEnds}, s{sT}, v{a0}")
    o(f"    v_cndmask_b32 v{vEnds}, v{vEnds}, v{b0}, vcc")
    o(f"    v_lshrrev_b32 v{vRaw}, 1, v{vLane}")
    o(f"    v_add_u32 v{vRaw}, s{sT}, v{vRaw}")
    o(f"    v_lshlrev_b32 v{vRaw}, 4, v{vRaw}")
    if RAW:
        o(f"    v_add_u32 v{vRaw}, {RAW}, v{vRaw}")
    o(f"    s_mul_i32 s{sT}, s{sWave}, {3*RBLK}")
    o(f"    s_add_u32 s{sT}, s{sT}, {RING}")
    o(f"    s_add_u32 s{sT2}, s{sT}, 1024")
    o(f"    v_lshrrev_b32 v{b0}, 5, v{vLane}         ; ha / g")
    o(f"    v_bfe_u32 v{b1}, v{vLane}, 2, 2          ; rho")
    o(f"    v_lshl_add_u32 v{b1}, v{b0}, 3, v{b1}")
    o(f"    v_bfe_u32 v{c0}, v{vLane}, 1, 1")
    o(f"    v_bfe_u32 v{c1}, v{vLane}, 4, 1")
    o(f"    v_lshl_add_u32 v{c0}, v{c1}, 1, v{c0}")
    o(f"    v_lshl_add_u32 v{c0}, v{c0}, 3, s{sT}")
    o(f"    v_lshl_add_u32 v{vA}, v{b1}, 5, v{c0}")
    o(f"    v_lshl_add_u32 v{vV}, v{b0}, 4, s{sT2}")
    o(f"    v_lshl_add_u32 v{vCw}, v{vLane}, 4, s{sT}")
    o(f"    v_lshrrev_b32 v{b0}, 1, v{vLane}")
    o(f"    v_lshl_add_u32 v{vVw}, v{b0}, 2, s{sT2}")
    dump_addr()
    o("    s_waitcnt lgkmcnt(0)")
    for i in range(8):
        o(f"    v_add_lshl_u32 v{AD1+i}, v{AD1+i}, v{RK1+i}, 4")
    stamp(4)
    for i in range(8):
        o(f"    s_mov_b64 exec, {sr(sM1+2*i,2)}")
        o(f"    s_waitcnt vmcnt({(7 if WLDS else 12)-i + (PF0 if PFPOS == 'd' and i > PFI else 0)})")
        o(f"    ds_write_b128 v{AD1+i}, {vr(4*i,4)} offset:{RAW}")
        if PF0 and PFPOS == "d" and i == PFI:
            o("    s_mov_b64 exec, -1")
            prefetch0()
    o(f"    s_waitcnt vmcnt({PF0 if PFPOS == 'd' else 0})")
    if PF0 and PFPOS == "c":
        o("    s_mov_b64 exec, -1")
        prefetch0()
    o(f"    s_cmp_eq_u64 {sr(sAny2,2)}, 0")
    o("    s_cbranch_scc1 K2_NO2D")
    for i in range(8):
        o(f"    s_mov_b64 exec, {sr(sM2+2*i,2)}")
        o(f"    s_cbranch_execz K2_NS2{i}")
        o(f"    v_add_lshl_u32 v{AD2+i}, v{AD2+i}, v{RK2+i}, 4")
        o(f"    ds_write_b128 v{AD2+i}, {vr(32+4*i,4)} offset:{RAW}")
        L(f"K2_NS2{i}")
    L("K2_NO2D")
    o("    s_mov_b64 exec, -1")
    if WLDS:
        o(f"    v_lshlrev_b32 v{TT}, 4, v{vLane}")
        o(f"    v_add_u32 v{TT}, {WST}, v{TT}")
        o(f"    s_cmp_lg_u32 s{sMode}, 0")
        o("    s_cbranch_scc1 K2_NOWST")
        o(f"    ds_write_b128 v{W+4}, {vr(W,4)}")
        L("K2_NOWST")
    o("    s_waitcnt lgkmcnt(0)")
    o("    s_barrier")
    stamp(5)
    if STAMP:
        o("    s_memtime s[100:101]")
        o("    s_waitcnt lgkmcnt(0)")
        o(f"    v_writelane_b32 v{STV}, s100, 12")
    if "prio" in EXP:
        o(f"    s_cmp_lt_u32 s{sWave}, 4")
        o("    s_cbranch_scc1 K2_NOPRIO")
        o("    s_setprio 1")
        L("K2_NOPRIO")

    def convert(ct, rr=RR, off=0):
        CO = AM1
        a0_, a1_, y0, y1, y2, m0, m1, vo = range(ct, ct + 8)
        o(f"    v_bitop3_b32 v{CO}, v{vPar}, v{rr+1}, v{rr} bitop3:0xca")
        o(f"    v_lshlrev_b32 v{y0}, 16, v{rr+2}")
        o(f"    v_lshlrev_b32 v{a0_}, 16, v{CO}")
        o(f"    v_and_b32 v{a1_}, 0xffff0000, v{CO}")
        o(f"    v_and_b32 v{y1}, 0xffff0000, v{rr+2}")
        o(f"    v_lshlrev_b32 v{y2}, 16, v{rr+3}")
        for u, y in enumerate((y0, y1, y2)):
            o(f"    v_mul_f32 v{m0}, v{a0_}, v{y}")
            o(f"    v_mul_f32 v{m1}, v{a1_}, v{y}")
            o(f"    v_cvt_pk_bf16_f32 v{CO+1+u}, v{m0}, v{m1}")
        o(f"    v_lshrrev_b32 v{vo}, 7, v{rr+3}")
        o(f"    v_and_b32 v{vo}, {hex(int(os.environ.get('SRCMASK','0x1fffe00'),16))}, v{vo}")
        o(f"    ds_write_b128 v{vCw}, {vr(CO,4)} offset:{off}")
        o(f"    ds_write_b32 v{vVw}, v{vo} offset:{off}")

    def loads_tile(x, v, vo):
        for r in range(8):
            o(f"    buffer_load_dword v{B+32*x+8*v+r}, v{vo+r}, {sr(sX,4)}, 0 offen offset:{v*128}")
    def smf(x, v, areg):
        if "q1" in EXP and v != 0:
            return
        if "q2" in EXP and v >= 2:
            return
        if "nomfma" not in EXP:
            o(f"    v_smfmac_f32_32x32x32_bf16 {vr(ACC+16*v,16)}, {vr(areg,4)}, {vr(B+32*x+8*v,8)}, v{vIdx}")
    def zero_tile(v):
        if "nomfma" not in EXP or "keepz" in EXP:
            o(f"    v_mfma_f32_32x32x8_bf16 {vr(ACC+16*v,16)}, {vr(ZR,2)}, {vr(ZR,2)}, 0")
    def mask_read(dst, sreg, tmp):
        o(f"    s_lshl_b32 s{sT}, s{sreg}, 5")
        o(f"    v_add_u32 v{tmp}, s{sT}, v{vMask}")
        o(f"    ds_read_b128 {vr(dst,4)}, v{tmp}")
    terms = [(0, 0, 0, 0, 1)] + [(2 + j, 2, 0, j + 1, 1) for j in range(3)]
    cross = {(2, 3): (0, 1), (3, 2): (0, -1), (3, 1): (1, 1), (1, 3): (1, -1), (1, 2): (2, 1), (2, 1): (2, -1)}
    for v in range(1, 4):
        terms.append((5 + v - 1, 3, v, 0, 1))
        for u in range(1, 4):
            if u == v:
                terms.append((1, 1, v, u, 1))
            else:
                i, sg = cross[(u, v)]
                terms.append((8 + i, 4, v, u, sg))
    first_v = {}
    for (si, p, v_, u, sg) in terms:
        first_v.setdefault(si, (v_, u))
    def fmas(v):
        if "noepi" in EXP:
            return
        tv = [t for t in terms if t[2] == v]
        if PK:
            for dh in range(2):
                for (si, p, v_, u, sg) in tv:
                    t = vr(TT + 2 * si, 2)
                    neg3 = " neg_lo:[1,0,0] neg_hi:[1,0,0]" if sg < 0 else ""
                    neg2 = " neg_lo:[1,0] neg_hi:[1,0]" if sg < 0 else ""
                    if dh == 0 and first_v[si] == (v_, u):
                        o(f"    v_pk_mul_f32 {t}, {vr(wreg(p,0),2)}, {vr(accr(v,u,0),2)}{neg2}")
                    else:
                        o(f"    v_pk_fma_f32 {t}, {vr(wreg(p,2*dh),2)}, {vr(accr(v,u,2*dh),2)}, {t}{neg3}")
        else:
            for d in range(4):
                for (si, p, v_, u, sg) in tv:
                    t = TT + 2 * si
                    ng = "-" if sg < 0 else ""
                    if d == 0 and first_v[si] == (v_, u):
                        o(f"    v_mul_f32 v{t}, {ng}v{wreg(p,d)}, v{accr(v,u,d)}")
                    elif sg > 0:
                        o(f"    v_fmac_f32 v{t}, v{wreg(p,d)}, v{accr(v,u,d)}")
                    else:
                        o(f"    v_fma_f32 v{t}, -v{wreg(p,d)}, v{accr(v,u,d)}, v{t}")
    def fold():
        if PK:
            for si in range(11):
                o(f"    v_add_f32 v{TT+2*si}, v{TT+2*si}, v{TT+2*si+1}")
    def commit_lds():
        t = lambda si: TT + 2 * si
        o(f"    v_cvt_pk_bf16_f32 v{TC}, v{t(0)}, v{t(1)}")
        for j in range(3):
            o(f"    v_cvt_pk_bf16_f32 v{TC+1+j}, v{t(2+j)}, v{t(5+j)}")
        o(f"    v_cvt_pk_bf16_f32 v{TC+4}, v{t(8)}, v{t(9)}")
        o(f"    v_cvt_pk_bf16_f32 v{TC+5}, v{t(10)}, v{t(10)}")
        o(f"    ds_write2st64_b32 v{vD4}, v{TC}, v{TC+1} offset0:0 offset1:1")
        o(f"    ds_write2st64_b32 v{vD4}, v{TC+2}, v{TC+3} offset0:2 offset1:3")
        o(f"    ds_write_b16 v{vD2}, v{TC+4}")
        o(f"    ds_write_b16_d16_hi v{vD2}, v{TC+4} offset:128")
        o(f"    ds_write_b16 v{vD2}, v{TC+5} offset:256")
        o(f"    v_add_u32 v{vD4}, {8*SDS}, v{vD4}")
        o(f"    v_add_u32 v{vD2}, {8*SDS}, v{vD2}")
    pcnt = [0]
    def prio_step():
        if PRIO:
            o(f"    s_and_b32 s{sT}, s{sSeg}, 15")
            for lvl, th in zip((2, 1, 0), PRIO):
                pcnt[0] += 1
                o(f"    s_cmp_lg_u32 s{sT}, {th}")
                o(f"    s_cbranch_scc1 K2_PR{pcnt[0]}")
                o(f"    s_setprio {lvl}")
                L(f"K2_PR{pcnt[0]}")
    def schedule_next():
        o(f"    s_sub_u32 s{sT}, s{sEnd}, 1")
        o(f"    s_and_b32 s{sHi}, s{sT}, 15")
        o(f"    s_add_u32 s{sHi}, s{sHi}, 1")
        o(f"    s_lshr_b32 s{sT}, s{sT}, 4")
        o(f"    s_sub_i32 s{sT2}, s{sNs}, 2")
        o(f"    s_add_u32 s{sT3}, s{sGen}, 1")
        o(f"    s_max_i32 s{sT2}, s{sT2}, s{sT3}")
        o(f"    s_min_u32 s{sGen}, s{sT}, s{sT2}")
        o(f"    s_sub_u32 s{sCnt}, s{sGen}, s{sT3}")

    o(f"    s_cmp_eq_u32 s{sNs}, 0")
    o("    s_cbranch_scc1 K2_EMPTY")
    o(f"    ds_read_b128 {vr(RR,4)}, v{vRaw}")
    o(f"    ds_read_b128 {vr(A[0],4)}, v{vRaw} offset:512")
    if PRIO:
        o("    s_setprio 3")
    o(f"    s_mov_b32 s{sD0}, {RBLK}                ; delta for vA at end of this batch")
    o(f"    s_mov_b32 s{sD1}, {RBLK}")
    o(f"    s_mov_b32 s{sD2}, {-2*RBLK}")
    for v in range(4):
        zero_tile(v)
    o("    s_waitcnt lgkmcnt(1)")
    convert(VO[1])
    o(f"    ds_read_b128 {vr(VO[0],4)}, v{vV}")
    o(f"    ds_read_b128 {vr(VO[0]+4,4)}, v{vV} offset:32")
    o("    s_waitcnt lgkmcnt(4)")
    convert(VO[1], A[0], RBLK)
    o(f"    ds_read_b128 {vr(VO[1],4)}, v{vV} offset:64")
    o(f"    ds_read_b128 {vr(VO[1]+4,4)}, v{vV} offset:96")
    o(f"    v_add_u32 v{vRaw}, 1024, v{vRaw}")
    o(f"    v_add_u32 v{vCw}, {2*RBLK}, v{vCw}")
    o(f"    v_add_u32 v{vVw}, {2*RBLK}, v{vVw}")
    o(f"    v_add_u32 v{vV}, {RBLK}, v{vV}")
    o("    s_waitcnt lgkmcnt(4)")
    for r in range(8):
        o(f"    v_add_u32 v{VO[0]+r}, v{VO[0]+r}, v{vN4}")
    for r in range(8):
        thr = 8 * (r >> 2) + (r & 3) + 4
        if thr < 15:
            o(f"    s_cmp_gt_u32 s{sLo}, {thr}")
            o(f"    s_cbranch_scc1 K2_IZ{r}")
        for v in range(4):
            o(f"    buffer_load_dword v{B+8*v+r}, v{VO[0]+r}, {sr(sX,4)}, 0 offen offset:{v*128}")
        L(f"K2_IN{r}")
    o(f"    s_cmp_eq_u32 s{sNs}, 1")
    o("    s_cbranch_scc1 K2_INITD")
    o("    s_waitcnt lgkmcnt(0)")
    for r in range(8):
        o(f"    v_add_u32 v{VO[1]+r}, v{VO[1]+r}, v{vN4}")
    for v in range(4):
        if v == 3:
            o("    s_waitcnt vmcnt(55)")
        loads_tile(1, v, VO[1])
    L("K2_INITD")
    if WLDS:
        for p in range(5):
            o(f"    ds_read_b128 {vr(W+4*p,4)}, v{TT} offset:{p*1024}")
    o(f"    v_readlane_b32 s{sEnd}, v{vEnds}, s{sSeg}")
    o(f"    ds_read_b64_tr_b16 {vr(A[0],2)}, v{vA}")
    o(f"    ds_read_b64_tr_b16 {vr(A[0]+2,2)}, v{vA} offset:128")
    o(f"    ds_read_b128 {vr(VO[0],4)}, v{vV}")
    o(f"    ds_read_b128 {vr(VO[0]+4,4)}, v{vV} offset:32")
    o(f"    s_mov_b32 s{sGen}, 0")
    o(f"    s_mov_b32 s{sCnt}, 0")

    o(".p2align 3")
    L("K2_LOOP")
    for x in range(2):
        a_cur, a_nxt = A[x], A[x ^ 1]
        v_cur, v_nxt = VO[x], VO[x ^ 1]
        if x == 1:
            o(f"    v_add_u32 v{vA}, s{sD0}, v{vA}")
            o(f"    v_add_u32 v{vV}, s{sD1}, v{vV}")
        nx = x ^ 1
        if x == 0:
            o(f"    ds_read_b128 {vr(RR,4)}, v{vRaw}")
        o(f"    ds_read_b64_tr_b16 {vr(a_nxt,2)}, v{vA} offset:{nx*512}")
        o(f"    ds_read_b64_tr_b16 {vr(a_nxt+2,2)}, v{vA} offset:{nx*512+128}")
        o(f"    ds_read_b128 {vr(v_nxt,4)}, v{vV} offset:{nx*64}")
        o(f"    ds_read_b128 {vr(v_nxt+4,4)}, v{vV} offset:{nx*64+32}")
        o(f"    s_sub_u32 s{sCnt}, s{sCnt}, 1")
        o(f"    s_waitcnt lgkmcnt({5 if x == 0 else 4})")
        for r in range(8):
            o(f"    v_add_u32 v{v_cur+r}, v{v_cur+r}, v{vN4}")
        o(f"    s_cbranch_scc1 K2_SP{x}")
        for v in range(4):
            o("    s_waitcnt vmcnt(55)")
            smf(x, v, a_cur)
            loads_tile(x, v, v_cur)
        L(f"K2_NEXT{x}")
        if x == 0:
            o("    s_waitcnt lgkmcnt(4)")
            convert(v_cur)
            o(f"    v_add_u32 v{vRaw}, 512, v{vRaw}")
            o(f"    v_add_u32 v{vCw}, s{sD2}, v{vCw}")
            o(f"    v_add_u32 v{vVw}, s{sD2}, v{vVw}")
        else:
            o(f"    s_mov_b32 s{sT}, s{sD0}")
            o(f"    s_mov_b32 s{sD0}, s{sD1}")
            o(f"    s_mov_b32 s{sD1}, s{sD2}")
            o(f"    s_mov_b32 s{sD2}, s{sT}")
            o("    s_branch K2_LOOP")

    for x in range(2):
        a_cur = A[x]
        v_cur = VO[x]
        L(f"K2_SP{x}")
        o(f"    s_add_u32 s{sT}, s{sSeg}, 1")
        o(f"    v_readlane_b32 s{sNext}, v{vEnds}, s{sT}")
        o(f"    s_sub_u32 s{sRem}, s{sNs}, s{sGen}")
        o(f"    s_lshl_b32 s{sT3}, s{sGen}, 4")
        o(f"    s_cmp_le_u32 s{sRem}, 2")
        o(f"    s_cbranch_scc1 K2_GEN{x}")
        o(f"    s_cmp_le_u32 s{sGen}, s{sFast}")
        o(f"    s_cbranch_scc1 K2_GEN{x}")
        o(f"    s_add_u32 s{sT2}, s{sT3}, 16")
        o(f"    s_cmp_le_u32 s{sNext}, s{sT2}")
        o(f"    s_cbranch_scc1 K2_GEN{x}")
        for r in range(4):
            o(f"    v_and_b32 v{AM1+r}, v{a_cur+r}, v{LT+r}")
        for r in range(4):
            o(f"    v_bitop3_b32 v{AM2+r}, v{a_cur+r}, v{LT+r}, v{LT+r} bitop3:0x30")
        o("    s_waitcnt vmcnt(31)")
        for v in range(4):
            smf(x, v, AM1)
        o(f"    s_mov_b32 s{sSeg}, s{sT}")
        o(f"    s_mov_b32 s{sEnd}, s{sNext}")
        schedule_next()
        mask_read(LT, sHi, a_cur)
        for v in range(4):
            fmas(v)
            zero_tile(v)
            smf(x, v, AM2)
            loads_tile(x, v, v_cur)
        fold()
        commit_lds()
        prio_step()
        o(f"    s_branch K2_NEXT{x}")
        L(f"K2_GEN{x}")
        o(f"    s_cmp_ge_u32 s{sRem}, 2")
        o(f"    s_cbranch_scc1 K2_GW{x}")
        o("    s_waitcnt vmcnt(0)")
        L(f"K2_GW{x}")
        o(f"    s_cmp_eq_u32 s{sGen}, 0")
        o(f"    s_cselect_b32 s{sLo}, s{sLo}, 0")
        L(f"K2_GL{x}")
        o(f"    s_sub_u32 s{sRel}, s{sEnd}, s{sT3}")
        o(f"    s_min_u32 s{sHi}, s{sRel}, 16")
        mask_read(LT, sHi, AM1)
        mask_read(AM2, sLo, AM1 + 1)
        o("    s_waitcnt vmcnt(31) lgkmcnt(0)")
        for r in range(4):
            o(f"    v_bitop3_b32 v{AM1+r}, v{a_cur+r}, v{LT+r}, v{AM2+r} bitop3:0x40")
        o("    s_nop 1")
        for v in range(4):
            smf(x, v, AM1)
        o(f"    s_cmp_gt_u32 s{sRel}, 16")
        o(f"    s_cbranch_scc1 K2_GD{x}")
        o(f"    s_mov_b32 s{sRet}, {x}")
        o("    s_branch K2_EPI")
        L(f"K2_GD{x}")
        o(f"    s_cmp_le_u32 s{sRem}, 2")
        o(f"    s_cbranch_scc1 K2_NL{x}")
        for v in range(4):
            loads_tile(x, v, v_cur)
        L(f"K2_NL{x}")
        o(f"    s_cmp_eq_u32 s{sRem}, 1")
        o("    s_cbranch_scc1 K2_STREAM_DONE")
        schedule_next()
        mask_read(LT, sHi, AM1)
        o(f"    s_branch K2_NEXT{x}")

    L("K2_EPI")
    o(f"    s_add_u32 s{sSeg}, s{sSeg}, 1")
    o(f"    s_mov_b32 s{sLo}, s{sHi}")
    o(f"    v_readlane_b32 s{sEnd}, v{vEnds}, s{sSeg}")
    o("    s_nop 7")
    for v in range(4):
        fmas(v)
        zero_tile(v)
    fold()
    o(f"    s_cmp_lg_u32 s{sMode}, 0")
    o("    s_cbranch_scc1 K2_EPS")
    commit_lds()
    prio_step()
    L("K2_EPR")
    o(f"    s_cmp_eq_u32 s{sRet}, 0")
    o("    s_cbranch_scc1 K2_GL0")
    o("    s_branch K2_GL1")
    L("K2_EPS")
    o("    s_waitcnt vmcnt(31)")
    for si in range(11):
        o(f"    buffer_atomic_add_f32 v{TT+2*si}, v{vSa}, {sr(sWS,4)}, 0 offen offset:{si*256}")
    o(f"    v_add_u32 v{vSa}, {8*2816}, v{vSa}")
    o("    s_waitcnt vmcnt(0)")
    o("    s_branch K2_EPR")
    for r in range(7):
        L(f"K2_IZ{r}")
        for v in range(4):
            o(f"    v_mov_b32 v{B+8*v+r}, 0")
        o(f"    s_branch K2_IN{r}")
    L("K2_EMPTY")
    o(f"    s_cmp_lg_u32 s{sMode}, 0")
    o("    s_cbranch_scc1 K2_STREAM_DONE")
    for si in range(11):
        o(f"    v_mov_b32 v{TT+2*si}, 0")
    o(f"    s_mov_b32 s{sT2}, 5")
    L("K2_EMPTYL")
    commit_lds()
    o(f"    s_sub_u32 s{sT2}, s{sT2}, 1")
    o(f"    s_cmp_lg_u32 s{sT2}, 0")
    o("    s_cbranch_scc1 K2_EMPTYL")
    o("    s_branch K2_POSTG")

    L("K2_GOSLOW")
    o(f"    s_mov_b32 s{sMode}, 1")
    o(f"    s_mov_b32 s{sFast}, -1")
    w_loads()
    if WLDS:
        o("    s_waitcnt vmcnt(0)")
        o(f"    ds_write_b128 v{W+4}, {vr(W,4)}")
    dump_addr()
    o(f"    v_mov_b32 v{TT}, 0")
    for k in range(5):
        for si in range(11):
            o(f"    buffer_store_dword v{TT}, v{vSa}, {sr(sWS,4)}, 0 offen offset:{si*256} sc1")
        o(f"    v_add_u32 v{vSa}, {8*2816}, v{vSa}")
        o("    s_waitcnt vmcnt(0)")
    o("    s_waitcnt vmcnt(0)")
    L("K2_SLOW_ROUND")
    o("    s_waitcnt lgkmcnt(0)")
    o("    s_barrier")
    o("    s_nop 7")
    lane_id()
    o(f"    v_lshlrev_b32 v2, 2, v{vLane}")
    o(f"    v_add_u32 v2, {CNT}, v2")
    o("    v_mov_b32 v3, 0")
    o("    ds_write2st64_b32 v2, v3, v3 offset0:0 offset1:1")
    lane_prep()
    hdr_loads()
    o(f"    v_add_u32 v{TM+1}, s{sJlo}, v{vJ}")
    o(f"    s_movk_i32 s{sT}, {CH}")
    o(f"    v_mad_u32_u24 v{TM+2}, v{vW0}, s{sT}, v{TM+1}")
    o(f"    v_cmp_gt_u32 {sr(sSave,2)}, 8, v{vJ}")
    o(f"    s_mov_b64 {sr(sAny2,2)}, 0")
    o(f"    v_mov_b32 v{TM+3}, 0")
    o("    s_waitcnt vmcnt(0)")
    for i in range(8):
        o(f"    v_lshrrev_b32 v{TM}, 16, v{HD+i}")
        o(f"    v_and_b32 v{AD2+i}, 0xffff, v{HD+i}")
        o(f"    v_cmp_lt_u32 vcc, v{TM+1}, v{TM}")
        o(f"    v_add_u32 v{AD2+i}, v{AD2+i}, v{TM+2}")
        o(f"    v_lshlrev_b32 v{RO+i}, 4, v{AD2+i}")
        o(f"    v_max_u32 v{TM+3}, v{TM+3}, v{TM}")
        o(f"    v_mov_b32 v{AD1+i}, 0")
        o(f"    s_and_b64 {sr(sM1+2*i,2)}, vcc, {sr(sSave,2)}")
        o(f"    s_mov_b64 exec, {sr(sM1+2*i,2)}")
        o(f"    s_cbranch_execz K2_SR{i}")
        o(f"    s_mov_b32 s{sT}, {i*4*CH*16}")
        o(f"    s_mov_b32 s{sT2}, {WS_KEY + i*4*CH}")
        o(f"    buffer_load_dwordx4 {vr(4*i,4)}, v{RO+i}, {sr(sWS,4)}, s{sT} offen")
        o(f"    buffer_load_ubyte v{AD1+i}, v{AD2+i}, {sr(sWS,4)}, s{sT2} offen")
        L(f"K2_SR{i}")
        o("    s_mov_b64 exec, -1")
    o(f"    v_mov_b32 v{TM}, {MISC+4}")
    o(f"    ds_max_u32 v{TM}, v{TM+3}")
    o(f"    v_mov_b32 v{TM+4}, {CNT}")
    o("    s_waitcnt vmcnt(0) lgkmcnt(0)")
    o("    s_barrier")
    o(f"    ds_read_b32 v{TM}, v{TM}")
    o("    s_waitcnt lgkmcnt(0)")
    o(f"    v_readfirstlane_b32 s{sMax}, v{TM}")
    o(f"    v_mov_b32 v{TM}, 1")
    for i in range(8):
        o(f"    v_lshl_add_u32 v{AD1+i}, v{AD1+i}, 2, v{TM+4}")
    for i in range(8):
        o(f"    s_mov_b64 exec, {sr(sM1+2*i,2)}")
        o(f"    ds_add_rtn_u32 v{RK1+i}, v{AD1+i}, v{TM}")
    o("    s_mov_b64 exec, -1")
    o("    s_branch K2_RANKD")

    L("K2_STREAM_DONE")
    o(f"    s_cmp_eq_u32 s{sMode}, 0")
    o("    s_cbranch_scc1 K2_POSTG")
    o(f"    s_add_u32 s{sJlo}, s{sJlo}, 8")
    o(f"    s_cmp_lt_u32 s{sJlo}, s{sMax}")
    o("    s_cbranch_scc1 K2_SLOW_ROUND")
    o("    s_nop 7")
    lane_id()
    dump_addr()
    o(f"    s_mov_b32 s{sT2}, 5")
    L("K2_SLOWL")
    for si in range(11):
        o(f"    buffer_load_dword v{TT+2*si}, v{vSa}, {sr(sWS,4)}, 0 offen offset:{si*256} sc1")
    o(f"    v_add_u32 v{vSa}, {8*2816}, v{vSa}")
    o("    s_waitcnt vmcnt(0)")
    commit_lds()
    o(f"    s_sub_u32 s{sT2}, s{sT2}, 1")
    o(f"    s_cmp_lg_u32 s{sT2}, 0")
    o("    s_cbranch_scc1 K2_SLOWL")

    L("K2_POSTG")
    stamp(6)
    if STAMP:
        o("    s_memtime s[100:101]")
        o("    s_waitcnt lgkmcnt(0)")
        o(f"    v_writelane_b32 v{STV}, s100, 13")
    t0, t1 = 226, 227
    vLane = 246
    o(f"    v_mbcnt_lo_u32_b32 v{vLane}, -1, 0")
    o(f"    v_mbcnt_hi_u32_b32 v{vLane}, -1, v{vLane}")
    o(f"    v_lshlrev_b32 v{t1}, 4, v{vLane}")
    o(f"    s_cmp_ge_u32 s{sWave}, 4")
    o("    s_cbranch_scc1 K2_NOWF")
    o(f"    s_mul_i32 s{sT}, s{sWave}, 10240")
    o(f"    s_add_u32 s{sT}, s{sT}, {WS_WF}")
    for f in range(10):
        if f == 4 or f == 8:
            o(f"    s_add_u32 s{sT}, s{sT}, 4096")
        o(f"    buffer_load_dwordx4 {vr(4*f,4)}, v{t1}, {sr(sWS,4)}, s{sT} offen offset:{(f%4)*1024}")
    L("K2_NOWF")
    vB_, vOt = 224, 225
    o(f"    v_and_b32 v{t0}, 15, v{vLane}")
    o(f"    v_lshrrev_b32 v{t1}, 4, v{vLane}")
    o(f"    v_mul_u32_u24 v{vB_}, {SDS}, v{t0}")
    o(f"    v_lshl_add_u32 v{vB_}, v{t1}, 4, v{vB_}")
    o(f"    v_add_u32 v{vB_}, {SD}, v{vB_}")
    o(f"    v_mul_u32_u24 v{vOt}, {OUT_STRIDE}, v{t0}")
    o(f"    v_lshl_add_u32 v{vOt}, v{t1}, 3, v{vOt}")
    o(f"    s_lshl_b32 s{sT}, s{sWave}, 5")
    o(f"    s_add_u32 s{sT}, s{sT}, {OUTT}")
    o(f"    v_add_u32 v{vOt}, s{sT}, v{vOt}")
    o("    s_waitcnt lgkmcnt(0)")
    o("    s_barrier")
    stamp(7)
    o(f"    s_cmp_ge_u32 s{sWave}, 4")
    o("    s_cbranch_scc1 K2_NOGEMM")
    seq = []
    for T in range(3):
        for blk in range(4):
            items = [(ks if blk == 0 else 4 + ks, blk * 256 + 64 * ks) for ks in range(4)]
            if blk:
                items += [(8 + ks, 1024 + 128 * (blk - 1) + 64 * ks) for ks in range(2)]
            for n_, (f, off) in enumerate(items):
                seq.append((T, blk, f, T * 16 * SDS + off, n_ == 0))
    BB = 64
    NB_ = 12
    DEPTH = 10
    DDs = [128, 144]
    G = 160
    def bread(i):
        o(f"    ds_read_b128 {vr(BB+4*(i%NB_),4)}, v{vB_} offset:{seq[i][3]}")
    for i in range(DEPTH):
        bread(i)
    o(f"    v_mov_b32 v{G+16}, 0xbfb8aa3b           ; -log2(e)")
    o("    s_waitcnt vmcnt(0)")
    def finish(T):
        DD = DDs[T & 1]
        for r in range(4):
            o(f"    v_mul_f32 v{G+r}, v{G+16}, v{DD+r}")
        for r in range(4):
            o(f"    v_exp_f32 v{G+r}, v{G+r}")
        for r in range(4):
            o(f"    v_add_f32 v{G+r}, 1.0, v{G+r}")
        for r in range(4):
            o(f"    v_rcp_f32 v{G+r}, v{G+r}")
        Rr = 228 + 8 * T - (0 if T < 2 else 244 - 186)
        o(f"    v_cvt_pk_bf16_f32 v{Rr}, v{DD}, v{DD+1}")
        o(f"    v_cvt_pk_bf16_f32 v{Rr+1}, v{DD+2}, v{DD+3}")
        for blk in range(1, 4):
            for r in range(4):
                o(f"    v_mul_f32 v{DD+4*blk+r}, v{DD+4*blk+r}, v{G+r}")
            o(f"    v_cvt_pk_bf16_f32 v{Rr+2*blk}, v{DD+4*blk}, v{DD+4*blk+1}")
            o(f"    v_cvt_pk_bf16_f32 v{Rr+1+2*blk}, v{DD+4*blk+2}, v{DD+4*blk+3}")
    n = len(seq)
    pend_w = 0
    for i, (T, blk, f, off, first) in enumerate(seq):
        cnt = min(i + DEPTH, n) - 1 - i
        o(f"    s_waitcnt lgkmcnt({cnt})")
        d = vr(DDs[T & 1] + 4 * blk, 4)
        o(f"    v_mfma_f32_16x16x32_bf16 {d}, {vr(4*f,4)}, {vr(BB+4*(i%NB_),4)}, {'0' if first else d}")
        if i + DEPTH < n:
            bread(i + DEPTH)
        if i + 1 == n or seq[i + 1][0] != T:
            finish(T)
    for T in range(3):
        for blk in range(4):
            o(f"    ds_write_b64 v{vOt}, {vr(228 + 8 * T - (0 if T < 2 else 244 - 186) + 2*blk,2)} offset:{T*16*OUT_STRIDE + blk*128}")
    L("K2_NOGEMM")
    o(f"    s_lshl_b32 s{sT}, s{sWave}, 6")
    o(f"    v_add_u32 v4, s{sT}, v{vLane}            ; tid")
    o("    v_lshrrev_b32 v0, 5, v4")
    o("    v_and_b32 v1, 31, v4")
    o(f"    v_mul_u32_u24 v2, {OUT_STRIDE}, v0")
    o("    v_lshl_add_u32 v2, v1, 4, v2")
    if OUTT:
        o(f"    v_add_u32 v2, {OUTT}, v2")
    o("    v_lshlrev_b32 v3, 4, v4")
    o("    v_add_u32 v16, 8192, v3")
    o("    v_add_u32 v17, 16384, v3")
    o("    s_waitcnt lgkmcnt(0)")
    o("    s_barrier")
    stamp(8)
    for r in range(3):
        o(f"    ds_read_b128 {vr(4+4*r,4)}, v2 offset:{r*16*OUT_STRIDE}")
    for r in range(3):
        if r == 2:
            o(f"    s_cmp_ge_u32 s{sWave}, 4")
            o("    s_cbranch_scc1 K2_FIN")
        o(f"    s_waitcnt lgkmcnt({2-r})")
        o(f"    buffer_store_dwordx4 {vr(4+4*r,4)}, v{[3,16,17][r]}, {sr(sOUT,4)}, 0 offen {OUTST}")
    L("K2_FIN")
    if STAMP:
        o("    s_waitcnt vmcnt(0)")
    stamp(9)
    stamp_dump(sWS, sWS + 1, sWave, 8, 65 << 20)
    L("K2_END")
    o("    s_endpgm")
    L("CODE_END")

gen_k1()
gen_k2()

o('.section .rodata,"a"')
def kd(name, vgpr, sgpr):
    o(".p2align 6")
    o(f".amdhsa_kernel {name}")
    o(f"  .amdhsa_next_free_vgpr {vgpr}")
    o(f"  .amdhsa_next_free_sgpr {sgpr}")
    o(f"  .amdhsa_accum_offset {(vgpr+3)//4*4}")
    o("  .amdhsa_group_segment_fixed_size 0")
    o("  .amdhsa_kernarg_size 96")
    o("  .amdhsa_user_sgpr_count 2")
    o("  .amdhsa_user_sgpr_kernarg_segment_ptr 1")
    o("  .amdhsa_system_sgpr_workgroup_id_x 1")
    o("  .amdhsa_float_denorm_mode_32 3")
    o(".end_amdhsa_kernel")
kd("tp_part_kernel", 80, 102 if STAMP else 72)
kd("tp_main_kernel", 256, 102 if STAMP else 90)

open(OUTFILE, "w").write("\n".join(lines) + "\n")
print("wrote", OUTFILE, len(lines), "lines; K2 LDS", K2_LDS)
```

```python
import sys, os

P = 1
OUTFILE = sys.argv[1] if len(sys.argv) > 1 else "standalone__tensor_product_equiv_equiformer__graph.s"
STAMP = int(os.environ.get("STAMP", "0"))
K1ST = os.environ.get("K1ST", "sc1")
K1LD2 = os.environ.get("K1LD2", "nt")
OUTST = os.environ.get("OUTST", "sc1")
K1LD = os.environ.get("K1LD", "nt")
EXP = os.environ.get("EXP", "")
K1ORD = int(os.environ.get("K1ORD", "0"))
ZZ = int(os.environ.get("ZZ", "1"))
K1MAP = int(os.environ.get("K1MAP", "0"))
PK = int(os.environ.get("PK", "0"))
RMASK = int(os.environ.get("RMASK", "1"))
WLDS = int(os.environ.get("WLDS", "1"))
XEND = os.environ.get("XEND", "")
NEARLY = int(os.environ.get("NEARLY", "4"))
K1PF = int(os.environ.get("K1PF", "0"))
PF0 = int(os.environ.get("PF0", "1"))
PFPOS = os.environ.get("PFPOS", "d")
PFI = int(os.environ.get("PFI", "5"))
PFL = int(os.environ.get("PFL", "32"))
IDXN = int(os.environ.get("IDXN", "0"))
IDXN2 = int(os.environ.get("IDXN2", "3"))
CPF = int(os.environ.get("CPF", "2"))
VW = int(os.environ.get("VW", "48"))
PRIO = [int(t) for t in os.environ.get("PRIO", "2,3,4").split(",") if t]
XPF = int(os.environ.get("XPF", "0"))

N = 10000
E = 640000
NWG = 256
CH = 2500
BINM = 1677
PHM = (P << 23) // 10000
WS_REC = 0
WS_KEY = 10240000
WS_TAB = 10880000
WS_T2 = WS_TAB + 256 * 1024
WS_WF = WS_T2 + 256 * 8192
WS_WR = WS_WF + 40 * 1024
WS_S32 = WS_WR + 5 * 1024
WS_END = WS_S32 + 256 * 40 * 2816

lines = []
def o(s=""):
    lines.append(s)
def L(s):
    lines.append(s + ":")
def vr(a, n):
    return f"v[{a}:{a+n-1}]"
def sr(a, n):
    return f"s[{a}:{a+n-1}]"
def srd(d, lo, hi, nbytes):
    o(f"    s_mov_b32 s{d}, s{lo}")
    o(f"    s_and_b32 s{d+1}, s{hi}, 0xffff")
    o(f"    s_mov_b32 s{d+2}, {nbytes}")
    o(f"    s_mov_b32 s{d+3}, 0x00020000")

STV = 183
def stamp(i, vreg=STV):
    if STAMP:
        o("    s_memrealtime s[100:101]")
        o("    s_waitcnt lgkmcnt(0)")
        o(f"    v_writelane_b32 v{vreg}, s100, {i}")
def stamp_dump(wsl, wsh, wave_sgpr, nwaves, base, vreg=STV):
    if not STAMP:
        return
    o("    s_waitcnt lgkmcnt(0) vmcnt(0)")
    o("    s_mov_b64 exec, 0xffff")
    o(f"    s_mul_i32 s4, s2, {nwaves}")
    o(f"    s_add_u32 s4, s4, s{wave_sgpr}")
    o("    s_lshl_b32 s4, s4, 6")
    o(f"    s_add_u32 s4, s4, {base}")
    o(f"    s_mov_b32 s8, s{wsl}")
    o(f"    s_and_b32 s9, s{wsh}, 0xffff")
    o("    s_mov_b32 s10, 0x8000000")
    o("    s_mov_b32 s11, 0x00020000")
    o("    v_mbcnt_lo_u32_b32 v0, -1, 0")
    o("    v_lshl_add_u32 v0, v0, 2, s4")
    o(f"    buffer_store_dword v{vreg}, v0, s[8:11], 0 offen")
    o("    s_waitcnt vmcnt(0)")

K1_CNT = 0
K1_START = 1024
K1_KEY = 2048
K1_T2 = 4608
K1_REC = K1_T2 + 8192
K1_LDS = K1_REC + 40960

SLOTCAP = 3072
RAW = 0
RING = RAW + SLOTCAP * 16
RBLK = 1152
MASK = RING + 8 * 3 * RBLK
CNT = MASK + 1024
BASE = CNT + 512
MISC = BASE + 512
SD = MISC + 64
SDS = 1440
K2_LDS = SD + 48 * SDS
WST = SD + 40 * SDS
OUTT = RAW
OUT_STRIDE = 528
assert K2_LDS <= 163840, K2_LDS
assert SD % 16 == 0

o(f"; @launch kernel=tp_part_kernel grid=({NWG},1,1) block=(704,1,1) lds={K1_LDS}")
o(f"; @launch kernel=tp_main_kernel grid=({NWG},1,1) block=(512,1,1) lds={K2_LDS}")
o('.amdgcn_target "amdgcn-amd-amdhsa--gfx950"')
o(".text")

def gen_k1():
    SV = 79
    o(".globl tp_part_kernel")
    o(".p2align 8")
    o(".type tp_part_kernel,@function")
    L("tp_part_kernel")
    o(f"    s_cmp_ge_u32 s2, {NWG}")
    o("    s_cbranch_scc1 K1_END")
    if K1MAP:
        o("    s_and_b32 s3, s2, 7")
        o("    s_lshl_b32 s3, s3, 5")
        o("    s_lshr_b32 s2, s2, 3")
        o("    s_add_u32 s2, s2, s3")
    stamp(0, SV)
    o("    s_load_dwordx4 s[4:7], s[0:1], 8")
    o("    s_load_dwordx4 s[8:11], s[0:1], 24")
    o("    s_load_dwordx2 s[16:17], s[0:1], 88   ; ws")
    o("    s_load_dwordx2 s[64:65], s[0:1], 0    ; x")
    def code_pf():
        o("    s_cmp_lg_u32 s50, 8")
        o("    s_cbranch_scc1 K1_NOCPF")
        o("    s_getpc_b64 s[66:67]")
        L("K1_PC")
        o("    v_and_b32 v78, 3, v0")
        o("    s_lshr_b32 s68, s2, 3")
        o("    s_lshl_b32 s68, s68, 9")
        o("    v_lshl_add_u32 v78, v78, 7, s68")
        o(f"    v_min_u32 v77, CODE_END-K1_PC-4, v78")
        o("    s_mov_b64 exec, 15")
        o(f"    global_load_dword v76, v77, s[66:67]")
        o("    s_mov_b64 exec, -1")
        L("K1_NOCPF")
    def xtouch():
        o("    s_cmp_ge_u32 s50, 3")
        o("    s_cbranch_scc1 K1_NOX")
        srd(68, 64, 65, N * 512)
        o("    s_mul_i32 s66, s2, 20000")
        o("    s_and_b32 s66, s66, 0xffffff80")
        o("    v_lshl_add_u32 v77, v0, 7, s66")
        o("    v_cmp_gt_u32 vcc, 158, v0")
        o("    s_and_b64 exec, exec, vcc")
        o("    buffer_load_dword v78, v77, s[68:71], 0 offen")
        o("    s_mov_b64 exec, -1")
        L("K1_NOX")
    D, S, EA, RA, RB = 4, 8, 12, 20, 24
    BN, RK, ST = 28, 32, 36
    T = 40
    WFR = 48
    C = 56
    o("    v_lshrrev_b32 v70, 6, v0")
    o("    v_lshlrev_b32 v1, 2, v0               ; tid*4")
    o("    v_readfirstlane_b32 s50, v70")
    o(f"    s_mul_i32 s3, s2, {CH}")
    o("    v_add_u32 v2, s3, v1")
    o("    v_lshlrev_b32 v3, 2, v2")
    o(f"    v_lshlrev_b32 v{T}, 3, v2")
    o(f"    v_mul_u32_u24 v{T+1}, 6, v2")
    o("    s_cmp_eq_u32 s50, 10")
    o("    s_cbranch_scc1 K1_AUX")
    o("    s_waitcnt lgkmcnt(0)")
    stamp(1, SV)
    srd(20, 10, 11, E * 4)
    o(f"    buffer_load_dwordx4 {vr(D,4)}, v3, s[20:23], 0 offen {K1LD}")
    srd(24, 8, 9, E * 4)
    srd(28, 6, 7, E * 8)
    srd(32, 4, 5, E * 6)
    def payload():
        o(f"    buffer_load_dwordx4 {vr(S,4)}, v3, s[24:27], 0 offen {K1LD}")
        o(f"    buffer_load_dwordx4 {vr(EA,4)}, v{T}, s[28:31], 0 offen {K1LD2}")
        o(f"    buffer_load_dwordx4 {vr(EA+4,4)}, v{T}, s[28:31], 0 offen offset:16 {K1LD2}")
        o(f"    buffer_load_dwordx3 {vr(RA,3)}, v{T+1}, s[32:35], 0 offen {K1LD2}")
        o(f"    buffer_load_dwordx3 {vr(RB,3)}, v{T+1}, s[32:35], 0 offen offset:12 {K1LD2}")
    if K1ORD == 0:
        payload()
    o("    v_lshlrev_b32 v71, 4, v0              ; tid*16")
    o("    v_and_b32 v70, 63, v0")
    o("    v_lshlrev_b32 v70, 4, v70             ; lane*16")
    o("    s_cmp_lt_u32 s50, 8")
    o("    s_cselect_b32 s51, -1, 0")
    for i in range(4):
        o(f"    v_mov_b32 v{60+i}, s51")
    o("    s_cbranch_scc0 K1_INIT2")
    o(f"    ds_write_b128 v71, v[60:63] offset:{K1_T2}")
    o("    s_branch K1_INIT3")
    L("K1_INIT2")
    o(f"    ds_write_b128 v70, v[60:63] offset:{K1_CNT}")
    L("K1_INIT3")
    o(f"    s_mul_i32 s36, s2, {CH*16}")
    o("    s_add_u32 s36, s16, s36")
    o("    s_addc_u32 s37, s17, 0")
    o("    s_and_b32 s37, s37, 0xffff")
    o(f"    s_mov_b32 s38, {CH*16}")
    o("    s_mov_b32 s39, 0x00020000")
    o(f"    s_add_u32 s40, s3, {WS_KEY}")
    o("    s_add_u32 s40, s16, s40")
    o("    s_addc_u32 s41, s17, 0")
    o("    s_and_b32 s41, s41, 0xffff")
    o(f"    s_mov_b32 s42, {CH}")
    o("    s_mov_b32 s43, 0x00020000")
    srd(44, 16, 17, WS_END)
    o("    s_mov_b32 s62, 0x05040100")
    o("    s_mov_b32 s63, 0x05040302")
    for r in range(1, 4):
        o(f"    v_add_u32 v{71+r}, {r*10240}, v71")
    o("    s_waitcnt lgkmcnt(0)")
    o("    s_barrier")
    if K1ORD == 1:
        payload()
    if CPF == 1:
        code_pf()
    o(f"    v_cmp_gt_u32 vcc, {CH//4}, v0")
    o("    s_mov_b64 s[60:61], vcc")
    o("    s_mov_b64 exec, vcc")
    o("    v_mov_b32 v2, 1")
    o("    s_waitcnt vmcnt(5)")
    stamp(2, SV)
    for j in range(4):
        o(f"    v_mul_u32_u24 v{D+j}, {BINM}, v{D+j}")
    for j in range(4):
        o(f"    v_lshrrev_b32 v{BN+j}, 14, v{D+j}")
    for j in range(4):
        o(f"    v_and_b32 v{BN+j}, 0x3fc, v{BN+j}")
    for j in range(4):
        o(f"    ds_add_rtn_u32 v{RK+j}, v{BN+j}, v2 offset:{K1_CNT}")
    o("    s_mov_b64 exec, -1")
    o("    s_waitcnt lgkmcnt(0)")
    o("    s_barrier")
    stamp(3, SV)
    o(f"    ds_read_b128 {vr(C,4)}, v70 offset:{K1_CNT}")
    for j in range(4):
        o(f"    v_and_b32 v{D+j}, 0xffff, v{D+j}")
        o(f"    v_mul_u32_u24 v{D+j}, 40018, v{D+j}")
        o(f"    v_bfe_u32 v{ST+j}, v{D+j}, 26, 3       ; local&7")
        o(f"    v_lshrrev_b32 v{D+j}, 29, v{D+j}       ; local>>3")
        if ZZ > 1:
            o(f"    v_and_b32 v{44+j}, 1, v{D+j}             ; k&1")
            o(f"    v_mul_u32_u24 v{D+j}, {ZZ}, v{D+j}")
        o(f"    v_lshl_add_u32 v{D+j}, v{ST+j}, 4, v{D+j}")
    o("    s_waitcnt lgkmcnt(0)")
    o(f"    v_add_u32 v64, v{C}, v{C+1}")
    o(f"    v_add_u32 v65, v64, v{C+2}")
    o(f"    v_add_u32 v66, v65, v{C+3}")
    o("    v_mov_b32 v67, v66")
    fill = []
    for j in range(4):
        fill.append(f"    v_min_u32 v{WFR+j}, 29, v{RK+j}")
        fill.append(f"    v_lshlrev_b32 v{WFR+j}, 1, v{WFR+j}")
        fill.append(f"    v_subrev_u32 v{WFR+4+j}, 29, v{WFR+j}")
        fill.append(f"    v_min_u32 v{WFR+j}, v{WFR+j}, v{WFR+4+j}")
    def two():
        o(fill.pop(0)); o(fill.pop(0))
    two()
    for sh in (1, 2, 4, 8):
        o(f"    v_add_u32_dpp v67, v67, v67 row_shr:{sh} row_mask:0xf bank_mask:0xf bound_ctrl:0")
        two()
    o("    v_add_u32_dpp v67, v67, v67 row_bcast:15 row_mask:0xa bank_mask:0xf")
    two()
    o("    v_add_u32_dpp v67, v67, v67 row_bcast:31 row_mask:0xc bank_mask:0xf")
    o("    v_sub_u32 v60, v67, v66")
    o(f"    v_add_u32 v61, v60, v{C}")
    o("    v_add_u32 v62, v60, v64")
    o("    v_add_u32 v63, v60, v65")
    o(f"    ds_write_b128 v70, v[60:63] offset:{K1_START}")
    for j in range(4):
        o(f"    ds_read_b32 v{ST+j}, v{BN+j} offset:{K1_START}")
    while fill:
        o(fill.pop(0))
    for j in range(4):
        o(f"    v_lshl_add_u32 v{WFR+j}, v{BN+j}, 3, v{WFR+j}")
    o("    s_cmp_lg_u32 s50, 9")
    o("    s_cbranch_scc1 K1_NOTAB")
    o("    v_lshlrev_b32 v68, 3, v70")
    for j in range(4):
        o(f"    v_cmp_lt_u32 vcc, 30, v{C+j}")
        o(f"    v_or_b32 v69, 0x8000, v{60+j}")
        o(f"    v_lshl_or_b32 v{C+j}, v{C+j}, 16, v{60+j}")
        o(f"    v_cndmask_b32 v69, v{60+j}, v69, vcc")
        o(f"    ds_write_b16 v68, v69 offset:{K1_T2 + 32*j + 30}")
    L("K1_NOTAB")
    o("    s_mov_b64 exec, s[60:61]")
    if P > 1:
        o("    s_waitcnt vmcnt(4)")
        for j in range(4):
            o(f"    v_mul_u32_u24 v{WFR+4+j}, {PHM}, v{S+j}")
            o(f"    v_lshrrev_b32 v{WFR+4+j}, 23, v{WFR+4+j}")
            o(f"    v_mad_u32_u24 v{D+j}, v{WFR+4+j}, 5, v{D+j}")
    if ZZ > 1:
        o("    s_waitcnt vmcnt(4)")
        for j in range(4):
            o(f"    v_mul_u32_u24 v{WFR+4+j}, {(ZZ << 23) // 10000}, v{S+j}")
            o(f"    v_lshrrev_b32 v{WFR+4+j}, 23, v{WFR+4+j}     ; sub")
            o(f"    v_sub_u32 v64, {ZZ-1}, v{WFR+4+j}")
            o(f"    v_sub_u32 v64, v64, v{WFR+4+j}")
            o(f"    v_mad_i32_i24 v64, v64, v{44+j}, v{WFR+4+j}")
            o(f"    v_add_u32 v{D+j}, v{D+j}, v64")
    for j in range(4):
        o(f"    ds_write_b8 v{WFR+j}, v{D+j} offset:{K1_T2}")
    o("    s_waitcnt lgkmcnt(4)")
    for j in range(4):
        o(f"    v_add_u32 v{ST+j}, v{ST+j}, v{RK+j}     ; pos")
    for j in range(4):
        o(f"    ds_write_b8 v{ST+j}, v{D+j} offset:{K1_KEY}")
    for j in range(4):
        o(f"    v_lshlrev_b32 v{RK+j}, 4, v{ST+j}")
        o(f"    v_add_u32 v{RK+j}, {K1_REC}, v{RK+j}")
    o("    s_waitcnt vmcnt(1)")
    o(f"    v_alignbit_b32 v{T}, v{RA+2}, v{RA+1}, 16")
    o(f"    v_perm_b32 v{T+1}, v{S+1}, v{RA+2}, s63")
    o(f"    v_perm_b32 v{RA+1}, v{S}, v{RA+1}, s62")
    yp = [RA, T, RB, T + 2]
    for j in range(2):
        o(f"    ds_write2_b64 v{RK+j}, {vr(EA+2*j,2)}, {vr(yp[j],2)} offset0:0 offset1:1")
    o("    s_waitcnt vmcnt(0)")
    stamp(4, SV)
    o(f"    v_alignbit_b32 v{T+2}, v{RB+2}, v{RB+1}, 16")
    o(f"    v_perm_b32 v{T+3}, v{S+3}, v{RB+2}, s63")
    o(f"    v_perm_b32 v{RB+1}, v{S+2}, v{RB+1}, s62")
    for j in range(2, 4):
        o(f"    ds_write2_b64 v{RK+j}, {vr(EA+2*j,2)}, {vr(yp[j],2)} offset0:0 offset1:1")
    o("    s_mov_b64 exec, -1")
    if CPF == 2:
        code_pf()
    o("    s_waitcnt lgkmcnt(0)")
    o("    s_barrier")
    stamp(5, SV)
    if XEND == "mid":
        xtouch()
    for r in range(4):
        o(f"    ds_read_b128 {vr(4+4*r,4)}, v71 offset:{K1_REC + r*10240}")
    o(f"    ds_read_b128 {vr(24,4)}, v71 offset:{K1_T2}")
    o(f"    ds_read_b32 v20, v1 offset:{K1_KEY}")
    for r in range(4):
        o(f"    s_waitcnt lgkmcnt({5-r})")
        o(f"    buffer_store_dwordx4 {vr(4+4*r,4)}, v{71+r}, s[36:39], 0 offen {K1ST}")
    o("    s_cmp_lt_u32 s50, 8")
    o("    s_cbranch_scc0 K1_NT2")
    o("    s_lshl_b32 s52, s2, 13")
    o(f"    s_add_u32 s52, s52, {WS_T2}")
    o("    s_waitcnt lgkmcnt(1)")
    o(f"    buffer_store_dwordx4 {vr(24,4)}, v71, s[44:47], s52 offen {K1ST}")
    L("K1_NT2")
    o("    s_cmp_lg_u32 s50, 9")
    o("    s_cbranch_scc1 K1_NT1")
    o("    s_lshl_b32 s52, s2, 10")
    o(f"    s_add_u32 s52, s52, {WS_TAB}")
    o(f"    buffer_store_dwordx4 {vr(C,4)}, v70, s[44:47], s52 offen {K1ST}")
    L("K1_NT1")
    o("    s_waitcnt lgkmcnt(0)")
    o("    buffer_store_dword v20, v1, s[40:43], 0 offen")
    if XEND == "end":
        xtouch()
    stamp(6, SV)
    if STAMP:
        o("    s_waitcnt vmcnt(0)")
    stamp(7, SV)
    stamp_dump(16, 17, 50, 10, 64 << 20, SV)
    L("K1_END")
    o("    s_endpgm")
    L("K1_AUX")
    o("    s_cmp_ge_u32 s2, 45")
    o("    s_cbranch_scc1 K1_END")
    o("    s_load_dwordx2 s[18:19], s[0:1], 40   ; w_rad")
    o("    s_load_dwordx4 s[12:15], s[0:1], 48")
    o("    v_and_b32 v0, 63, v0")
    o("    s_waitcnt lgkmcnt(0)")
    srd(44, 16, 17, WS_END)
    o("    s_cmp_ge_u32 s2, 40")
    o("    s_cbranch_scc1 K1_AUXR")
    o("    s_mul_i32 s51, s2, 26")
    o("    s_lshr_b32 s51, s51, 8                ; t")
    o("    s_mul_i32 s52, s51, 10")
    o("    s_sub_u32 s52, s2, s52                ; q")
    o("    s_cmp_lt_u32 s52, 4")
    o("    s_cselect_b32 s56, s12, s14")
    o("    s_cselect_b32 s57, s13, s15")
    o("    s_movk_i32 s58, 16384")
    o("    s_cselect_b32 s58, s58, 24576")
    o("    s_and_b32 s57, s57, 0xffff")
    o("    s_mov_b32 s59, 0x00020000")
    o("    v_lshrrev_b32 v70, 4, v0              ; g'")
    o("    v_and_b32 v71, 15, v0")
    o("    v_lshlrev_b32 v71, 1, v71")
    o("    s_lshl_b32 s53, s51, 5")
    o("    v_add_u32 v71, s53, v71               ; (16t+m)*2")
    o("    s_cmp_ge_u32 s52, 8")
    o("    s_cbranch_scc1 K1_FRAGX")
    o("    s_and_b32 s53, s52, 1")
    o("    s_lshl_b32 s53, s53, 5")
    o("    s_bfe_u32 s55, s52, 0x10001           ; (q>>1)&1")
    o("    s_add_u32 s53, s53, s55")
    o("    s_lshl_b32 s53, s53, 7")
    o("    v_lshl_add_u32 v71, v70, 10, v71")
    o("    v_add_u32 v71, s53, v71")
    o("    v_add_u32 v72, 8192, v71")
    for i in range(8):
        o(f"    buffer_load_ushort v{WFR+i}, v{71+(i&1)}, s[56:59], 0 offen offset:{(i>>1)*256}")
    o("    s_branch K1_FRAGW")
    L("K1_FRAGX")
    o("    s_and_b32 s53, s52, 1")
    o("    s_add_u32 s53, s53, 128")
    o("    s_lshl_b32 s53, s53, 7")
    o("    v_lshl_add_u32 v71, v70, 11, v71")
    o("    v_add_u32 v71, s53, v71")
    for i in range(8):
        o(f"    buffer_load_ushort v{WFR+i}, v71, s[56:59], 0 offen offset:{i*256}")
    L("K1_FRAGW")
    o("    s_waitcnt vmcnt(0)")
    for p in range(4):
        o(f"    v_lshl_or_b32 v{WFR+p}, v{WFR+2*p+1}, 16, v{WFR+2*p}")
    o("    s_branch K1_AUXS")
    L("K1_AUXR")
    srd(56, 18, 19, 2560)
    o("    v_and_b32 v70, 31, v0")
    o("    v_lshrrev_b32 v71, 5, v0")
    o("    v_lshlrev_b32 v70, 2, v70")
    o("    v_lshl_add_u32 v70, v71, 1, v70")
    o("    s_sub_u32 s52, s2, 40")
    o("    s_lshl_b32 s52, s52, 7")
    o("    v_add_u32 v70, s52, v70")
    for d in range(4):
        o(f"    buffer_load_ushort v{WFR+d}, v70, s[56:59], 0 offen offset:{d*640}")
    o("    s_waitcnt vmcnt(0)")
    for d in range(4):
        o(f"    v_lshlrev_b32 v{WFR+d}, 16, v{WFR+d}")
    L("K1_AUXS")
    o("    s_lshl_b32 s52, s2, 10")
    o(f"    s_add_u32 s52, s52, {WS_WF}")
    o("    v_lshlrev_b32 v70, 4, v0")
    o(f"    buffer_store_dwordx4 {vr(WFR,4)}, v70, s[44:47], s52 offen")
    o("    s_endpgm")

def gen_k2():
    B, ACC, S, W = 0, 64, 128, 184
    A = [204, 208]
    VO = [212, 220]
    LT, AM1, AM2 = 228, 232, 236
    RR = 240
    ZR = 244
    vA, vV, vRaw, vCw, vVw, vN4, vMask, vEnds, vPar, vIdx = range(246, 256)
    vLane = 125
    TT = 128
    vD4, vD2, vSa = 150, 151, 152
    TC = 154
    sX, sWS, sOUT, sWR = 12, 16, 20, 24
    sBin, sNN, sWave, sMode, sJlo, sMax = 28, 29, 30, 31, 32, 33
    sNs, sGen, sCnt, sSeg, sK, sLo, sHi, sRel, sRet, sRem = range(34, 44)
    sD0, sD1, sD2 = 44, 45, 46
    sEnd, sNext = 54, 55
    sFast = 38
    sT, sT2, sT3 = 47, 48, 49
    sSave = 50
    sAny2 = 52
    sM1 = 56
    sM2 = 72
    sLM = 24
    sOv = 26

    def accr(v, u, d):
        cc = 2 * (d >> 1) + (u >> 1)
        e = 2 * (u & 1) + (d & 1)
        return ACC + 16 * v + 4 * cc + e
    def wreg(p, d):
        return W + 4 * p + d

    o(".globl tp_main_kernel")
    o(f".p2align {os.environ.get('K2AL', '8')}")
    o(".type tp_main_kernel,@function")
    L("tp_main_kernel")
    o(f"    s_cmp_ge_u32 s2, {NWG}")
    o("    s_cbranch_scc1 K2_END")
    stamp(0)
    o("    s_load_dwordx2 s[4:5], s[0:1], 0      ; x")
    o("    s_load_dwordx2 s[8:9], s[0:1], 72     ; out")
    o("    s_load_dwordx2 s[10:11], s[0:1], 88   ; ws")
    o("    v_lshrrev_b32 v1, 6, v0")
    o(f"    v_and_b32 v{vLane}, 63, v0")
    o(f"    v_readfirstlane_b32 s{sWave}, v1")
    o(f"    s_and_b32 s{sBin}, s2, 7")
    o(f"    s_lshl_b32 s{sBin}, s{sBin}, 5")
    o(f"    s_lshr_b32 s{sT}, s2, 3")
    o(f"    s_add_u32 s{sBin}, s{sBin}, s{sT}")
    HD, KY, RK1, RK2, AD1, AD2, RO, TM = 64, 72, 80, 88, 96, 104, 112, 120
    vW0, vJ = 126, 127

    def prefetch0():
        o(f"    s_lshr_b32 s{sT}, s2, 3")
        o(f"    s_lshl_b32 s{sT}, s{sT}, 3")
        o(f"    s_add_u32 s{sT}, s{sT}, s{sWave}")
        o(f"    s_lshl_b32 s{sT}, s{sT}, 13")
        o(f"    v_lshl_add_u32 v160, v{vLane}, 7, s{sT}")
        if PFL < 64:
            o(f"    s_mov_b64 exec, {hex((1 << PFL) - 1)}")
        for i in range(PF0):
            o(f"    buffer_load_dword v161, v160, {sr(sX,4)}, 0 offen")
            if i + 1 < PF0:
                o(f"    v_add_u32 v160, {256*8192}, v160")
    def w_loads():
        if WLDS:
            return
        o(f"    s_mov_b32 s{sT}, {WS_WR}")
        for p in range(5):
            if p == 4:
                o(f"    s_add_u32 s{sT}, s{sT}, 4096")
            o(f"    buffer_load_dwordx4 {vr(W+4*p,4)}, v{TM+1}, {sr(sWS,4)}, s{sT} offen offset:{(p%4)*1024}")
    def dump_addr():
        o(f"    s_mul_i32 s{sT}, s{sWave}, {SDS}")
        o(f"    s_add_u32 s{sT}, s{sT}, {SD}")
        o(f"    v_lshl_add_u32 v{vD4}, v{vLane}, 2, s{sT}")
        o(f"    s_add_u32 s{sT}, s{sT}, 1024")
        o(f"    v_lshl_add_u32 v{vD2}, v{vLane}, 1, s{sT}")
        o(f"    s_mul_i32 s{sT}, s{sBin}, 40")
        o(f"    s_add_u32 s{sT}, s{sT}, s{sWave}")
        o(f"    s_mul_i32 s{sT}, s{sT}, 2816")
        o(f"    s_add_u32 s{sT}, s{sT}, {WS_S32}")
        o(f"    v_lshl_add_u32 v{vSa}, v{vLane}, 2, s{sT}")
    def lane_id():
        o(f"    v_mbcnt_lo_u32_b32 v{vLane}, -1, 0")
        o(f"    v_mbcnt_hi_u32_b32 v{vLane}, -1, v{vLane}")
    def lane_prep():
        o(f"    v_lshrrev_b32 v{vW0}, 4, v{vLane}")
        o(f"    s_lshl_b32 s{sT}, s{sWave}, 5")
        o(f"    v_add_u32 v{vW0}, s{sT}, v{vW0}")
        o(f"    v_and_b32 v{vJ}, 15, v{vLane}")
        o(f"    v_lshlrev_b32 v{TM}, 10, v{vW0}")
    def hdr_loads():
        o(f"    s_lshl_b32 s{sT}, s{sBin}, 2")
        o(f"    s_add_u32 s{sT}, s{sT}, {WS_TAB}")
        for i in range(8):
            o(f"    buffer_load_dword v{HD+i}, v{TM}, {sr(sWS,4)}, s{sT} offen")
            if i < 7:
                o(f"    s_add_u32 s{sT}, s{sT}, 4096")
    lane_prep()
    o(f"    v_lshlrev_b32 v{TM+1}, 13, v{vW0}")
    o(f"    v_lshl_add_u32 v{TM+1}, v{vJ}, 1, v{TM+1}")
    o(f"    s_lshl_b32 s{sT}, s{sBin}, 5")
    o(f"    s_add_u32 s{sT}, s{sT}, {WS_T2}")
    o("    s_waitcnt lgkmcnt(0)")
    stamp(1)
    srd(sWS, 10, 11, WS_END)
    for i in range(8):
        o(f"    buffer_load_ushort v{KY+i}, v{TM+1}, {sr(sWS,4)}, s{sT} offen")
        if i < 7:
            o(f"    s_add_u32 s{sT}, s{sT}, 32768")
    if WLDS:
        o(f"    v_lshlrev_b32 v{W+4}, 4, v0                 ; tid*16")
        o(f"    v_min_u32 v{W+4}, 5104, v{W+4}")
        o(f"    s_mov_b32 s{sT}, {WS_WR}")
        o(f"    buffer_load_dwordx4 {vr(W,4)}, v{W+4}, {sr(sWS,4)}, s{sT} offen")
    srd(sX, 4, 5, N * 512)
    o(f"    v_and_b32 v{TM+2}, 31, v{vLane}")
    o(f"    v_lshlrev_b32 v{vN4}, 2, v{TM+2}")
    o(f"    v_lshrrev_b32 v{TM+3}, 5, v{vLane}      ; g = l>>5")
    o(f"    s_lshl_b32 s{sT}, s{sBin}, 16")
    o(f"    s_add_u32 s{sT}, s{sT}, {BINM-1}")
    o(f"    s_mul_hi_u32 s{sT2}, s{sT}, 0x27144e     ; n0")
    o(f"    s_add_u32 s{sT}, s{sT}, 0x10000")
    o(f"    s_mul_hi_u32 s{sT}, s{sT}, 0x27144e")
    o(f"    s_min_u32 s{sT}, s{sT}, {N}")
    o(f"    s_sub_u32 s{sNN}, s{sT}, s{sT2}")
    o(f"    s_lshl_b32 s{sT}, s{sT2}, 9")
    o(f"    s_add_u32 s{sOUT}, s8, s{sT}")
    o(f"    s_addc_u32 s{sOUT+1}, s9, 0")
    o(f"    s_and_b32 s{sOUT+1}, s{sOUT+1}, 0xffff")
    o(f"    s_lshl_b32 s{sOUT+2}, s{sNN}, 9")
    o(f"    s_mov_b32 s{sOUT+3}, 0x00020000")
    o(f"    s_mov_b32 s{sMode}, 0")
    o(f"    s_mov_b32 s{sFast}, 0")
    o(f"    s_mov_b32 s{sJlo}, 0")
    o("    v_lshrrev_b32 v5, 3, v0               ; e")
    o("    v_and_b32 v6, 7, v0")
    o("    v_lshlrev_b32 v6, 1, v6               ; 8ha+2p")
    o("    v_sub_u32 v5, v5, v6                  ; e-(8ha+2p)")
    o("    v_med3_i32 v5, v5, 0, 2")
    o("    v_lshlrev_b32 v5, 4, v5")
    o("    v_mov_b32 v6, -1")
    o("    v_mov_b32 v7, 0")
    o("    v_lshlrev_b64 v[6:7], v5, v[6:7]")
    o("    v_cmp_gt_u32 vcc, 256, v0")
    o("    v_lshlrev_b32 v3, 2, v0")
    o(f"    v_add_u32 v3, {MASK}, v3")
    o("    v_cndmask_b32 v2, 0, v7, vcc")
    o("    ds_write_b32 v3, v2")
    o("    v_mov_b32 v2, 0")
    o(f"    v_mov_b32 v3, {MISC}")
    o("    ds_write2_b32 v3, v2, v2 offset0:0 offset1:1")
    o(f"    v_mov_b32 v{ZR}, 0")
    o(f"    v_mov_b32 v{ZR+1}, 0")
    o(f"    v_and_b32 v4, 1, v{vLane}")
    o(f"    v_sub_u32 v{vPar}, 0, v4")
    o(f"    v_bfe_u32 v4, v{vLane}, 2, 1")
    o(f"    v_mul_u32_u24 v{vIdx}, 0x5555, v4")
    o(f"    v_add_u32 v{vIdx}, 0x8888, v{vIdx}       ; 0x8888 / 0xdddd")
    o(f"    v_lshlrev_b32 v{vMask}, 4, v{TM+3}")
    o(f"    v_add_u32 v{vMask}, {MASK}, v{vMask}")
    o("    s_waitcnt lgkmcnt(0)")
    o(f"    s_movk_i32 s{sT}, {CH}")
    o(f"    v_mad_u32_u24 v{TM+2}, v{vW0}, s{sT}, v{vJ}   ; w0*2500 + j")
    o(f"    s_mov_b32 s{sLM}, 0x7fff7fff")
    o(f"    s_mov_b32 s{sLM+1}, 0x7fff7fff")
    o(f"    s_mov_b64 {sr(sOv,2)}, -1")
    o(f"    s_mov_b64 {sr(sAny2,2)}, 0")
    o(f"    v_mov_b32 v{TM+4}, {CNT}")
    o(f"    v_lshlrev_b32 v{TM+1}, 4, v{vLane}")
    o("    s_barrier")
    def rec_load(i):
        o(f"    s_mov_b32 s{sT}, {i*4*CH*16}")
        if RMASK:
            o(f"    s_or_b64 exec, {sr(sM1+2*i,2)}, 1")
        o(f"    buffer_load_dwordx4 {vr(4*i,4)}, v{RO+i}, {sr(sWS,4)}, s{sT} offen")
        if RMASK:
            o("    s_mov_b64 exec, -1")
    o(f"    v_mov_b32 v{TM}, 1")
    for i in range(8):
        o(f"    s_waitcnt vmcnt({7 - i + min(i, NEARLY) + WLDS})")
        if i == 0:
            stamp(2)
        o(f"    v_mov_b32_dpp v{RO+i}, v{KY+i} row_newbcast:15 row_mask:0xf bank_mask:0xf")
        o(f"    v_and_b32 v{AD1+i}, 0xff, v{KY+i}")
        o(f"    v_and_b32 v{RO+i}, 0xfff, v{RO+i}")
        o(f"    v_cmp_gt_u32 vcc, 0x80, v{AD1+i}")
        o(f"    v_add_lshl_u32 v{RO+i}, v{RO+i}, v{TM+2}, 4")
        o(f"    v_lshl_add_u32 v{AD1+i}, v{AD1+i}, 2, v{TM+4}")
        o(f"    s_and_b64 {sr(sM1+2*i,2)}, vcc, {sr(sLM,2)}")
        if i < NEARLY:
            rec_load(i)
        o(f"    v_cmp_gt_u32 vcc, 0x8000, v{KY+i}")
        o(f"    s_mov_b64 exec, {sr(sM1+2*i,2)}")
        o(f"    ds_add_rtn_u32 v{RK1+i}, v{AD1+i}, v{TM}")
        o("    s_mov_b64 exec, -1")
        o(f"    s_and_b64 {sr(sM2+2*i,2)}, vcc, {sr(sLM,2)}")
        o(f"    s_and_b64 {sr(sOv,2)}, {sr(sOv,2)}, vcc")
        o(f"    s_or_b64 {sr(sAny2,2)}, {sr(sAny2,2)}, {sr(sM2+2*i,2)}")
    o("    s_cbranch_scc0 K2_NO2B")
    o("    s_waitcnt lgkmcnt(4)")
    for i in range(8):
        o(f"    s_mov_b64 exec, {sr(sM2+2*i,2)}")
        o(f"    s_cbranch_execz K2_NK2{i}")
        o(f"    v_lshrrev_b32 v{AD2+i}, 8, v{KY+i}")
        o(f"    v_lshl_add_u32 v{AD2+i}, v{AD2+i}, 2, v{TM+4}")
        o(f"    ds_add_rtn_u32 v{RK2+i}, v{AD2+i}, v{TM}")
        L(f"K2_NK2{i}")
    o("    s_mov_b64 exec, -1")
    L("K2_NO2B")
    if WLDS:
        o(f"    v_add_u32 v{W+4}, {WST}, v{W+4}")
    o(f"    s_or_b64 {sr(sOv,2)}, {sr(sOv,2)}, {sr(sLM,2)}")
    o(f"    s_cmp_eq_u64 {sr(sOv,2)}, -1")
    o("    s_cbranch_scc1 K2_RANKD")
    o(f"    v_mov_b32 v{TM}, {MISC}")
    o(f"    ds_write_b32 v{TM}, v{TM}")
    L("K2_RANKD")
    c0, c1, i0, i1, tt0, tt1, e0, e1, p0, p1, a0, a1, b0, b1, ad, mx = range(204, 220)
    o(f"    v_lshlrev_b32 v{ad}, 2, v{vLane}")
    o(f"    v_add_u32 v{ad}, {CNT}, v{ad}")
    o(f"    v_mov_b32 v{mx}, {MISC}")
    o("    s_waitcnt lgkmcnt(0)")
    o("    s_barrier")
    stamp(3)
    o(f"    ds_read2st64_b32 v[{c0}:{c1}], v{ad} offset0:0 offset1:1")
    o(f"    ds_read_b32 v{mx}, v{mx}")
    o(f"    s_cmp_lg_u32 s{sMode}, 0")
    o("    s_cbranch_scc1 K2_NOLATE")
    for i in range(NEARLY, NEARLY + 2):
        rec_load(i)
    L("K2_NOLATE")
    o("    s_waitcnt lgkmcnt(0)")
    o(f"    v_mov_b32 v{i0}, v{c0}")
    o(f"    v_mov_b32 v{i1}, v{c1}")
    o(f"    v_readfirstlane_b32 s{sT3}, v{mx}")
    for sh in (1, 2, 4, 8):
        o(f"    v_add_u32_dpp v{i0}, v{i0}, v{i0} row_shr:{sh} row_mask:0xf bank_mask:0xf bound_ctrl:0")
        o(f"    v_add_u32_dpp v{i1}, v{i1}, v{i1} row_shr:{sh} row_mask:0xf bank_mask:0xf bound_ctrl:0")
        o("    s_nop 0")
    o(f"    v_mov_b32_dpp v{tt0}, v{i0} row_newbcast:15 row_mask:0xf bank_mask:0xf")
    o(f"    v_mov_b32_dpp v{tt1}, v{i1} row_newbcast:15 row_mask:0xf bank_mask:0xf")
    o(f"    v_add_u32 v{e0}, 15, v{tt0}")
    o(f"    v_add_u32 v{e1}, 15, v{tt1}")
    o(f"    v_and_b32 v{e0}, -16, v{e0}")
    o(f"    v_and_b32 v{e1}, -16, v{e1}")
    o(f"    v_mov_b32 v{p0}, v{e0}")
    o(f"    v_mov_b32 v{p1}, v{e1}")
    o(f"    v_add_u32_dpp v{e0}, v{e0}, v{e0} row_bcast:15 row_mask:0xa bank_mask:0xf")
    o(f"    v_add_u32_dpp v{e1}, v{e1}, v{e1} row_bcast:15 row_mask:0xa bank_mask:0xf")
    o("    s_nop 0")
    o(f"    v_add_u32_dpp v{e0}, v{e0}, v{e0} row_bcast:31 row_mask:0xc bank_mask:0xf")
    o(f"    v_add_u32_dpp v{e1}, v{e1}, v{e1} row_bcast:31 row_mask:0xc bank_mask:0xf")
    o("    s_nop 0")
    o(f"    v_readlane_b32 s{sT}, v{e0}, 63")
    o(f"    v_readlane_b32 s{sT2}, v{e1}, 63")
    o(f"    v_sub_u32 v{a0}, v{e0}, v{tt0}")
    o(f"    v_add_u32 v{e1}, s{sT}, v{e1}")
    o(f"    v_add_u32 v{a0}, v{a0}, v{i0}            ; absolute end slot of entry")
    o(f"    v_sub_u32 v{a1}, v{e1}, v{tt1}")
    o(f"    v_add_u32 v{a1}, v{a1}, v{i1}")
    o(f"    v_sub_u32 v{b0}, v{a0}, v{c0}")
    o(f"    v_sub_u32 v{b1}, v{a1}, v{c1}")
    o(f"    ds_write2st64_b32 v{ad}, v{b0}, v{b1} offset0:2 offset1:3")
    o(f"    s_add_u32 s{sT}, s{sT}, s{sT2}")
    o(f"    s_cmp_gt_u32 s{sT}, {SLOTCAP-96}")
    o(f"    s_cselect_b32 s{sT}, 1, 0")
    o(f"    s_cmp_lg_u32 s{sT3}, 0")
    o(f"    s_cselect_b32 s{sT}, 1, s{sT}")
    o(f"    s_cmp_gt_u32 s{sT}, s{sMode}")
    o("    s_cbranch_scc1 K2_GOSLOW")
    for i in range(8):
        o(f"    ds_read_b32 v{AD1+i}, v{AD1+i} offset:512")
    o(f"    s_cmp_lg_u32 s{sMode}, 0")
    o("    s_cbranch_scc1 K2_NO2C")
    for i in range(NEARLY + 2, 8):
        rec_load(i)
    w_loads()
    o(f"    s_cmp_eq_u64 {sr(sAny2,2)}, 0")
    o("    s_cbranch_scc1 K2_NO2C")
    o("    s_waitcnt lgkmcnt(4)")
    for i in range(8):
        o(f"    s_mov_b64 exec, {sr(sM2+2*i,2)}")
        o(f"    s_cbranch_execz K2_NR2{i}")
        o(f"    s_mov_b32 s{sT}, {i*4*CH*16}")
        o(f"    buffer_load_dwordx4 {vr(32+4*i,4)}, v{RO+i}, {sr(sWS,4)}, s{sT} offen offset:240")
        o(f"    ds_read_b32 v{AD2+i}, v{AD2+i} offset:512")
        L(f"K2_NR2{i}")
    o("    s_mov_b64 exec, -1")
    L("K2_NO2C")
    o(f"    s_cmp_lt_u32 s{sWave}, 4")
    o("    s_cselect_b64 vcc, -1, 0")
    o(f"    v_cndmask_b32 v{a0}, v{a1}, v{a0}, vcc")
    o(f"    v_cndmask_b32 v{e0}, v{e1}, v{e0}, vcc")
    o(f"    v_cndmask_b32 v{p0}, v{p1}, v{p0}, vcc")
    o(f"    v_cndmask_b32 v{tt0}, v{tt1}, v{tt0}, vcc")
    o(f"    s_and_b32 s{sSeg}, s{sWave}, 3")
    o(f"    s_lshl_b32 s{sSeg}, s{sSeg}, 4")
    o("    s_nop 0")
    o(f"    v_readlane_b32 s{sT}, v{e0}, s{sSeg}")
    o(f"    v_readlane_b32 s{sT2}, v{p0}, s{sSeg}")
    o(f"    v_readlane_b32 s{sT3}, v{tt0}, s{sSeg}")
    o(f"    v_and_b32 v{b0}, 15, v{vLane}")
    o(f"    v_cmp_le_u32 vcc, {5*ZZ}, v{b0}")
    o(f"    v_mov_b32 v{b0}, 0x7fffffff")
    o(f"    s_sub_u32 s{sT}, s{sT}, s{sT2}")
    o(f"    s_sub_u32 s{sLo}, s{sT2}, s{sT3}         ; pad")
    o(f"    s_lshr_b32 s{sNs}, s{sT2}, 4")
    o(f"    v_subrev_u32 v{vEnds}, s{sT}, v{a0}")
    o(f"    v_cndmask_b32 v{vEnds}, v{vEnds}, v{b0}, vcc")
    o(f"    v_lshrrev_b32 v{vRaw}, 1, v{vLane}")
    o(f"    v_add_u32 v{vRaw}, s{sT}, v{vRaw}")
    o(f"    v_lshlrev_b32 v{vRaw}, 4, v{vRaw}")
    if RAW:
        o(f"    v_add_u32 v{vRaw}, {RAW}, v{vRaw}")
    o(f"    s_mul_i32 s{sT}, s{sWave}, {3*RBLK}")
    o(f"    s_add_u32 s{sT}, s{sT}, {RING}")
    o(f"    s_add_u32 s{sT2}, s{sT}, 1024")
    o(f"    v_lshrrev_b32 v{b0}, 5, v{vLane}         ; ha / g")
    o(f"    v_bfe_u32 v{b1}, v{vLane}, 2, 2          ; rho")
    o(f"    v_lshl_add_u32 v{b1}, v{b0}, 3, v{b1}")
    o(f"    v_bfe_u32 v{c0}, v{vLane}, 1, 1")
    o(f"    v_bfe_u32 v{c1}, v{vLane}, 4, 1")
    o(f"    v_lshl_add_u32 v{c0}, v{c1}, 1, v{c0}")
    o(f"    v_lshl_add_u32 v{c0}, v{c0}, 3, s{sT}")
    o(f"    v_lshl_add_u32 v{vA}, v{b1}, 5, v{c0}")
    o(f"    v_lshl_add_u32 v{vV}, v{b0}, 4, s{sT2}")
    o(f"    v_lshl_add_u32 v{vCw}, v{vLane}, 4, s{sT}")
    o(f"    v_lshrrev_b32 v{b0}, 1, v{vLane}")
    o(f"    v_lshl_add_u32 v{vVw}, v{b0}, 2, s{sT2}")
    dump_addr()
    o("    s_waitcnt lgkmcnt(0)")
    for i in range(8):
        o(f"    v_add_lshl_u32 v{AD1+i}, v{AD1+i}, v{RK1+i}, 4")
    stamp(4)
    for i in range(8):
        o(f"    s_mov_b64 exec, {sr(sM1+2*i,2)}")
        o(f"    s_waitcnt vmcnt({(7 if WLDS else 12)-i + (PF0 if PFPOS == 'd' and i > PFI else 0)})")
        o(f"    ds_write_b128 v{AD1+i}, {vr(4*i,4)} offset:{RAW}")
        if PF0 and PFPOS == "d" and i == PFI:
            o("    s_mov_b64 exec, -1")
            prefetch0()
    o(f"    s_waitcnt vmcnt({PF0 if PFPOS == 'd' else 0})")
    if PF0 and PFPOS == "c":
        o("    s_mov_b64 exec, -1")
        prefetch0()
    o(f"    s_cmp_eq_u64 {sr(sAny2,2)}, 0")
    o("    s_cbranch_scc1 K2_NO2D")
    for i in range(8):
        o(f"    s_mov_b64 exec, {sr(sM2+2*i,2)}")
        o(f"    s_cbranch_execz K2_NS2{i}")
        o(f"    v_add_lshl_u32 v{AD2+i}, v{AD2+i}, v{RK2+i}, 4")
        o(f"    ds_write_b128 v{AD2+i}, {vr(32+4*i,4)} offset:{RAW}")
        L(f"K2_NS2{i}")
    L("K2_NO2D")
    o("    s_mov_b64 exec, -1")
    if WLDS:
        o(f"    v_lshlrev_b32 v{TT}, 4, v{vLane}")
        o(f"    v_add_u32 v{TT}, {WST}, v{TT}")
        o(f"    s_cmp_lg_u32 s{sMode}, 0")
        o("    s_cbranch_scc1 K2_NOWST")
        o(f"    ds_write_b128 v{W+4}, {vr(W,4)}")
        L("K2_NOWST")
    o("    s_waitcnt lgkmcnt(0)")
    o("    s_barrier")
    stamp(5)
    if STAMP:
        o("    s_memtime s[100:101]")
        o("    s_waitcnt lgkmcnt(0)")
        o(f"    v_writelane_b32 v{STV}, s100, 12")
    if "prio" in EXP:
        o(f"    s_cmp_lt_u32 s{sWave}, 4")
        o("    s_cbranch_scc1 K2_NOPRIO")
        o("    s_setprio 1")
        L("K2_NOPRIO")

    def convert(ct, rr=RR, off=0):
        CO = AM1
        a0_, a1_, y0, y1, y2, m0, m1, vo = range(ct, ct + 8)
        o(f"    v_bitop3_b32 v{CO}, v{vPar}, v{rr+1}, v{rr} bitop3:0xca")
        o(f"    v_lshlrev_b32 v{y0}, 16, v{rr+2}")
        o(f"    v_lshlrev_b32 v{a0_}, 16, v{CO}")
        o(f"    v_and_b32 v{a1_}, 0xffff0000, v{CO}")
        o(f"    v_and_b32 v{y1}, 0xffff0000, v{rr+2}")
        o(f"    v_lshlrev_b32 v{y2}, 16, v{rr+3}")
        for u, y in enumerate((y0, y1, y2)):
            o(f"    v_mul_f32 v{m0}, v{a0_}, v{y}")
            o(f"    v_mul_f32 v{m1}, v{a1_}, v{y}")
            o(f"    v_cvt_pk_bf16_f32 v{CO+1+u}, v{m0}, v{m1}")
        o(f"    v_lshrrev_b32 v{vo}, 7, v{rr+3}")
        o(f"    v_and_b32 v{vo}, {hex(int(os.environ.get('SRCMASK','0x1fffe00'),16))}, v{vo}")
        o(f"    ds_write_b128 v{vCw}, {vr(CO,4)} offset:{off}")
        o(f"    ds_write_b32 v{vVw}, v{vo} offset:{off}")

    def loads_tile(x, v, vo):
        for r in range(8):
            o(f"    buffer_load_dword v{B+32*x+8*v+r}, v{vo+r}, {sr(sX,4)}, 0 offen offset:{v*128}")
    def smf(x, v, areg):
        if "q1" in EXP and v != 0:
            return
        if "q2" in EXP and v >= 2:
            return
        if "nomfma" not in EXP:
            o(f"    v_smfmac_f32_32x32x32_bf16 {vr(ACC+16*v,16)}, {vr(areg,4)}, {vr(B+32*x+8*v,8)}, v{vIdx}")
    def zero_tile(v):
        if "nomfma" not in EXP or "keepz" in EXP:
            o(f"    v_mfma_f32_32x32x8_bf16 {vr(ACC+16*v,16)}, {vr(ZR,2)}, {vr(ZR,2)}, 0")
    def mask_read(dst, sreg, tmp):
        o(f"    s_lshl_b32 s{sT}, s{sreg}, 5")
        o(f"    v_add_u32 v{tmp}, s{sT}, v{vMask}")
        o(f"    ds_read_b128 {vr(dst,4)}, v{tmp}")
    terms = [(0, 0, 0, 0, 1)] + [(2 + j, 2, 0, j + 1, 1) for j in range(3)]
    cross = {(2, 3): (0, 1), (3, 2): (0, -1), (3, 1): (1, 1), (1, 3): (1, -1), (1, 2): (2, 1), (2, 1): (2, -1)}
    for v in range(1, 4):
        terms.append((5 + v - 1, 3, v, 0, 1))
        for u in range(1, 4):
            if u == v:
                terms.append((1, 1, v, u, 1))
            else:
                i, sg = cross[(u, v)]
                terms.append((8 + i, 4, v, u, sg))
    first_v = {}
    for (si, p, v_, u, sg) in terms:
        first_v.setdefault(si, (v_, u))
    def fmas(v):
        if "noepi" in EXP:
            return
        tv = [t for t in terms if t[2] == v]
        if PK:
            for dh in range(2):
                for (si, p, v_, u, sg) in tv:
                    t = vr(TT + 2 * si, 2)
                    neg3 = " neg_lo:[1,0,0] neg_hi:[1,0,0]" if sg < 0 else ""
                    neg2 = " neg_lo:[1,0] neg_hi:[1,0]" if sg < 0 else ""
                    if dh == 0 and first_v[si] == (v_, u):
                        o(f"    v_pk_mul_f32 {t}, {vr(wreg(p,0),2)}, {vr(accr(v,u,0),2)}{neg2}")
                    else:
                        o(f"    v_pk_fma_f32 {t}, {vr(wreg(p,2*dh),2)}, {vr(accr(v,u,2*dh),2)}, {t}{neg3}")
        else:
            for d in range(4):
                for (si, p, v_, u, sg) in tv:
                    t = TT + 2 * si
                    ng = "-" if sg < 0 else ""
                    if d == 0 and first_v[si] == (v_, u):
                        o(f"    v_mul_f32 v{t}, {ng}v{wreg(p,d)}, v{accr(v,u,d)}")
                    elif sg > 0:
                        o(f"    v_fmac_f32 v{t}, v{wreg(p,d)}, v{accr(v,u,d)}")
                    else:
                        o(f"    v_fma_f32 v{t}, -v{wreg(p,d)}, v{accr(v,u,d)}, v{t}")
    def fold():
        if PK:
            for si in range(11):
                o(f"    v_add_f32 v{TT+2*si}, v{TT+2*si}, v{TT+2*si+1}")
    def commit_lds():
        t = lambda si: TT + 2 * si
        o(f"    v_cvt_pk_bf16_f32 v{TC}, v{t(0)}, v{t(1)}")
        for j in range(3):
            o(f"    v_cvt_pk_bf16_f32 v{TC+1+j}, v{t(2+j)}, v{t(5+j)}")
        o(f"    v_cvt_pk_bf16_f32 v{TC+4}, v{t(8)}, v{t(9)}")
        o(f"    v_cvt_pk_bf16_f32 v{TC+5}, v{t(10)}, v{t(10)}")
        o(f"    ds_write2st64_b32 v{vD4}, v{TC}, v{TC+1} offset0:0 offset1:1")
        o(f"    ds_write2st64_b32 v{vD4}, v{TC+2}, v{TC+3} offset0:2 offset1:3")
        o(f"    ds_write_b16 v{vD2}, v{TC+4}")
        o(f"    ds_write_b16_d16_hi v{vD2}, v{TC+4} offset:128")
        o(f"    ds_write_b16 v{vD2}, v{TC+5} offset:256")
        o(f"    v_add_u32 v{vD4}, {8*SDS}, v{vD4}")
        o(f"    v_add_u32 v{vD2}, {8*SDS}, v{vD2}")
    pcnt = [0]
    def prio_step():
        if PRIO:
            o(f"    s_and_b32 s{sT}, s{sSeg}, 15")
            for lvl, th in zip((2, 1, 0), PRIO):
                pcnt[0] += 1
                o(f"    s_cmp_lg_u32 s{sT}, {th*ZZ+ZZ-1}")
                o(f"    s_cbranch_scc1 K2_PR{pcnt[0]}")
                o(f"    s_setprio {lvl}")
                L(f"K2_PR{pcnt[0]}")
    def schedule_next():
        o(f"    s_sub_u32 s{sT}, s{sEnd}, 1")
        o(f"    s_and_b32 s{sHi}, s{sT}, 15")
        o(f"    s_add_u32 s{sHi}, s{sHi}, 1")
        o(f"    s_lshr_b32 s{sT}, s{sT}, 4")
        o(f"    s_sub_i32 s{sT2}, s{sNs}, 2")
        o(f"    s_add_u32 s{sT3}, s{sGen}, 1")
        o(f"    s_max_i32 s{sT2}, s{sT2}, s{sT3}")
        o(f"    s_min_u32 s{sGen}, s{sT}, s{sT2}")
        o(f"    s_sub_u32 s{sCnt}, s{sGen}, s{sT3}")

    o(f"    s_cmp_eq_u32 s{sNs}, 0")
    o("    s_cbranch_scc1 K2_EMPTY")
    o(f"    ds_read_b128 {vr(RR,4)}, v{vRaw}")
    o(f"    ds_read_b128 {vr(A[0],4)}, v{vRaw} offset:512")
    if PRIO:
        o("    s_setprio 3")
    o(f"    s_mov_b32 s{sD0}, {RBLK}                ; delta for vA at end of this batch")
    o(f"    s_mov_b32 s{sD1}, {RBLK}")
    o(f"    s_mov_b32 s{sD2}, {-2*RBLK}")
    for v in range(4):
        zero_tile(v)
    o("    s_waitcnt lgkmcnt(1)")
    convert(VO[1])
    o(f"    ds_read_b128 {vr(VO[0],4)}, v{vV}")
    o(f"    ds_read_b128 {vr(VO[0]+4,4)}, v{vV} offset:32")
    o("    s_waitcnt lgkmcnt(4)")
    convert(VO[1], A[0], RBLK)
    o(f"    ds_read_b128 {vr(VO[1],4)}, v{vV} offset:64")
    o(f"    ds_read_b128 {vr(VO[1]+4,4)}, v{vV} offset:96")
    o(f"    v_add_u32 v{vRaw}, 1024, v{vRaw}")
    o(f"    v_add_u32 v{vCw}, {2*RBLK}, v{vCw}")
    o(f"    v_add_u32 v{vVw}, {2*RBLK}, v{vVw}")
    o(f"    v_add_u32 v{vV}, {RBLK}, v{vV}")
    o("    s_waitcnt lgkmcnt(4)")
    for r in range(8):
        o(f"    v_add_u32 v{VO[0]+r}, v{VO[0]+r}, v{vN4}")
    for r in range(8):
        thr = 8 * (r >> 2) + (r & 3) + 4
        if thr < 15:
            o(f"    s_cmp_gt_u32 s{sLo}, {thr}")
            o(f"    s_cbranch_scc1 K2_IZ{r}")
        for v in range(4):
            o(f"    buffer_load_dword v{B+8*v+r}, v{VO[0]+r}, {sr(sX,4)}, 0 offen offset:{v*128}")
        L(f"K2_IN{r}")
    o(f"    s_cmp_eq_u32 s{sNs}, 1")
    o("    s_cbranch_scc1 K2_INITD")
    o("    s_waitcnt lgkmcnt(0)")
    for r in range(8):
        o(f"    v_add_u32 v{VO[1]+r}, v{VO[1]+r}, v{vN4}")
    for v in range(4):
        if v == 3:
            o("    s_waitcnt vmcnt(55)")
        loads_tile(1, v, VO[1])
    L("K2_INITD")
    if ZZ > 1:
        o(f"    s_add_u32 s{sSeg}, s{sSeg}, {ZZ-1}")
    if WLDS:
        for p in range(5):
            o(f"    ds_read_b128 {vr(W+4*p,4)}, v{TT} offset:{p*1024}")
    o(f"    v_readlane_b32 s{sEnd}, v{vEnds}, s{sSeg}")
    o(f"    ds_read_b64_tr_b16 {vr(A[0],2)}, v{vA}")
    o(f"    ds_read_b64_tr_b16 {vr(A[0]+2,2)}, v{vA} offset:128")
    o(f"    ds_read_b128 {vr(VO[0],4)}, v{vV}")
    o(f"    ds_read_b128 {vr(VO[0]+4,4)}, v{vV} offset:32")
    o(f"    s_mov_b32 s{sGen}, 0")
    o(f"    s_mov_b32 s{sCnt}, 0")

    o(".p2align 3")
    L("K2_LOOP")
    for x in range(2):
        a_cur, a_nxt = A[x], A[x ^ 1]
        v_cur, v_nxt = VO[x], VO[x ^ 1]
        if x == 1:
            o(f"    v_add_u32 v{vA}, s{sD0}, v{vA}")
            o(f"    v_add_u32 v{vV}, s{sD1}, v{vV}")
        nx = x ^ 1
        if x == 0:
            o(f"    ds_read_b128 {vr(RR,4)}, v{vRaw}")
        o(f"    ds_read_b64_tr_b16 {vr(a_nxt,2)}, v{vA} offset:{nx*512}")
        o(f"    ds_read_b64_tr_b16 {vr(a_nxt+2,2)}, v{vA} offset:{nx*512+128}")
        o(f"    ds_read_b128 {vr(v_nxt,4)}, v{vV} offset:{nx*64}")
        o(f"    ds_read_b128 {vr(v_nxt+4,4)}, v{vV} offset:{nx*64+32}")
        o(f"    s_sub_u32 s{sCnt}, s{sCnt}, 1")
        o(f"    s_waitcnt lgkmcnt({5 if x == 0 else 4})")
        for r in range(8):
            o(f"    v_add_u32 v{v_cur+r}, v{v_cur+r}, v{vN4}")
        o(f"    s_cbranch_scc1 K2_SP{x}")
        for v in range(4):
            o("    s_waitcnt vmcnt(55)")
            smf(x, v, a_cur)
            loads_tile(x, v, v_cur)
        L(f"K2_NEXT{x}")
        if x == 0:
            o("    s_waitcnt lgkmcnt(4)")
            convert(v_cur)
            o(f"    v_add_u32 v{vRaw}, 512, v{vRaw}")
            o(f"    v_add_u32 v{vCw}, s{sD2}, v{vCw}")
            o(f"    v_add_u32 v{vVw}, s{sD2}, v{vVw}")
        else:
            o(f"    s_mov_b32 s{sT}, s{sD0}")
            o(f"    s_mov_b32 s{sD0}, s{sD1}")
            o(f"    s_mov_b32 s{sD1}, s{sD2}")
            o(f"    s_mov_b32 s{sD2}, s{sT}")
            o("    s_branch K2_LOOP")

    for x in range(2):
        a_cur = A[x]
        v_cur = VO[x]
        L(f"K2_SP{x}")
        o(f"    s_add_u32 s{sT}, s{sSeg}, {ZZ}")
        if ZZ == 3:
            o(f"    s_or_b32 s{sT2}, s{sSeg}, 15")
            o(f"    s_min_u32 s{sT}, s{sT}, s{sT2}")
        o(f"    v_readlane_b32 s{sNext}, v{vEnds}, s{sT}")
        o(f"    s_sub_u32 s{sRem}, s{sNs}, s{sGen}")
        o(f"    s_lshl_b32 s{sT3}, s{sGen}, 4")
        o(f"    s_cmp_le_u32 s{sRem}, 2")
        o(f"    s_cbranch_scc1 K2_GEN{x}")
        o(f"    s_cmp_le_u32 s{sGen}, s{sFast}")
        o(f"    s_cbranch_scc1 K2_GEN{x}")
        o(f"    s_add_u32 s{sT2}, s{sT3}, 16")
        o(f"    s_cmp_le_u32 s{sNext}, s{sT2}")
        o(f"    s_cbranch_scc1 K2_GEN{x}")
        for r in range(4):
            o(f"    v_and_b32 v{AM1+r}, v{a_cur+r}, v{LT+r}")
        for r in range(4):
            o(f"    v_bitop3_b32 v{AM2+r}, v{a_cur+r}, v{LT+r}, v{LT+r} bitop3:0x30")
        o("    s_waitcnt vmcnt(31)")
        for v in range(4):
            smf(x, v, AM1)
        o(f"    s_mov_b32 s{sSeg}, s{sT}")
        o(f"    s_mov_b32 s{sEnd}, s{sNext}")
        schedule_next()
        mask_read(LT, sHi, a_cur)
        for v in range(4):
            fmas(v)
            zero_tile(v)
            smf(x, v, AM2)
            loads_tile(x, v, v_cur)
        fold()
        commit_lds()
        prio_step()
        o(f"    s_branch K2_NEXT{x}")
        L(f"K2_GEN{x}")
        o(f"    s_cmp_ge_u32 s{sRem}, 2")
        o(f"    s_cbranch_scc1 K2_GW{x}")
        o("    s_waitcnt vmcnt(0)")
        L(f"K2_GW{x}")
        o(f"    s_cmp_eq_u32 s{sGen}, 0")
        o(f"    s_cselect_b32 s{sLo}, s{sLo}, 0")
        L(f"K2_GL{x}")
        o(f"    s_sub_u32 s{sRel}, s{sEnd}, s{sT3}")
        o(f"    s_min_u32 s{sHi}, s{sRel}, 16")
        mask_read(LT, sHi, AM1)
        mask_read(AM2, sLo, AM1 + 1)
        o("    s_waitcnt vmcnt(31) lgkmcnt(0)")
        for r in range(4):
            o(f"    v_bitop3_b32 v{AM1+r}, v{a_cur+r}, v{LT+r}, v{AM2+r} bitop3:0x40")
        o("    s_nop 1")
        for v in range(4):
            smf(x, v, AM1)
        o(f"    s_cmp_gt_u32 s{sRel}, 16")
        o(f"    s_cbranch_scc1 K2_GD{x}")
        o(f"    s_mov_b32 s{sRet}, {x}")
        o("    s_branch K2_EPI")
        L(f"K2_GD{x}")
        o(f"    s_cmp_le_u32 s{sRem}, 2")
        o(f"    s_cbranch_scc1 K2_NL{x}")
        for v in range(4):
            loads_tile(x, v, v_cur)
        L(f"K2_NL{x}")
        o(f"    s_cmp_eq_u32 s{sRem}, 1")
        o("    s_cbranch_scc1 K2_STREAM_DONE")
        schedule_next()
        mask_read(LT, sHi, AM1)
        o(f"    s_branch K2_NEXT{x}")

    L("K2_EPI")
    if ZZ == 3:
        o(f"    s_or_b32 s{sT2}, s{sSeg}, 15")
    o(f"    s_add_u32 s{sSeg}, s{sSeg}, {ZZ}")
    if ZZ == 3:
        o(f"    s_min_u32 s{sSeg}, s{sSeg}, s{sT2}")
    o(f"    s_mov_b32 s{sLo}, s{sHi}")
    o(f"    v_readlane_b32 s{sEnd}, v{vEnds}, s{sSeg}")
    o("    s_nop 7")
    for v in range(4):
        fmas(v)
        zero_tile(v)
    fold()
    o(f"    s_cmp_lg_u32 s{sMode}, 0")
    o("    s_cbranch_scc1 K2_EPS")
    commit_lds()
    prio_step()
    L("K2_EPR")
    o(f"    s_cmp_eq_u32 s{sRet}, 0")
    o("    s_cbranch_scc1 K2_GL0")
    o("    s_branch K2_GL1")
    L("K2_EPS")
    o("    s_waitcnt vmcnt(31)")
    for si in range(11):
        o(f"    buffer_atomic_add_f32 v{TT+2*si}, v{vSa}, {sr(sWS,4)}, 0 offen offset:{si*256}")
    o(f"    v_add_u32 v{vSa}, {8*2816}, v{vSa}")
    o("    s_waitcnt vmcnt(0)")
    o("    s_branch K2_EPR")
    for r in range(7):
        L(f"K2_IZ{r}")
        for v in range(4):
            o(f"    v_mov_b32 v{B+8*v+r}, 0")
        o(f"    s_branch K2_IN{r}")
    L("K2_EMPTY")
    o(f"    s_cmp_lg_u32 s{sMode}, 0")
    o("    s_cbranch_scc1 K2_STREAM_DONE")
    for si in range(11):
        o(f"    v_mov_b32 v{TT+2*si}, 0")
    o(f"    s_mov_b32 s{sT2}, 5")
    L("K2_EMPTYL")
    commit_lds()
    o(f"    s_sub_u32 s{sT2}, s{sT2}, 1")
    o(f"    s_cmp_lg_u32 s{sT2}, 0")
    o("    s_cbranch_scc1 K2_EMPTYL")
    o("    s_branch K2_POSTG")

    L("K2_GOSLOW")
    o(f"    s_mov_b32 s{sMode}, 1")
    o(f"    s_mov_b32 s{sFast}, -1")
    w_loads()
    if WLDS:
        o("    s_waitcnt vmcnt(0)")
        o(f"    ds_write_b128 v{W+4}, {vr(W,4)}")
    dump_addr()
    o(f"    v_mov_b32 v{TT}, 0")
    for k in range(5):
        for si in range(11):
            o(f"    buffer_store_dword v{TT}, v{vSa}, {sr(sWS,4)}, 0 offen offset:{si*256} sc1")
        o(f"    v_add_u32 v{vSa}, {8*2816}, v{vSa}")
        o("    s_waitcnt vmcnt(0)")
    o("    s_waitcnt vmcnt(0)")
    L("K2_SLOW_ROUND")
    o("    s_waitcnt lgkmcnt(0)")
    o("    s_barrier")
    o("    s_nop 7")
    lane_id()
    o(f"    v_lshlrev_b32 v2, 2, v{vLane}")
    o(f"    v_add_u32 v2, {CNT}, v2")
    o("    v_mov_b32 v3, 0")
    o("    ds_write2st64_b32 v2, v3, v3 offset0:0 offset1:1")
    lane_prep()
    hdr_loads()
    o(f"    v_add_u32 v{TM+1}, s{sJlo}, v{vJ}")
    o(f"    s_movk_i32 s{sT}, {CH}")
    o(f"    v_mad_u32_u24 v{TM+2}, v{vW0}, s{sT}, v{TM+1}")
    o(f"    v_cmp_gt_u32 {sr(sSave,2)}, 8, v{vJ}")
    o(f"    s_mov_b64 {sr(sAny2,2)}, 0")
    o(f"    v_mov_b32 v{TM+3}, 0")
    o("    s_waitcnt vmcnt(0)")
    for i in range(8):
        o(f"    v_lshrrev_b32 v{TM}, 16, v{HD+i}")
        o(f"    v_and_b32 v{AD2+i}, 0xffff, v{HD+i}")
        o(f"    v_cmp_lt_u32 vcc, v{TM+1}, v{TM}")
        o(f"    v_add_u32 v{AD2+i}, v{AD2+i}, v{TM+2}")
        o(f"    v_lshlrev_b32 v{RO+i}, 4, v{AD2+i}")
        o(f"    v_max_u32 v{TM+3}, v{TM+3}, v{TM}")
        o(f"    v_mov_b32 v{AD1+i}, 0")
        o(f"    s_and_b64 {sr(sM1+2*i,2)}, vcc, {sr(sSave,2)}")
        o(f"    s_mov_b64 exec, {sr(sM1+2*i,2)}")
        o(f"    s_cbranch_execz K2_SR{i}")
        o(f"    s_mov_b32 s{sT}, {i*4*CH*16}")
        o(f"    s_mov_b32 s{sT2}, {WS_KEY + i*4*CH}")
        o(f"    buffer_load_dwordx4 {vr(4*i,4)}, v{RO+i}, {sr(sWS,4)}, s{sT} offen")
        o(f"    buffer_load_ubyte v{AD1+i}, v{AD2+i}, {sr(sWS,4)}, s{sT2} offen")
        L(f"K2_SR{i}")
        o("    s_mov_b64 exec, -1")
    o(f"    v_mov_b32 v{TM}, {MISC+4}")
    o(f"    ds_max_u32 v{TM}, v{TM+3}")
    o(f"    v_mov_b32 v{TM+4}, {CNT}")
    o("    s_waitcnt vmcnt(0) lgkmcnt(0)")
    o("    s_barrier")
    o(f"    ds_read_b32 v{TM}, v{TM}")
    o("    s_waitcnt lgkmcnt(0)")
    o(f"    v_readfirstlane_b32 s{sMax}, v{TM}")
    o(f"    v_mov_b32 v{TM}, 1")
    for i in range(8):
        o(f"    v_lshl_add_u32 v{AD1+i}, v{AD1+i}, 2, v{TM+4}")
    for i in range(8):
        o(f"    s_mov_b64 exec, {sr(sM1+2*i,2)}")
        o(f"    ds_add_rtn_u32 v{RK1+i}, v{AD1+i}, v{TM}")
    o("    s_mov_b64 exec, -1")
    o("    s_branch K2_RANKD")

    L("K2_STREAM_DONE")
    o(f"    s_cmp_eq_u32 s{sMode}, 0")
    o("    s_cbranch_scc1 K2_POSTG")
    o(f"    s_add_u32 s{sJlo}, s{sJlo}, 8")
    o(f"    s_cmp_lt_u32 s{sJlo}, s{sMax}")
    o("    s_cbranch_scc1 K2_SLOW_ROUND")
    o("    s_nop 7")
    lane_id()
    dump_addr()
    o(f"    s_mov_b32 s{sT2}, 5")
    L("K2_SLOWL")
    for si in range(11):
        o(f"    buffer_load_dword v{TT+2*si}, v{vSa}, {sr(sWS,4)}, 0 offen offset:{si*256} sc1")
    o(f"    v_add_u32 v{vSa}, {8*2816}, v{vSa}")
    o("    s_waitcnt vmcnt(0)")
    commit_lds()
    o(f"    s_sub_u32 s{sT2}, s{sT2}, 1")
    o(f"    s_cmp_lg_u32 s{sT2}, 0")
    o("    s_cbranch_scc1 K2_SLOWL")

    L("K2_POSTG")
    stamp(6)
    if STAMP:
        o("    s_memtime s[100:101]")
        o("    s_waitcnt lgkmcnt(0)")
        o(f"    v_writelane_b32 v{STV}, s100, 13")
    t0, t1 = 226, 227
    vLane = 246
    o(f"    v_mbcnt_lo_u32_b32 v{vLane}, -1, 0")
    o(f"    v_mbcnt_hi_u32_b32 v{vLane}, -1, v{vLane}")
    o(f"    v_lshlrev_b32 v{t1}, 4, v{vLane}")
    o(f"    s_cmp_ge_u32 s{sWave}, 4")
    o("    s_cbranch_scc1 K2_NOWF")
    o(f"    s_mul_i32 s{sT}, s{sWave}, 10240")
    o(f"    s_add_u32 s{sT}, s{sT}, {WS_WF}")
    for f in range(10):
        if f == 4 or f == 8:
            o(f"    s_add_u32 s{sT}, s{sT}, 4096")
        o(f"    buffer_load_dwordx4 {vr(4*f,4)}, v{t1}, {sr(sWS,4)}, s{sT} offen offset:{(f%4)*1024}")
    L("K2_NOWF")
    vB_, vOt = 224, 225
    o(f"    v_and_b32 v{t0}, 15, v{vLane}")
    o(f"    v_lshrrev_b32 v{t1}, 4, v{vLane}")
    o(f"    v_mul_u32_u24 v{vB_}, {SDS}, v{t0}")
    o(f"    v_lshl_add_u32 v{vB_}, v{t1}, 4, v{vB_}")
    o(f"    v_add_u32 v{vB_}, {SD}, v{vB_}")
    o(f"    v_mul_u32_u24 v{vOt}, {OUT_STRIDE}, v{t0}")
    o(f"    v_lshl_add_u32 v{vOt}, v{t1}, 3, v{vOt}")
    o(f"    s_lshl_b32 s{sT}, s{sWave}, 5")
    o(f"    s_add_u32 s{sT}, s{sT}, {OUTT}")
    o(f"    v_add_u32 v{vOt}, s{sT}, v{vOt}")
    o("    s_waitcnt lgkmcnt(0)")
    o("    s_barrier")
    stamp(7)
    o(f"    s_cmp_ge_u32 s{sWave}, 4")
    o("    s_cbranch_scc1 K2_NOGEMM")
    seq = []
    for T in range(3):
        for blk in range(4):
            items = [(ks if blk == 0 else 4 + ks, blk * 256 + 64 * ks) for ks in range(4)]
            if blk:
                items += [(8 + ks, 1024 + 128 * (blk - 1) + 64 * ks) for ks in range(2)]
            for n_, (f, off) in enumerate(items):
                seq.append((T, blk, f, T * 16 * SDS + off, n_ == 0))
    BB = 64
    NB_ = 12
    DEPTH = 10
    DDs = [128, 144]
    G = 160
    def bread(i):
        if "g_nords" in EXP:
            return
        o(f"    ds_read_b128 {vr(BB+4*(i%NB_),4)}, v{vB_} offset:{seq[i][3]}")
    for i in range(DEPTH):
        bread(i)
    o(f"    v_mov_b32 v{G+16}, 0xbfb8aa3b           ; -log2(e)")
    o("    s_waitcnt vmcnt(0)")
    def finish(T):
        if "g_nofin" in EXP:
            return
        DD = DDs[T & 1]
        for r in range(4):
            o(f"    v_mul_f32 v{G+r}, v{G+16}, v{DD+r}")
        for r in range(4):
            o(f"    v_exp_f32 v{G+r}, v{G+r}")
        for r in range(4):
            o(f"    v_add_f32 v{G+r}, 1.0, v{G+r}")
        for r in range(4):
            o(f"    v_rcp_f32 v{G+r}, v{G+r}")
        Rr = 228 + 8 * T - (0 if T < 2 else 244 - 186)
        o(f"    v_cvt_pk_bf16_f32 v{Rr}, v{DD}, v{DD+1}")
        o(f"    v_cvt_pk_bf16_f32 v{Rr+1}, v{DD+2}, v{DD+3}")
        for blk in range(1, 4):
            for r in range(4):
                o(f"    v_mul_f32 v{DD+4*blk+r}, v{DD+4*blk+r}, v{G+r}")
            o(f"    v_cvt_pk_bf16_f32 v{Rr+2*blk}, v{DD+4*blk}, v{DD+4*blk+1}")
            o(f"    v_cvt_pk_bf16_f32 v{Rr+1+2*blk}, v{DD+4*blk+2}, v{DD+4*blk+3}")
    n = len(seq)
    pend_w = 0
    for i, (T, blk, f, off, first) in enumerate(seq):
        cnt = min(i + DEPTH, n) - 1 - i
        o(f"    s_waitcnt lgkmcnt({cnt})")
        d = vr(DDs[T & 1] + 4 * blk, 4)
        if "g_nmf" not in EXP:
            o(f"    v_mfma_f32_16x16x32_bf16 {d}, {vr(4*f,4)}, {vr(BB+4*(i%NB_),4)}, {'0' if first else d}")
        if i + DEPTH < n:
            bread(i + DEPTH)
        if i + 1 == n or seq[i + 1][0] != T:
            finish(T)
    for T in range(3):
        for blk in range(4):
            o(f"    ds_write_b64 v{vOt}, {vr(228 + 8 * T - (0 if T < 2 else 244 - 186) + 2*blk,2)} offset:{T*16*OUT_STRIDE + blk*128}")
    L("K2_NOGEMM")
    o(f"    s_lshl_b32 s{sT}, s{sWave}, 6")
    o(f"    v_add_u32 v4, s{sT}, v{vLane}            ; tid")
    o("    v_lshrrev_b32 v0, 5, v4")
    o("    v_and_b32 v1, 31, v4")
    o(f"    v_mul_u32_u24 v2, {OUT_STRIDE}, v0")
    o("    v_lshl_add_u32 v2, v1, 4, v2")
    if OUTT:
        o(f"    v_add_u32 v2, {OUTT}, v2")
    o("    v_lshlrev_b32 v3, 4, v4")
    o("    v_add_u32 v16, 8192, v3")
    o("    v_add_u32 v17, 16384, v3")
    o("    s_waitcnt lgkmcnt(0)")
    o("    s_barrier")
    stamp(8)
    for r in range(3):
        o(f"    ds_read_b128 {vr(4+4*r,4)}, v2 offset:{r*16*OUT_STRIDE}")
    for r in range(3):
        if r == 2:
            o(f"    s_cmp_ge_u32 s{sWave}, 4")
            o("    s_cbranch_scc1 K2_FIN")
        o(f"    s_waitcnt lgkmcnt({2-r})")
        o(f"    buffer_store_dwordx4 {vr(4+4*r,4)}, v{[3,16,17][r]}, {sr(sOUT,4)}, 0 offen {OUTST}")
    L("K2_FIN")
    if STAMP:
        o("    s_waitcnt vmcnt(0)")
    stamp(9)
    stamp_dump(sWS, sWS + 1, sWave, 8, 65 << 20)
    L("K2_END")
    o("    s_endpgm")
    L("CODE_END")

gen_k1()
gen_k2()

o('.section .rodata,"a"')
def kd(name, vgpr, sgpr):
    o(".p2align 6")
    o(f".amdhsa_kernel {name}")
    o(f"  .amdhsa_next_free_vgpr {vgpr}")
    o(f"  .amdhsa_next_free_sgpr {sgpr}")
    o(f"  .amdhsa_accum_offset {(vgpr+3)//4*4}")
    o("  .amdhsa_group_segment_fixed_size 0")
    o("  .amdhsa_kernarg_size 96")
    o("  .amdhsa_user_sgpr_count 2")
    o("  .amdhsa_user_sgpr_kernarg_segment_ptr 1")
    o("  .amdhsa_system_sgpr_workgroup_id_x 1")
    o("  .amdhsa_float_denorm_mode_32 3")
    o(".end_amdhsa_kernel")
kd("tp_part_kernel", 80, 102 if STAMP else 72)
kd("tp_main_kernel", 256, 102 if STAMP else 90)

open(OUTFILE, "w").write("\n".join(lines) + "\n")
print("wrote", OUTFILE, len(lines), "lines; K2 LDS", K2_LDS)
```

```python
import sys, os

P = 1
OUTFILE = sys.argv[1] if len(sys.argv) > 1 else "standalone__tensor_product_equiv_equiformer__graph.s"
STAMP = int(os.environ.get("STAMP", "0"))
K1ST = os.environ.get("K1ST", "sc1")
K1LD2 = os.environ.get("K1LD2", "")
OUTST = os.environ.get("OUTST", "sc1")
K1LD = os.environ.get("K1LD", "nt")
EXP = os.environ.get("EXP", "")
K1SPL = int(os.environ.get("K1SPL", "1"))
TLBW = int(os.environ.get("TLBW", "0"))
K1ORD = int(os.environ.get("K1ORD", "2"))
T2E = int(os.environ.get("T2E", "0"))
ZZ = int(os.environ.get("ZZ", "1"))
K1MAP = int(os.environ.get("K1MAP", "0"))
PK = int(os.environ.get("PK", "0"))
RMASK = int(os.environ.get("RMASK", "1"))
WLDS = int(os.environ.get("WLDS", "1"))
XEND = os.environ.get("XEND", "")
NEARLY = int(os.environ.get("NEARLY", "4"))
K1PF = int(os.environ.get("K1PF", "0"))
PF0 = int(os.environ.get("PF0", "1"))
PFPOS = os.environ.get("PFPOS", "d")
PFI = int(os.environ.get("PFI", "5"))
PFL = int(os.environ.get("PFL", "32"))
IDXN = int(os.environ.get("IDXN", "0"))
IDXN2 = int(os.environ.get("IDXN2", "3"))
CPF = int(os.environ.get("CPF", "3"))
VW = int(os.environ.get("VW", "48"))
PRIO = [int(t) for t in os.environ.get("PRIO", "2,3,4").split(",") if t]
XPF = int(os.environ.get("XPF", "0"))

N = 10000
E = 640000
NWG = 256
CH = 2500
BINM = 1677
PHM = (P << 23) // 10000
WS_REC = 0
WS_KEY = 10240000
WS_TAB = 10880000
WS_T2 = WS_TAB + 256 * 1024
WS_WF = WS_T2 + 256 * 8192
WS_WR = WS_WF + 40 * 1024
WS_S32 = WS_WR + 5 * 1024
WS_END = WS_S32 + 256 * 40 * 2816

lines = []
def o(s=""):
    lines.append(s)
def L(s):
    lines.append(s + ":")
def vr(a, n):
    return f"v[{a}:{a+n-1}]"
def sr(a, n):
    return f"s[{a}:{a+n-1}]"
def srd(d, lo, hi, nbytes):
    o(f"    s_mov_b32 s{d}, s{lo}")
    o(f"    s_and_b32 s{d+1}, s{hi}, 0xffff")
    o(f"    s_mov_b32 s{d+2}, {nbytes}")
    o(f"    s_mov_b32 s{d+3}, 0x00020000")

STV = 183
def stamp(i, vreg=STV):
    if STAMP:
        o("    s_memrealtime s[100:101]")
        o("    s_waitcnt lgkmcnt(0)")
        o(f"    v_writelane_b32 v{vreg}, s100, {i}")
def stamp_dump(wsl, wsh, wave_sgpr, nwaves, base, vreg=STV):
    if not STAMP:
        return
    o("    s_waitcnt lgkmcnt(0) vmcnt(0)")
    o("    s_mov_b64 exec, 0xffff")
    o(f"    s_mul_i32 s4, s2, {nwaves}")
    o(f"    s_add_u32 s4, s4, s{wave_sgpr}")
    o("    s_lshl_b32 s4, s4, 6")
    o(f"    s_add_u32 s4, s4, {base}")
    o(f"    s_mov_b32 s8, s{wsl}")
    o(f"    s_and_b32 s9, s{wsh}, 0xffff")
    o("    s_mov_b32 s10, 0x8000000")
    o("    s_mov_b32 s11, 0x00020000")
    o("    v_mbcnt_lo_u32_b32 v0, -1, 0")
    o("    v_lshl_add_u32 v0, v0, 2, s4")
    o(f"    buffer_store_dword v{vreg}, v0, s[8:11], 0 offen")
    o("    s_waitcnt vmcnt(0)")

K1_CNT = 0
K1_START = 1024
K1_KEY = 2048
K1_T2 = 4608
K1_REC = K1_T2 + 8192
K1_LDS = K1_REC + 40960

SLOTCAP = 3072
RAW = 0
RING = RAW + SLOTCAP * 16
RBLK = 1152
MASK = RING + 8 * 3 * RBLK
CNT = MASK + 1024
BASE = CNT + 512
MISC = BASE + 512
SD = MISC + 64
SDS = 1440
K2_LDS = SD + 48 * SDS
WST = SD + 40 * SDS
OUTT = RAW
OUT_STRIDE = 528
assert K2_LDS <= 163840, K2_LDS
assert SD % 16 == 0

o(f"; @launch kernel=tp_part_kernel grid=({NWG},1,1) block=(704,1,1) lds={K1_LDS}")
o(f"; @launch kernel=tp_main_kernel grid=({NWG},1,1) block=(512,1,1) lds={K2_LDS}")
o('.amdgcn_target "amdgcn-amd-amdhsa--gfx950"')
o(".text")

def gen_k1():
    SV = 79
    o(".globl tp_part_kernel")
    o(".p2align 8")
    o(".type tp_part_kernel,@function")
    L("tp_part_kernel")
    o(f"    s_cmp_ge_u32 s2, {NWG}")
    o("    s_cbranch_scc1 K1_END")
    if K1MAP:
        o("    s_and_b32 s3, s2, 7")
        o("    s_lshl_b32 s3, s3, 5")
        o("    s_lshr_b32 s2, s2, 3")
        o("    s_add_u32 s2, s2, s3")
    stamp(0, SV)
    o("    s_load_dwordx4 s[4:7], s[0:1], 8")
    o("    s_load_dwordx4 s[8:11], s[0:1], 24")
    o("    s_load_dwordx2 s[16:17], s[0:1], 88   ; ws")
    o("    s_load_dwordx2 s[64:65], s[0:1], 0    ; x")
    def code_pf():
        o("    s_cmp_lg_u32 s50, 8")
        o("    s_cbranch_scc1 K1_NOCPF")
        o("    s_getpc_b64 s[66:67]")
        L("K1_PC")
        o("    v_and_b32 v78, 3, v0")
        o("    s_lshr_b32 s68, s2, 3")
        o("    s_lshl_b32 s68, s68, 9")
        o("    v_lshl_add_u32 v78, v78, 7, s68")
        o(f"    v_min_u32 v77, CODE_END-K1_PC-4, v78")
        o("    s_mov_b64 exec, 15")
        o(f"    global_load_dword v76, v77, s[66:67]")
        o("    s_mov_b64 exec, -1")
        L("K1_NOCPF")
    def xtouch():
        o("    s_cmp_ge_u32 s50, 3")
        o("    s_cbranch_scc1 K1_NOX")
        srd(68, 64, 65, N * 512)
        o("    s_mul_i32 s66, s2, 20000")
        o("    s_and_b32 s66, s66, 0xffffff80")
        o("    v_lshl_add_u32 v77, v0, 7, s66")
        o("    v_cmp_gt_u32 vcc, 158, v0")
        o("    s_and_b64 exec, exec, vcc")
        o("    buffer_load_dword v78, v77, s[68:71], 0 offen")
        o("    s_mov_b64 exec, -1")
        L("K1_NOX")
    D, S, EA, RA, RB = 4, 8, 12, 20, 24
    BN, RK, ST = 28, 32, 36
    T = 40
    WFR = 48
    C = 56
    o("    v_lshrrev_b32 v70, 6, v0")
    o("    v_lshlrev_b32 v1, 2, v0               ; tid*4")
    o("    v_readfirstlane_b32 s50, v70")
    o(f"    s_mul_i32 s3, s2, {CH}")
    o("    v_add_u32 v2, s3, v1")
    o("    v_lshlrev_b32 v3, 2, v2")
    o(f"    v_lshlrev_b32 v{T}, 3, v2")
    o(f"    v_mul_u32_u24 v{T+1}, 6, v2")
    o("    s_cmp_eq_u32 s50, 10")
    o("    s_cbranch_scc1 K1_AUX")
    o("    s_waitcnt lgkmcnt(0)")
    stamp(1, SV)
    srd(20, 10, 11, E * 4)
    o(f"    buffer_load_dwordx4 {vr(D,4)}, v3, s[20:23], 0 offen {K1LD}")
    srd(24, 8, 9, E * 4)
    srd(28, 6, 7, E * 8)
    srd(32, 4, 5, E * 6)
    def payload1():
        o(f"    buffer_load_dwordx4 {vr(S,4)}, v3, s[24:27], 0 offen {K1LD}")
        o(f"    buffer_load_dwordx3 {vr(RA,3)}, v{T+1}, s[32:35], 0 offen {K1LD2}")
        o(f"    buffer_load_dwordx3 {vr(RB,3)}, v{T+1}, s[32:35], 0 offen offset:12 {K1LD2}")
    def payload2():
        o(f"    buffer_load_dwordx4 {vr(EA,4)}, v{T}, s[28:31], 0 offen {K1LD2}")
        o(f"    buffer_load_dwordx4 {vr(EA+4,4)}, v{T}, s[28:31], 0 offen offset:16 {K1LD2}")
    o("    v_lshlrev_b32 v71, 4, v0              ; tid*16")
    o("    v_and_b32 v70, 63, v0")
    o("    v_lshlrev_b32 v70, 4, v70             ; lane*16")
    o("    s_cmp_lt_u32 s50, 8")
    o("    s_cselect_b32 s51, -1, 0")
    for i in range(4):
        o(f"    v_mov_b32 v{60+i}, s51")
    o("    s_cbranch_scc0 K1_INIT2")
    o(f"    ds_write_b128 v71, v[60:63] offset:{K1_T2}")
    o("    s_branch K1_INIT3")
    L("K1_INIT2")
    o(f"    ds_write_b128 v70, v[60:63] offset:{K1_CNT}")
    L("K1_INIT3")
    o(f"    s_mul_i32 s36, s2, {CH*16}")
    o("    s_add_u32 s36, s16, s36")
    o("    s_addc_u32 s37, s17, 0")
    o("    s_and_b32 s37, s37, 0xffff")
    o(f"    s_mov_b32 s38, {CH*16}")
    o("    s_mov_b32 s39, 0x00020000")
    o(f"    s_add_u32 s40, s3, {WS_KEY}")
    o("    s_add_u32 s40, s16, s40")
    o("    s_addc_u32 s41, s17, 0")
    o("    s_and_b32 s41, s41, 0xffff")
    o(f"    s_mov_b32 s42, {CH}")
    o("    s_mov_b32 s43, 0x00020000")
    srd(44, 16, 17, WS_END)
    o("    s_mov_b32 s62, 0x05040100")
    o("    s_mov_b32 s63, 0x05040302")
    for r in range(1, 4):
        o(f"    v_add_u32 v{71+r}, {r*10240}, v71")
    o("    s_waitcnt lgkmcnt(0)")
    o("    s_barrier")
    payload1()
    if K1ORD == 1:
        payload2()
    if CPF == 1:
        code_pf()
    o(f"    v_cmp_gt_u32 vcc, {CH//4}, v0")
    o("    s_mov_b64 s[60:61], vcc")
    o("    s_mov_b64 exec, vcc")
    o("    v_mov_b32 v2, 1")
    o(f"    s_waitcnt vmcnt({5 if K1ORD == 1 else 3})")
    stamp(2, SV)
    for j in range(4):
        o(f"    v_mul_u32_u24 v{D+j}, {BINM}, v{D+j}")
    for j in range(4):
        o(f"    v_lshrrev_b32 v{BN+j}, 14, v{D+j}")
    for j in range(4):
        o(f"    v_and_b32 v{BN+j}, 0x3fc, v{BN+j}")
    for j in range(4):
        o(f"    ds_add_rtn_u32 v{RK+j}, v{BN+j}, v2 offset:{K1_CNT}")
    o("    s_mov_b64 exec, -1")
    if K1ORD == 3:
        payload2()
    o("    s_waitcnt lgkmcnt(0)")
    o("    s_barrier")
    stamp(3, SV)
    o(f"    ds_read_b128 {vr(C,4)}, v70 offset:{K1_CNT}")
    if K1ORD == 2:
        payload2()
    for j in range(4):
        o(f"    v_and_b32 v{D+j}, 0xffff, v{D+j}")
        o(f"    v_mul_u32_u24 v{D+j}, 40018, v{D+j}")
        o(f"    v_bfe_u32 v{ST+j}, v{D+j}, 26, 3       ; local&7")
        o(f"    v_lshrrev_b32 v{D+j}, 29, v{D+j}       ; local>>3")
        if ZZ > 1:
            o(f"    v_and_b32 v{44+j}, 1, v{D+j}             ; k&1")
            o(f"    v_mul_u32_u24 v{D+j}, {ZZ}, v{D+j}")
        o(f"    v_lshl_add_u32 v{D+j}, v{ST+j}, 4, v{D+j}")
    o("    s_waitcnt lgkmcnt(0)")
    o(f"    v_add_u32 v64, v{C}, v{C+1}")
    o(f"    v_add_u32 v65, v64, v{C+2}")
    o(f"    v_add_u32 v66, v65, v{C+3}")
    o("    v_mov_b32 v67, v66")
    o(f"    v_max3_u32 v68, v{C}, v{C+1}, v{C+2}")
    o(f"    v_max_u32 v68, v68, v{C+3}")
    o("    v_cmp_lt_u32 vcc, 30, v68")
    o("    s_mov_b64 s[54:55], vcc")
    fill = []
    for j in range(4):
        fill.append(f"    v_min_u32 v{WFR+j}, 29, v{RK+j}")
        fill.append(f"    v_lshlrev_b32 v{WFR+j}, 1, v{WFR+j}")
        fill.append(f"    v_subrev_u32 v{WFR+4+j}, 29, v{WFR+j}")
        fill.append(f"    v_min_u32 v{WFR+j}, v{WFR+j}, v{WFR+4+j}")
    def two():
        o(fill.pop(0)); o(fill.pop(0))
    two()
    for sh in (1, 2, 4, 8):
        o(f"    v_add_u32_dpp v67, v67, v67 row_shr:{sh} row_mask:0xf bank_mask:0xf bound_ctrl:0")
        two()
    o("    v_add_u32_dpp v67, v67, v67 row_bcast:15 row_mask:0xa bank_mask:0xf")
    two()
    o("    v_add_u32_dpp v67, v67, v67 row_bcast:31 row_mask:0xc bank_mask:0xf")
    o("    v_sub_u32 v60, v67, v66")
    o(f"    v_add_u32 v61, v60, v{C}")
    o("    v_add_u32 v62, v60, v64")
    o("    v_add_u32 v63, v60, v65")
    o(f"    ds_write_b128 v70, v[60:63] offset:{K1_START}")
    for j in range(4):
        o(f"    ds_read_b32 v{ST+j}, v{BN+j} offset:{K1_START}")
    while fill:
        o(fill.pop(0))
    for j in range(4):
        o(f"    v_lshl_add_u32 v{WFR+j}, v{BN+j}, 3, v{WFR+j}")
    o("    s_cmp_lt_u32 s50, 8")
    o("    s_cbranch_scc1 K1_NOTAB")
    o("    v_lshlrev_b32 v68, 3, v70")
    for j in range(4):
        o(f"    v_cmp_lt_u32 vcc, 30, v{C+j}")
        o(f"    v_or_b32 v69, 0x8000, v{60+j}")
        o(f"    v_lshl_or_b32 v{C+j}, v{C+j}, 16, v{60+j}")
        o(f"    v_cndmask_b32 v69, v{60+j}, v69, vcc")
        o(f"    ds_write_b16 v68, v69 offset:{K1_T2 + 32*j + 30}")
    L("K1_NOTAB")
    o("    s_mov_b64 exec, s[60:61]")
    if P > 1:
        o("    s_waitcnt vmcnt(4)")
        for j in range(4):
            o(f"    v_mul_u32_u24 v{WFR+4+j}, {PHM}, v{S+j}")
            o(f"    v_lshrrev_b32 v{WFR+4+j}, 23, v{WFR+4+j}")
            o(f"    v_mad_u32_u24 v{D+j}, v{WFR+4+j}, 5, v{D+j}")
    if ZZ > 1:
        o("    s_waitcnt vmcnt(4)")
        for j in range(4):
            o(f"    v_mul_u32_u24 v{WFR+4+j}, {(ZZ << 23) // 10000}, v{S+j}")
            o(f"    v_lshrrev_b32 v{WFR+4+j}, 23, v{WFR+4+j}     ; sub")
            o(f"    v_sub_u32 v64, {ZZ-1}, v{WFR+4+j}")
            o(f"    v_sub_u32 v64, v64, v{WFR+4+j}")
            o(f"    v_mad_i32_i24 v64, v64, v{44+j}, v{WFR+4+j}")
            o(f"    v_add_u32 v{D+j}, v{D+j}, v64")
    for j in range(4):
        o(f"    ds_write_b8 v{WFR+j}, v{D+j} offset:{K1_T2}")
    o("    s_waitcnt lgkmcnt(4)")
    for j in range(4):
        o(f"    v_add_u32 v{ST+j}, v{ST+j}, v{RK+j}     ; pos")
    o("    s_cmp_eq_u64 s[54:55], 0")
    o("    s_cbranch_scc1 K1_NOKEY")
    for j in range(4):
        o(f"    ds_write_b8 v{ST+j}, v{D+j} offset:{K1_KEY}")
    L("K1_NOKEY")
    for j in range(4):
        o(f"    v_lshlrev_b32 v{RK+j}, 4, v{ST+j}")
        o(f"    v_add_u32 v{RK+j}, {K1_REC}, v{RK+j}")
    TY = 44
    def t2_out(wait):
        o("    s_cmp_lt_u32 s50, 8")
        o("    s_cbranch_scc0 K1_NT2")
        o("    s_lshl_b32 s52, s2, 13")
        o(f"    s_add_u32 s52, s52, {WS_T2}")
        o(f"    s_waitcnt lgkmcnt({wait})")
        o(f"    buffer_store_dwordx4 v[60:63], v71, s[44:47], s52 offen {K1ST}")
        o("    s_branch K1_NT1")
        L("K1_NT2")
        o("    s_lshl_b32 s52, s2, 10")
        o(f"    s_add_u32 s52, s52, {WS_TAB}")
        o(f"    buffer_store_dwordx4 {vr(C,4)}, v70, s[44:47], s52 offen {K1ST}")
        L("K1_NT1")
    if T2E:
        o("    s_mov_b64 exec, -1")
        o("    s_waitcnt lgkmcnt(0)")
        o("    s_barrier")
        o(f"    ds_read_b128 v[60:63], v71 offset:{K1_T2}")
        t2_out(0)
        o("    s_mov_b64 exec, s[60:61]")
    o(f"    s_waitcnt vmcnt({2+T2E})")
    o(f"    v_alignbit_b32 v{TY}, v{RA+2}, v{RA+1}, 16")
    o(f"    v_perm_b32 v{TY+1}, v{S+1}, v{RA+2}, s63")
    o(f"    v_perm_b32 v{RA+1}, v{S}, v{RA+1}, s62")
    o(f"    v_alignbit_b32 v{TY+2}, v{RB+2}, v{RB+1}, 16")
    o(f"    v_perm_b32 v{TY+3}, v{S+3}, v{RB+2}, s63")
    o(f"    v_perm_b32 v{RB+1}, v{S+2}, v{RB+1}, s62")
    yp = [RA, TY, RB, TY + 2]
    if K1SPL:
        for j in range(4):
            o(f"    ds_write_b64 v{RK+j}, {vr(yp[j],2)} offset:8")
    o(f"    s_waitcnt vmcnt({1+T2E})")
    for j in range(4):
        if j == 2:
            o(f"    s_waitcnt vmcnt({T2E})")
            stamp(4, SV)
        if K1SPL:
            o(f"    ds_write_b64 v{RK+j}, {vr(EA+2*j,2)}")
        else:
            o(f"    ds_write2_b64 v{RK+j}, {vr(EA+2*j,2)}, {vr(yp[j],2)} offset0:0 offset1:1")
    o("    s_mov_b64 exec, -1")
    if CPF == 2:
        code_pf()
    o("    s_waitcnt lgkmcnt(0)")
    o("    s_barrier")
    stamp(5, SV)
    if XEND == "mid":
        xtouch()
    for r in range(4):
        o(f"    ds_read_b128 {vr(4+4*r,4)}, v71 offset:{K1_REC + r*10240}")
    if not T2E:
        o(f"    ds_read_b128 v[60:63], v71 offset:{K1_T2}")
    o(f"    ds_read_b32 v20, v1 offset:{K1_KEY}")
    for r in range(4):
        o(f"    s_waitcnt lgkmcnt({5-T2E-r})")
        o(f"    buffer_store_dwordx4 {vr(4+4*r,4)}, v{71+r}, s[36:39], 0 offen {K1ST}")
    if not T2E:
        t2_out(1)
    o("    s_cmp_eq_u64 s[54:55], 0")
    o("    s_cbranch_scc1 K1_NOKEY2")
    o("    s_waitcnt lgkmcnt(0)")
    o("    buffer_store_dword v20, v1, s[40:43], 0 offen")
    L("K1_NOKEY2")
    if XEND == "end":
        xtouch()
    stamp(6, SV)
    if STAMP:
        o("    s_waitcnt vmcnt(0)")
    stamp(7, SV)
    stamp_dump(16, 17, 50, 10, 64 << 20, SV)
    L("K1_END")
    o("    s_endpgm")
    L("K1_AUX")
    if "auxoff" in EXP:
        o("    s_endpgm")
    o("    s_load_dwordx2 s[18:19], s[0:1], 40   ; w_rad")
    o("    s_load_dwordx4 s[12:15], s[0:1], 48")
    o("    v_and_b32 v0, 63, v0")
    o("    s_barrier")
    o("    s_waitcnt lgkmcnt(0)")
    if CPF == 3:
        o("    s_getpc_b64 s[66:67]")
        L("K1_PC")
        o("    s_lshr_b32 s68, s2, 3")
        o("    s_lshl_b32 s68, s68, 9")
        o("    s_min_u32 s68, s68, CODE_END-K1_PC-452")
        for i in range(8):
            o(f"    s_load_dword s{32+i}, s[66:67], s68")
            o("    s_add_u32 s68, s68, 64")
    if TLBW & 1:
        o("    s_load_dword s29, s[18:19], 0")
        o("    s_load_dword s30, s[12:13], 0")
        o("    s_load_dword s31, s[14:15], 0")
    o("    s_barrier")
    o("    s_cmp_ge_u32 s2, 45")
    o("    s_cbranch_scc1 K1_END")
    srd(44, 16, 17, WS_END)
    o("    s_cmp_ge_u32 s2, 40")
    o("    s_cbranch_scc1 K1_AUXR")
    o("    s_mul_i32 s51, s2, 26")
    o("    s_lshr_b32 s51, s51, 8                ; t")
    o("    s_mul_i32 s52, s51, 10")
    o("    s_sub_u32 s52, s2, s52                ; q")
    o("    s_cmp_lt_u32 s52, 4")
    o("    s_cselect_b32 s56, s12, s14")
    o("    s_cselect_b32 s57, s13, s15")
    o("    s_movk_i32 s58, 16384")
    o("    s_cselect_b32 s58, s58, 24576")
    o("    s_and_b32 s57, s57, 0xffff")
    o("    s_mov_b32 s59, 0x00020000")
    o("    v_lshrrev_b32 v70, 4, v0              ; g'")
    o("    v_and_b32 v71, 15, v0")
    o("    v_lshlrev_b32 v71, 1, v71")
    o("    s_lshl_b32 s53, s51, 5")
    o("    v_add_u32 v71, s53, v71               ; (16t+m)*2")
    o("    s_cmp_ge_u32 s52, 8")
    o("    s_cbranch_scc1 K1_FRAGX")
    o("    s_and_b32 s53, s52, 1")
    o("    s_lshl_b32 s53, s53, 5")
    o("    s_bfe_u32 s55, s52, 0x10001           ; (q>>1)&1")
    o("    s_add_u32 s53, s53, s55")
    o("    s_lshl_b32 s53, s53, 7")
    o("    v_lshl_add_u32 v71, v70, 10, v71")
    o("    v_add_u32 v71, s53, v71")
    o("    v_add_u32 v72, 8192, v71")
    for i in range(8):
        o(f"    buffer_load_ushort v{WFR+i}, v{71+(i&1)}, s[56:59], 0 offen offset:{(i>>1)*256}")
    o("    s_branch K1_FRAGW")
    L("K1_FRAGX")
    o("    s_and_b32 s53, s52, 1")
    o("    s_add_u32 s53, s53, 128")
    o("    s_lshl_b32 s53, s53, 7")
    o("    v_lshl_add_u32 v71, v70, 11, v71")
    o("    v_add_u32 v71, s53, v71")
    for i in range(8):
        o(f"    buffer_load_ushort v{WFR+i}, v71, s[56:59], 0 offen offset:{i*256}")
    L("K1_FRAGW")
    for _ in range(1 + T2E):
        o("    s_barrier")
    o("    s_waitcnt vmcnt(0)")
    for p in range(4):
        o(f"    v_lshl_or_b32 v{WFR+p}, v{WFR+2*p+1}, 16, v{WFR+2*p}")
    o("    s_branch K1_AUXS")
    L("K1_AUXR")
    srd(56, 18, 19, 2560)
    o("    v_and_b32 v70, 31, v0")
    o("    v_lshrrev_b32 v71, 5, v0")
    o("    v_lshlrev_b32 v70, 2, v70")
    o("    v_lshl_add_u32 v70, v71, 1, v70")
    o("    s_sub_u32 s52, s2, 40")
    o("    s_lshl_b32 s52, s52, 7")
    o("    v_add_u32 v70, s52, v70")
    for d in range(4):
        o(f"    buffer_load_ushort v{WFR+d}, v70, s[56:59], 0 offen offset:{d*640}")
    for _ in range(1 + T2E):
        o("    s_barrier")
    o("    s_waitcnt vmcnt(0)")
    for d in range(4):
        o(f"    v_lshlrev_b32 v{WFR+d}, 16, v{WFR+d}")
    L("K1_AUXS")
    o("    s_lshl_b32 s52, s2, 10")
    o(f"    s_add_u32 s52, s52, {WS_WF}")
    o("    v_lshlrev_b32 v70, 4, v0")
    o(f"    buffer_store_dwordx4 {vr(WFR,4)}, v70, s[44:47], s52 offen {K1ST}")
    o("    s_endpgm")

def gen_k2():
    B, ACC, S, W = 0, 64, 128, 184
    A = [204, 208]
    VO = [212, 220]
    LT, AM1, AM2 = 228, 232, 236
    RR = 240
    ZR = 244
    vA, vV, vRaw, vCw, vVw, vN4, vMask, vEnds, vPar, vIdx = range(246, 256)
    vLane = 125
    TT = 128
    vD4, vD2, vSa = 150, 151, 152
    TC = 154
    sX, sWS, sOUT, sWR = 12, 16, 20, 24
    sBin, sNN, sWave, sMode, sJlo, sMax = 28, 29, 30, 31, 32, 33
    sNs, sGen, sCnt, sSeg, sK, sLo, sHi, sRel, sRet, sRem = range(34, 44)
    sD0, sD1, sD2 = 44, 45, 46
    sEnd, sNext = 54, 55
    sFast = 38
    sT, sT2, sT3 = 47, 48, 49
    sSave = 50
    sAny2 = 52
    sM1 = 56
    sM2 = 72
    sLM = 24
    sOv = 26

    def accr(v, u, d):
        cc = 2 * (d >> 1) + (u >> 1)
        e = 2 * (u & 1) + (d & 1)
        return ACC + 16 * v + 4 * cc + e
    def wreg(p, d):
        return W + 4 * p + d

    o(".globl tp_main_kernel")
    o(f".p2align {os.environ.get('K2AL', '8')}")
    o(".type tp_main_kernel,@function")
    L("tp_main_kernel")
    o(f"    s_cmp_ge_u32 s2, {NWG}")
    o("    s_cbranch_scc1 K2_END")
    stamp(0)
    o("    s_load_dwordx2 s[4:5], s[0:1], 0      ; x")
    o("    s_load_dwordx2 s[8:9], s[0:1], 72     ; out")
    o("    s_load_dwordx2 s[10:11], s[0:1], 88   ; ws")
    o("    v_lshrrev_b32 v1, 6, v0")
    o(f"    v_and_b32 v{vLane}, 63, v0")
    o(f"    v_readfirstlane_b32 s{sWave}, v1")
    o(f"    s_and_b32 s{sBin}, s2, 7")
    o(f"    s_lshl_b32 s{sBin}, s{sBin}, 5")
    o(f"    s_lshr_b32 s{sT}, s2, 3")
    o(f"    s_add_u32 s{sBin}, s{sBin}, s{sT}")
    HD, KY, RK1, RK2, AD1, AD2, RO, TM = 64, 72, 80, 88, 96, 104, 112, 120
    vW0, vJ = 126, 127

    def prefetch0():
        o(f"    s_lshr_b32 s{sT}, s2, 3")
        o(f"    s_lshl_b32 s{sT}, s{sT}, 3")
        o(f"    s_add_u32 s{sT}, s{sT}, s{sWave}")
        o(f"    s_lshl_b32 s{sT}, s{sT}, 13")
        o(f"    v_lshl_add_u32 v160, v{vLane}, 7, s{sT}")
        if PFL < 64:
            o(f"    s_mov_b64 exec, {hex((1 << PFL) - 1)}")
        for i in range(PF0):
            o(f"    buffer_load_dword v161, v160, {sr(sX,4)}, 0 offen")
            if i + 1 < PF0:
                o(f"    v_add_u32 v160, {256*8192}, v160")
    def w_loads():
        if WLDS:
            return
        o(f"    s_mov_b32 s{sT}, {WS_WR}")
        for p in range(5):
            if p == 4:
                o(f"    s_add_u32 s{sT}, s{sT}, 4096")
            o(f"    buffer_load_dwordx4 {vr(W+4*p,4)}, v{TM+1}, {sr(sWS,4)}, s{sT} offen offset:{(p%4)*1024}")
    def dump_addr():
        o(f"    s_mul_i32 s{sT}, s{sWave}, {SDS}")
        o(f"    s_add_u32 s{sT}, s{sT}, {SD}")
        o(f"    v_lshl_add_u32 v{vD4}, v{vLane}, 2, s{sT}")
        o(f"    s_add_u32 s{sT}, s{sT}, 1024")
        o(f"    v_lshl_add_u32 v{vD2}, v{vLane}, 1, s{sT}")
        o(f"    s_mul_i32 s{sT}, s{sBin}, 40")
        o(f"    s_add_u32 s{sT}, s{sT}, s{sWave}")
        o(f"    s_mul_i32 s{sT}, s{sT}, 2816")
        o(f"    s_add_u32 s{sT}, s{sT}, {WS_S32}")
        o(f"    v_lshl_add_u32 v{vSa}, v{vLane}, 2, s{sT}")
    def lane_id():
        o(f"    v_mbcnt_lo_u32_b32 v{vLane}, -1, 0")
        o(f"    v_mbcnt_hi_u32_b32 v{vLane}, -1, v{vLane}")
    def lane_prep():
        o(f"    v_lshrrev_b32 v{vW0}, 4, v{vLane}")
        o(f"    s_lshl_b32 s{sT}, s{sWave}, 5")
        o(f"    v_add_u32 v{vW0}, s{sT}, v{vW0}")
        o(f"    v_and_b32 v{vJ}, 15, v{vLane}")
        o(f"    v_lshlrev_b32 v{TM}, 10, v{vW0}")
    def hdr_loads():
        o(f"    s_lshl_b32 s{sT}, s{sBin}, 2")
        o(f"    s_add_u32 s{sT}, s{sT}, {WS_TAB}")
        for i in range(8):
            o(f"    buffer_load_dword v{HD+i}, v{TM}, {sr(sWS,4)}, s{sT} offen")
            if i < 7:
                o(f"    s_add_u32 s{sT}, s{sT}, 4096")
    lane_prep()
    o(f"    v_lshlrev_b32 v{TM+1}, 13, v{vW0}")
    o(f"    v_lshl_add_u32 v{TM+1}, v{vJ}, 1, v{TM+1}")
    o(f"    s_lshl_b32 s{sT}, s{sBin}, 5")
    o(f"    s_add_u32 s{sT}, s{sT}, {WS_T2}")
    o("    s_waitcnt lgkmcnt(0)")
    stamp(1)
    srd(sWS, 10, 11, WS_END)
    for i in range(8):
        o(f"    buffer_load_ushort v{KY+i}, v{TM+1}, {sr(sWS,4)}, s{sT} offen")
        if i < 7:
            o(f"    s_add_u32 s{sT}, s{sT}, 32768")
    if WLDS:
        o(f"    v_lshlrev_b32 v{W+4}, 4, v0                 ; tid*16")
        o(f"    v_min_u32 v{W+4}, 5104, v{W+4}")
        o(f"    s_mov_b32 s{sT}, {WS_WR}")
        o(f"    buffer_load_dwordx4 {vr(W,4)}, v{W+4}, {sr(sWS,4)}, s{sT} offen")
    srd(sX, 4, 5, N * 512)
    o(f"    v_and_b32 v{TM+2}, 31, v{vLane}")
    o(f"    v_lshlrev_b32 v{vN4}, 2, v{TM+2}")
    o(f"    v_lshrrev_b32 v{TM+3}, 5, v{vLane}      ; g = l>>5")
    o(f"    s_lshl_b32 s{sT}, s{sBin}, 16")
    o(f"    s_add_u32 s{sT}, s{sT}, {BINM-1}")
    o(f"    s_mul_hi_u32 s{sT2}, s{sT}, 0x27144e     ; n0")
    o(f"    s_add_u32 s{sT}, s{sT}, 0x10000")
    o(f"    s_mul_hi_u32 s{sT}, s{sT}, 0x27144e")
    o(f"    s_min_u32 s{sT}, s{sT}, {N}")
    o(f"    s_sub_u32 s{sNN}, s{sT}, s{sT2}")
    o(f"    s_lshl_b32 s{sT}, s{sT2}, 9")
    o(f"    s_add_u32 s{sOUT}, s8, s{sT}")
    o(f"    s_addc_u32 s{sOUT+1}, s9, 0")
    o(f"    s_and_b32 s{sOUT+1}, s{sOUT+1}, 0xffff")
    o(f"    s_lshl_b32 s{sOUT+2}, s{sNN}, 9")
    o(f"    s_mov_b32 s{sOUT+3}, 0x00020000")
    o(f"    s_mov_b32 s{sMode}, 0")
    o(f"    s_mov_b32 s{sFast}, 0")
    o(f"    s_mov_b32 s{sJlo}, 0")
    o("    v_lshrrev_b32 v5, 3, v0               ; e")
    o("    v_and_b32 v6, 7, v0")
    o("    v_lshlrev_b32 v6, 1, v6               ; 8ha+2p")
    o("    v_sub_u32 v5, v5, v6                  ; e-(8ha+2p)")
    o("    v_med3_i32 v5, v5, 0, 2")
    o("    v_lshlrev_b32 v5, 4, v5")
    o("    v_mov_b32 v6, -1")
    o("    v_mov_b32 v7, 0")
    o("    v_lshlrev_b64 v[6:7], v5, v[6:7]")
    o("    v_cmp_gt_u32 vcc, 256, v0")
    o("    v_lshlrev_b32 v3, 2, v0")
    o(f"    v_add_u32 v3, {MASK}, v3")
    o("    v_cndmask_b32 v2, 0, v7, vcc")
    o("    ds_write_b32 v3, v2")
    o("    v_mov_b32 v2, 0")
    o(f"    v_mov_b32 v3, {MISC}")
    o("    ds_write2_b32 v3, v2, v2 offset0:0 offset1:1")
    o(f"    v_mov_b32 v{ZR}, 0")
    o(f"    v_mov_b32 v{ZR+1}, 0")
    o(f"    v_and_b32 v4, 1, v{vLane}")
    o(f"    v_sub_u32 v{vPar}, 0, v4")
    o(f"    v_bfe_u32 v4, v{vLane}, 2, 1")
    o(f"    v_mul_u32_u24 v{vIdx}, 0x5555, v4")
    o(f"    v_add_u32 v{vIdx}, 0x8888, v{vIdx}       ; 0x8888 / 0xdddd")
    o(f"    v_lshlrev_b32 v{vMask}, 4, v{TM+3}")
    o(f"    v_add_u32 v{vMask}, {MASK}, v{vMask}")
    o("    s_waitcnt lgkmcnt(0)")
    o(f"    s_movk_i32 s{sT}, {CH}")
    o(f"    v_mad_u32_u24 v{TM+2}, v{vW0}, s{sT}, v{vJ}   ; w0*2500 + j")
    o(f"    s_mov_b32 s{sLM}, 0x7fff7fff")
    o(f"    s_mov_b32 s{sLM+1}, 0x7fff7fff")
    o(f"    s_mov_b64 {sr(sOv,2)}, -1")
    o(f"    s_mov_b64 {sr(sAny2,2)}, 0")
    o(f"    v_mov_b32 v{TM+4}, {CNT}")
    o(f"    v_lshlrev_b32 v{TM+1}, 4, v{vLane}")
    o("    s_barrier")
    def rec_load(i):
        o(f"    s_mov_b32 s{sT}, {i*4*CH*16}")
        if RMASK:
            o(f"    s_or_b64 exec, {sr(sM1+2*i,2)}, 1")
        o(f"    buffer_load_dwordx4 {vr(4*i,4)}, v{RO+i}, {sr(sWS,4)}, s{sT} offen")
        if RMASK:
            o("    s_mov_b64 exec, -1")
    o(f"    v_mov_b32 v{TM}, 1")
    for i in range(8):
        o(f"    s_waitcnt vmcnt({7 - i + min(i, NEARLY) + WLDS})")
        if i == 0:
            stamp(2)
        o(f"    v_mov_b32_dpp v{RO+i}, v{KY+i} row_newbcast:15 row_mask:0xf bank_mask:0xf")
        o(f"    v_and_b32 v{AD1+i}, 0xff, v{KY+i}")
        o(f"    v_and_b32 v{RO+i}, 0xfff, v{RO+i}")
        o(f"    v_cmp_gt_u32 vcc, 0x80, v{AD1+i}")
        o(f"    v_add_lshl_u32 v{RO+i}, v{RO+i}, v{TM+2}, 4")
        o(f"    v_lshl_add_u32 v{AD1+i}, v{AD1+i}, 2, v{TM+4}")
        o(f"    s_and_b64 {sr(sM1+2*i,2)}, vcc, {sr(sLM,2)}")
        if i < NEARLY:
            rec_load(i)
        o(f"    v_cmp_gt_u32 vcc, 0x8000, v{KY+i}")
        o(f"    s_mov_b64 exec, {sr(sM1+2*i,2)}")
        o(f"    ds_add_rtn_u32 v{RK1+i}, v{AD1+i}, v{TM}")
        o("    s_mov_b64 exec, -1")
        o(f"    s_and_b64 {sr(sM2+2*i,2)}, vcc, {sr(sLM,2)}")
        o(f"    s_and_b64 {sr(sOv,2)}, {sr(sOv,2)}, vcc")
        o(f"    s_or_b64 {sr(sAny2,2)}, {sr(sAny2,2)}, {sr(sM2+2*i,2)}")
    o("    s_cbranch_scc0 K2_NO2B")
    o("    s_waitcnt lgkmcnt(4)")
    for i in range(8):
        o(f"    s_mov_b64 exec, {sr(sM2+2*i,2)}")
        o(f"    s_cbranch_execz K2_NK2{i}")
        o(f"    v_lshrrev_b32 v{AD2+i}, 8, v{KY+i}")
        o(f"    v_lshl_add_u32 v{AD2+i}, v{AD2+i}, 2, v{TM+4}")
        o(f"    ds_add_rtn_u32 v{RK2+i}, v{AD2+i}, v{TM}")
        L(f"K2_NK2{i}")
    o("    s_mov_b64 exec, -1")
    L("K2_NO2B")
    if WLDS:
        o(f"    v_add_u32 v{W+4}, {WST}, v{W+4}")
    o(f"    s_or_b64 {sr(sOv,2)}, {sr(sOv,2)}, {sr(sLM,2)}")
    o(f"    s_cmp_eq_u64 {sr(sOv,2)}, -1")
    o("    s_cbranch_scc1 K2_RANKD")
    o(f"    v_mov_b32 v{TM}, {MISC}")
    o(f"    ds_write_b32 v{TM}, v{TM}")
    L("K2_RANKD")
    c0, c1, i0, i1, tt0, tt1, e0, e1, p0, p1, a0, a1, b0, b1, ad, mx = range(204, 220)
    o(f"    v_lshlrev_b32 v{ad}, 2, v{vLane}")
    o(f"    v_add_u32 v{ad}, {CNT}, v{ad}")
    o(f"    v_mov_b32 v{mx}, {MISC}")
    o("    s_waitcnt lgkmcnt(0)")
    o("    s_barrier")
    stamp(3)
    o(f"    ds_read2st64_b32 v[{c0}:{c1}], v{ad} offset0:0 offset1:1")
    o(f"    ds_read_b32 v{mx}, v{mx}")
    o(f"    s_cmp_lg_u32 s{sMode}, 0")
    o("    s_cbranch_scc1 K2_NOLATE")
    for i in range(NEARLY, NEARLY + 2):
        rec_load(i)
    L("K2_NOLATE")
    o("    s_waitcnt lgkmcnt(0)")
    o(f"    v_mov_b32 v{i0}, v{c0}")
    o(f"    v_mov_b32 v{i1}, v{c1}")
    o(f"    v_readfirstlane_b32 s{sT3}, v{mx}")
    for sh in (1, 2, 4, 8):
        o(f"    v_add_u32_dpp v{i0}, v{i0}, v{i0} row_shr:{sh} row_mask:0xf bank_mask:0xf bound_ctrl:0")
        o(f"    v_add_u32_dpp v{i1}, v{i1}, v{i1} row_shr:{sh} row_mask:0xf bank_mask:0xf bound_ctrl:0")
        o("    s_nop 0")
    o(f"    v_mov_b32_dpp v{tt0}, v{i0} row_newbcast:15 row_mask:0xf bank_mask:0xf")
    o(f"    v_mov_b32_dpp v{tt1}, v{i1} row_newbcast:15 row_mask:0xf bank_mask:0xf")
    o(f"    v_add_u32 v{e0}, 15, v{tt0}")
    o(f"    v_add_u32 v{e1}, 15, v{tt1}")
    o(f"    v_and_b32 v{e0}, -16, v{e0}")
    o(f"    v_and_b32 v{e1}, -16, v{e1}")
    o(f"    v_mov_b32 v{p0}, v{e0}")
    o(f"    v_mov_b32 v{p1}, v{e1}")
    o(f"    v_add_u32_dpp v{e0}, v{e0}, v{e0} row_bcast:15 row_mask:0xa bank_mask:0xf")
    o(f"    v_add_u32_dpp v{e1}, v{e1}, v{e1} row_bcast:15 row_mask:0xa bank_mask:0xf")
    o("    s_nop 0")
    o(f"    v_add_u32_dpp v{e0}, v{e0}, v{e0} row_bcast:31 row_mask:0xc bank_mask:0xf")
    o(f"    v_add_u32_dpp v{e1}, v{e1}, v{e1} row_bcast:31 row_mask:0xc bank_mask:0xf")
    o("    s_nop 0")
    o(f"    v_readlane_b32 s{sT}, v{e0}, 63")
    o(f"    v_readlane_b32 s{sT2}, v{e1}, 63")
    o(f"    v_sub_u32 v{a0}, v{e0}, v{tt0}")
    o(f"    v_add_u32 v{e1}, s{sT}, v{e1}")
    o(f"    v_add_u32 v{a0}, v{a0}, v{i0}            ; absolute end slot of entry")
    o(f"    v_sub_u32 v{a1}, v{e1}, v{tt1}")
    o(f"    v_add_u32 v{a1}, v{a1}, v{i1}")
    o(f"    v_sub_u32 v{b0}, v{a0}, v{c0}")
    o(f"    v_sub_u32 v{b1}, v{a1}, v{c1}")
    o(f"    ds_write2st64_b32 v{ad}, v{b0}, v{b1} offset0:2 offset1:3")
    o(f"    s_add_u32 s{sT}, s{sT}, s{sT2}")
    o(f"    s_cmp_gt_u32 s{sT}, {SLOTCAP-96}")
    o(f"    s_cselect_b32 s{sT}, 1, 0")
    o(f"    s_cmp_lg_u32 s{sT3}, 0")
    o(f"    s_cselect_b32 s{sT}, 1, s{sT}")
    o(f"    s_cmp_gt_u32 s{sT}, s{sMode}")
    o("    s_cbranch_scc1 K2_GOSLOW")
    for i in range(8):
        o(f"    ds_read_b32 v{AD1+i}, v{AD1+i} offset:512")
    o(f"    s_cmp_lg_u32 s{sMode}, 0")
    o("    s_cbranch_scc1 K2_NO2C")
    for i in range(NEARLY + 2, 8):
        rec_load(i)
    w_loads()
    o(f"    s_cmp_eq_u64 {sr(sAny2,2)}, 0")
    o("    s_cbranch_scc1 K2_NO2C")
    o("    s_waitcnt lgkmcnt(4)")
    for i in range(8):
        o(f"    s_mov_b64 exec, {sr(sM2+2*i,2)}")
        o(f"    s_cbranch_execz K2_NR2{i}")
        o(f"    s_mov_b32 s{sT}, {i*4*CH*16}")
        o(f"    buffer_load_dwordx4 {vr(32+4*i,4)}, v{RO+i}, {sr(sWS,4)}, s{sT} offen offset:240")
        o(f"    ds_read_b32 v{AD2+i}, v{AD2+i} offset:512")
        L(f"K2_NR2{i}")
    o("    s_mov_b64 exec, -1")
    L("K2_NO2C")
    o(f"    s_cmp_lt_u32 s{sWave}, 4")
    o("    s_cselect_b64 vcc, -1, 0")
    o(f"    v_cndmask_b32 v{a0}, v{a1}, v{a0}, vcc")
    o(f"    v_cndmask_b32 v{e0}, v{e1}, v{e0}, vcc")
    o(f"    v_cndmask_b32 v{p0}, v{p1}, v{p0}, vcc")
    o(f"    v_cndmask_b32 v{tt0}, v{tt1}, v{tt0}, vcc")
    o(f"    s_and_b32 s{sSeg}, s{sWave}, 3")
    o(f"    s_lshl_b32 s{sSeg}, s{sSeg}, 4")
    o("    s_nop 0")
    o(f"    v_readlane_b32 s{sT}, v{e0}, s{sSeg}")
    o(f"    v_readlane_b32 s{sT2}, v{p0}, s{sSeg}")
    o(f"    v_readlane_b32 s{sT3}, v{tt0}, s{sSeg}")
    o(f"    v_and_b32 v{b0}, 15, v{vLane}")
    o(f"    v_cmp_le_u32 vcc, {5*ZZ}, v{b0}")
    o(f"    v_mov_b32 v{b0}, 0x7fffffff")
    o(f"    s_sub_u32 s{sT}, s{sT}, s{sT2}")
    o(f"    s_sub_u32 s{sLo}, s{sT2}, s{sT3}         ; pad")
    o(f"    s_lshr_b32 s{sNs}, s{sT2}, 4")
    o(f"    v_subrev_u32 v{vEnds}, s{sT}, v{a0}")
    o(f"    v_cndmask_b32 v{vEnds}, v{vEnds}, v{b0}, vcc")
    o(f"    v_lshrrev_b32 v{vRaw}, 1, v{vLane}")
    o(f"    v_add_u32 v{vRaw}, s{sT}, v{vRaw}")
    o(f"    v_lshlrev_b32 v{vRaw}, 4, v{vRaw}")
    if RAW:
        o(f"    v_add_u32 v{vRaw}, {RAW}, v{vRaw}")
    o(f"    s_mul_i32 s{sT}, s{sWave}, {3*RBLK}")
    o(f"    s_add_u32 s{sT}, s{sT}, {RING}")
    o(f"    s_add_u32 s{sT2}, s{sT}, 1024")
    o(f"    v_lshrrev_b32 v{b0}, 5, v{vLane}         ; ha / g")
    o(f"    v_bfe_u32 v{b1}, v{vLane}, 2, 2          ; rho")
    o(f"    v_lshl_add_u32 v{b1}, v{b0}, 3, v{b1}")
    o(f"    v_bfe_u32 v{c0}, v{vLane}, 1, 1")
    o(f"    v_bfe_u32 v{c1}, v{vLane}, 4, 1")
    o(f"    v_lshl_add_u32 v{c0}, v{c1}, 1, v{c0}")
    o(f"    v_lshl_add_u32 v{c0}, v{c0}, 3, s{sT}")
    o(f"    v_lshl_add_u32 v{vA}, v{b1}, 5, v{c0}")
    o(f"    v_lshl_add_u32 v{vV}, v{b0}, 4, s{sT2}")
    o(f"    v_lshl_add_u32 v{vCw}, v{vLane}, 4, s{sT}")
    o(f"    v_lshrrev_b32 v{b0}, 1, v{vLane}")
    o(f"    v_lshl_add_u32 v{vVw}, v{b0}, 2, s{sT2}")
    dump_addr()
    o("    s_waitcnt lgkmcnt(0)")
    for i in range(8):
        o(f"    v_add_lshl_u32 v{AD1+i}, v{AD1+i}, v{RK1+i}, 4")
    stamp(4)
    for i in range(8):
        o(f"    s_mov_b64 exec, {sr(sM1+2*i,2)}")
        o(f"    s_waitcnt vmcnt({(7 if WLDS else 12)-i + (PF0 if PFPOS == 'd' and i > PFI else 0)})")
        o(f"    ds_write_b128 v{AD1+i}, {vr(4*i,4)} offset:{RAW}")
        if PF0 and PFPOS == "d" and i == PFI:
            o("    s_mov_b64 exec, -1")
            prefetch0()
    o(f"    s_waitcnt vmcnt({PF0 if PFPOS == 'd' else 0})")
    if PF0 and PFPOS == "c":
        o("    s_mov_b64 exec, -1")
        prefetch0()
    o(f"    s_cmp_eq_u64 {sr(sAny2,2)}, 0")
    o("    s_cbranch_scc1 K2_NO2D")
    for i in range(8):
        o(f"    s_mov_b64 exec, {sr(sM2+2*i,2)}")
        o(f"    s_cbranch_execz K2_NS2{i}")
        o(f"    v_add_lshl_u32 v{AD2+i}, v{AD2+i}, v{RK2+i}, 4")
        o(f"    ds_write_b128 v{AD2+i}, {vr(32+4*i,4)} offset:{RAW}")
        L(f"K2_NS2{i}")
    L("K2_NO2D")
    o("    s_mov_b64 exec, -1")
    if WLDS:
        o(f"    v_lshlrev_b32 v{TT}, 4, v{vLane}")
        o(f"    v_add_u32 v{TT}, {WST}, v{TT}")
        o(f"    s_cmp_lg_u32 s{sMode}, 0")
        o("    s_cbranch_scc1 K2_NOWST")
        o(f"    ds_write_b128 v{W+4}, {vr(W,4)}")
        L("K2_NOWST")
    o("    s_waitcnt lgkmcnt(0)")
    o("    s_barrier")
    stamp(5)
    if STAMP:
        o("    s_memtime s[100:101]")
        o("    s_waitcnt lgkmcnt(0)")
        o(f"    v_writelane_b32 v{STV}, s100, 12")
    if "prio" in EXP:
        o(f"    s_cmp_lt_u32 s{sWave}, 4")
        o("    s_cbranch_scc1 K2_NOPRIO")
        o("    s_setprio 1")
        L("K2_NOPRIO")

    def convert(ct, rr=RR, off=0):
        CO = AM1
        a0_, a1_, y0, y1, y2, m0, m1, vo = range(ct, ct + 8)
        o(f"    v_bitop3_b32 v{CO}, v{vPar}, v{rr+1}, v{rr} bitop3:0xca")
        o(f"    v_lshlrev_b32 v{y0}, 16, v{rr+2}")
        o(f"    v_lshlrev_b32 v{a0_}, 16, v{CO}")
        o(f"    v_and_b32 v{a1_}, 0xffff0000, v{CO}")
        o(f"    v_and_b32 v{y1}, 0xffff0000, v{rr+2}")
        o(f"    v_lshlrev_b32 v{y2}, 16, v{rr+3}")
        for u, y in enumerate((y0, y1, y2)):
            o(f"    v_mul_f32 v{m0}, v{a0_}, v{y}")
            o(f"    v_mul_f32 v{m1}, v{a1_}, v{y}")
            o(f"    v_cvt_pk_bf16_f32 v{CO+1+u}, v{m0}, v{m1}")
        o(f"    v_lshrrev_b32 v{vo}, 7, v{rr+3}")
        o(f"    v_and_b32 v{vo}, {hex(int(os.environ.get('SRCMASK','0x1fffe00'),16))}, v{vo}")
        o(f"    ds_write_b128 v{vCw}, {vr(CO,4)} offset:{off}")
        o(f"    ds_write_b32 v{vVw}, v{vo} offset:{off}")

    def loads_tile(x, v, vo):
        for r in range(8):
            o(f"    buffer_load_dword v{B+32*x+8*v+r}, v{vo+r}, {sr(sX,4)}, 0 offen offset:{v*128}")
    def smf(x, v, areg):
        if "q1" in EXP and v != 0:
            return
        if "q2" in EXP and v >= 2:
            return
        if "nomfma" not in EXP:
            o(f"    v_smfmac_f32_32x32x32_bf16 {vr(ACC+16*v,16)}, {vr(areg,4)}, {vr(B+32*x+8*v,8)}, v{vIdx}")
    def zero_tile(v):
        if "nomfma" not in EXP or "keepz" in EXP:
            o(f"    v_mfma_f32_32x32x8_bf16 {vr(ACC+16*v,16)}, {vr(ZR,2)}, {vr(ZR,2)}, 0")
    def mask_read(dst, sreg, tmp):
        o(f"    s_lshl_b32 s{sT}, s{sreg}, 5")
        o(f"    v_add_u32 v{tmp}, s{sT}, v{vMask}")
        o(f"    ds_read_b128 {vr(dst,4)}, v{tmp}")
    terms = [(0, 0, 0, 0, 1)] + [(2 + j, 2, 0, j + 1, 1) for j in range(3)]
    cross = {(2, 3): (0, 1), (3, 2): (0, -1), (3, 1): (1, 1), (1, 3): (1, -1), (1, 2): (2, 1), (2, 1): (2, -1)}
    for v in range(1, 4):
        terms.append((5 + v - 1, 3, v, 0, 1))
        for u in range(1, 4):
            if u == v:
                terms.append((1, 1, v, u, 1))
            else:
                i, sg = cross[(u, v)]
                terms.append((8 + i, 4, v, u, sg))
    first_v = {}
    for (si, p, v_, u, sg) in terms:
        first_v.setdefault(si, (v_, u))
    def fmas(v):
        if "noepi" in EXP:
            return
        tv = [t for t in terms if t[2] == v]
        if PK:
            for dh in range(2):
                for (si, p, v_, u, sg) in tv:
                    t = vr(TT + 2 * si, 2)
                    neg3 = " neg_lo:[1,0,0] neg_hi:[1,0,0]" if sg < 0 else ""
                    neg2 = " neg_lo:[1,0] neg_hi:[1,0]" if sg < 0 else ""
                    if dh == 0 and first_v[si] == (v_, u):
                        o(f"    v_pk_mul_f32 {t}, {vr(wreg(p,0),2)}, {vr(accr(v,u,0),2)}{neg2}")
                    else:
                        o(f"    v_pk_fma_f32 {t}, {vr(wreg(p,2*dh),2)}, {vr(accr(v,u,2*dh),2)}, {t}{neg3}")
        else:
            for d in range(4):
                for (si, p, v_, u, sg) in tv:
                    t = TT + 2 * si
                    ng = "-" if sg < 0 else ""
                    if d == 0 and first_v[si] == (v_, u):
                        o(f"    v_mul_f32 v{t}, {ng}v{wreg(p,d)}, v{accr(v,u,d)}")
                    elif sg > 0:
                        o(f"    v_fmac_f32 v{t}, v{wreg(p,d)}, v{accr(v,u,d)}")
                    else:
                        o(f"    v_fma_f32 v{t}, -v{wreg(p,d)}, v{accr(v,u,d)}, v{t}")
    def fold():
        if PK:
            for si in range(11):
                o(f"    v_add_f32 v{TT+2*si}, v{TT+2*si}, v{TT+2*si+1}")
    def commit_lds():
        t = lambda si: TT + 2 * si
        o(f"    v_cvt_pk_bf16_f32 v{TC}, v{t(0)}, v{t(1)}")
        for j in range(3):
            o(f"    v_cvt_pk_bf16_f32 v{TC+1+j}, v{t(2+j)}, v{t(5+j)}")
        o(f"    v_cvt_pk_bf16_f32 v{TC+4}, v{t(8)}, v{t(9)}")
        o(f"    v_cvt_pk_bf16_f32 v{TC+5}, v{t(10)}, v{t(10)}")
        o(f"    ds_write2st64_b32 v{vD4}, v{TC}, v{TC+1} offset0:0 offset1:1")
        o(f"    ds_write2st64_b32 v{vD4}, v{TC+2}, v{TC+3} offset0:2 offset1:3")
        o(f"    ds_write_b16 v{vD2}, v{TC+4}")
        o(f"    ds_write_b16_d16_hi v{vD2}, v{TC+4} offset:128")
        o(f"    ds_write_b16 v{vD2}, v{TC+5} offset:256")
        o(f"    v_add_u32 v{vD4}, {8*SDS}, v{vD4}")
        o(f"    v_add_u32 v{vD2}, {8*SDS}, v{vD2}")
    pcnt = [0]
    def prio_step():
        if PRIO:
            o(f"    s_and_b32 s{sT}, s{sSeg}, 15")
            for lvl, th in zip((2, 1, 0), PRIO):
                pcnt[0] += 1
                o(f"    s_cmp_lg_u32 s{sT}, {th*ZZ+ZZ-1}")
                o(f"    s_cbranch_scc1 K2_PR{pcnt[0]}")
                o(f"    s_setprio {lvl}")
                L(f"K2_PR{pcnt[0]}")
    def schedule_next():
        o(f"    s_sub_u32 s{sT}, s{sEnd}, 1")
        o(f"    s_and_b32 s{sHi}, s{sT}, 15")
        o(f"    s_add_u32 s{sHi}, s{sHi}, 1")
        o(f"    s_lshr_b32 s{sT}, s{sT}, 4")
        o(f"    s_sub_i32 s{sT2}, s{sNs}, 2")
        o(f"    s_add_u32 s{sT3}, s{sGen}, 1")
        o(f"    s_max_i32 s{sT2}, s{sT2}, s{sT3}")
        o(f"    s_min_u32 s{sGen}, s{sT}, s{sT2}")
        o(f"    s_sub_u32 s{sCnt}, s{sGen}, s{sT3}")

    o(f"    s_cmp_eq_u32 s{sNs}, 0")
    o("    s_cbranch_scc1 K2_EMPTY")
    o(f"    ds_read_b128 {vr(RR,4)}, v{vRaw}")
    o(f"    ds_read_b128 {vr(A[0],4)}, v{vRaw} offset:512")
    if PRIO:
        o("    s_setprio 3")
    o(f"    s_mov_b32 s{sD0}, {RBLK}                ; delta for vA at end of this batch")
    o(f"    s_mov_b32 s{sD1}, {RBLK}")
    o(f"    s_mov_b32 s{sD2}, {-2*RBLK}")
    for v in range(4):
        zero_tile(v)
    o("    s_waitcnt lgkmcnt(1)")
    convert(VO[1])
    o(f"    ds_read_b128 {vr(VO[0],4)}, v{vV}")
    o(f"    ds_read_b128 {vr(VO[0]+4,4)}, v{vV} offset:32")
    o("    s_waitcnt lgkmcnt(4)")
    convert(VO[1], A[0], RBLK)
    o(f"    ds_read_b128 {vr(VO[1],4)}, v{vV} offset:64")
    o(f"    ds_read_b128 {vr(VO[1]+4,4)}, v{vV} offset:96")
    o(f"    v_add_u32 v{vRaw}, 1024, v{vRaw}")
    o(f"    v_add_u32 v{vCw}, {2*RBLK}, v{vCw}")
    o(f"    v_add_u32 v{vVw}, {2*RBLK}, v{vVw}")
    o(f"    v_add_u32 v{vV}, {RBLK}, v{vV}")
    o("    s_waitcnt lgkmcnt(4)")
    for r in range(8):
        o(f"    v_add_u32 v{VO[0]+r}, v{VO[0]+r}, v{vN4}")
    for r in range(8):
        thr = 8 * (r >> 2) + (r & 3) + 4
        if thr < 15:
            o(f"    s_cmp_gt_u32 s{sLo}, {thr}")
            o(f"    s_cbranch_scc1 K2_IZ{r}")
        for v in range(4):
            o(f"    buffer_load_dword v{B+8*v+r}, v{VO[0]+r}, {sr(sX,4)}, 0 offen offset:{v*128}")
        L(f"K2_IN{r}")
    o(f"    s_cmp_eq_u32 s{sNs}, 1")
    o("    s_cbranch_scc1 K2_INITD")
    o("    s_waitcnt lgkmcnt(0)")
    for r in range(8):
        o(f"    v_add_u32 v{VO[1]+r}, v{VO[1]+r}, v{vN4}")
    for v in range(4):
        if v == 3:
            o("    s_waitcnt vmcnt(55)")
        loads_tile(1, v, VO[1])
    L("K2_INITD")
    if ZZ > 1:
        o(f"    s_add_u32 s{sSeg}, s{sSeg}, {ZZ-1}")
    if WLDS:
        for p in range(5):
            o(f"    ds_read_b128 {vr(W+4*p,4)}, v{TT} offset:{p*1024}")
    o(f"    v_readlane_b32 s{sEnd}, v{vEnds}, s{sSeg}")
    o(f"    ds_read_b64_tr_b16 {vr(A[0],2)}, v{vA}")
    o(f"    ds_read_b64_tr_b16 {vr(A[0]+2,2)}, v{vA} offset:128")
    o(f"    ds_read_b128 {vr(VO[0],4)}, v{vV}")
    o(f"    ds_read_b128 {vr(VO[0]+4,4)}, v{vV} offset:32")
    o(f"    s_mov_b32 s{sGen}, 0")
    o(f"    s_mov_b32 s{sCnt}, 0")

    o(".p2align 3")
    L("K2_LOOP")
    for x in range(2):
        a_cur, a_nxt = A[x], A[x ^ 1]
        v_cur, v_nxt = VO[x], VO[x ^ 1]
        if x == 1:
            o(f"    v_add_u32 v{vA}, s{sD0}, v{vA}")
            o(f"    v_add_u32 v{vV}, s{sD1}, v{vV}")
        nx = x ^ 1
        if x == 0:
            o(f"    ds_read_b128 {vr(RR,4)}, v{vRaw}")
        o(f"    ds_read_b64_tr_b16 {vr(a_nxt,2)}, v{vA} offset:{nx*512}")
        o(f"    ds_read_b64_tr_b16 {vr(a_nxt+2,2)}, v{vA} offset:{nx*512+128}")
        o(f"    ds_read_b128 {vr(v_nxt,4)}, v{vV} offset:{nx*64}")
        o(f"    ds_read_b128 {vr(v_nxt+4,4)}, v{vV} offset:{nx*64+32}")
        o(f"    s_sub_u32 s{sCnt}, s{sCnt}, 1")
        o(f"    s_waitcnt lgkmcnt({5 if x == 0 else 4})")
        for r in range(8):
            o(f"    v_add_u32 v{v_cur+r}, v{v_cur+r}, v{vN4}")
        o(f"    s_cbranch_scc1 K2_SP{x}")
        for v in range(4):
            o("    s_waitcnt vmcnt(55)")
            smf(x, v, a_cur)
            loads_tile(x, v, v_cur)
        L(f"K2_NEXT{x}")
        if x == 0:
            o("    s_waitcnt lgkmcnt(4)")
            convert(v_cur)
            o(f"    v_add_u32 v{vRaw}, 512, v{vRaw}")
            o(f"    v_add_u32 v{vCw}, s{sD2}, v{vCw}")
            o(f"    v_add_u32 v{vVw}, s{sD2}, v{vVw}")
        else:
            o(f"    s_mov_b32 s{sT}, s{sD0}")
            o(f"    s_mov_b32 s{sD0}, s{sD1}")
            o(f"    s_mov_b32 s{sD1}, s{sD2}")
            o(f"    s_mov_b32 s{sD2}, s{sT}")
            o("    s_branch K2_LOOP")

    for x in range(2):
        a_cur = A[x]
        v_cur = VO[x]
        L(f"K2_SP{x}")
        o(f"    s_add_u32 s{sT}, s{sSeg}, {ZZ}")
        if ZZ == 3:
            o(f"    s_or_b32 s{sT2}, s{sSeg}, 15")
            o(f"    s_min_u32 s{sT}, s{sT}, s{sT2}")
        o(f"    v_readlane_b32 s{sNext}, v{vEnds}, s{sT}")
        o(f"    s_sub_u32 s{sRem}, s{sNs}, s{sGen}")
        o(f"    s_lshl_b32 s{sT3}, s{sGen}, 4")
        o(f"    s_cmp_le_u32 s{sRem}, 2")
        o(f"    s_cbranch_scc1 K2_GEN{x}")
        o(f"    s_cmp_le_u32 s{sGen}, s{sFast}")
        o(f"    s_cbranch_scc1 K2_GEN{x}")
        o(f"    s_add_u32 s{sT2}, s{sT3}, 16")
        o(f"    s_cmp_le_u32 s{sNext}, s{sT2}")
        o(f"    s_cbranch_scc1 K2_GEN{x}")
        for r in range(4):
            o(f"    v_and_b32 v{AM1+r}, v{a_cur+r}, v{LT+r}")
        for r in range(4):
            o(f"    v_bitop3_b32 v{AM2+r}, v{a_cur+r}, v{LT+r}, v{LT+r} bitop3:0x30")
        o("    s_waitcnt vmcnt(31)")
        for v in range(4):
            smf(x, v, AM1)
        o(f"    s_mov_b32 s{sSeg}, s{sT}")
        o(f"    s_mov_b32 s{sEnd}, s{sNext}")
        schedule_next()
        mask_read(LT, sHi, a_cur)
        for v in range(4):
            fmas(v)
            zero_tile(v)
            smf(x, v, AM2)
            loads_tile(x, v, v_cur)
        fold()
        commit_lds()
        prio_step()
        o(f"    s_branch K2_NEXT{x}")
        L(f"K2_GEN{x}")
        o(f"    s_cmp_ge_u32 s{sRem}, 2")
        o(f"    s_cbranch_scc1 K2_GW{x}")
        o("    s_waitcnt vmcnt(0)")
        L(f"K2_GW{x}")
        o(f"    s_cmp_eq_u32 s{sGen}, 0")
        o(f"    s_cselect_b32 s{sLo}, s{sLo}, 0")
        L(f"K2_GL{x}")
        o(f"    s_sub_u32 s{sRel}, s{sEnd}, s{sT3}")
        o(f"    s_min_u32 s{sHi}, s{sRel}, 16")
        mask_read(LT, sHi, AM1)
        mask_read(AM2, sLo, AM1 + 1)
        o("    s_waitcnt vmcnt(31) lgkmcnt(0)")
        for r in range(4):
            o(f"    v_bitop3_b32 v{AM1+r}, v{a_cur+r}, v{LT+r}, v{AM2+r} bitop3:0x40")
        o("    s_nop 1")
        for v in range(4):
            smf(x, v, AM1)
        o(f"    s_cmp_gt_u32 s{sRel}, 16")
        o(f"    s_cbranch_scc1 K2_GD{x}")
        o(f"    s_mov_b32 s{sRet}, {x}")
        o("    s_branch K2_EPI")
        L(f"K2_GD{x}")
        o(f"    s_cmp_le_u32 s{sRem}, 2")
        o(f"    s_cbranch_scc1 K2_NL{x}")
        for v in range(4):
            loads_tile(x, v, v_cur)
        L(f"K2_NL{x}")
        o(f"    s_cmp_eq_u32 s{sRem}, 1")
        o("    s_cbranch_scc1 K2_STREAM_DONE")
        schedule_next()
        mask_read(LT, sHi, AM1)
        o(f"    s_branch K2_NEXT{x}")

    L("K2_EPI")
    if ZZ == 3:
        o(f"    s_or_b32 s{sT2}, s{sSeg}, 15")
    o(f"    s_add_u32 s{sSeg}, s{sSeg}, {ZZ}")
    if ZZ == 3:
        o(f"    s_min_u32 s{sSeg}, s{sSeg}, s{sT2}")
    o(f"    s_mov_b32 s{sLo}, s{sHi}")
    o(f"    v_readlane_b32 s{sEnd}, v{vEnds}, s{sSeg}")
    o("    s_nop 7")
    for v in range(4):
        fmas(v)
        zero_tile(v)
    fold()
    o(f"    s_cmp_lg_u32 s{sMode}, 0")
    o("    s_cbranch_scc1 K2_EPS")
    commit_lds()
    prio_step()
    L("K2_EPR")
    o(f"    s_cmp_eq_u32 s{sRet}, 0")
    o("    s_cbranch_scc1 K2_GL0")
    o("    s_branch K2_GL1")
    L("K2_EPS")
    o("    s_waitcnt vmcnt(31)")
    for si in range(11):
        o(f"    buffer_atomic_add_f32 v{TT+2*si}, v{vSa}, {sr(sWS,4)}, 0 offen offset:{si*256}")
    o(f"    v_add_u32 v{vSa}, {8*2816}, v{vSa}")
    o("    s_waitcnt vmcnt(0)")
    o("    s_branch K2_EPR")
    for r in range(7):
        L(f"K2_IZ{r}")
        for v in range(4):
            o(f"    v_mov_b32 v{B+8*v+r}, 0")
        o(f"    s_branch K2_IN{r}")
    L("K2_EMPTY")
    o(f"    s_cmp_lg_u32 s{sMode}, 0")
    o("    s_cbranch_scc1 K2_STREAM_DONE")
    for si in range(11):
        o(f"    v_mov_b32 v{TT+2*si}, 0")
    o(f"    s_mov_b32 s{sT2}, 5")
    L("K2_EMPTYL")
    commit_lds()
    o(f"    s_sub_u32 s{sT2}, s{sT2}, 1")
    o(f"    s_cmp_lg_u32 s{sT2}, 0")
    o("    s_cbranch_scc1 K2_EMPTYL")
    o("    s_branch K2_POSTG")

    L("K2_GOSLOW")
    o(f"    s_mov_b32 s{sMode}, 1")
    o(f"    s_mov_b32 s{sFast}, -1")
    w_loads()
    if WLDS:
        o("    s_waitcnt vmcnt(0)")
        o(f"    ds_write_b128 v{W+4}, {vr(W,4)}")
    dump_addr()
    o(f"    v_mov_b32 v{TT}, 0")
    for k in range(5):
        for si in range(11):
            o(f"    buffer_store_dword v{TT}, v{vSa}, {sr(sWS,4)}, 0 offen offset:{si*256} sc1")
        o(f"    v_add_u32 v{vSa}, {8*2816}, v{vSa}")
        o("    s_waitcnt vmcnt(0)")
    o("    s_waitcnt vmcnt(0)")
    L("K2_SLOW_ROUND")
    o("    s_waitcnt lgkmcnt(0)")
    o("    s_barrier")
    o("    s_nop 7")
    lane_id()
    o(f"    v_lshlrev_b32 v2, 2, v{vLane}")
    o(f"    v_add_u32 v2, {CNT}, v2")
    o("    v_mov_b32 v3, 0")
    o("    ds_write2st64_b32 v2, v3, v3 offset0:0 offset1:1")
    lane_prep()
    hdr_loads()
    o(f"    v_add_u32 v{TM+1}, s{sJlo}, v{vJ}")
    o(f"    s_movk_i32 s{sT}, {CH}")
    o(f"    v_mad_u32_u24 v{TM+2}, v{vW0}, s{sT}, v{TM+1}")
    o(f"    v_cmp_gt_u32 {sr(sSave,2)}, 8, v{vJ}")
    o(f"    s_mov_b64 {sr(sAny2,2)}, 0")
    o(f"    v_mov_b32 v{TM+3}, 0")
    o(f"    v_lshlrev_b32 v{KY}, 1, v{TM+1}")
    o(f"    v_subrev_u32 v{KY+1}, 29, v{KY}")
    o(f"    v_min_u32 v{KY}, v{KY}, v{KY+1}")
    o(f"    v_lshl_add_u32 v{KY}, v{vW0}, 13, v{KY}")
    o(f"    s_lshl_b32 s{sT}, s{sBin}, 5")
    o(f"    s_add_u32 s{sT}, s{sT}, {WS_T2}")
    o(f"    v_add_u32 v{KY}, s{sT}, v{KY}")
    o("    s_waitcnt vmcnt(0)")
    for i in range(8):
        o(f"    v_lshrrev_b32 v{TM}, 16, v{HD+i}")
        o(f"    v_and_b32 v{AD2+i}, 0xffff, v{HD+i}")
        o(f"    v_cmp_lt_u32 vcc, v{TM+1}, v{TM}")
        o(f"    v_add_u32 v{AD2+i}, v{AD2+i}, v{TM+2}")
        o(f"    v_lshlrev_b32 v{RO+i}, 4, v{AD2+i}")
        o(f"    v_max_u32 v{TM+3}, v{TM+3}, v{TM}")
        o(f"    v_mov_b32 v{AD1+i}, 0")
        o(f"    s_and_b64 {sr(sM1+2*i,2)}, vcc, {sr(sSave,2)}")
        o(f"    s_mov_b64 exec, {sr(sM1+2*i,2)}")
        o(f"    s_cbranch_execz K2_SR{i}")
        o(f"    s_mov_b32 s{sT}, {i*4*CH*16}")
        o(f"    buffer_load_dwordx4 {vr(4*i,4)}, v{RO+i}, {sr(sWS,4)}, s{sT} offen")
        o(f"    v_cmp_lt_u32 vcc, 30, v{TM}")
        o(f"    v_add_u32 v{AD2+i}, {WS_KEY + i*4*CH}, v{AD2+i}")
        o(f"    v_add_u32 v{TM}, {i*32768}, v{KY}")
        o(f"    v_cndmask_b32 v{AD2+i}, v{TM}, v{AD2+i}, vcc")
        o(f"    buffer_load_ubyte v{AD1+i}, v{AD2+i}, {sr(sWS,4)}, 0 offen")
        L(f"K2_SR{i}")
        o("    s_mov_b64 exec, -1")
    o(f"    v_mov_b32 v{TM}, {MISC+4}")
    o(f"    ds_max_u32 v{TM}, v{TM+3}")
    o(f"    v_mov_b32 v{TM+4}, {CNT}")
    o("    s_waitcnt vmcnt(0) lgkmcnt(0)")
    o("    s_barrier")
    o(f"    ds_read_b32 v{TM}, v{TM}")
    o("    s_waitcnt lgkmcnt(0)")
    o(f"    v_readfirstlane_b32 s{sMax}, v{TM}")
    o(f"    v_mov_b32 v{TM}, 1")
    for i in range(8):
        o(f"    v_lshl_add_u32 v{AD1+i}, v{AD1+i}, 2, v{TM+4}")
    for i in range(8):
        o(f"    s_mov_b64 exec, {sr(sM1+2*i,2)}")
        o(f"    ds_add_rtn_u32 v{RK1+i}, v{AD1+i}, v{TM}")
    o("    s_mov_b64 exec, -1")
    o("    s_branch K2_RANKD")

    L("K2_STREAM_DONE")
    o(f"    s_cmp_eq_u32 s{sMode}, 0")
    o("    s_cbranch_scc1 K2_POSTG")
    o(f"    s_add_u32 s{sJlo}, s{sJlo}, 8")
    o(f"    s_cmp_lt_u32 s{sJlo}, s{sMax}")
    o("    s_cbranch_scc1 K2_SLOW_ROUND")
    o("    s_nop 7")
    lane_id()
    dump_addr()
    o(f"    s_mov_b32 s{sT2}, 5")
    L("K2_SLOWL")
    for si in range(11):
        o(f"    buffer_load_dword v{TT+2*si}, v{vSa}, {sr(sWS,4)}, 0 offen offset:{si*256} sc1")
    o(f"    v_add_u32 v{vSa}, {8*2816}, v{vSa}")
    o("    s_waitcnt vmcnt(0)")
    commit_lds()
    o(f"    s_sub_u32 s{sT2}, s{sT2}, 1")
    o(f"    s_cmp_lg_u32 s{sT2}, 0")
    o("    s_cbranch_scc1 K2_SLOWL")

    L("K2_POSTG")
    stamp(6)
    if STAMP:
        o("    s_memtime s[100:101]")
        o("    s_waitcnt lgkmcnt(0)")
        o(f"    v_writelane_b32 v{STV}, s100, 13")
    t0, t1 = 226, 227
    vLane = 246
    o(f"    v_mbcnt_lo_u32_b32 v{vLane}, -1, 0")
    o(f"    v_mbcnt_hi_u32_b32 v{vLane}, -1, v{vLane}")
    o(f"    v_lshlrev_b32 v{t1}, 4, v{vLane}")
    o(f"    s_cmp_ge_u32 s{sWave}, 4")
    o("    s_cbranch_scc1 K2_NOWF")
    o(f"    s_mul_i32 s{sT}, s{sWave}, 10240")
    o(f"    s_add_u32 s{sT}, s{sT}, {WS_WF}")
    for f in range(10):
        if f == 4 or f == 8:
            o(f"    s_add_u32 s{sT}, s{sT}, 4096")
        o(f"    buffer_load_dwordx4 {vr(4*f,4)}, v{t1}, {sr(sWS,4)}, s{sT} offen offset:{(f%4)*1024}")
    L("K2_NOWF")
    vB_, vOt = 224, 225
    o(f"    v_and_b32 v{t0}, 15, v{vLane}")
    o(f"    v_lshrrev_b32 v{t1}, 4, v{vLane}")
    o(f"    v_mul_u32_u24 v{vB_}, {SDS}, v{t0}")
    o(f"    v_lshl_add_u32 v{vB_}, v{t1}, 4, v{vB_}")
    o(f"    v_add_u32 v{vB_}, {SD}, v{vB_}")
    o(f"    v_mul_u32_u24 v{vOt}, {OUT_STRIDE}, v{t0}")
    o(f"    v_lshl_add_u32 v{vOt}, v{t1}, 3, v{vOt}")
    o(f"    s_lshl_b32 s{sT}, s{sWave}, 5")
    o(f"    s_add_u32 s{sT}, s{sT}, {OUTT}")
    o(f"    v_add_u32 v{vOt}, s{sT}, v{vOt}")
    o("    s_waitcnt lgkmcnt(0)")
    o("    s_barrier")
    stamp(7)
    o(f"    s_cmp_ge_u32 s{sWave}, 4")
    o("    s_cbranch_scc1 K2_NOGEMM")
    seq = []
    for T in range(3):
        for blk in range(4):
            items = [(ks if blk == 0 else 4 + ks, blk * 256 + 64 * ks) for ks in range(4)]
            if blk:
                items += [(8 + ks, 1024 + 128 * (blk - 1) + 64 * ks) for ks in range(2)]
            for n_, (f, off) in enumerate(items):
                seq.append((T, blk, f, T * 16 * SDS + off, n_ == 0))
    BB = 64
    NB_ = 12
    DEPTH = 10
    DDs = [128, 144]
    G = 160
    def bread(i):
        if "g_nords" in EXP:
            return
        o(f"    ds_read_b128 {vr(BB+4*(i%NB_),4)}, v{vB_} offset:{seq[i][3]}")
    for i in range(DEPTH):
        bread(i)
    o(f"    v_mov_b32 v{G+16}, 0xbfb8aa3b           ; -log2(e)")
    o("    s_waitcnt vmcnt(0)")
    def finish(T):
        if "g_nofin" in EXP:
            return
        DD = DDs[T & 1]
        for r in range(4):
            o(f"    v_mul_f32 v{G+r}, v{G+16}, v{DD+r}")
        for r in range(4):
            o(f"    v_exp_f32 v{G+r}, v{G+r}")
        for r in range(4):
            o(f"    v_add_f32 v{G+r}, 1.0, v{G+r}")
        for r in range(4):
            o(f"    v_rcp_f32 v{G+r}, v{G+r}")
        Rr = 228 + 8 * T - (0 if T < 2 else 244 - 186)
        o(f"    v_cvt_pk_bf16_f32 v{Rr}, v{DD}, v{DD+1}")
        o(f"    v_cvt_pk_bf16_f32 v{Rr+1}, v{DD+2}, v{DD+3}")
        for blk in range(1, 4):
            for r in range(4):
                o(f"    v_mul_f32 v{DD+4*blk+r}, v{DD+4*blk+r}, v{G+r}")
            o(f"    v_cvt_pk_bf16_f32 v{Rr+2*blk}, v{DD+4*blk}, v{DD+4*blk+1}")
            o(f"    v_cvt_pk_bf16_f32 v{Rr+1+2*blk}, v{DD+4*blk+2}, v{DD+4*blk+3}")
    n = len(seq)
    pend_w = 0
    for i, (T, blk, f, off, first) in enumerate(seq):
        cnt = min(i + DEPTH, n) - 1 - i
        o(f"    s_waitcnt lgkmcnt({cnt})")
        d = vr(DDs[T & 1] + 4 * blk, 4)
        if "g_nmf" not in EXP:
            o(f"    v_mfma_f32_16x16x32_bf16 {d}, {vr(4*f,4)}, {vr(BB+4*(i%NB_),4)}, {'0' if first else d}")
        if i + DEPTH < n:
            bread(i + DEPTH)
        if i + 1 == n or seq[i + 1][0] != T:
            finish(T)
    for T in range(3):
        for blk in range(4):
            o(f"    ds_write_b64 v{vOt}, {vr(228 + 8 * T - (0 if T < 2 else 244 - 186) + 2*blk,2)} offset:{T*16*OUT_STRIDE + blk*128}")
    L("K2_NOGEMM")
    o(f"    s_lshl_b32 s{sT}, s{sWave}, 6")
    o(f"    v_add_u32 v4, s{sT}, v{vLane}            ; tid")
    o("    v_lshrrev_b32 v0, 5, v4")
    o("    v_and_b32 v1, 31, v4")
    o(f"    v_mul_u32_u24 v2, {OUT_STRIDE}, v0")
    o("    v_lshl_add_u32 v2, v1, 4, v2")
    if OUTT:
        o(f"    v_add_u32 v2, {OUTT}, v2")
    o("    v_lshlrev_b32 v3, 4, v4")
    o("    v_add_u32 v16, 8192, v3")
    o("    v_add_u32 v17, 16384, v3")
    o("    s_waitcnt lgkmcnt(0)")
    o("    s_barrier")
    stamp(8)
    for r in range(3):
        o(f"    ds_read_b128 {vr(4+4*r,4)}, v2 offset:{r*16*OUT_STRIDE}")
    for r in range(3):
        if r == 2:
            o(f"    s_cmp_ge_u32 s{sWave}, 4")
            o("    s_cbranch_scc1 K2_FIN")
        o(f"    s_waitcnt lgkmcnt({2-r})")
        o(f"    buffer_store_dwordx4 {vr(4+4*r,4)}, v{[3,16,17][r]}, {sr(sOUT,4)}, 0 offen {OUTST}")
    L("K2_FIN")
    if STAMP:
        o("    s_waitcnt vmcnt(0)")
    stamp(9)
    stamp_dump(sWS, sWS + 1, sWave, 8, 65 << 20)
    L("K2_END")
    o("    s_endpgm")
    L("CODE_END")

gen_k1()
gen_k2()

o('.section .rodata,"a"')
def kd(name, vgpr, sgpr):
    o(".p2align 6")
    o(f".amdhsa_kernel {name}")
    o(f"  .amdhsa_next_free_vgpr {vgpr}")
    o(f"  .amdhsa_next_free_sgpr {sgpr}")
    o(f"  .amdhsa_accum_offset {(vgpr+3)//4*4}")
    o("  .amdhsa_group_segment_fixed_size 0")
    o("  .amdhsa_kernarg_size 96")
    o("  .amdhsa_user_sgpr_count 2")
    o("  .amdhsa_user_sgpr_kernarg_segment_ptr 1")
    o("  .amdhsa_system_sgpr_workgroup_id_x 1")
    o("  .amdhsa_float_denorm_mode_32 3")
    o(".end_amdhsa_kernel")
kd("tp_part_kernel", 80, 102 if STAMP else 72)
kd("tp_main_kernel", 256, 102 if STAMP else 90)

open(OUTFILE, "w").write("\n".join(lines) + "\n")
print("wrote", OUTFILE, len(lines), "lines; K2 LDS", K2_LDS)
```

```python
import sys, os

P = 1
OUTFILE = sys.argv[1] if len(sys.argv) > 1 else "standalone__tensor_product_equiv_equiformer__graph.s"
STAMP = int(os.environ.get("STAMP", "0"))
K1ST = os.environ.get("K1ST", "sc1")
K1LD2 = os.environ.get("K1LD2", "")
OUTST = os.environ.get("OUTST", "sc1")
K1LD = os.environ.get("K1LD", "nt")
EXP = os.environ.get("EXP", "")
K1SPL = int(os.environ.get("K1SPL", "1"))
TLBW = int(os.environ.get("TLBW", "0"))
K1ORD = int(os.environ.get("K1ORD", "2"))
T2E = int(os.environ.get("T2E", "0"))
ZZ = int(os.environ.get("ZZ", "1"))
K1MAP = int(os.environ.get("K1MAP", "0"))
PK = 0
WFE = int(os.environ.get("WFE", "0"))
EEX = int(os.environ.get("EEX", "1"))
RP = [int(t) for t in os.environ.get("RP", "").split(",") if t]
RMASK = int(os.environ.get("RMASK", "1"))
WLDS = int(os.environ.get("WLDS", "1"))
XEND = os.environ.get("XEND", "")
NEARLY = int(os.environ.get("NEARLY", "4"))
K1PF = int(os.environ.get("K1PF", "0"))
PF0 = int(os.environ.get("PF0", "1"))
PFPOS = os.environ.get("PFPOS", "d")
PFI = int(os.environ.get("PFI", "5"))
PFL = int(os.environ.get("PFL", "32"))
IDXN = int(os.environ.get("IDXN", "0"))
IDXN2 = int(os.environ.get("IDXN2", "3"))
CPF = int(os.environ.get("CPF", "3"))
VW = int(os.environ.get("VW", "48"))
PRIO = [int(t) for t in os.environ.get("PRIO", "2,3,4").split(",") if t]
XPF = int(os.environ.get("XPF", "0"))

N = 10000
E = 640000
NWG = 256
CH = 2500
BINM = 1677
PHM = (P << 23) // 10000
WS_REC = 0
WS_KEY = 10240000
WS_TAB = 10880000
WS_T2 = WS_TAB + 256 * 1024
WS_WF = WS_T2 + 256 * 8192
WS_WR = WS_WF + 40 * 1024
WS_S32 = WS_WR + 5 * 1024
WS_END = WS_S32 + 256 * 40 * 2816

lines = []
def o(s=""):
    lines.append(s)
def L(s):
    lines.append(s + ":")
def vr(a, n):
    return f"v[{a}:{a+n-1}]"
def sr(a, n):
    return f"s[{a}:{a+n-1}]"
def srd(d, lo, hi, nbytes):
    o(f"    s_mov_b32 s{d}, s{lo}")
    o(f"    s_and_b32 s{d+1}, s{hi}, 0xffff")
    o(f"    s_mov_b32 s{d+2}, {nbytes}")
    o(f"    s_mov_b32 s{d+3}, 0x00020000")

STV = 142
def stamp(i, vreg=STV):
    if STAMP:
        o("    s_memrealtime s[100:101]")
        o("    s_waitcnt lgkmcnt(0)")
        o(f"    v_writelane_b32 v{vreg}, s100, {i}")
def stamp_dump(wsl, wsh, wave_sgpr, nwaves, base, vreg=STV):
    if not STAMP:
        return
    o("    s_waitcnt lgkmcnt(0) vmcnt(0)")
    o("    s_mov_b64 exec, 0xffff")
    o(f"    s_mul_i32 s4, s2, {nwaves}")
    o(f"    s_add_u32 s4, s4, s{wave_sgpr}")
    o("    s_lshl_b32 s4, s4, 6")
    o(f"    s_add_u32 s4, s4, {base}")
    o(f"    s_mov_b32 s8, s{wsl}")
    o(f"    s_and_b32 s9, s{wsh}, 0xffff")
    o("    s_mov_b32 s10, 0x8000000")
    o("    s_mov_b32 s11, 0x00020000")
    o("    v_mbcnt_lo_u32_b32 v0, -1, 0")
    o("    v_lshl_add_u32 v0, v0, 2, s4")
    o(f"    buffer_store_dword v{vreg}, v0, s[8:11], 0 offen")
    o("    s_waitcnt vmcnt(0)")

K1_CNT = 0
K1_START = 1024
K1_KEY = 2048
K1_T2 = 4608
K1_REC = K1_T2 + 8192
K1_LDS = K1_REC + 40960

SLOTCAP = 3072
RAW = 0
RING = RAW + SLOTCAP * 16
RBLK = 1152
MASK = RING + 8 * 3 * RBLK
CNT = MASK + 1024
BASE = CNT + 512
MISC = BASE + 512
SD = MISC + 64
SDS = 1440
K2_LDS = SD + 48 * SDS
WST = SD + 40 * SDS
OUTT = RAW
OUT_STRIDE = 528
assert K2_LDS <= 163840, K2_LDS
assert SD % 16 == 0

o(f"; @launch kernel=tp_part_kernel grid=({NWG},1,1) block=(704,1,1) lds={K1_LDS}")
o(f"; @launch kernel=tp_main_kernel grid=({NWG},1,1) block=(512,1,1) lds={K2_LDS}")
o('.amdgcn_target "amdgcn-amd-amdhsa--gfx950"')
o(".text")

def gen_k1():
    SV = 79
    o(".globl tp_part_kernel")
    o(".p2align 8")
    o(".type tp_part_kernel,@function")
    L("tp_part_kernel")
    o(f"    s_cmp_ge_u32 s2, {NWG}")
    o("    s_cbranch_scc1 K1_END")
    if K1MAP:
        o("    s_and_b32 s3, s2, 7")
        o("    s_lshl_b32 s3, s3, 5")
        o("    s_lshr_b32 s2, s2, 3")
        o("    s_add_u32 s2, s2, s3")
    stamp(0, SV)
    o("    s_load_dwordx4 s[4:7], s[0:1], 8")
    o("    s_load_dwordx4 s[8:11], s[0:1], 24")
    o("    s_load_dwordx2 s[16:17], s[0:1], 88   ; ws")
    o("    s_load_dwordx2 s[64:65], s[0:1], 0    ; x")
    def code_pf():
        o("    s_cmp_lg_u32 s50, 8")
        o("    s_cbranch_scc1 K1_NOCPF")
        o("    s_getpc_b64 s[66:67]")
        L("K1_PC")
        o("    v_and_b32 v78, 3, v0")
        o("    s_lshr_b32 s68, s2, 3")
        o("    s_lshl_b32 s68, s68, 9")
        o("    v_lshl_add_u32 v78, v78, 7, s68")
        o(f"    v_min_u32 v77, CODE_END-K1_PC-4, v78")
        o("    s_mov_b64 exec, 15")
        o(f"    global_load_dword v76, v77, s[66:67]")
        o("    s_mov_b64 exec, -1")
        L("K1_NOCPF")
    def xtouch():
        o("    s_cmp_ge_u32 s50, 3")
        o("    s_cbranch_scc1 K1_NOX")
        srd(68, 64, 65, N * 512)
        o("    s_mul_i32 s66, s2, 20000")
        o("    s_and_b32 s66, s66, 0xffffff80")
        o("    v_lshl_add_u32 v77, v0, 7, s66")
        o("    v_cmp_gt_u32 vcc, 158, v0")
        o("    s_and_b64 exec, exec, vcc")
        o("    buffer_load_dword v78, v77, s[68:71], 0 offen")
        o("    s_mov_b64 exec, -1")
        L("K1_NOX")
    D, S, EA, RA, RB = 4, 8, 12, 20, 24
    BN, RK, ST = 28, 32, 36
    T = 40
    WFR = 48
    C = 56
    o("    v_lshrrev_b32 v70, 6, v0")
    o("    v_lshlrev_b32 v1, 2, v0               ; tid*4")
    o("    v_readfirstlane_b32 s50, v70")
    o(f"    s_mul_i32 s3, s2, {CH}")
    o("    v_add_u32 v2, s3, v1")
    o("    v_lshlrev_b32 v3, 2, v2")
    o(f"    v_lshlrev_b32 v{T}, 3, v2")
    o(f"    v_mul_u32_u24 v{T+1}, 6, v2")
    o("    s_cmp_eq_u32 s50, 10")
    o("    s_cbranch_scc1 K1_AUX")
    o("    s_waitcnt lgkmcnt(0)")
    stamp(1, SV)
    srd(20, 10, 11, E * 4)
    o(f"    buffer_load_dwordx4 {vr(D,4)}, v3, s[20:23], 0 offen {K1LD}")
    srd(24, 8, 9, E * 4)
    srd(28, 6, 7, E * 8)
    srd(32, 4, 5, E * 6)
    def payload1():
        o(f"    buffer_load_dwordx4 {vr(S,4)}, v3, s[24:27], 0 offen {K1LD}")
        o(f"    buffer_load_dwordx3 {vr(RA,3)}, v{T+1}, s[32:35], 0 offen {K1LD2}")
        o(f"    buffer_load_dwordx3 {vr(RB,3)}, v{T+1}, s[32:35], 0 offen offset:12 {K1LD2}")
    def payload2():
        o(f"    buffer_load_dwordx4 {vr(EA,4)}, v{T}, s[28:31], 0 offen {K1LD2}")
        o(f"    buffer_load_dwordx4 {vr(EA+4,4)}, v{T}, s[28:31], 0 offen offset:16 {K1LD2}")
    o("    v_lshlrev_b32 v71, 4, v0              ; tid*16")
    o("    v_and_b32 v70, 63, v0")
    o("    v_lshlrev_b32 v70, 4, v70             ; lane*16")
    o("    s_cmp_lt_u32 s50, 8")
    o("    s_cselect_b32 s51, -1, 0")
    for i in range(4):
        o(f"    v_mov_b32 v{60+i}, s51")
    o("    s_cbranch_scc0 K1_INIT2")
    o(f"    ds_write_b128 v71, v[60:63] offset:{K1_T2}")
    o("    s_branch K1_INIT3")
    L("K1_INIT2")
    o(f"    ds_write_b128 v70, v[60:63] offset:{K1_CNT}")
    L("K1_INIT3")
    o(f"    s_mul_i32 s36, s2, {CH*16}")
    o("    s_add_u32 s36, s16, s36")
    o("    s_addc_u32 s37, s17, 0")
    o("    s_and_b32 s37, s37, 0xffff")
    o(f"    s_mov_b32 s38, {CH*16}")
    o("    s_mov_b32 s39, 0x00020000")
    o(f"    s_add_u32 s40, s3, {WS_KEY}")
    o("    s_add_u32 s40, s16, s40")
    o("    s_addc_u32 s41, s17, 0")
    o("    s_and_b32 s41, s41, 0xffff")
    o(f"    s_mov_b32 s42, {CH}")
    o("    s_mov_b32 s43, 0x00020000")
    srd(44, 16, 17, WS_END)
    o("    s_mov_b32 s62, 0x05040100")
    o("    s_mov_b32 s63, 0x05040302")
    for r in range(1, 4):
        o(f"    v_add_u32 v{71+r}, {r*10240}, v71")
    o("    s_waitcnt lgkmcnt(0)")
    o("    s_barrier")
    payload1()
    if K1ORD == 1:
        payload2()
    if CPF == 1:
        code_pf()
    o(f"    v_cmp_gt_u32 vcc, {CH//4}, v0")
    o("    s_mov_b64 s[60:61], vcc")
    o("    s_mov_b64 exec, vcc")
    o("    v_mov_b32 v2, 1")
    o(f"    s_waitcnt vmcnt({5 if K1ORD == 1 else 3})")
    stamp(2, SV)
    for j in range(4):
        o(f"    v_mul_u32_u24 v{D+j}, {BINM}, v{D+j}")
    for j in range(4):
        o(f"    v_lshrrev_b32 v{BN+j}, 14, v{D+j}")
    for j in range(4):
        o(f"    v_and_b32 v{BN+j}, 0x3fc, v{BN+j}")
    for j in range(4):
        o(f"    ds_add_rtn_u32 v{RK+j}, v{BN+j}, v2 offset:{K1_CNT}")
    o("    s_mov_b64 exec, -1")
    if K1ORD == 3:
        payload2()
    o("    s_waitcnt lgkmcnt(0)")
    o("    s_barrier")
    stamp(3, SV)
    o(f"    ds_read_b128 {vr(C,4)}, v70 offset:{K1_CNT}")
    if K1ORD == 2:
        payload2()
    for j in range(4):
        o(f"    v_and_b32 v{D+j}, 0xffff, v{D+j}")
        o(f"    v_mul_u32_u24 v{D+j}, 40018, v{D+j}")
        o(f"    v_bfe_u32 v{ST+j}, v{D+j}, 26, 3       ; local&7")
        o(f"    v_lshrrev_b32 v{D+j}, 29, v{D+j}       ; local>>3")
        if ZZ > 1:
            o(f"    v_and_b32 v{44+j}, 1, v{D+j}             ; k&1")
            o(f"    v_mul_u32_u24 v{D+j}, {ZZ}, v{D+j}")
        o(f"    v_lshl_add_u32 v{D+j}, v{ST+j}, 4, v{D+j}")
    o("    s_waitcnt lgkmcnt(0)")
    o(f"    v_add_u32 v64, v{C}, v{C+1}")
    o(f"    v_add_u32 v65, v64, v{C+2}")
    o(f"    v_add_u32 v66, v65, v{C+3}")
    o("    v_mov_b32 v67, v66")
    o(f"    v_max3_u32 v68, v{C}, v{C+1}, v{C+2}")
    o(f"    v_max_u32 v68, v68, v{C+3}")
    o("    v_cmp_lt_u32 vcc, 30, v68")
    o("    s_mov_b64 s[54:55], vcc")
    fill = []
    for j in range(4):
        fill.append(f"    v_min_u32 v{WFR+j}, 29, v{RK+j}")
        fill.append(f"    v_lshlrev_b32 v{WFR+j}, 1, v{WFR+j}")
        fill.append(f"    v_subrev_u32 v{WFR+4+j}, 29, v{WFR+j}")
        fill.append(f"    v_min_u32 v{WFR+j}, v{WFR+j}, v{WFR+4+j}")
    def two():
        o(fill.pop(0)); o(fill.pop(0))
    two()
    for sh in (1, 2, 4, 8):
        o(f"    v_add_u32_dpp v67, v67, v67 row_shr:{sh} row_mask:0xf bank_mask:0xf bound_ctrl:0")
        two()
    o("    v_add_u32_dpp v67, v67, v67 row_bcast:15 row_mask:0xa bank_mask:0xf")
    two()
    o("    v_add_u32_dpp v67, v67, v67 row_bcast:31 row_mask:0xc bank_mask:0xf")
    o("    v_sub_u32 v60, v67, v66")
    o(f"    v_add_u32 v61, v60, v{C}")
    o("    v_add_u32 v62, v60, v64")
    o("    v_add_u32 v63, v60, v65")
    o(f"    ds_write_b128 v70, v[60:63] offset:{K1_START}")
    for j in range(4):
        o(f"    ds_read_b32 v{ST+j}, v{BN+j} offset:{K1_START}")
    while fill:
        o(fill.pop(0))
    for j in range(4):
        o(f"    v_lshl_add_u32 v{WFR+j}, v{BN+j}, 3, v{WFR+j}")
    o("    s_cmp_lt_u32 s50, 8")
    o("    s_cbranch_scc1 K1_NOTAB")
    o("    v_lshlrev_b32 v68, 3, v70")
    for j in range(4):
        o(f"    v_cmp_lt_u32 vcc, 30, v{C+j}")
        o(f"    v_or_b32 v69, 0x8000, v{60+j}")
        o(f"    v_lshl_or_b32 v{C+j}, v{C+j}, 16, v{60+j}")
        o(f"    v_cndmask_b32 v69, v{60+j}, v69, vcc")
        o(f"    ds_write_b16 v68, v69 offset:{K1_T2 + 32*j + 30}")
    L("K1_NOTAB")
    o("    s_mov_b64 exec, s[60:61]")
    if P > 1:
        o("    s_waitcnt vmcnt(4)")
        for j in range(4):
            o(f"    v_mul_u32_u24 v{WFR+4+j}, {PHM}, v{S+j}")
            o(f"    v_lshrrev_b32 v{WFR+4+j}, 23, v{WFR+4+j}")
            o(f"    v_mad_u32_u24 v{D+j}, v{WFR+4+j}, 5, v{D+j}")
    if ZZ > 1:
        o("    s_waitcnt vmcnt(4)")
        for j in range(4):
            o(f"    v_mul_u32_u24 v{WFR+4+j}, {(ZZ << 23) // 10000}, v{S+j}")
            o(f"    v_lshrrev_b32 v{WFR+4+j}, 23, v{WFR+4+j}     ; sub")
            o(f"    v_sub_u32 v64, {ZZ-1}, v{WFR+4+j}")
            o(f"    v_sub_u32 v64, v64, v{WFR+4+j}")
            o(f"    v_mad_i32_i24 v64, v64, v{44+j}, v{WFR+4+j}")
            o(f"    v_add_u32 v{D+j}, v{D+j}, v64")
    for j in range(4):
        o(f"    ds_write_b8 v{WFR+j}, v{D+j} offset:{K1_T2}")
    o("    s_waitcnt lgkmcnt(4)")
    for j in range(4):
        o(f"    v_add_u32 v{ST+j}, v{ST+j}, v{RK+j}     ; pos")
    o("    s_cmp_eq_u64 s[54:55], 0")
    o("    s_cbranch_scc1 K1_NOKEY")
    for j in range(4):
        o(f"    ds_write_b8 v{ST+j}, v{D+j} offset:{K1_KEY}")
    L("K1_NOKEY")
    for j in range(4):
        o(f"    v_lshlrev_b32 v{RK+j}, 4, v{ST+j}")
        o(f"    v_add_u32 v{RK+j}, {K1_REC}, v{RK+j}")
    TY = 44
    def t2_out(wait):
        o("    s_cmp_lt_u32 s50, 8")
        o("    s_cbranch_scc0 K1_NT2")
        o("    s_lshl_b32 s52, s2, 13")
        o(f"    s_add_u32 s52, s52, {WS_T2}")
        o(f"    s_waitcnt lgkmcnt({wait})")
        o(f"    buffer_store_dwordx4 v[60:63], v71, s[44:47], s52 offen {K1ST}")
        o("    s_branch K1_NT1")
        L("K1_NT2")
        o("    s_lshl_b32 s52, s2, 10")
        o(f"    s_add_u32 s52, s52, {WS_TAB}")
        o(f"    buffer_store_dwordx4 {vr(C,4)}, v70, s[44:47], s52 offen {K1ST}")
        L("K1_NT1")
    if T2E:
        o("    s_mov_b64 exec, -1")
        o("    s_waitcnt lgkmcnt(0)")
        o("    s_barrier")
        o(f"    ds_read_b128 v[60:63], v71 offset:{K1_T2}")
        t2_out(0)
        o("    s_mov_b64 exec, s[60:61]")
    o(f"    s_waitcnt vmcnt({2+T2E})")
    o(f"    v_alignbit_b32 v{TY}, v{RA+2}, v{RA+1}, 16")
    o(f"    v_perm_b32 v{TY+1}, v{S+1}, v{RA+2}, s63")
    o(f"    v_perm_b32 v{RA+1}, v{S}, v{RA+1}, s62")
    o(f"    v_alignbit_b32 v{TY+2}, v{RB+2}, v{RB+1}, 16")
    o(f"    v_perm_b32 v{TY+3}, v{S+3}, v{RB+2}, s63")
    o(f"    v_perm_b32 v{RB+1}, v{S+2}, v{RB+1}, s62")
    yp = [RA, TY, RB, TY + 2]
    if K1SPL:
        for j in range(4):
            o(f"    ds_write_b64 v{RK+j}, {vr(yp[j],2)} offset:8")
    o(f"    s_waitcnt vmcnt({1+T2E})")
    for j in range(4):
        if j == 2:
            o(f"    s_waitcnt vmcnt({T2E})")
            stamp(4, SV)
        if K1SPL:
            o(f"    ds_write_b64 v{RK+j}, {vr(EA+2*j,2)}")
        else:
            o(f"    ds_write2_b64 v{RK+j}, {vr(EA+2*j,2)}, {vr(yp[j],2)} offset0:0 offset1:1")
    o("    s_mov_b64 exec, -1")
    if CPF == 2:
        code_pf()
    o("    s_waitcnt lgkmcnt(0)")
    o("    s_barrier")
    stamp(5, SV)
    if XEND == "mid":
        xtouch()
    for r in range(4):
        o(f"    ds_read_b128 {vr(4+4*r,4)}, v71 offset:{K1_REC + r*10240}")
    if not T2E:
        o(f"    ds_read_b128 v[60:63], v71 offset:{K1_T2}")
    o(f"    ds_read_b32 v20, v1 offset:{K1_KEY}")
    for r in range(4):
        o(f"    s_waitcnt lgkmcnt({5-T2E-r})")
        o(f"    buffer_store_dwordx4 {vr(4+4*r,4)}, v{71+r}, s[36:39], 0 offen {K1ST}")
    if not T2E:
        t2_out(1)
    o("    s_cmp_eq_u64 s[54:55], 0")
    o("    s_cbranch_scc1 K1_NOKEY2")
    o("    s_waitcnt lgkmcnt(0)")
    o("    buffer_store_dword v20, v1, s[40:43], 0 offen")
    L("K1_NOKEY2")
    if XEND == "end":
        xtouch()
    stamp(6, SV)
    if STAMP:
        o("    s_waitcnt vmcnt(0)")
    stamp(7, SV)
    stamp_dump(16, 17, 50, 10, 64 << 20, SV)
    L("K1_END")
    o("    s_endpgm")
    L("K1_AUX")
    if "auxoff" in EXP:
        o("    s_endpgm")
    o("    s_load_dwordx2 s[18:19], s[0:1], 40   ; w_rad")
    o("    s_load_dwordx4 s[12:15], s[0:1], 48")
    o("    v_and_b32 v0, 63, v0")
    o("    s_barrier")
    o("    s_waitcnt lgkmcnt(0)")
    if CPF == 3:
        o("    s_getpc_b64 s[66:67]")
        L("K1_PC")
        o("    s_lshr_b32 s68, s2, 3")
        o("    s_lshl_b32 s68, s68, 9")
        o("    s_min_u32 s68, s68, CODE_END-K1_PC-452")
        for i in range(8):
            o(f"    s_load_dword s{32+i}, s[66:67], s68")
            o("    s_add_u32 s68, s68, 64")
    if TLBW & 1:
        o("    s_load_dword s29, s[18:19], 0")
        o("    s_load_dword s30, s[12:13], 0")
        o("    s_load_dword s31, s[14:15], 0")
    o("    s_barrier")
    o("    s_cmp_ge_u32 s2, 45")
    o("    s_cbranch_scc1 K1_END")
    srd(44, 16, 17, WS_END)
    o("    s_cmp_ge_u32 s2, 40")
    o("    s_cbranch_scc1 K1_AUXR")
    o("    s_mul_i32 s51, s2, 26")
    o("    s_lshr_b32 s51, s51, 8                ; t")
    o("    s_mul_i32 s52, s51, 10")
    o("    s_sub_u32 s52, s2, s52                ; q")
    o("    s_cmp_lt_u32 s52, 4")
    o("    s_cselect_b32 s56, s12, s14")
    o("    s_cselect_b32 s57, s13, s15")
    o("    s_movk_i32 s58, 16384")
    o("    s_cselect_b32 s58, s58, 24576")
    o("    s_and_b32 s57, s57, 0xffff")
    o("    s_mov_b32 s59, 0x00020000")
    o("    v_lshrrev_b32 v70, 4, v0              ; g'")
    o("    v_and_b32 v71, 15, v0")
    o("    v_lshlrev_b32 v71, 1, v71")
    o("    s_lshl_b32 s53, s51, 5")
    o("    v_add_u32 v71, s53, v71               ; (16t+m)*2")
    o("    s_cmp_ge_u32 s52, 8")
    o("    s_cbranch_scc1 K1_FRAGX")
    o("    s_and_b32 s53, s52, 1")
    o("    s_lshl_b32 s53, s53, 5")
    o("    s_bfe_u32 s55, s52, 0x10001           ; (q>>1)&1")
    o("    s_add_u32 s53, s53, s55")
    o("    s_lshl_b32 s53, s53, 7")
    o("    v_lshl_add_u32 v71, v70, 10, v71")
    o("    v_add_u32 v71, s53, v71")
    o("    v_add_u32 v72, 8192, v71")
    for i in range(8):
        o(f"    buffer_load_ushort v{WFR+i}, v{71+(i&1)}, s[56:59], 0 offen offset:{(i>>1)*256}")
    o("    s_branch K1_FRAGW")
    L("K1_FRAGX")
    o("    s_and_b32 s53, s52, 1")
    o("    s_add_u32 s53, s53, 128")
    o("    s_lshl_b32 s53, s53, 7")
    o("    v_lshl_add_u32 v71, v70, 11, v71")
    o("    v_add_u32 v71, s53, v71")
    for i in range(8):
        o(f"    buffer_load_ushort v{WFR+i}, v71, s[56:59], 0 offen offset:{i*256}")
    L("K1_FRAGW")
    for _ in range(1 + T2E):
        o("    s_barrier")
    o("    s_waitcnt vmcnt(0)")
    for p in range(4):
        o(f"    v_lshl_or_b32 v{WFR+p}, v{WFR+2*p+1}, 16, v{WFR+2*p}")
    o("    s_branch K1_AUXS")
    L("K1_AUXR")
    srd(56, 18, 19, 2560)
    o("    v_and_b32 v70, 31, v0")
    o("    v_lshrrev_b32 v71, 5, v0")
    o("    v_lshlrev_b32 v70, 2, v70")
    o("    v_lshl_add_u32 v70, v71, 1, v70")
    o("    s_sub_u32 s52, s2, 40")
    o("    s_lshl_b32 s52, s52, 7")
    o("    v_add_u32 v70, s52, v70")
    for d in range(4):
        o(f"    buffer_load_ushort v{WFR+d}, v70, s[56:59], 0 offen offset:{d*640}")
    for _ in range(1 + T2E):
        o("    s_barrier")
    o("    s_waitcnt vmcnt(0)")
    for d in range(4):
        o(f"    v_lshlrev_b32 v{WFR+d}, 16, v{WFR+d}")
    L("K1_AUXS")
    o("    s_lshl_b32 s52, s2, 10")
    o(f"    s_add_u32 s52, s52, {WS_WF}")
    o("    v_lshlrev_b32 v70, 4, v0")
    o(f"    buffer_store_dwordx4 {vr(WFR,4)}, v70, s[44:47], s52 offen {K1ST}")
    o("    s_endpgm")

def gen_k2():
    B, ACC, S, W = 0, 64, 128, 184
    A = [204, 208]
    VO = [212, 220]
    LT, AM1, AM2 = 228, 232, 236
    RR = 240
    ZR = 244
    vA, vV, vRaw, vCw, vVw, vN4, vMask, vEnds, vPar, vIdx = range(246, 256)
    vLane = 125
    TT = 128
    vD4, vD2, vSa = 139, 140, 141
    TC = AM1
    WF = 144
    sX, sWS, sOUT, sWR = 12, 16, 20, 24
    sBin, sNN, sWave, sMode, sJlo, sMax = 28, 29, 30, 31, 32, 33
    sNs, sGen, sCnt, sSeg, sK, sLo, sHi, sRel, sRet, sRem = range(34, 44)
    sD0, sD1, sD2 = 44, 45, 46
    sEnd, sNext = 54, 55
    sWFl = 88
    sLeft, sPT = 89, 90
    sFast = 38
    sT, sT2, sT3 = 47, 48, 49
    sSave = 50
    sAny2 = 52
    sM1 = 56
    sM2 = 72
    sLM = 24
    sOv = 26

    def accr(v, u, d):
        cc = 2 * (d >> 1) + (u >> 1)
        e = 2 * (u & 1) + (d & 1)
        return ACC + 16 * v + 4 * cc + e
    def wreg(p, d):
        return W + 4 * p + d

    o(".globl tp_main_kernel")
    o(f".p2align {os.environ.get('K2AL', '8')}")
    o(".type tp_main_kernel,@function")
    L("tp_main_kernel")
    o(f"    s_cmp_ge_u32 s2, {NWG}")
    o("    s_cbranch_scc1 K2_END")
    stamp(0)
    o("    s_load_dwordx2 s[4:5], s[0:1], 0      ; x")
    o("    s_load_dwordx2 s[8:9], s[0:1], 72     ; out")
    o("    s_load_dwordx2 s[10:11], s[0:1], 88   ; ws")
    o("    v_lshrrev_b32 v1, 6, v0")
    o(f"    v_and_b32 v{vLane}, 63, v0")
    o(f"    v_readfirstlane_b32 s{sWave}, v1")
    o(f"    s_and_b32 s{sBin}, s2, 7")
    o(f"    s_lshl_b32 s{sBin}, s{sBin}, 5")
    o(f"    s_lshr_b32 s{sT}, s2, 3")
    o(f"    s_add_u32 s{sBin}, s{sBin}, s{sT}")
    HD, KY, RK1, RK2, AD1, AD2, RO, TM = 64, 72, 80, 88, 96, 104, 112, 120
    vW0, vJ = 126, 127

    def prefetch0():
        o(f"    s_lshr_b32 s{sT}, s2, 3")
        o(f"    s_lshl_b32 s{sT}, s{sT}, 3")
        o(f"    s_add_u32 s{sT}, s{sT}, s{sWave}")
        o(f"    s_lshl_b32 s{sT}, s{sT}, 13")
        o(f"    v_lshl_add_u32 v143, v{vLane}, 7, s{sT}")
        if PFL < 64:
            o(f"    s_mov_b64 exec, {hex((1 << PFL) - 1)}")
        for i in range(PF0):
            o(f"    buffer_load_dword v143, v143, {sr(sX,4)}, 0 offen")
            if i + 1 < PF0:
                o(f"    v_add_u32 v143, {256*8192}, v143")
    def w_loads():
        if WLDS:
            return
        o(f"    s_mov_b32 s{sT}, {WS_WR}")
        for p in range(5):
            if p == 4:
                o(f"    s_add_u32 s{sT}, s{sT}, 4096")
            o(f"    buffer_load_dwordx4 {vr(W+4*p,4)}, v{TM+1}, {sr(sWS,4)}, s{sT} offen offset:{(p%4)*1024}")
    def dump_addr():
        o(f"    s_mul_i32 s{sT}, s{sWave}, {SDS}")
        o(f"    s_add_u32 s{sT}, s{sT}, {SD}")
        o(f"    v_lshl_add_u32 v{vD4}, v{vLane}, 2, s{sT}")
        o(f"    s_add_u32 s{sT}, s{sT}, 1024")
        o(f"    v_lshl_add_u32 v{vD2}, v{vLane}, 1, s{sT}")
        o(f"    s_mul_i32 s{sT}, s{sBin}, 40")
        o(f"    s_add_u32 s{sT}, s{sT}, s{sWave}")
        o(f"    s_mul_i32 s{sT}, s{sT}, 2816")
        o(f"    s_add_u32 s{sT}, s{sT}, {WS_S32}")
        o(f"    v_lshl_add_u32 v{vSa}, v{vLane}, 2, s{sT}")
    def wf_loads(tmp):
        o(f"    v_mbcnt_lo_u32_b32 v{tmp}, -1, 0")
        o(f"    v_mbcnt_hi_u32_b32 v{tmp}, -1, v{tmp}")
        o(f"    s_mul_i32 s{sT}, s{sWave}, 10240")
        o(f"    v_lshlrev_b32 v{tmp}, 4, v{tmp}")
        o(f"    s_add_u32 s{sT}, s{sT}, {WS_WF}")
        for f in range(10):
            if f == 4 or f == 8:
                o(f"    s_add_u32 s{sT}, s{sT}, 4096")
            o(f"    buffer_load_dwordx4 {vr(WF+4*f,4)}, v{tmp}, {sr(sWS,4)}, s{sT} offen offset:{(f%4)*1024}")
        o(f"    s_mov_b32 s{sWFl}, 1")
    def lane_id():
        o(f"    v_mbcnt_lo_u32_b32 v{vLane}, -1, 0")
        o(f"    v_mbcnt_hi_u32_b32 v{vLane}, -1, v{vLane}")
    def lane_prep():
        o(f"    v_lshrrev_b32 v{vW0}, 4, v{vLane}")
        o(f"    s_lshl_b32 s{sT}, s{sWave}, 5")
        o(f"    v_add_u32 v{vW0}, s{sT}, v{vW0}")
        o(f"    v_and_b32 v{vJ}, 15, v{vLane}")
        o(f"    v_lshlrev_b32 v{TM}, 10, v{vW0}")
    def hdr_loads():
        o(f"    s_lshl_b32 s{sT}, s{sBin}, 2")
        o(f"    s_add_u32 s{sT}, s{sT}, {WS_TAB}")
        for i in range(8):
            o(f"    buffer_load_dword v{HD+i}, v{TM}, {sr(sWS,4)}, s{sT} offen")
            if i < 7:
                o(f"    s_add_u32 s{sT}, s{sT}, 4096")
    lane_prep()
    o(f"    v_lshlrev_b32 v{TM+1}, 13, v{vW0}")
    o(f"    v_lshl_add_u32 v{TM+1}, v{vJ}, 1, v{TM+1}")
    o(f"    s_lshl_b32 s{sT}, s{sBin}, 5")
    o(f"    s_add_u32 s{sT}, s{sT}, {WS_T2}")
    o("    s_waitcnt lgkmcnt(0)")
    stamp(1)
    srd(sWS, 10, 11, WS_END)
    for i in range(8):
        o(f"    buffer_load_ushort v{KY+i}, v{TM+1}, {sr(sWS,4)}, s{sT} offen")
        if i < 7:
            o(f"    s_add_u32 s{sT}, s{sT}, 32768")
    if WLDS:
        o(f"    v_lshlrev_b32 v{W+4}, 4, v0                 ; tid*16")
        o(f"    v_min_u32 v{W+4}, 5104, v{W+4}")
        o(f"    s_mov_b32 s{sT}, {WS_WR}")
        o(f"    buffer_load_dwordx4 {vr(W,4)}, v{W+4}, {sr(sWS,4)}, s{sT} offen")
    srd(sX, 4, 5, N * 512)
    o(f"    v_and_b32 v{TM+2}, 31, v{vLane}")
    o(f"    v_lshlrev_b32 v{vN4}, 2, v{TM+2}")
    o(f"    v_lshrrev_b32 v{TM+3}, 5, v{vLane}      ; g = l>>5")
    o(f"    s_lshl_b32 s{sT}, s{sBin}, 16")
    o(f"    s_add_u32 s{sT}, s{sT}, {BINM-1}")
    o(f"    s_mul_hi_u32 s{sT2}, s{sT}, 0x27144e     ; n0")
    o(f"    s_add_u32 s{sT}, s{sT}, 0x10000")
    o(f"    s_mul_hi_u32 s{sT}, s{sT}, 0x27144e")
    o(f"    s_min_u32 s{sT}, s{sT}, {N}")
    o(f"    s_sub_u32 s{sNN}, s{sT}, s{sT2}")
    o(f"    s_lshl_b32 s{sT}, s{sT2}, 9")
    o(f"    s_add_u32 s{sOUT}, s8, s{sT}")
    o(f"    s_addc_u32 s{sOUT+1}, s9, 0")
    o(f"    s_and_b32 s{sOUT+1}, s{sOUT+1}, 0xffff")
    o(f"    s_lshl_b32 s{sOUT+2}, s{sNN}, 9")
    o(f"    s_mov_b32 s{sOUT+3}, 0x00020000")
    o(f"    s_mov_b32 s{sMode}, 0")
    o(f"    s_mov_b32 s{sFast}, 0")
    o(f"    s_lshr_b32 s{sWFl}, s{sWave}, 2")
    o(f"    s_mov_b32 s{sJlo}, 0")
    o("    v_lshrrev_b32 v5, 3, v0               ; e")
    o("    v_and_b32 v6, 7, v0")
    o("    v_lshlrev_b32 v6, 1, v6               ; 8ha+2p")
    o("    v_sub_u32 v5, v5, v6                  ; e-(8ha+2p)")
    o("    v_med3_i32 v5, v5, 0, 2")
    o("    v_lshlrev_b32 v5, 4, v5")
    o("    v_mov_b32 v6, -1")
    o("    v_mov_b32 v7, 0")
    o("    v_lshlrev_b64 v[6:7], v5, v[6:7]")
    o("    v_cmp_gt_u32 vcc, 256, v0")
    o("    v_lshlrev_b32 v3, 2, v0")
    o(f"    v_add_u32 v3, {MASK}, v3")
    o("    v_cndmask_b32 v2, 0, v7, vcc")
    o("    ds_write_b32 v3, v2")
    o("    v_mov_b32 v2, 0")
    o(f"    v_mov_b32 v3, {MISC}")
    o("    ds_write2_b32 v3, v2, v2 offset0:0 offset1:1")
    o(f"    v_mov_b32 v{ZR}, 0")
    o(f"    v_mov_b32 v{ZR+1}, 0")
    o(f"    v_and_b32 v4, 1, v{vLane}")
    o(f"    v_sub_u32 v{vPar}, 0, v4")
    o(f"    v_bfe_u32 v4, v{vLane}, 2, 1")
    o(f"    v_mul_u32_u24 v{vIdx}, 0x5555, v4")
    o(f"    v_add_u32 v{vIdx}, 0x8888, v{vIdx}       ; 0x8888 / 0xdddd")
    o(f"    v_lshlrev_b32 v{vMask}, 4, v{TM+3}")
    o(f"    v_add_u32 v{vMask}, {MASK}, v{vMask}")
    o("    s_waitcnt lgkmcnt(0)")
    o(f"    s_movk_i32 s{sT}, {CH}")
    o(f"    v_mad_u32_u24 v{TM+2}, v{vW0}, s{sT}, v{vJ}   ; w0*2500 + j")
    o(f"    s_mov_b32 s{sLM}, 0x7fff7fff")
    o(f"    s_mov_b32 s{sLM+1}, 0x7fff7fff")
    o(f"    s_mov_b64 {sr(sOv,2)}, -1")
    o(f"    s_mov_b64 {sr(sAny2,2)}, 0")
    o(f"    v_mov_b32 v{TM+4}, {CNT}")
    o(f"    v_lshlrev_b32 v{TM+1}, 4, v{vLane}")
    o("    s_barrier")
    def rec_load(i):
        o(f"    s_mov_b32 s{sT}, {i*4*CH*16}")
        if RMASK:
            o(f"    s_or_b64 exec, {sr(sM1+2*i,2)}, 1")
        o(f"    buffer_load_dwordx4 {vr(4*i,4)}, v{RO+i}, {sr(sWS,4)}, s{sT} offen")
        if RMASK:
            o("    s_mov_b64 exec, -1")
    o(f"    v_mov_b32 v{TM}, 1")
    for i in range(8):
        o(f"    s_waitcnt vmcnt({7 - i + min(i, NEARLY) + WLDS})")
        if i == 0:
            stamp(2)
        o(f"    v_mov_b32_dpp v{RO+i}, v{KY+i} row_newbcast:15 row_mask:0xf bank_mask:0xf")
        o(f"    v_and_b32 v{AD1+i}, 0xff, v{KY+i}")
        o(f"    v_and_b32 v{RO+i}, 0xfff, v{RO+i}")
        o(f"    v_cmp_gt_u32 vcc, 0x80, v{AD1+i}")
        o(f"    v_add_lshl_u32 v{RO+i}, v{RO+i}, v{TM+2}, 4")
        o(f"    v_lshl_add_u32 v{AD1+i}, v{AD1+i}, 2, v{TM+4}")
        o(f"    s_and_b64 {sr(sM1+2*i,2)}, vcc, {sr(sLM,2)}")
        if i < NEARLY:
            rec_load(i)
        o(f"    v_cmp_gt_u32 vcc, 0x8000, v{KY+i}")
        o(f"    s_mov_b64 exec, {sr(sM1+2*i,2)}")
        o(f"    ds_add_rtn_u32 v{RK1+i}, v{AD1+i}, v{TM}")
        o("    s_mov_b64 exec, -1")
        o(f"    s_and_b64 {sr(sM2+2*i,2)}, vcc, {sr(sLM,2)}")
        o(f"    s_and_b64 {sr(sOv,2)}, {sr(sOv,2)}, vcc")
        o(f"    s_or_b64 {sr(sAny2,2)}, {sr(sAny2,2)}, {sr(sM2+2*i,2)}")
    o("    s_cbranch_scc0 K2_NO2B")
    o("    s_waitcnt lgkmcnt(4)")
    for i in range(8):
        o(f"    s_mov_b64 exec, {sr(sM2+2*i,2)}")
        o(f"    s_cbranch_execz K2_NK2{i}")
        o(f"    v_lshrrev_b32 v{AD2+i}, 8, v{KY+i}")
        o(f"    v_lshl_add_u32 v{AD2+i}, v{AD2+i}, 2, v{TM+4}")
        o(f"    ds_add_rtn_u32 v{RK2+i}, v{AD2+i}, v{TM}")
        L(f"K2_NK2{i}")
    o("    s_mov_b64 exec, -1")
    L("K2_NO2B")
    if WLDS:
        o(f"    v_add_u32 v{W+4}, {WST}, v{W+4}")
    o(f"    s_or_b64 {sr(sOv,2)}, {sr(sOv,2)}, {sr(sLM,2)}")
    o(f"    s_cmp_eq_u64 {sr(sOv,2)}, -1")
    o("    s_cbranch_scc1 K2_RANKD")
    o(f"    v_mov_b32 v{TM}, {MISC}")
    o(f"    ds_write_b32 v{TM}, v{TM}")
    L("K2_RANKD")
    c0, c1, i0, i1, tt0, tt1, e0, e1, p0, p1, a0, a1, b0, b1, ad, mx = range(204, 220)
    o(f"    v_lshlrev_b32 v{ad}, 2, v{vLane}")
    o(f"    v_add_u32 v{ad}, {CNT}, v{ad}")
    o(f"    v_mov_b32 v{mx}, {MISC}")
    o("    s_waitcnt lgkmcnt(0)")
    o("    s_barrier")
    stamp(3)
    o(f"    ds_read2st64_b32 v[{c0}:{c1}], v{ad} offset0:0 offset1:1")
    o(f"    ds_read_b32 v{mx}, v{mx}")
    o(f"    s_cmp_lg_u32 s{sMode}, 0")
    o("    s_cbranch_scc1 K2_NOLATE")
    for i in range(NEARLY, NEARLY + 2):
        rec_load(i)
    L("K2_NOLATE")
    o("    s_waitcnt lgkmcnt(0)")
    o(f"    v_mov_b32 v{i0}, v{c0}")
    o(f"    v_mov_b32 v{i1}, v{c1}")
    o(f"    v_readfirstlane_b32 s{sT3}, v{mx}")
    for sh in (1, 2, 4, 8):
        o(f"    v_add_u32_dpp v{i0}, v{i0}, v{i0} row_shr:{sh} row_mask:0xf bank_mask:0xf bound_ctrl:0")
        o(f"    v_add_u32_dpp v{i1}, v{i1}, v{i1} row_shr:{sh} row_mask:0xf bank_mask:0xf bound_ctrl:0")
        o("    s_nop 0")
    o(f"    v_mov_b32_dpp v{tt0}, v{i0} row_newbcast:15 row_mask:0xf bank_mask:0xf")
    o(f"    v_mov_b32_dpp v{tt1}, v{i1} row_newbcast:15 row_mask:0xf bank_mask:0xf")
    o(f"    v_add_u32 v{e0}, 15, v{tt0}")
    o(f"    v_add_u32 v{e1}, 15, v{tt1}")
    o(f"    v_and_b32 v{e0}, -16, v{e0}")
    o(f"    v_and_b32 v{e1}, -16, v{e1}")
    o(f"    v_mov_b32 v{p0}, v{e0}")
    o(f"    v_mov_b32 v{p1}, v{e1}")
    o(f"    v_add_u32_dpp v{e0}, v{e0}, v{e0} row_bcast:15 row_mask:0xa bank_mask:0xf")
    o(f"    v_add_u32_dpp v{e1}, v{e1}, v{e1} row_bcast:15 row_mask:0xa bank_mask:0xf")
    o("    s_nop 0")
    o(f"    v_add_u32_dpp v{e0}, v{e0}, v{e0} row_bcast:31 row_mask:0xc bank_mask:0xf")
    o(f"    v_add_u32_dpp v{e1}, v{e1}, v{e1} row_bcast:31 row_mask:0xc bank_mask:0xf")
    o("    s_nop 0")
    o(f"    v_readlane_b32 s{sT}, v{e0}, 63")
    o(f"    v_readlane_b32 s{sT2}, v{e1}, 63")
    o(f"    v_sub_u32 v{a0}, v{e0}, v{tt0}")
    o(f"    v_add_u32 v{e1}, s{sT}, v{e1}")
    o(f"    v_add_u32 v{a0}, v{a0}, v{i0}            ; absolute end slot of entry")
    o(f"    v_sub_u32 v{a1}, v{e1}, v{tt1}")
    o(f"    v_add_u32 v{a1}, v{a1}, v{i1}")
    o(f"    v_sub_u32 v{b0}, v{a0}, v{c0}")
    o(f"    v_sub_u32 v{b1}, v{a1}, v{c1}")
    o(f"    ds_write2st64_b32 v{ad}, v{b0}, v{b1} offset0:2 offset1:3")
    o(f"    s_add_u32 s{sT}, s{sT}, s{sT2}")
    o(f"    s_cmp_gt_u32 s{sT}, {SLOTCAP-96}")
    o(f"    s_cselect_b32 s{sT}, 1, 0")
    o(f"    s_cmp_lg_u32 s{sT3}, 0")
    o(f"    s_cselect_b32 s{sT}, 1, s{sT}")
    o(f"    s_cmp_gt_u32 s{sT}, s{sMode}")
    o("    s_cbranch_scc1 K2_GOSLOW")
    for i in range(8):
        o(f"    ds_read_b32 v{AD1+i}, v{AD1+i} offset:512")
    o(f"    s_cmp_lg_u32 s{sMode}, 0")
    o("    s_cbranch_scc1 K2_NO2C")
    for i in range(NEARLY + 2, 8):
        rec_load(i)
    w_loads()
    o(f"    s_cmp_eq_u64 {sr(sAny2,2)}, 0")
    o("    s_cbranch_scc1 K2_NO2C")
    o("    s_waitcnt lgkmcnt(4)")
    for i in range(8):
        o(f"    s_mov_b64 exec, {sr(sM2+2*i,2)}")
        o(f"    s_cbranch_execz K2_NR2{i}")
        o(f"    s_mov_b32 s{sT}, {i*4*CH*16}")
        o(f"    buffer_load_dwordx4 {vr(32+4*i,4)}, v{RO+i}, {sr(sWS,4)}, s{sT} offen offset:240")
        o(f"    ds_read_b32 v{AD2+i}, v{AD2+i} offset:512")
        L(f"K2_NR2{i}")
    o("    s_mov_b64 exec, -1")
    L("K2_NO2C")
    o(f"    s_cmp_lt_u32 s{sWave}, 4")
    o("    s_cselect_b64 vcc, -1, 0")
    o(f"    v_cndmask_b32 v{a0}, v{a1}, v{a0}, vcc")
    o(f"    v_cndmask_b32 v{e0}, v{e1}, v{e0}, vcc")
    o(f"    v_cndmask_b32 v{p0}, v{p1}, v{p0}, vcc")
    o(f"    v_cndmask_b32 v{tt0}, v{tt1}, v{tt0}, vcc")
    o(f"    s_and_b32 s{sSeg}, s{sWave}, 3")
    o(f"    s_lshl_b32 s{sSeg}, s{sSeg}, 4")
    o("    s_nop 0")
    o(f"    v_readlane_b32 s{sT}, v{e0}, s{sSeg}")
    o(f"    v_readlane_b32 s{sT2}, v{p0}, s{sSeg}")
    o(f"    v_readlane_b32 s{sT3}, v{tt0}, s{sSeg}")
    o(f"    v_and_b32 v{b0}, 15, v{vLane}")
    o(f"    v_cmp_le_u32 vcc, {5*ZZ}, v{b0}")
    o(f"    v_mov_b32 v{b0}, 0x7fffffff")
    o(f"    s_sub_u32 s{sT}, s{sT}, s{sT2}")
    o(f"    s_sub_u32 s{sLo}, s{sT2}, s{sT3}         ; pad")
    o(f"    s_lshr_b32 s{sNs}, s{sT2}, 4")
    o(f"    v_subrev_u32 v{vEnds}, s{sT}, v{a0}")
    o(f"    v_cndmask_b32 v{vEnds}, v{vEnds}, v{b0}, vcc")
    o(f"    v_lshrrev_b32 v{vRaw}, 1, v{vLane}")
    o(f"    v_add_u32 v{vRaw}, s{sT}, v{vRaw}")
    o(f"    v_lshlrev_b32 v{vRaw}, 4, v{vRaw}")
    if RAW:
        o(f"    v_add_u32 v{vRaw}, {RAW}, v{vRaw}")
    o(f"    s_mul_i32 s{sT}, s{sWave}, {3*RBLK}")
    o(f"    s_add_u32 s{sT}, s{sT}, {RING}")
    o(f"    s_add_u32 s{sT2}, s{sT}, 1024")
    o(f"    v_lshrrev_b32 v{b0}, 5, v{vLane}         ; ha / g")
    o(f"    v_bfe_u32 v{b1}, v{vLane}, 2, 2          ; rho")
    o(f"    v_lshl_add_u32 v{b1}, v{b0}, 3, v{b1}")
    o(f"    v_bfe_u32 v{c0}, v{vLane}, 1, 1")
    o(f"    v_bfe_u32 v{c1}, v{vLane}, 4, 1")
    o(f"    v_lshl_add_u32 v{c0}, v{c1}, 1, v{c0}")
    o(f"    v_lshl_add_u32 v{c0}, v{c0}, 3, s{sT}")
    o(f"    v_lshl_add_u32 v{vA}, v{b1}, 5, v{c0}")
    o(f"    v_lshl_add_u32 v{vV}, v{b0}, 4, s{sT2}")
    o(f"    v_lshl_add_u32 v{vCw}, v{vLane}, 4, s{sT}")
    o(f"    v_lshrrev_b32 v{b0}, 1, v{vLane}")
    o(f"    v_lshl_add_u32 v{vVw}, v{b0}, 2, s{sT2}")
    dump_addr()
    o("    s_waitcnt lgkmcnt(0)")
    for i in range(8):
        o(f"    v_add_lshl_u32 v{AD1+i}, v{AD1+i}, v{RK1+i}, 4")
    stamp(4)
    for i in range(8):
        o(f"    s_mov_b64 exec, {sr(sM1+2*i,2)}")
        o(f"    s_waitcnt vmcnt({(7 if WLDS else 12)-i + (PF0 if PFPOS == 'd' and i > PFI else 0)})")
        o(f"    ds_write_b128 v{AD1+i}, {vr(4*i,4)} offset:{RAW}")
        if PF0 and PFPOS == "d" and i == PFI:
            o("    s_mov_b64 exec, -1")
            prefetch0()
    o(f"    s_waitcnt vmcnt({PF0 if PFPOS == 'd' else 0})")
    if PF0 and PFPOS == "c":
        o("    s_mov_b64 exec, -1")
        prefetch0()
    o(f"    s_cmp_eq_u64 {sr(sAny2,2)}, 0")
    o("    s_cbranch_scc1 K2_NO2D")
    for i in range(8):
        o(f"    s_mov_b64 exec, {sr(sM2+2*i,2)}")
        o(f"    s_cbranch_execz K2_NS2{i}")
        o(f"    v_add_lshl_u32 v{AD2+i}, v{AD2+i}, v{RK2+i}, 4")
        o(f"    ds_write_b128 v{AD2+i}, {vr(32+4*i,4)} offset:{RAW}")
        L(f"K2_NS2{i}")
    L("K2_NO2D")
    o("    s_mov_b64 exec, -1")
    if WLDS:
        o(f"    v_lshlrev_b32 v{TT}, 4, v{vLane}")
        o(f"    v_add_u32 v{TT}, {WST}, v{TT}")
        o(f"    s_cmp_lg_u32 s{sMode}, 0")
        o("    s_cbranch_scc1 K2_NOWST")
        o(f"    ds_write_b128 v{W+4}, {vr(W,4)}")
        L("K2_NOWST")
    o("    s_waitcnt lgkmcnt(0)")
    o("    s_barrier")
    stamp(5)
    if STAMP:
        o("    s_memtime s[100:101]")
        o("    s_waitcnt lgkmcnt(0)")
        o(f"    v_writelane_b32 v{STV}, s100, 12")
    if "prio" in EXP:
        o(f"    s_cmp_lt_u32 s{sWave}, 4")
        o("    s_cbranch_scc1 K2_NOPRIO")
        o("    s_setprio 1")
        L("K2_NOPRIO")

    def convert(ct, rr=RR, off=0):
        CO = AM1
        a0_, a1_, y0, y1, y2, m0, m1, vo = range(ct, ct + 8)
        o(f"    v_bitop3_b32 v{CO}, v{vPar}, v{rr+1}, v{rr} bitop3:0xca")
        o(f"    v_lshlrev_b32 v{y0}, 16, v{rr+2}")
        o(f"    v_lshlrev_b32 v{a0_}, 16, v{CO}")
        o(f"    v_and_b32 v{a1_}, 0xffff0000, v{CO}")
        o(f"    v_and_b32 v{y1}, 0xffff0000, v{rr+2}")
        o(f"    v_lshlrev_b32 v{y2}, 16, v{rr+3}")
        for u, y in enumerate((y0, y1, y2)):
            o(f"    v_mul_f32 v{m0}, v{a0_}, v{y}")
            o(f"    v_mul_f32 v{m1}, v{a1_}, v{y}")
            o(f"    v_cvt_pk_bf16_f32 v{CO+1+u}, v{m0}, v{m1}")
        o(f"    v_lshrrev_b32 v{vo}, 7, v{rr+3}")
        o(f"    v_and_b32 v{vo}, {hex(int(os.environ.get('SRCMASK','0x1fffe00'),16))}, v{vo}")
        o(f"    ds_write_b128 v{vCw}, {vr(CO,4)} offset:{off}")
        o(f"    ds_write_b32 v{vVw}, v{vo} offset:{off}")

    def loads_tile(x, v, vo):
        for r in range(8):
            o(f"    buffer_load_dword v{B+32*x+8*v+r}, v{vo+r}, {sr(sX,4)}, 0 offen offset:{v*128}")
    def smf(x, v, areg):
        if "q1" in EXP and v != 0:
            return
        if "q2" in EXP and v >= 2:
            return
        if "nomfma" not in EXP:
            o(f"    v_smfmac_f32_32x32x32_bf16 {vr(ACC+16*v,16)}, {vr(areg,4)}, {vr(B+32*x+8*v,8)}, v{vIdx}")
    def zero_tile(v):
        if "nomfma" not in EXP or "keepz" in EXP:
            o(f"    v_mfma_f32_32x32x8_bf16 {vr(ACC+16*v,16)}, {vr(ZR,2)}, {vr(ZR,2)}, 0")
    def mask_read(dst, sreg, tmp):
        o(f"    s_lshl_b32 s{sT}, s{sreg}, 5")
        o(f"    v_add_u32 v{tmp}, s{sT}, v{vMask}")
        o(f"    ds_read_b128 {vr(dst,4)}, v{tmp}")
    terms = [(0, 0, 0, 0, 1)] + [(2 + j, 2, 0, j + 1, 1) for j in range(3)]
    cross = {(2, 3): (0, 1), (3, 2): (0, -1), (3, 1): (1, 1), (1, 3): (1, -1), (1, 2): (2, 1), (2, 1): (2, -1)}
    for v in range(1, 4):
        terms.append((5 + v - 1, 3, v, 0, 1))
        for u in range(1, 4):
            if u == v:
                terms.append((1, 1, v, u, 1))
            else:
                i, sg = cross[(u, v)]
                terms.append((8 + i, 4, v, u, sg))
    first_v = {}
    for (si, p, v_, u, sg) in terms:
        first_v.setdefault(si, (v_, u))
    def fmas(v):
        if "noepi" in EXP:
            return
        tv = [t for t in terms if t[2] == v]
        if PK:
            for dh in range(2):
                for (si, p, v_, u, sg) in tv:
                    t = vr(TT + si, 2)
                    neg3 = " neg_lo:[1,0,0] neg_hi:[1,0,0]" if sg < 0 else ""
                    neg2 = " neg_lo:[1,0] neg_hi:[1,0]" if sg < 0 else ""
                    if dh == 0 and first_v[si] == (v_, u):
                        o(f"    v_pk_mul_f32 {t}, {vr(wreg(p,0),2)}, {vr(accr(v,u,0),2)}{neg2}")
                    else:
                        o(f"    v_pk_fma_f32 {t}, {vr(wreg(p,2*dh),2)}, {vr(accr(v,u,2*dh),2)}, {t}{neg3}")
        else:
            for d in range(4):
                for (si, p, v_, u, sg) in tv:
                    t = TT + si
                    ng = "-" if sg < 0 else ""
                    if d == 0 and first_v[si] == (v_, u):
                        o(f"    v_mul_f32 v{t}, {ng}v{wreg(p,d)}, v{accr(v,u,d)}")
                    elif sg > 0:
                        o(f"    v_fmac_f32 v{t}, v{wreg(p,d)}, v{accr(v,u,d)}")
                    else:
                        o(f"    v_fma_f32 v{t}, -v{wreg(p,d)}, v{accr(v,u,d)}, v{t}")
    def fold():
        if PK:
            for si in range(11):
                o(f"    v_add_f32 v{TT+si}, v{TT+si}, v{TT+si+1}")
    def commit_lds():
        t = lambda si: TT + si
        o(f"    v_cvt_pk_bf16_f32 v{TC}, v{t(0)}, v{t(1)}")
        for j in range(3):
            o(f"    v_cvt_pk_bf16_f32 v{TC+1+j}, v{t(2+j)}, v{t(5+j)}")
        o(f"    v_cvt_pk_bf16_f32 v{TC+4}, v{t(8)}, v{t(9)}")
        o(f"    v_cvt_pk_bf16_f32 v{TC+5}, v{t(10)}, v{t(10)}")
        o(f"    ds_write2st64_b32 v{vD4}, v{TC}, v{TC+1} offset0:0 offset1:1")
        o(f"    ds_write2st64_b32 v{vD4}, v{TC+2}, v{TC+3} offset0:2 offset1:3")
        o(f"    ds_write_b16 v{vD2}, v{TC+4}")
        o(f"    ds_write_b16_d16_hi v{vD2}, v{TC+4} offset:128")
        o(f"    ds_write_b16 v{vD2}, v{TC+5} offset:256")
        o(f"    v_add_u32 v{vD4}, {8*SDS}, v{vD4}")
        o(f"    v_add_u32 v{vD2}, {8*SDS}, v{vD2}")
    pcnt = [0]
    def prio_step():
        if PRIO:
            o(f"    s_and_b32 s{sT}, s{sSeg}, 15")
            for lvl, th in zip((2, 1, 0), PRIO):
                pcnt[0] += 1
                o(f"    s_cmp_lg_u32 s{sT}, {th*ZZ+ZZ-1}")
                o(f"    s_cbranch_scc1 K2_PR{pcnt[0]}")
                o(f"    s_setprio {lvl}")
                L(f"K2_PR{pcnt[0]}")
    def schedule_next():
        o(f"    s_sub_u32 s{sT}, s{sEnd}, 1")
        o(f"    s_and_b32 s{sHi}, s{sT}, 15")
        o(f"    s_add_u32 s{sHi}, s{sHi}, 1")
        o(f"    s_lshr_b32 s{sT}, s{sT}, 4")
        o(f"    s_sub_i32 s{sT2}, s{sNs}, 2")
        o(f"    s_add_u32 s{sT3}, s{sGen}, 1")
        o(f"    s_max_i32 s{sT2}, s{sT2}, s{sT3}")
        o(f"    s_min_u32 s{sGen}, s{sT}, s{sT2}")
        o(f"    s_sub_u32 s{sCnt}, s{sGen}, s{sT3}")

    o(f"    s_cmp_eq_u32 s{sNs}, 0")
    o("    s_cbranch_scc1 K2_EMPTY")
    o(f"    ds_read_b128 {vr(RR,4)}, v{vRaw}")
    o(f"    ds_read_b128 {vr(A[0],4)}, v{vRaw} offset:512")
    if PRIO or RP:
        o("    s_setprio 3")
    if RP:
        o(f"    s_mov_b32 s{sLeft}, s{sNs}")
        o(f"    s_mov_b32 s{sPT}, {RP[0]}")
    o(f"    s_mov_b32 s{sD0}, {RBLK}                ; delta for vA at end of this batch")
    o(f"    s_mov_b32 s{sD1}, {RBLK}")
    o(f"    s_mov_b32 s{sD2}, {-2*RBLK}")
    for v in range(4):
        zero_tile(v)
    o("    s_waitcnt lgkmcnt(1)")
    convert(VO[1])
    o(f"    ds_read_b128 {vr(VO[0],4)}, v{vV}")
    o(f"    ds_read_b128 {vr(VO[0]+4,4)}, v{vV} offset:32")
    o("    s_waitcnt lgkmcnt(4)")
    convert(VO[1], A[0], RBLK)
    o(f"    ds_read_b128 {vr(VO[1],4)}, v{vV} offset:64")
    o(f"    ds_read_b128 {vr(VO[1]+4,4)}, v{vV} offset:96")
    o(f"    v_add_u32 v{vRaw}, 1024, v{vRaw}")
    o(f"    v_add_u32 v{vCw}, {2*RBLK}, v{vCw}")
    o(f"    v_add_u32 v{vVw}, {2*RBLK}, v{vVw}")
    o(f"    v_add_u32 v{vV}, {RBLK}, v{vV}")
    o("    s_waitcnt lgkmcnt(4)")
    for r in range(8):
        o(f"    v_add_u32 v{VO[0]+r}, v{VO[0]+r}, v{vN4}")
    for r in range(8):
        thr = 8 * (r >> 2) + (r & 3) + 4
        if thr < 15:
            o(f"    s_cmp_gt_u32 s{sLo}, {thr}")
            o(f"    s_cbranch_scc1 K2_IZ{r}")
        for v in range(4):
            o(f"    buffer_load_dword v{B+8*v+r}, v{VO[0]+r}, {sr(sX,4)}, 0 offen offset:{v*128}")
        L(f"K2_IN{r}")
    o(f"    s_cmp_eq_u32 s{sNs}, 1")
    o("    s_cbranch_scc1 K2_INITD")
    o("    s_waitcnt lgkmcnt(0)")
    for r in range(8):
        o(f"    v_add_u32 v{VO[1]+r}, v{VO[1]+r}, v{vN4}")
    for v in range(4):
        if v == 3:
            o("    s_waitcnt vmcnt(55)")
        loads_tile(1, v, VO[1])
    L("K2_INITD")
    if ZZ > 1:
        o(f"    s_add_u32 s{sSeg}, s{sSeg}, {ZZ-1}")
    if WLDS:
        for p in range(5):
            o(f"    ds_read_b128 {vr(W+4*p,4)}, v{TT} offset:{p*1024}")
    o(f"    v_readlane_b32 s{sEnd}, v{vEnds}, s{sSeg}")
    o(f"    ds_read_b64_tr_b16 {vr(A[0],2)}, v{vA}")
    o(f"    ds_read_b64_tr_b16 {vr(A[0]+2,2)}, v{vA} offset:128")
    o(f"    ds_read_b128 {vr(VO[0],4)}, v{vV}")
    o(f"    ds_read_b128 {vr(VO[0]+4,4)}, v{vV} offset:32")
    o(f"    s_mov_b32 s{sGen}, 0")
    o(f"    s_mov_b32 s{sCnt}, 0")

    o(".p2align 3")
    L("K2_LOOP")
    for x in range(2):
        a_cur, a_nxt = A[x], A[x ^ 1]
        v_cur, v_nxt = VO[x], VO[x ^ 1]
        if x == 1:
            o(f"    v_add_u32 v{vA}, s{sD0}, v{vA}")
            o(f"    v_add_u32 v{vV}, s{sD1}, v{vV}")
        nx = x ^ 1
        if x == 0:
            o(f"    ds_read_b128 {vr(RR,4)}, v{vRaw}")
        o(f"    ds_read_b64_tr_b16 {vr(a_nxt,2)}, v{vA} offset:{nx*512}")
        o(f"    ds_read_b64_tr_b16 {vr(a_nxt+2,2)}, v{vA} offset:{nx*512+128}")
        o(f"    ds_read_b128 {vr(v_nxt,4)}, v{vV} offset:{nx*64}")
        o(f"    ds_read_b128 {vr(v_nxt+4,4)}, v{vV} offset:{nx*64+32}")
        o(f"    s_sub_u32 s{sCnt}, s{sCnt}, 1")
        o(f"    s_waitcnt lgkmcnt({5 if x == 0 else 4})")
        for r in range(8):
            o(f"    v_add_u32 v{v_cur+r}, v{v_cur+r}, v{vN4}")
        o(f"    s_cbranch_scc1 K2_SP{x}")
        for v in range(4):
            o("    s_waitcnt vmcnt(55)")
            smf(x, v, a_cur)
            loads_tile(x, v, v_cur)
        L(f"K2_NEXT{x}")
        if RP:
            o(f"    s_sub_u32 s{sLeft}, s{sLeft}, 1")
            o(f"    s_cmp_le_i32 s{sLeft}, s{sPT}")
            o(f"    s_cbranch_scc1 K2_RP{x}")
            L(f"K2_RPB{x}")
        if x == 0:
            o("    s_waitcnt lgkmcnt(4)")
            convert(v_cur)
            o(f"    v_add_u32 v{vRaw}, 512, v{vRaw}")
            o(f"    v_add_u32 v{vCw}, s{sD2}, v{vCw}")
            o(f"    v_add_u32 v{vVw}, s{sD2}, v{vVw}")
        else:
            o(f"    s_mov_b32 s{sT}, s{sD0}")
            o(f"    s_mov_b32 s{sD0}, s{sD1}")
            o(f"    s_mov_b32 s{sD1}, s{sD2}")
            o(f"    s_mov_b32 s{sD2}, s{sT}")
            o("    s_branch K2_LOOP")

    for x in range(2):
        a_cur = A[x]
        v_cur = VO[x]
        L(f"K2_SP{x}")
        o(f"    s_add_u32 s{sT}, s{sSeg}, {ZZ}")
        if ZZ == 3:
            o(f"    s_or_b32 s{sT2}, s{sSeg}, 15")
            o(f"    s_min_u32 s{sT}, s{sT}, s{sT2}")
        o(f"    v_readlane_b32 s{sNext}, v{vEnds}, s{sT}")
        o(f"    s_sub_u32 s{sRem}, s{sNs}, s{sGen}")
        o(f"    s_lshl_b32 s{sT3}, s{sGen}, 4")
        o(f"    s_cmp_le_u32 s{sRem}, 2")
        o(f"    s_cbranch_scc1 K2_GEN{x}")
        o(f"    s_cmp_le_u32 s{sGen}, s{sFast}")
        o(f"    s_cbranch_scc1 K2_GEN{x}")
        o(f"    s_add_u32 s{sT2}, s{sT3}, 16")
        o(f"    s_cmp_le_u32 s{sNext}, s{sT2}")
        o(f"    s_cbranch_scc1 K2_GEN{x}")
        for r in range(4):
            o(f"    v_and_b32 v{AM1+r}, v{a_cur+r}, v{LT+r}")
        for r in range(4):
            o(f"    v_bitop3_b32 v{AM2+r}, v{a_cur+r}, v{LT+r}, v{LT+r} bitop3:0x30")
        o("    s_waitcnt vmcnt(31)")
        for v in range(4):
            smf(x, v, AM1)
        o(f"    s_mov_b32 s{sSeg}, s{sT}")
        o(f"    s_mov_b32 s{sEnd}, s{sNext}")
        schedule_next()
        mask_read(LT, sHi, a_cur)
        for v in range(4):
            fmas(v)
            zero_tile(v)
            smf(x, v, AM2)
            loads_tile(x, v, v_cur)
        fold()
        commit_lds()
        prio_step()
        o(f"    s_branch K2_NEXT{x}")
        L(f"K2_GEN{x}")
        o(f"    s_cmp_ge_u32 s{sRem}, 2")
        o(f"    s_cbranch_scc1 K2_GW{x}")
        o("    s_waitcnt vmcnt(0)")
        L(f"K2_GW{x}")
        o(f"    s_cmp_eq_u32 s{sGen}, 0")
        o(f"    s_cselect_b32 s{sLo}, s{sLo}, 0")
        L(f"K2_GL{x}")
        o(f"    s_sub_u32 s{sRel}, s{sEnd}, s{sT3}")
        o(f"    s_min_u32 s{sHi}, s{sRel}, 16")
        mask_read(LT, sHi, AM1)
        mask_read(AM2, sLo, AM1 + 1)
        o("    s_waitcnt vmcnt(31) lgkmcnt(0)")
        for r in range(4):
            o(f"    v_bitop3_b32 v{AM1+r}, v{a_cur+r}, v{LT+r}, v{AM2+r} bitop3:0x40")
        o("    s_nop 1")
        for v in range(4):
            smf(x, v, AM1)
        o(f"    s_cmp_gt_u32 s{sRel}, 16")
        o(f"    s_cbranch_scc1 K2_GD{x}")
        o(f"    s_mov_b32 s{sRet}, {x}")
        o("    s_branch K2_EPI")
        L(f"K2_GD{x}")
        o(f"    s_cmp_le_u32 s{sRem}, 2")
        o(f"    s_cbranch_scc1 K2_NL{x}")
        for v in range(4):
            loads_tile(x, v, v_cur)
        if WFE:
            o(f"    s_branch K2_NL2{x}")
        L(f"K2_NL{x}")
        if WFE:
            o(f"    s_cmp_lg_u32 s{sWFl}, 0")
            o(f"    s_cbranch_scc1 K2_NL2{x}")
            wf_loads(AM2)
            L(f"K2_NL2{x}")
        o(f"    s_cmp_eq_u32 s{sRem}, 1")
        o("    s_cbranch_scc1 K2_STREAM_DONE")
        schedule_next()
        mask_read(LT, sHi, AM1)
        o(f"    s_branch K2_NEXT{x}")

    if RP:
        for x in range(2):
            L(f"K2_RP{x}")
            for lvl in range(3):
                if lvl < 2:
                    o(f"    s_cmp_lg_u32 s{sPT}, {RP[lvl]}")
                    o(f"    s_cbranch_scc1 K2_RP{x}_{lvl}")
                o(f"    s_setprio {2-lvl}")
                o(f"    s_mov_b32 s{sPT}, {RP[lvl+1] if lvl < 2 else -1}")
                o(f"    s_branch K2_RPB{x}")
                if lvl < 2:
                    L(f"K2_RP{x}_{lvl}")
    L("K2_EPI")
    if ZZ == 3:
        o(f"    s_or_b32 s{sT2}, s{sSeg}, 15")
    o(f"    s_add_u32 s{sSeg}, s{sSeg}, {ZZ}")
    if ZZ == 3:
        o(f"    s_min_u32 s{sSeg}, s{sSeg}, s{sT2}")
    o(f"    s_mov_b32 s{sLo}, s{sHi}")
    o(f"    v_readlane_b32 s{sEnd}, v{vEnds}, s{sSeg}")
    o("    s_nop 7")
    for v in range(4):
        fmas(v)
        zero_tile(v)
    fold()
    o(f"    s_cmp_lg_u32 s{sMode}, 0")
    o("    s_cbranch_scc1 K2_EPS")
    commit_lds()
    prio_step()
    L("K2_EPR")
    if EEX:
        o(f"    s_cmp_eq_u32 s{sEnd}, 0x7fffffff")
        o("    s_cbranch_scc1 K2_STREAM_DONE")
    o(f"    s_cmp_eq_u32 s{sRet}, 0")
    o("    s_cbranch_scc1 K2_GL0")
    o("    s_branch K2_GL1")
    L("K2_EPS")
    o("    s_waitcnt vmcnt(31)")
    for si in range(11):
        o(f"    buffer_atomic_add_f32 v{TT+si}, v{vSa}, {sr(sWS,4)}, 0 offen offset:{si*256}")
    o(f"    v_add_u32 v{vSa}, {8*2816}, v{vSa}")
    o("    s_waitcnt vmcnt(0)")
    o("    s_branch K2_EPR")
    for r in range(7):
        L(f"K2_IZ{r}")
        for v in range(4):
            o(f"    v_mov_b32 v{B+8*v+r}, 0")
        o(f"    s_branch K2_IN{r}")
    L("K2_EMPTY")
    o(f"    s_cmp_lg_u32 s{sMode}, 0")
    o("    s_cbranch_scc1 K2_STREAM_DONE")
    for si in range(11):
        o(f"    v_mov_b32 v{TT+si}, 0")
    o(f"    s_mov_b32 s{sT2}, 5")
    L("K2_EMPTYL")
    commit_lds()
    o(f"    s_sub_u32 s{sT2}, s{sT2}, 1")
    o(f"    s_cmp_lg_u32 s{sT2}, 0")
    o("    s_cbranch_scc1 K2_EMPTYL")
    o("    s_branch K2_POSTG")

    L("K2_GOSLOW")
    o(f"    s_mov_b32 s{sMode}, 1")
    o(f"    s_mov_b32 s{sFast}, -1")
    w_loads()
    if WLDS:
        o("    s_waitcnt vmcnt(0)")
        o(f"    ds_write_b128 v{W+4}, {vr(W,4)}")
    dump_addr()
    o(f"    v_mov_b32 v{TT}, 0")
    for k in range(5):
        for si in range(11):
            o(f"    buffer_store_dword v{TT}, v{vSa}, {sr(sWS,4)}, 0 offen offset:{si*256} sc1")
        o(f"    v_add_u32 v{vSa}, {8*2816}, v{vSa}")
        o("    s_waitcnt vmcnt(0)")
    o("    s_waitcnt vmcnt(0)")
    L("K2_SLOW_ROUND")
    o("    s_waitcnt lgkmcnt(0)")
    o("    s_barrier")
    o("    s_nop 7")
    lane_id()
    o(f"    v_lshlrev_b32 v2, 2, v{vLane}")
    o(f"    v_add_u32 v2, {CNT}, v2")
    o("    v_mov_b32 v3, 0")
    o("    ds_write2st64_b32 v2, v3, v3 offset0:0 offset1:1")
    lane_prep()
    hdr_loads()
    o(f"    v_add_u32 v{TM+1}, s{sJlo}, v{vJ}")
    o(f"    s_movk_i32 s{sT}, {CH}")
    o(f"    v_mad_u32_u24 v{TM+2}, v{vW0}, s{sT}, v{TM+1}")
    o(f"    v_cmp_gt_u32 {sr(sSave,2)}, 8, v{vJ}")
    o(f"    s_mov_b64 {sr(sAny2,2)}, 0")
    o(f"    v_mov_b32 v{TM+3}, 0")
    o(f"    v_lshlrev_b32 v{KY}, 1, v{TM+1}")
    o(f"    v_subrev_u32 v{KY+1}, 29, v{KY}")
    o(f"    v_min_u32 v{KY}, v{KY}, v{KY+1}")
    o(f"    v_lshl_add_u32 v{KY}, v{vW0}, 13, v{KY}")
    o(f"    s_lshl_b32 s{sT}, s{sBin}, 5")
    o(f"    s_add_u32 s{sT}, s{sT}, {WS_T2}")
    o(f"    v_add_u32 v{KY}, s{sT}, v{KY}")
    o("    s_waitcnt vmcnt(0)")
    for i in range(8):
        o(f"    v_lshrrev_b32 v{TM}, 16, v{HD+i}")
        o(f"    v_and_b32 v{AD2+i}, 0xffff, v{HD+i}")
        o(f"    v_cmp_lt_u32 vcc, v{TM+1}, v{TM}")
        o(f"    v_add_u32 v{AD2+i}, v{AD2+i}, v{TM+2}")
        o(f"    v_lshlrev_b32 v{RO+i}, 4, v{AD2+i}")
        o(f"    v_max_u32 v{TM+3}, v{TM+3}, v{TM}")
        o(f"    v_mov_b32 v{AD1+i}, 0")
        o(f"    s_and_b64 {sr(sM1+2*i,2)}, vcc, {sr(sSave,2)}")
        o(f"    s_mov_b64 exec, {sr(sM1+2*i,2)}")
        o(f"    s_cbranch_execz K2_SR{i}")
        o(f"    s_mov_b32 s{sT}, {i*4*CH*16}")
        o(f"    buffer_load_dwordx4 {vr(4*i,4)}, v{RO+i}, {sr(sWS,4)}, s{sT} offen")
        o(f"    v_cmp_lt_u32 vcc, 30, v{TM}")
        o(f"    v_add_u32 v{AD2+i}, {WS_KEY + i*4*CH}, v{AD2+i}")
        o(f"    v_add_u32 v{TM}, {i*32768}, v{KY}")
        o(f"    v_cndmask_b32 v{AD2+i}, v{TM}, v{AD2+i}, vcc")
        o(f"    buffer_load_ubyte v{AD1+i}, v{AD2+i}, {sr(sWS,4)}, 0 offen")
        L(f"K2_SR{i}")
        o("    s_mov_b64 exec, -1")
    o(f"    v_mov_b32 v{TM}, {MISC+4}")
    o(f"    ds_max_u32 v{TM}, v{TM+3}")
    o(f"    v_mov_b32 v{TM+4}, {CNT}")
    o("    s_waitcnt vmcnt(0) lgkmcnt(0)")
    o("    s_barrier")
    o(f"    ds_read_b32 v{TM}, v{TM}")
    o("    s_waitcnt lgkmcnt(0)")
    o(f"    v_readfirstlane_b32 s{sMax}, v{TM}")
    o(f"    v_mov_b32 v{TM}, 1")
    for i in range(8):
        o(f"    v_lshl_add_u32 v{AD1+i}, v{AD1+i}, 2, v{TM+4}")
    for i in range(8):
        o(f"    s_mov_b64 exec, {sr(sM1+2*i,2)}")
        o(f"    ds_add_rtn_u32 v{RK1+i}, v{AD1+i}, v{TM}")
    o("    s_mov_b64 exec, -1")
    o("    s_branch K2_RANKD")

    L("K2_STREAM_DONE")
    o(f"    s_cmp_eq_u32 s{sMode}, 0")
    o("    s_cbranch_scc1 K2_POSTG")
    o(f"    s_add_u32 s{sJlo}, s{sJlo}, 8")
    o(f"    s_cmp_lt_u32 s{sJlo}, s{sMax}")
    o("    s_cbranch_scc1 K2_SLOW_ROUND")
    o("    s_nop 7")
    lane_id()
    dump_addr()
    o(f"    s_mov_b32 s{sT2}, 5")
    L("K2_SLOWL")
    for si in range(11):
        o(f"    buffer_load_dword v{TT+si}, v{vSa}, {sr(sWS,4)}, 0 offen offset:{si*256} sc1")
    o(f"    v_add_u32 v{vSa}, {8*2816}, v{vSa}")
    o("    s_waitcnt vmcnt(0)")
    commit_lds()
    o(f"    s_sub_u32 s{sT2}, s{sT2}, 1")
    o(f"    s_cmp_lg_u32 s{sT2}, 0")
    o("    s_cbranch_scc1 K2_SLOWL")

    L("K2_POSTG")
    stamp(6)
    if STAMP:
        o("    s_memtime s[100:101]")
        o("    s_waitcnt lgkmcnt(0)")
        o(f"    v_writelane_b32 v{STV}, s100, 13")
    t0, t1 = 226, 227
    vLane = 246
    o(f"    s_cmp_lg_u32 s{sWFl}, 0")
    o("    s_cbranch_scc1 K2_NOWF")
    wf_loads(t0)
    L("K2_NOWF")
    o(f"    v_mbcnt_lo_u32_b32 v{vLane}, -1, 0")
    o(f"    v_mbcnt_hi_u32_b32 v{vLane}, -1, v{vLane}")
    o(f"    s_cmp_ge_u32 s{sWave}, 4")
    o("    s_cbranch_scc1 K2_GADDR")
    vB_, vOt, vB2, vB2x, vB0, vO2 = 220, 221, 222, 223, 224, 225
    o(f"    v_and_b32 v{t0}, 15, v{vLane}                ; nn")
    o(f"    v_lshrrev_b32 v{t1}, 4, v{vLane}             ; g")
    o(f"    v_mul_u32_u24 v{vB_}, {SDS}, v{t0}")
    o(f"    v_lshl_add_u32 v{vB_}, v{t1}, 4, v{vB_}")
    o(f"    v_add_u32 v{vB_}, {SD}, v{vB_}")
    o(f"    s_lshl_b32 s{sT3}, s{sWave}, 5               ; t*32 bytes")
    o(f"    s_add_u32 s{sT}, s{sT3}, {OUTT}")
    o(f"    v_mul_u32_u24 v{vOt}, {OUT_STRIDE}, v{t0}")
    o(f"    v_lshl_add_u32 v{vOt}, v{t1}, 3, v{vOt}")
    o(f"    v_add_u32 v{vOt}, s{sT}, v{vOt}")
    o(f"    v_and_b32 v0, 7, v{t0}")
    o(f"    v_lshrrev_b32 v1, 3, v{t0}")
    o(f"    v_mul_u32_u24 v{vB0}, {SDS}, v0")
    o(f"    v_lshl_add_u32 v{vB0}, v{t1}, 4, v{vB0}")
    o(f"    v_add_u32 v{vB0}, {SD + 32*SDS}, v{vB0}")
    o(f"    v_lshl_add_u32 v{vB2}, v1, 8, v{vB0}")
    o(f"    v_lshl_add_u32 v{vB2x}, v1, 7, v{vB0}")
    o(f"    v_cmp_eq_u32 {sr(sSave,2)}, 1, v1")
    o(f"    v_mul_u32_u24 v{vO2}, {OUT_STRIDE}, v0")
    o(f"    v_lshl_add_u32 v{vO2}, v{t1}, 3, v{vO2}")
    o(f"    s_add_u32 s{sT}, s{sT3}, {OUTT + 32*OUT_STRIDE}")
    o(f"    v_add_u32 v{vO2}, s{sT}, v{vO2}")
    o(f"    v_lshl_add_u32 v{t0}, v1, 7, v{vO2}")
    o(f"    v_mul_u32_u24 v1, 384, v1")
    o(f"    v_sub_u32 v{t1}, v{vO2}, v1")
    G = 184
    o(f"    v_mov_b32 v{G+12}, 0xbfb8aa3b           ; -log2(e)")
    L("K2_GADDR")
    o("    s_waitcnt lgkmcnt(0)")
    o("    s_barrier")
    stamp(7)
    o(f"    s_cmp_ge_u32 s{sWave}, 4")
    o("    s_cbranch_scc1 K2_NOGEMM")
    seq = []
    for T, ar, base in ((0, vB_, 0), (1, vB_, 16 * SDS), (2, vB0, 0)):
        for ks in range(4):
            seq.append((T, ks, ar, base + 64 * ks, ks == 0))
    for T in range(2):
        for blk in range(1, 4):
            di = 3 + 3 * T + blk - 1
            for ks in range(4):
                seq.append((di, 4 + ks, vB_, T * 16 * SDS + blk * 256 + 64 * ks, ks == 0))
            for ks in range(2):
                seq.append((di, 8 + ks, vB_, T * 16 * SDS + 1024 + 128 * (blk - 1) + 64 * ks, False))
    for ks in range(4):
        seq.append((9, 4 + ks, vB2, 256 + 64 * ks, ks == 0))
    for ks in range(2):
        seq.append((9, 8 + ks, vB2x, 1024 + 64 * ks, False))
    for ks in range(4):
        seq.append((10, 4 + ks, vB0, 768 + 64 * ks, ks == 0))
    for ks in range(2):
        seq.append((10, 8 + ks, vB0, 1024 + 256 + 64 * ks, False))
    BB = 64
    NB_ = 16
    DEPTH = 12
    DD = 0
    RS = 198
    def bread(i):
        o(f"    ds_read_b128 {vr(BB+4*(i%NB_),4)}, v{seq[i][2]} offset:{seq[i][3]}")
    for i in range(DEPTH):
        bread(i)
    o("    s_waitcnt vmcnt(0)")
    work = []
    for T in range(3):
        work += [(16, f"    v_mul_f32 v{G+4*T+r}, v{G+12}, v{DD+4*T+r}") for r in range(4)]
    for T in range(3):
        work += [(16, f"    v_exp_f32 v{G+4*T+r}, v{G+4*T+r}") for r in range(4)]
    for T in range(3):
        work += [(16, f"    v_add_f32 v{G+4*T+r}, 1.0, v{G+4*T+r}") for r in range(4)]
    for T in range(3):
        work += [(16, f"    v_rcp_f32 v{G+4*T+r}, v{G+4*T+r}") for r in range(4)]
    for T in range(3):
        work += [(16, f"    v_cvt_pk_bf16_f32 v{RS+2*T}, v{DD+4*T}, v{DD+4*T+1}"), (16, f"    v_cvt_pk_bf16_f32 v{RS+2*T+1}, v{DD+4*T+2}, v{DD+4*T+3}")]
    def fin(di):
        g0 = G + 4 * min((di - 3) // 3, 2)
        last = 12 + 6 * (di - 3) + 5
        ins = [f"    v_mul_f32 v{DD+4*di+r}, v{DD+4*di+r}, v{g0+r}" for r in range(4)]
        ins += [f"    v_cvt_pk_bf16_f32 v{RS+2*di}, v{DD+4*di}, v{DD+4*di+1}", f"    v_cvt_pk_bf16_f32 v{RS+2*di+1}, v{DD+4*di+2}, v{DD+4*di+3}"]
        return [(last + 5, x) for x in ins]
    for di in range(3, 11):
        work += fin(di)
    n = len(seq)
    assert n == 60
    for i, (di, f, ar, off, first) in enumerate(seq):
        if i % 2 == 0:
            cnt = min(i + DEPTH, n) - 2 - i
            o(f"    s_waitcnt lgkmcnt({max(cnt,0)})")
        d = vr(DD + 4 * di, 4)
        o(f"    v_mfma_f32_16x16x32_bf16 {d}, {vr(WF+4*f,4)}, {vr(BB+4*(i%NB_),4)}, {'0' if first else d}")
        if i + DEPTH < n:
            bread(i + DEPTH)
        k = 0
        while work and work[0][0] <= i and k < (2 if i + DEPTH < n else 3):
            o(work.pop(0)[1]); k += 1
    wr = []
    for T in range(2):
        wr.append(f"    ds_write_b64 v{vOt}, {vr(RS+2*T,2)} offset:{T*16*OUT_STRIDE}")
        for blk in range(1, 4):
            wr.append(f"    ds_write_b64 v{vOt}, {vr(RS+2*(3+3*T+blk-1),2)} offset:{T*16*OUT_STRIDE+blk*128}")
    early = [w for w in work if w[0] <= n - 1]
    late = [w for w in work if w[0] > n - 1]
    for w in early:
        o(w[1])
    for x_ in wr:
        o(x_)
    o("    s_nop 1")
    for w in late:
        o(w[1])
    o(f"    ds_write_b64 v{t0}, {vr(RS+18,2)} offset:128")
    o(f"    v_cndmask_b32 v{RS+20}, v{RS+20}, v{RS+4}, {sr(sSave,2)}")
    o(f"    v_cndmask_b32 v{RS+21}, v{RS+21}, v{RS+5}, {sr(sSave,2)}")
    o(f"    ds_write_b64 v{t1}, {vr(RS+20,2)} offset:384")
    L("K2_NOGEMM")
    o(f"    s_lshl_b32 s{sT}, s{sWave}, 6")
    o(f"    v_add_u32 v4, s{sT}, v{vLane}            ; tid")
    o("    v_lshrrev_b32 v0, 5, v4")
    o("    v_and_b32 v1, 31, v4")
    o(f"    v_mul_u32_u24 v2, {OUT_STRIDE}, v0")
    o("    v_lshl_add_u32 v2, v1, 4, v2")
    if OUTT:
        o(f"    v_add_u32 v2, {OUTT}, v2")
    o("    v_lshlrev_b32 v3, 4, v4")
    o("    v_add_u32 v16, 8192, v3")
    o("    v_add_u32 v17, 16384, v3")
    o("    s_waitcnt lgkmcnt(0)")
    o("    s_barrier")
    stamp(8)
    for r in range(3):
        o(f"    ds_read_b128 {vr(4+4*r,4)}, v2 offset:{r*16*OUT_STRIDE}")
    for r in range(3):
        if r == 2:
            o(f"    s_cmp_ge_u32 s{sWave}, 4")
            o("    s_cbranch_scc1 K2_FIN")
        o(f"    s_waitcnt lgkmcnt({2-r})")
        o(f"    buffer_store_dwordx4 {vr(4+4*r,4)}, v{[3,16,17][r]}, {sr(sOUT,4)}, 0 offen {OUTST}")
    L("K2_FIN")
    if STAMP:
        o("    s_waitcnt vmcnt(0)")
    stamp(9)
    stamp_dump(sWS, sWS + 1, sWave, 8, 65 << 20)
    L("K2_END")
    o("    s_endpgm")
    L("CODE_END")

gen_k1()
gen_k2()

o('.section .rodata,"a"')
def kd(name, vgpr, sgpr):
    o(".p2align 6")
    o(f".amdhsa_kernel {name}")
    o(f"  .amdhsa_next_free_vgpr {vgpr}")
    o(f"  .amdhsa_next_free_sgpr {sgpr}")
    o(f"  .amdhsa_accum_offset {(vgpr+3)//4*4}")
    o("  .amdhsa_group_segment_fixed_size 0")
    o("  .amdhsa_kernarg_size 96")
    o("  .amdhsa_user_sgpr_count 2")
    o("  .amdhsa_user_sgpr_kernarg_segment_ptr 1")
    o("  .amdhsa_system_sgpr_workgroup_id_x 1")
    o("  .amdhsa_float_denorm_mode_32 3")
    o(".end_amdhsa_kernel")
kd("tp_part_kernel", 80, 102 if STAMP else 72)
kd("tp_main_kernel", 256, 102 if STAMP else 92)

open(OUTFILE, "w").write("\n".join(lines) + "\n")
print("wrote", OUTFILE, len(lines), "lines; K2 LDS", K2_LDS)
```

```python
import sys, os

P = 1
OUTFILE = sys.argv[1] if len(sys.argv) > 1 else "standalone__tensor_product_equiv_equiformer__graph.s"
STAMP = int(os.environ.get("STAMP", "0"))
K1ST = os.environ.get("K1ST", "sc1")
K1LD2 = os.environ.get("K1LD2", "")
OUTST = os.environ.get("OUTST", "sc1")
K1LD = os.environ.get("K1LD", "nt")
EXP = os.environ.get("EXP", "")
K1SPL = int(os.environ.get("K1SPL", "1"))
TLBW = int(os.environ.get("TLBW", "0"))
K1ORD = int(os.environ.get("K1ORD", "2"))
T2E = int(os.environ.get("T2E", "0"))
ZZ = int(os.environ.get("ZZ", "1"))
K1MAP = int(os.environ.get("K1MAP", "0"))
PK = 0
WFE = int(os.environ.get("WFE", "0"))
EEX = int(os.environ.get("EEX", "1"))
RP = [int(t) for t in os.environ.get("RP", "").split(",") if t]
RMASK = int(os.environ.get("RMASK", "1"))
WLDS = int(os.environ.get("WLDS", "1"))
XEND = os.environ.get("XEND", "")
NEARLY = int(os.environ.get("NEARLY", "4"))
K1PF = int(os.environ.get("K1PF", "0"))
PF0 = int(os.environ.get("PF0", "1"))
PFPOS = os.environ.get("PFPOS", "d")
PFI = int(os.environ.get("PFI", "5"))
PFL = int(os.environ.get("PFL", "32"))
IDXN = int(os.environ.get("IDXN", "0"))
IDXN2 = int(os.environ.get("IDXN2", "3"))
CPF = int(os.environ.get("CPF", "3"))
VW = int(os.environ.get("VW", "48"))
PRIO = [int(t) for t in os.environ.get("PRIO", "2,3,4").split(",") if t]
XPF = int(os.environ.get("XPF", "0"))

N = 10000
E = 640000
NWG = 256
CH = 2500
BINM = 1677
PHM = (P << 23) // 10000
WS_REC = 0
WS_KEY = 10240000
WS_TAB = 10880000
WS_T2 = WS_TAB + 256 * 1024
WS_WF = WS_T2 + 256 * 8192
WS_WR = WS_WF + 40 * 1024
WS_S32 = WS_WR + 5 * 1024
WS_END = WS_S32 + 256 * 40 * 2816

lines = []
def o(s=""):
    lines.append(s)
def L(s):
    lines.append(s + ":")
def vr(a, n):
    return f"v[{a}:{a+n-1}]"
def sr(a, n):
    return f"s[{a}:{a+n-1}]"
def srd(d, lo, hi, nbytes):
    o(f"    s_mov_b32 s{d}, s{lo}")
    o(f"    s_and_b32 s{d+1}, s{hi}, 0xffff")
    o(f"    s_mov_b32 s{d+2}, {nbytes}")
    o(f"    s_mov_b32 s{d+3}, 0x00020000")

STV = 142
def stamp(i, vreg=STV):
    if STAMP:
        o("    s_memrealtime s[100:101]")
        o("    s_waitcnt lgkmcnt(0)")
        o(f"    v_writelane_b32 v{vreg}, s100, {i}")
def stamp_dump(wsl, wsh, wave_sgpr, nwaves, base, vreg=STV):
    if not STAMP:
        return
    o("    s_waitcnt lgkmcnt(0) vmcnt(0)")
    o("    s_mov_b64 exec, 0xffff")
    o(f"    s_mul_i32 s4, s2, {nwaves}")
    o(f"    s_add_u32 s4, s4, s{wave_sgpr}")
    o("    s_lshl_b32 s4, s4, 6")
    o(f"    s_add_u32 s4, s4, {base}")
    o(f"    s_mov_b32 s8, s{wsl}")
    o(f"    s_and_b32 s9, s{wsh}, 0xffff")
    o("    s_mov_b32 s10, 0x8000000")
    o("    s_mov_b32 s11, 0x00020000")
    o("    v_mbcnt_lo_u32_b32 v0, -1, 0")
    o("    v_lshl_add_u32 v0, v0, 2, s4")
    o(f"    buffer_store_dword v{vreg}, v0, s[8:11], 0 offen")
    o("    s_waitcnt vmcnt(0)")

K1_CNT = 0
K1_START = 1024
K1_KEY = 2048
K1_T2 = 4608
K1_REC = K1_T2 + 8192
K1_LDS = K1_REC + 40960

SLOTCAP = 3072
RAW = 0
RING = RAW + SLOTCAP * 16
RBLK = 1152
MASK = RING + 8 * 3 * RBLK
CNT = MASK + 1024
BASE = CNT + 512
MISC = BASE + 512
SD = MISC + 64
SDS = 1440
K2_LDS = SD + 48 * SDS
WST = SD + 40 * SDS
OUTT = RAW
OUT_STRIDE = 528
assert K2_LDS <= 163840, K2_LDS
assert SD % 16 == 0

o(f"; @launch kernel=tp_part_kernel grid=({NWG},1,1) block=(704,1,1) lds={K1_LDS}")
o(f"; @launch kernel=tp_main_kernel grid=({NWG},1,1) block=(512,1,1) lds={K2_LDS}")
o('.amdgcn_target "amdgcn-amd-amdhsa--gfx950"')
o(".text")

def gen_k1():
    SV = 79
    o(".globl tp_part_kernel")
    o(".p2align 8")
    o(".type tp_part_kernel,@function")
    L("tp_part_kernel")
    o(f"    s_cmp_ge_u32 s2, {NWG}")
    o("    s_cbranch_scc1 K1_END")
    if K1MAP:
        o("    s_and_b32 s3, s2, 7")
        o("    s_lshl_b32 s3, s3, 5")
        o("    s_lshr_b32 s2, s2, 3")
        o("    s_add_u32 s2, s2, s3")
    stamp(0, SV)
    o("    s_load_dwordx4 s[4:7], s[0:1], 8")
    o("    s_load_dwordx4 s[8:11], s[0:1], 24")
    o("    s_load_dwordx2 s[16:17], s[0:1], 88   ; ws")
    o("    s_load_dwordx2 s[64:65], s[0:1], 0    ; x")
    def code_pf():
        o("    s_cmp_lg_u32 s50, 8")
        o("    s_cbranch_scc1 K1_NOCPF")
        o("    s_getpc_b64 s[66:67]")
        L("K1_PC")
        o("    v_and_b32 v78, 3, v0")
        o("    s_lshr_b32 s68, s2, 3")
        o("    s_lshl_b32 s68, s68, 9")
        o("    v_lshl_add_u32 v78, v78, 7, s68")
        o(f"    v_min_u32 v77, CODE_END-K1_PC-4, v78")
        o("    s_mov_b64 exec, 15")
        o(f"    global_load_dword v76, v77, s[66:67]")
        o("    s_mov_b64 exec, -1")
        L("K1_NOCPF")
    def xtouch():
        XL = int(os.environ.get("XL", "16"))
        srd(68, 64, 65, N * 512)
        o("    s_lshr_b32 s66, s2, 3")
        o("    s_mul_i32 s66, s66, 10")
        o("    s_add_u32 s66, s66, s50")
        o(f"    s_mul_i32 s66, s66, {XL*128}")
        o(f"    s_add_u32 s66, s66, {1<<21}")
        o("    v_lshl_add_u32 v77, v70, 3, s66")
        o(f"    s_mov_b64 exec, {hex((1<<XL)-1)}")
        o("    buffer_load_dword v78, v77, s[68:71], 0 offen")
        o("    s_mov_b64 exec, -1")
    D, S, EA, RA, RB = 4, 8, 12, 20, 24
    BN, RK, ST = 28, 32, 36
    T = 40
    WFR = 48
    C = 56
    o("    v_lshrrev_b32 v70, 6, v0")
    o("    v_lshlrev_b32 v1, 2, v0               ; tid*4")
    o("    v_readfirstlane_b32 s50, v70")
    o(f"    s_mul_i32 s3, s2, {CH}")
    o("    v_add_u32 v2, s3, v1")
    o("    v_lshlrev_b32 v3, 2, v2")
    o(f"    v_lshlrev_b32 v{T}, 3, v2")
    o(f"    v_mul_u32_u24 v{T+1}, 6, v2")
    o("    s_cmp_eq_u32 s50, 10")
    o("    s_cbranch_scc1 K1_AUX")
    o("    s_waitcnt lgkmcnt(0)")
    stamp(1, SV)
    srd(20, 10, 11, E * 4)
    o(f"    buffer_load_dwordx4 {vr(D,4)}, v3, s[20:23], 0 offen {K1LD}")
    srd(24, 8, 9, E * 4)
    srd(28, 6, 7, E * 8)
    srd(32, 4, 5, E * 6)
    def payload1():
        o(f"    buffer_load_dwordx4 {vr(S,4)}, v3, s[24:27], 0 offen {K1LD}")
        o(f"    buffer_load_dwordx3 {vr(RA,3)}, v{T+1}, s[32:35], 0 offen {K1LD2}")
        o(f"    buffer_load_dwordx3 {vr(RB,3)}, v{T+1}, s[32:35], 0 offen offset:12 {K1LD2}")
    def payload2():
        o(f"    buffer_load_dwordx4 {vr(EA,4)}, v{T}, s[28:31], 0 offen {K1LD2}")
        o(f"    buffer_load_dwordx4 {vr(EA+4,4)}, v{T}, s[28:31], 0 offen offset:16 {K1LD2}")
    o("    v_lshlrev_b32 v71, 4, v0              ; tid*16")
    o("    v_and_b32 v70, 63, v0")
    o("    v_lshlrev_b32 v70, 4, v70             ; lane*16")
    o("    s_cmp_lt_u32 s50, 8")
    o("    s_cselect_b32 s51, -1, 0")
    for i in range(4):
        o(f"    v_mov_b32 v{60+i}, s51")
    o("    s_cbranch_scc0 K1_INIT2")
    o(f"    ds_write_b128 v71, v[60:63] offset:{K1_T2}")
    o("    s_branch K1_INIT3")
    L("K1_INIT2")
    o(f"    ds_write_b128 v70, v[60:63] offset:{K1_CNT}")
    L("K1_INIT3")
    o(f"    s_mul_i32 s36, s2, {CH*16}")
    o("    s_add_u32 s36, s16, s36")
    o("    s_addc_u32 s37, s17, 0")
    o("    s_and_b32 s37, s37, 0xffff")
    o(f"    s_mov_b32 s38, {CH*16}")
    o("    s_mov_b32 s39, 0x00020000")
    o(f"    s_add_u32 s40, s3, {WS_KEY}")
    o("    s_add_u32 s40, s16, s40")
    o("    s_addc_u32 s41, s17, 0")
    o("    s_and_b32 s41, s41, 0xffff")
    o(f"    s_mov_b32 s42, {CH}")
    o("    s_mov_b32 s43, 0x00020000")
    srd(44, 16, 17, WS_END)
    o("    s_mov_b32 s62, 0x05040100")
    o("    s_mov_b32 s63, 0x05040302")
    for r in range(1, 4):
        o(f"    v_add_u32 v{71+r}, {r*10240}, v71")
    o("    s_waitcnt lgkmcnt(0)")
    o("    s_barrier")
    payload1()
    if K1ORD == 1:
        payload2()
    if CPF == 1:
        code_pf()
    o(f"    v_cmp_gt_u32 vcc, {CH//4}, v0")
    o("    s_mov_b64 s[60:61], vcc")
    o("    s_mov_b64 exec, vcc")
    o("    v_mov_b32 v2, 1")
    o(f"    s_waitcnt vmcnt({5 if K1ORD == 1 else 3})")
    stamp(2, SV)
    for j in range(4):
        o(f"    v_mul_u32_u24 v{D+j}, {BINM}, v{D+j}")
    for j in range(4):
        o(f"    v_lshrrev_b32 v{BN+j}, 14, v{D+j}")
    for j in range(4):
        o(f"    v_and_b32 v{BN+j}, 0x3fc, v{BN+j}")
    for j in range(4):
        o(f"    ds_add_rtn_u32 v{RK+j}, v{BN+j}, v2 offset:{K1_CNT}")
    o("    s_mov_b64 exec, -1")
    if K1ORD == 3:
        payload2()
    o("    s_waitcnt lgkmcnt(0)")
    o("    s_barrier")
    stamp(3, SV)
    o(f"    ds_read_b128 {vr(C,4)}, v70 offset:{K1_CNT}")
    if K1ORD == 2:
        payload2()
    for j in range(4):
        o(f"    v_and_b32 v{D+j}, 0xffff, v{D+j}")
        o(f"    v_mul_u32_u24 v{D+j}, 40018, v{D+j}")
        o(f"    v_bfe_u32 v{ST+j}, v{D+j}, 26, 3       ; local&7")
        o(f"    v_lshrrev_b32 v{D+j}, 29, v{D+j}       ; local>>3")
        if ZZ > 1:
            o(f"    v_and_b32 v{44+j}, 1, v{D+j}             ; k&1")
            o(f"    v_mul_u32_u24 v{D+j}, {ZZ}, v{D+j}")
        o(f"    v_lshl_add_u32 v{D+j}, v{ST+j}, 4, v{D+j}")
    o("    s_waitcnt lgkmcnt(0)")
    o(f"    v_add_u32 v64, v{C}, v{C+1}")
    o(f"    v_add_u32 v65, v64, v{C+2}")
    o(f"    v_add_u32 v66, v65, v{C+3}")
    o("    v_mov_b32 v67, v66")
    o(f"    v_max3_u32 v68, v{C}, v{C+1}, v{C+2}")
    o(f"    v_max_u32 v68, v68, v{C+3}")
    o("    v_cmp_lt_u32 vcc, 30, v68")
    o("    s_mov_b64 s[54:55], vcc")
    fill = []
    for j in range(4):
        fill.append(f"    v_min_u32 v{WFR+j}, 29, v{RK+j}")
        fill.append(f"    v_lshlrev_b32 v{WFR+j}, 1, v{WFR+j}")
        fill.append(f"    v_subrev_u32 v{WFR+4+j}, 29, v{WFR+j}")
        fill.append(f"    v_min_u32 v{WFR+j}, v{WFR+j}, v{WFR+4+j}")
    def two():
        o(fill.pop(0)); o(fill.pop(0))
    two()
    for sh in (1, 2, 4, 8):
        o(f"    v_add_u32_dpp v67, v67, v67 row_shr:{sh} row_mask:0xf bank_mask:0xf bound_ctrl:0")
        two()
    o("    v_add_u32_dpp v67, v67, v67 row_bcast:15 row_mask:0xa bank_mask:0xf")
    two()
    o("    v_add_u32_dpp v67, v67, v67 row_bcast:31 row_mask:0xc bank_mask:0xf")
    o("    v_sub_u32 v60, v67, v66")
    o(f"    v_add_u32 v61, v60, v{C}")
    o("    v_add_u32 v62, v60, v64")
    o("    v_add_u32 v63, v60, v65")
    o(f"    ds_write_b128 v70, v[60:63] offset:{K1_START}")
    for j in range(4):
        o(f"    ds_read_b32 v{ST+j}, v{BN+j} offset:{K1_START}")
    while fill:
        o(fill.pop(0))
    for j in range(4):
        o(f"    v_lshl_add_u32 v{WFR+j}, v{BN+j}, 3, v{WFR+j}")
    o("    s_cmp_lt_u32 s50, 8")
    o("    s_cbranch_scc1 K1_NOTAB")
    o("    v_lshlrev_b32 v68, 3, v70")
    for j in range(4):
        o(f"    v_cmp_lt_u32 vcc, 30, v{C+j}")
        o(f"    v_or_b32 v69, 0x8000, v{60+j}")
        o(f"    v_lshl_or_b32 v{C+j}, v{C+j}, 16, v{60+j}")
        o(f"    v_cndmask_b32 v69, v{60+j}, v69, vcc")
        o(f"    ds_write_b16 v68, v69 offset:{K1_T2 + 32*j + 30}")
    L("K1_NOTAB")
    o("    s_mov_b64 exec, s[60:61]")
    if P > 1:
        o("    s_waitcnt vmcnt(4)")
        for j in range(4):
            o(f"    v_mul_u32_u24 v{WFR+4+j}, {PHM}, v{S+j}")
            o(f"    v_lshrrev_b32 v{WFR+4+j}, 23, v{WFR+4+j}")
            o(f"    v_mad_u32_u24 v{D+j}, v{WFR+4+j}, 5, v{D+j}")
    if ZZ > 1:
        o("    s_waitcnt vmcnt(4)")
        for j in range(4):
            o(f"    v_mul_u32_u24 v{WFR+4+j}, {(ZZ << 23) // 10000}, v{S+j}")
            o(f"    v_lshrrev_b32 v{WFR+4+j}, 23, v{WFR+4+j}     ; sub")
            o(f"    v_sub_u32 v64, {ZZ-1}, v{WFR+4+j}")
            o(f"    v_sub_u32 v64, v64, v{WFR+4+j}")
            o(f"    v_mad_i32_i24 v64, v64, v{44+j}, v{WFR+4+j}")
            o(f"    v_add_u32 v{D+j}, v{D+j}, v64")
    for j in range(4):
        o(f"    ds_write_b8 v{WFR+j}, v{D+j} offset:{K1_T2}")
    o("    s_waitcnt lgkmcnt(4)")
    for j in range(4):
        o(f"    v_add_u32 v{ST+j}, v{ST+j}, v{RK+j}     ; pos")
    o("    s_cmp_eq_u64 s[54:55], 0")
    o("    s_cbranch_scc1 K1_NOKEY")
    for j in range(4):
        o(f"    ds_write_b8 v{ST+j}, v{D+j} offset:{K1_KEY}")
    L("K1_NOKEY")
    for j in range(4):
        o(f"    v_lshlrev_b32 v{RK+j}, 4, v{ST+j}")
        o(f"    v_add_u32 v{RK+j}, {K1_REC}, v{RK+j}")
    TY = 44
    def t2_out(wait):
        o("    s_cmp_lt_u32 s50, 8")
        o("    s_cbranch_scc0 K1_NT2")
        o("    s_lshl_b32 s52, s2, 13")
        o(f"    s_add_u32 s52, s52, {WS_T2}")
        o(f"    s_waitcnt lgkmcnt({wait})")
        o(f"    buffer_store_dwordx4 v[60:63], v71, s[44:47], s52 offen {K1ST}")
        o("    s_branch K1_NT1")
        L("K1_NT2")
        o("    s_lshl_b32 s52, s2, 10")
        o(f"    s_add_u32 s52, s52, {WS_TAB}")
        o(f"    buffer_store_dwordx4 {vr(C,4)}, v70, s[44:47], s52 offen {K1ST}")
        L("K1_NT1")
    if T2E:
        o("    s_mov_b64 exec, -1")
        o("    s_waitcnt lgkmcnt(0)")
        o("    s_barrier")
        o(f"    ds_read_b128 v[60:63], v71 offset:{K1_T2}")
        t2_out(0)
        o("    s_mov_b64 exec, s[60:61]")
    o(f"    s_waitcnt vmcnt({2+T2E})")
    o(f"    v_alignbit_b32 v{TY}, v{RA+2}, v{RA+1}, 16")
    o(f"    v_perm_b32 v{TY+1}, v{S+1}, v{RA+2}, s63")
    o(f"    v_perm_b32 v{RA+1}, v{S}, v{RA+1}, s62")
    o(f"    v_alignbit_b32 v{TY+2}, v{RB+2}, v{RB+1}, 16")
    o(f"    v_perm_b32 v{TY+3}, v{S+3}, v{RB+2}, s63")
    o(f"    v_perm_b32 v{RB+1}, v{S+2}, v{RB+1}, s62")
    yp = [RA, TY, RB, TY + 2]
    if K1SPL:
        for j in range(4):
            o(f"    ds_write_b64 v{RK+j}, {vr(yp[j],2)} offset:8")
    o(f"    s_waitcnt vmcnt({1+T2E})")
    for j in range(4):
        if j == 2:
            o(f"    s_waitcnt vmcnt({T2E})")
            stamp(4, SV)
        if K1SPL:
            o(f"    ds_write_b64 v{RK+j}, {vr(EA+2*j,2)}")
        else:
            o(f"    ds_write2_b64 v{RK+j}, {vr(EA+2*j,2)}, {vr(yp[j],2)} offset0:0 offset1:1")
    o("    s_mov_b64 exec, -1")
    if CPF == 2:
        code_pf()
    o("    s_waitcnt lgkmcnt(0)")
    o("    s_barrier")
    stamp(5, SV)
    if XEND == "mid":
        xtouch()
    for r in range(4):
        o(f"    ds_read_b128 {vr(4+4*r,4)}, v71 offset:{K1_REC + r*10240}")
    if not T2E:
        o(f"    ds_read_b128 v[60:63], v71 offset:{K1_T2}")
    o(f"    ds_read_b32 v20, v1 offset:{K1_KEY}")
    for r in range(4):
        o(f"    s_waitcnt lgkmcnt({5-T2E-r})")
        o(f"    buffer_store_dwordx4 {vr(4+4*r,4)}, v{71+r}, s[36:39], 0 offen {K1ST}")
    if not T2E:
        t2_out(1)
    o("    s_cmp_eq_u64 s[54:55], 0")
    o("    s_cbranch_scc1 K1_NOKEY2")
    o("    s_waitcnt lgkmcnt(0)")
    o("    buffer_store_dword v20, v1, s[40:43], 0 offen")
    L("K1_NOKEY2")
    if XEND == "end2":
        xtouch()
    if XEND == "end":
        xtouch()
    stamp(6, SV)
    if STAMP:
        o("    s_waitcnt vmcnt(0)")
    stamp(7, SV)
    stamp_dump(16, 17, 50, 10, 64 << 20, SV)
    L("K1_END")
    o("    s_endpgm")
    L("K1_AUX")
    if "auxoff" in EXP:
        o("    s_endpgm")
    o("    s_load_dwordx2 s[18:19], s[0:1], 40   ; w_rad")
    o("    s_load_dwordx4 s[12:15], s[0:1], 48")
    o("    v_and_b32 v0, 63, v0")
    o("    s_barrier")
    o("    s_waitcnt lgkmcnt(0)")
    if CPF == 3:
        o("    s_getpc_b64 s[66:67]")
        L("K1_PC")
        o("    s_lshr_b32 s68, s2, 3")
        o("    s_lshl_b32 s68, s68, 9")
        o("    s_min_u32 s68, s68, CODE_END-K1_PC-452")
        for i in range(8):
            o(f"    s_load_dword s{32+i}, s[66:67], s68")
            o("    s_add_u32 s68, s68, 64")
    if TLBW & 1:
        o("    s_load_dword s29, s[18:19], 0")
        o("    s_load_dword s30, s[12:13], 0")
        o("    s_load_dword s31, s[14:15], 0")
    o("    s_barrier")
    o("    s_cmp_ge_u32 s2, 45")
    o("    s_cbranch_scc1 K1_END")
    srd(44, 16, 17, WS_END)
    o("    s_cmp_ge_u32 s2, 40")
    o("    s_cbranch_scc1 K1_AUXR")
    o("    s_mul_i32 s51, s2, 26")
    o("    s_lshr_b32 s51, s51, 8                ; t")
    o("    s_mul_i32 s52, s51, 10")
    o("    s_sub_u32 s52, s2, s52                ; q")
    o("    s_cmp_lt_u32 s52, 4")
    o("    s_cselect_b32 s56, s12, s14")
    o("    s_cselect_b32 s57, s13, s15")
    o("    s_movk_i32 s58, 16384")
    o("    s_cselect_b32 s58, s58, 24576")
    o("    s_and_b32 s57, s57, 0xffff")
    o("    s_mov_b32 s59, 0x00020000")
    o("    v_lshrrev_b32 v70, 4, v0              ; g'")
    o("    v_and_b32 v71, 15, v0")
    o("    v_lshlrev_b32 v71, 1, v71")
    o("    s_lshl_b32 s53, s51, 5")
    o("    v_add_u32 v71, s53, v71               ; (16t+m)*2")
    o("    s_cmp_ge_u32 s52, 8")
    o("    s_cbranch_scc1 K1_FRAGX")
    o("    s_and_b32 s53, s52, 1")
    o("    s_lshl_b32 s53, s53, 5")
    o("    s_bfe_u32 s55, s52, 0x10001           ; (q>>1)&1")
    o("    s_add_u32 s53, s53, s55")
    o("    s_lshl_b32 s53, s53, 7")
    o("    v_lshl_add_u32 v71, v70, 10, v71")
    o("    v_add_u32 v71, s53, v71")
    o("    v_add_u32 v72, 8192, v71")
    for i in range(8):
        o(f"    buffer_load_ushort v{WFR+i}, v{71+(i&1)}, s[56:59], 0 offen offset:{(i>>1)*256}")
    o("    s_branch K1_FRAGW")
    L("K1_FRAGX")
    o("    s_and_b32 s53, s52, 1")
    o("    s_add_u32 s53, s53, 128")
    o("    s_lshl_b32 s53, s53, 7")
    o("    v_lshl_add_u32 v71, v70, 11, v71")
    o("    v_add_u32 v71, s53, v71")
    for i in range(8):
        o(f"    buffer_load_ushort v{WFR+i}, v71, s[56:59], 0 offen offset:{i*256}")
    L("K1_FRAGW")
    for _ in range(1 + T2E):
        o("    s_barrier")
    o("    s_waitcnt vmcnt(0)")
    for p in range(4):
        o(f"    v_lshl_or_b32 v{WFR+p}, v{WFR+2*p+1}, 16, v{WFR+2*p}")
    o("    s_branch K1_AUXS")
    L("K1_AUXR")
    srd(56, 18, 19, 2560)
    o("    v_and_b32 v70, 31, v0")
    o("    v_lshrrev_b32 v71, 5, v0")
    o("    v_lshlrev_b32 v70, 2, v70")
    o("    v_lshl_add_u32 v70, v71, 1, v70")
    o("    s_sub_u32 s52, s2, 40")
    o("    s_lshl_b32 s52, s52, 7")
    o("    v_add_u32 v70, s52, v70")
    for d in range(4):
        o(f"    buffer_load_ushort v{WFR+d}, v70, s[56:59], 0 offen offset:{d*640}")
    for _ in range(1 + T2E):
        o("    s_barrier")
    o("    s_waitcnt vmcnt(0)")
    for d in range(4):
        o(f"    v_lshlrev_b32 v{WFR+d}, 16, v{WFR+d}")
    L("K1_AUXS")
    o("    s_lshl_b32 s52, s2, 10")
    o(f"    s_add_u32 s52, s52, {WS_WF}")
    o("    v_lshlrev_b32 v70, 4, v0")
    o(f"    buffer_store_dwordx4 {vr(WFR,4)}, v70, s[44:47], s52 offen {K1ST}")
    o("    s_endpgm")

def gen_k2():
    B, ACC, S, W = 0, 64, 128, 184
    A = [204, 208]
    VO = [212, 220]
    LT, AM1, AM2 = 228, 232, 236
    RR = 240
    ZR = 244
    vA, vV, vRaw, vCw, vVw, vN4, vMask, vEnds, vPar, vIdx = range(246, 256)
    vLane = 125
    TT = 128
    vD4, vD2, vSa = 139, 140, 141
    TC = AM1
    WF = 144
    sX, sWS, sOUT, sWR = 12, 16, 20, 24
    sBin, sNN, sWave, sMode, sJlo, sMax = 28, 29, 30, 31, 32, 33
    sNs, sGen, sCnt, sSeg, sK, sLo, sHi, sRel, sRet, sRem = range(34, 44)
    sD0, sD1, sD2 = 44, 45, 46
    sEnd, sNext = 54, 55
    sWFl = 88
    sLeft, sPT = 89, 90
    sFast = 38
    sT, sT2, sT3 = 47, 48, 49
    sSave = 50
    sAny2 = 52
    sM1 = 56
    sM2 = 72
    sLM = 24
    sOv = 26

    def accr(v, u, d):
        cc = 2 * (d >> 1) + (u >> 1)
        e = 2 * (u & 1) + (d & 1)
        return ACC + 16 * v + 4 * cc + e
    def wreg(p, d):
        return W + 4 * p + d

    o(".globl tp_main_kernel")
    o(f".p2align {os.environ.get('K2AL', '8')}")
    o(".type tp_main_kernel,@function")
    L("tp_main_kernel")
    o(f"    s_cmp_ge_u32 s2, {NWG}")
    o("    s_cbranch_scc1 K2_END")
    stamp(0)
    o("    s_load_dwordx2 s[4:5], s[0:1], 0      ; x")
    o("    s_load_dwordx2 s[8:9], s[0:1], 72     ; out")
    o("    s_load_dwordx2 s[10:11], s[0:1], 88   ; ws")
    o("    v_lshrrev_b32 v1, 6, v0")
    o(f"    v_and_b32 v{vLane}, 63, v0")
    o(f"    v_readfirstlane_b32 s{sWave}, v1")
    o(f"    s_and_b32 s{sBin}, s2, 7")
    o(f"    s_lshl_b32 s{sBin}, s{sBin}, 5")
    o(f"    s_lshr_b32 s{sT}, s2, 3")
    o(f"    s_add_u32 s{sBin}, s{sBin}, s{sT}")
    HD, KY, RK1, RK2, AD1, AD2, RO, TM = 64, 72, 80, 88, 96, 104, 112, 120
    vW0, vJ = 126, 127

    def prefetch0():
        o(f"    s_lshr_b32 s{sT}, s2, 3")
        o(f"    s_lshl_b32 s{sT}, s{sT}, 3")
        o(f"    s_add_u32 s{sT}, s{sT}, s{sWave}")
        o(f"    s_lshl_b32 s{sT}, s{sT}, 13")
        o(f"    v_lshl_add_u32 v143, v{vLane}, 7, s{sT}")
        if PFL < 64:
            o(f"    s_mov_b64 exec, {hex((1 << PFL) - 1)}")
        for i in range(PF0):
            o(f"    buffer_load_dword v143, v143, {sr(sX,4)}, 0 offen")
            if i + 1 < PF0:
                o(f"    v_add_u32 v143, {256*8192}, v143")
    def w_loads():
        if WLDS:
            return
        o(f"    s_mov_b32 s{sT}, {WS_WR}")
        for p in range(5):
            if p == 4:
                o(f"    s_add_u32 s{sT}, s{sT}, 4096")
            o(f"    buffer_load_dwordx4 {vr(W+4*p,4)}, v{TM+1}, {sr(sWS,4)}, s{sT} offen offset:{(p%4)*1024}")
    def dump_addr():
        o(f"    s_mul_i32 s{sT}, s{sWave}, {SDS}")
        o(f"    s_add_u32 s{sT}, s{sT}, {SD}")
        o(f"    v_lshl_add_u32 v{vD4}, v{vLane}, 2, s{sT}")
        o(f"    s_add_u32 s{sT}, s{sT}, 1024")
        o(f"    v_lshl_add_u32 v{vD2}, v{vLane}, 1, s{sT}")
        o(f"    s_mul_i32 s{sT}, s{sBin}, 40")
        o(f"    s_add_u32 s{sT}, s{sT}, s{sWave}")
        o(f"    s_mul_i32 s{sT}, s{sT}, 2816")
        o(f"    s_add_u32 s{sT}, s{sT}, {WS_S32}")
        o(f"    v_lshl_add_u32 v{vSa}, v{vLane}, 2, s{sT}")
    def wf_loads(tmp):
        o(f"    v_mbcnt_lo_u32_b32 v{tmp}, -1, 0")
        o(f"    v_mbcnt_hi_u32_b32 v{tmp}, -1, v{tmp}")
        o(f"    s_mul_i32 s{sT}, s{sWave}, 10240")
        o(f"    v_lshlrev_b32 v{tmp}, 4, v{tmp}")
        o(f"    s_add_u32 s{sT}, s{sT}, {WS_WF}")
        for f in range(10):
            if f == 4 or f == 8:
                o(f"    s_add_u32 s{sT}, s{sT}, 4096")
            o(f"    buffer_load_dwordx4 {vr(WF+4*f,4)}, v{tmp}, {sr(sWS,4)}, s{sT} offen offset:{(f%4)*1024}")
        o(f"    s_mov_b32 s{sWFl}, 1")
    def lane_id():
        o(f"    v_mbcnt_lo_u32_b32 v{vLane}, -1, 0")
        o(f"    v_mbcnt_hi_u32_b32 v{vLane}, -1, v{vLane}")
    def lane_prep():
        o(f"    v_lshrrev_b32 v{vW0}, 4, v{vLane}")
        o(f"    s_lshl_b32 s{sT}, s{sWave}, 5")
        o(f"    v_add_u32 v{vW0}, s{sT}, v{vW0}")
        o(f"    v_and_b32 v{vJ}, 15, v{vLane}")
        o(f"    v_lshlrev_b32 v{TM}, 10, v{vW0}")
    def hdr_loads():
        o(f"    s_lshl_b32 s{sT}, s{sBin}, 2")
        o(f"    s_add_u32 s{sT}, s{sT}, {WS_TAB}")
        for i in range(8):
            o(f"    buffer_load_dword v{HD+i}, v{TM}, {sr(sWS,4)}, s{sT} offen")
            if i < 7:
                o(f"    s_add_u32 s{sT}, s{sT}, 4096")
    lane_prep()
    o(f"    v_lshlrev_b32 v{TM+1}, 13, v{vW0}")
    o(f"    v_lshl_add_u32 v{TM+1}, v{vJ}, 1, v{TM+1}")
    o(f"    s_lshl_b32 s{sT}, s{sBin}, 5")
    o(f"    s_add_u32 s{sT}, s{sT}, {WS_T2}")
    o("    s_waitcnt lgkmcnt(0)")
    stamp(1)
    srd(sWS, 10, 11, WS_END)
    for i in range(8):
        o(f"    buffer_load_ushort v{KY+i}, v{TM+1}, {sr(sWS,4)}, s{sT} offen")
        if i < 7:
            o(f"    s_add_u32 s{sT}, s{sT}, 32768")
    if WLDS:
        o(f"    v_lshlrev_b32 v{W+4}, 4, v0                 ; tid*16")
        o(f"    v_min_u32 v{W+4}, 5104, v{W+4}")
        o(f"    s_mov_b32 s{sT}, {WS_WR}")
        o(f"    buffer_load_dwordx4 {vr(W,4)}, v{W+4}, {sr(sWS,4)}, s{sT} offen")
    srd(sX, 4, 5, N * 512)
    o(f"    v_and_b32 v{TM+2}, 31, v{vLane}")
    o(f"    v_lshlrev_b32 v{vN4}, 2, v{TM+2}")
    o(f"    v_lshrrev_b32 v{TM+3}, 5, v{vLane}      ; g = l>>5")
    o(f"    s_lshl_b32 s{sT}, s{sBin}, 16")
    o(f"    s_add_u32 s{sT}, s{sT}, {BINM-1}")
    o(f"    s_mul_hi_u32 s{sT2}, s{sT}, 0x27144e     ; n0")
    o(f"    s_add_u32 s{sT}, s{sT}, 0x10000")
    o(f"    s_mul_hi_u32 s{sT}, s{sT}, 0x27144e")
    o(f"    s_min_u32 s{sT}, s{sT}, {N}")
    o(f"    s_sub_u32 s{sNN}, s{sT}, s{sT2}")
    o(f"    s_lshl_b32 s{sT}, s{sT2}, 9")
    o(f"    s_add_u32 s{sOUT}, s8, s{sT}")
    o(f"    s_addc_u32 s{sOUT+1}, s9, 0")
    o(f"    s_and_b32 s{sOUT+1}, s{sOUT+1}, 0xffff")
    o(f"    s_lshl_b32 s{sOUT+2}, s{sNN}, 9")
    o(f"    s_mov_b32 s{sOUT+3}, 0x00020000")
    o(f"    s_mov_b32 s{sMode}, 0")
    o(f"    s_mov_b32 s{sFast}, 0")
    o(f"    s_lshr_b32 s{sWFl}, s{sWave}, 2")
    o(f"    s_mov_b32 s{sJlo}, 0")
    o("    v_lshrrev_b32 v5, 3, v0               ; e")
    o("    v_and_b32 v6, 7, v0")
    o("    v_lshlrev_b32 v6, 1, v6               ; 8ha+2p")
    o("    v_sub_u32 v5, v5, v6                  ; e-(8ha+2p)")
    o("    v_med3_i32 v5, v5, 0, 2")
    o("    v_lshlrev_b32 v5, 4, v5")
    o("    v_mov_b32 v6, -1")
    o("    v_mov_b32 v7, 0")
    o("    v_lshlrev_b64 v[6:7], v5, v[6:7]")
    o("    v_cmp_gt_u32 vcc, 256, v0")
    o("    v_lshlrev_b32 v3, 2, v0")
    o(f"    v_add_u32 v3, {MASK}, v3")
    o("    v_cndmask_b32 v2, 0, v7, vcc")
    o("    ds_write_b32 v3, v2")
    o("    v_mov_b32 v2, 0")
    o(f"    v_mov_b32 v3, {MISC}")
    o("    ds_write2_b32 v3, v2, v2 offset0:0 offset1:1")
    o(f"    v_mov_b32 v{ZR}, 0")
    o(f"    v_mov_b32 v{ZR+1}, 0")
    o(f"    v_and_b32 v4, 1, v{vLane}")
    o(f"    v_sub_u32 v{vPar}, 0, v4")
    o(f"    v_bfe_u32 v4, v{vLane}, 2, 1")
    o(f"    v_mul_u32_u24 v{vIdx}, 0x5555, v4")
    o(f"    v_add_u32 v{vIdx}, 0x8888, v{vIdx}       ; 0x8888 / 0xdddd")
    o(f"    v_lshlrev_b32 v{vMask}, 4, v{TM+3}")
    o(f"    v_add_u32 v{vMask}, {MASK}, v{vMask}")
    o("    s_waitcnt lgkmcnt(0)")
    o(f"    s_movk_i32 s{sT}, {CH}")
    o(f"    v_mad_u32_u24 v{TM+2}, v{vW0}, s{sT}, v{vJ}   ; w0*2500 + j")
    o(f"    s_mov_b32 s{sLM}, 0x7fff7fff")
    o(f"    s_mov_b32 s{sLM+1}, 0x7fff7fff")
    o(f"    s_mov_b64 {sr(sOv,2)}, -1")
    o(f"    s_mov_b64 {sr(sAny2,2)}, 0")
    o(f"    v_mov_b32 v{TM+4}, {CNT}")
    o(f"    v_lshlrev_b32 v{TM+1}, 4, v{vLane}")
    o("    s_barrier")
    def rec_load(i):
        o(f"    s_mov_b32 s{sT}, {i*4*CH*16}")
        if RMASK:
            o(f"    s_or_b64 exec, {sr(sM1+2*i,2)}, 1")
        o(f"    buffer_load_dwordx4 {vr(4*i,4)}, v{RO+i}, {sr(sWS,4)}, s{sT} offen")
        if RMASK:
            o("    s_mov_b64 exec, -1")
    o(f"    v_mov_b32 v{TM}, 1")
    for i in range(8):
        o(f"    s_waitcnt vmcnt({7 - i + min(i, NEARLY) + WLDS})")
        if i == 0:
            stamp(2)
        o(f"    v_mov_b32_dpp v{RO+i}, v{KY+i} row_newbcast:15 row_mask:0xf bank_mask:0xf")
        o(f"    v_and_b32 v{AD1+i}, 0xff, v{KY+i}")
        o(f"    v_and_b32 v{RO+i}, 0xfff, v{RO+i}")
        o(f"    v_cmp_gt_u32 vcc, 0x80, v{AD1+i}")
        o(f"    v_add_lshl_u32 v{RO+i}, v{RO+i}, v{TM+2}, 4")
        o(f"    v_lshl_add_u32 v{AD1+i}, v{AD1+i}, 2, v{TM+4}")
        o(f"    s_and_b64 {sr(sM1+2*i,2)}, vcc, {sr(sLM,2)}")
        if i < NEARLY:
            rec_load(i)
        o(f"    v_cmp_gt_u32 vcc, 0x8000, v{KY+i}")
        o(f"    s_mov_b64 exec, {sr(sM1+2*i,2)}")
        o(f"    ds_add_rtn_u32 v{RK1+i}, v{AD1+i}, v{TM}")
        o("    s_mov_b64 exec, -1")
        o(f"    s_and_b64 {sr(sM2+2*i,2)}, vcc, {sr(sLM,2)}")
        o(f"    s_and_b64 {sr(sOv,2)}, {sr(sOv,2)}, vcc")
        o(f"    s_or_b64 {sr(sAny2,2)}, {sr(sAny2,2)}, {sr(sM2+2*i,2)}")
    o("    s_cbranch_scc0 K2_NO2B")
    o("    s_waitcnt lgkmcnt(4)")
    for i in range(8):
        o(f"    s_mov_b64 exec, {sr(sM2+2*i,2)}")
        o(f"    s_cbranch_execz K2_NK2{i}")
        o(f"    v_lshrrev_b32 v{AD2+i}, 8, v{KY+i}")
        o(f"    v_lshl_add_u32 v{AD2+i}, v{AD2+i}, 2, v{TM+4}")
        o(f"    ds_add_rtn_u32 v{RK2+i}, v{AD2+i}, v{TM}")
        L(f"K2_NK2{i}")
    o("    s_mov_b64 exec, -1")
    L("K2_NO2B")
    if WLDS:
        o(f"    v_add_u32 v{W+4}, {WST}, v{W+4}")
    o(f"    s_or_b64 {sr(sOv,2)}, {sr(sOv,2)}, {sr(sLM,2)}")
    o(f"    s_cmp_eq_u64 {sr(sOv,2)}, -1")
    o("    s_cbranch_scc1 K2_RANKD")
    o(f"    v_mov_b32 v{TM}, {MISC}")
    o(f"    ds_write_b32 v{TM}, v{TM}")
    L("K2_RANKD")
    c0, c1, i0, i1, tt0, tt1, e0, e1, p0, p1, a0, a1, b0, b1, ad, mx = range(204, 220)
    o(f"    v_lshlrev_b32 v{ad}, 2, v{vLane}")
    o(f"    v_add_u32 v{ad}, {CNT}, v{ad}")
    o(f"    v_mov_b32 v{mx}, {MISC}")
    o("    s_waitcnt lgkmcnt(0)")
    o("    s_barrier")
    stamp(3)
    o(f"    ds_read2st64_b32 v[{c0}:{c1}], v{ad} offset0:0 offset1:1")
    o(f"    ds_read_b32 v{mx}, v{mx}")
    o(f"    s_cmp_lg_u32 s{sMode}, 0")
    o("    s_cbranch_scc1 K2_NOLATE")
    for i in range(NEARLY, NEARLY + 2):
        rec_load(i)
    L("K2_NOLATE")
    o("    s_waitcnt lgkmcnt(0)")
    o(f"    v_mov_b32 v{i0}, v{c0}")
    o(f"    v_mov_b32 v{i1}, v{c1}")
    o(f"    v_readfirstlane_b32 s{sT3}, v{mx}")
    for sh in (1, 2, 4, 8):
        o(f"    v_add_u32_dpp v{i0}, v{i0}, v{i0} row_shr:{sh} row_mask:0xf bank_mask:0xf bound_ctrl:0")
        o(f"    v_add_u32_dpp v{i1}, v{i1}, v{i1} row_shr:{sh} row_mask:0xf bank_mask:0xf bound_ctrl:0")
        o("    s_nop 0")
    o(f"    v_mov_b32_dpp v{tt0}, v{i0} row_newbcast:15 row_mask:0xf bank_mask:0xf")
    o(f"    v_mov_b32_dpp v{tt1}, v{i1} row_newbcast:15 row_mask:0xf bank_mask:0xf")
    o(f"    v_add_u32 v{e0}, 15, v{tt0}")
    o(f"    v_add_u32 v{e1}, 15, v{tt1}")
    o(f"    v_and_b32 v{e0}, -16, v{e0}")
    o(f"    v_and_b32 v{e1}, -16, v{e1}")
    o(f"    v_mov_b32 v{p0}, v{e0}")
    o(f"    v_mov_b32 v{p1}, v{e1}")
    o(f"    v_add_u32_dpp v{e0}, v{e0}, v{e0} row_bcast:15 row_mask:0xa bank_mask:0xf")
    o(f"    v_add_u32_dpp v{e1}, v{e1}, v{e1} row_bcast:15 row_mask:0xa bank_mask:0xf")
    o("    s_nop 0")
    o(f"    v_add_u32_dpp v{e0}, v{e0}, v{e0} row_bcast:31 row_mask:0xc bank_mask:0xf")
    o(f"    v_add_u32_dpp v{e1}, v{e1}, v{e1} row_bcast:31 row_mask:0xc bank_mask:0xf")
    o("    s_nop 0")
    o(f"    v_readlane_b32 s{sT}, v{e0}, 63")
    o(f"    v_readlane_b32 s{sT2}, v{e1}, 63")
    o(f"    v_sub_u32 v{a0}, v{e0}, v{tt0}")
    o(f"    v_add_u32 v{e1}, s{sT}, v{e1}")
    o(f"    v_add_u32 v{a0}, v{a0}, v{i0}            ; absolute end slot of entry")
    o(f"    v_sub_u32 v{a1}, v{e1}, v{tt1}")
    o(f"    v_add_u32 v{a1}, v{a1}, v{i1}")
    o(f"    v_sub_u32 v{b0}, v{a0}, v{c0}")
    o(f"    v_sub_u32 v{b1}, v{a1}, v{c1}")
    o(f"    ds_write2st64_b32 v{ad}, v{b0}, v{b1} offset0:2 offset1:3")
    o(f"    s_add_u32 s{sT}, s{sT}, s{sT2}")
    o(f"    s_cmp_gt_u32 s{sT}, {SLOTCAP-96}")
    o(f"    s_cselect_b32 s{sT}, 1, 0")
    o(f"    s_cmp_lg_u32 s{sT3}, 0")
    o(f"    s_cselect_b32 s{sT}, 1, s{sT}")
    o(f"    s_cmp_gt_u32 s{sT}, s{sMode}")
    o("    s_cbranch_scc1 K2_GOSLOW")
    for i in range(8):
        o(f"    ds_read_b32 v{AD1+i}, v{AD1+i} offset:512")
    o(f"    s_cmp_lg_u32 s{sMode}, 0")
    o("    s_cbranch_scc1 K2_NO2C")
    for i in range(NEARLY + 2, 8):
        rec_load(i)
    w_loads()
    o(f"    s_cmp_eq_u64 {sr(sAny2,2)}, 0")
    o("    s_cbranch_scc1 K2_NO2C")
    o("    s_waitcnt lgkmcnt(4)")
    for i in range(8):
        o(f"    s_mov_b64 exec, {sr(sM2+2*i,2)}")
        o(f"    s_cbranch_execz K2_NR2{i}")
        o(f"    s_mov_b32 s{sT}, {i*4*CH*16}")
        o(f"    buffer_load_dwordx4 {vr(32+4*i,4)}, v{RO+i}, {sr(sWS,4)}, s{sT} offen offset:240")
        o(f"    ds_read_b32 v{AD2+i}, v{AD2+i} offset:512")
        L(f"K2_NR2{i}")
    o("    s_mov_b64 exec, -1")
    L("K2_NO2C")
    o(f"    s_cmp_lt_u32 s{sWave}, 4")
    o("    s_cselect_b64 vcc, -1, 0")
    o(f"    v_cndmask_b32 v{a0}, v{a1}, v{a0}, vcc")
    o(f"    v_cndmask_b32 v{e0}, v{e1}, v{e0}, vcc")
    o(f"    v_cndmask_b32 v{p0}, v{p1}, v{p0}, vcc")
    o(f"    v_cndmask_b32 v{tt0}, v{tt1}, v{tt0}, vcc")
    o(f"    s_and_b32 s{sSeg}, s{sWave}, 3")
    o(f"    s_lshl_b32 s{sSeg}, s{sSeg}, 4")
    o("    s_nop 0")
    o(f"    v_readlane_b32 s{sT}, v{e0}, s{sSeg}")
    o(f"    v_readlane_b32 s{sT2}, v{p0}, s{sSeg}")
    o(f"    v_readlane_b32 s{sT3}, v{tt0}, s{sSeg}")
    o(f"    v_and_b32 v{b0}, 15, v{vLane}")
    o(f"    v_cmp_le_u32 vcc, {5*ZZ}, v{b0}")
    o(f"    v_mov_b32 v{b0}, 0x7fffffff")
    o(f"    s_sub_u32 s{sT}, s{sT}, s{sT2}")
    o(f"    s_sub_u32 s{sLo}, s{sT2}, s{sT3}         ; pad")
    o(f"    s_lshr_b32 s{sNs}, s{sT2}, 4")
    o(f"    v_subrev_u32 v{vEnds}, s{sT}, v{a0}")
    o(f"    v_cndmask_b32 v{vEnds}, v{vEnds}, v{b0}, vcc")
    o(f"    v_lshrrev_b32 v{vRaw}, 1, v{vLane}")
    o(f"    v_add_u32 v{vRaw}, s{sT}, v{vRaw}")
    o(f"    v_lshlrev_b32 v{vRaw}, 4, v{vRaw}")
    if RAW:
        o(f"    v_add_u32 v{vRaw}, {RAW}, v{vRaw}")
    o(f"    s_mul_i32 s{sT}, s{sWave}, {3*RBLK}")
    o(f"    s_add_u32 s{sT}, s{sT}, {RING}")
    o(f"    s_add_u32 s{sT2}, s{sT}, 1024")
    o(f"    v_lshrrev_b32 v{b0}, 5, v{vLane}         ; ha / g")
    o(f"    v_bfe_u32 v{b1}, v{vLane}, 2, 2          ; rho")
    o(f"    v_lshl_add_u32 v{b1}, v{b0}, 3, v{b1}")
    o(f"    v_bfe_u32 v{c0}, v{vLane}, 1, 1")
    o(f"    v_bfe_u32 v{c1}, v{vLane}, 4, 1")
    o(f"    v_lshl_add_u32 v{c0}, v{c1}, 1, v{c0}")
    o(f"    v_lshl_add_u32 v{c0}, v{c0}, 3, s{sT}")
    o(f"    v_lshl_add_u32 v{vA}, v{b1}, 5, v{c0}")
    o(f"    v_lshl_add_u32 v{vV}, v{b0}, 4, s{sT2}")
    o(f"    v_lshl_add_u32 v{vCw}, v{vLane}, 4, s{sT}")
    o(f"    v_lshrrev_b32 v{b0}, 1, v{vLane}")
    o(f"    v_lshl_add_u32 v{vVw}, v{b0}, 2, s{sT2}")
    dump_addr()
    o("    s_waitcnt lgkmcnt(0)")
    for i in range(8):
        o(f"    v_add_lshl_u32 v{AD1+i}, v{AD1+i}, v{RK1+i}, 4")
    stamp(4)
    for i in range(8):
        o(f"    s_mov_b64 exec, {sr(sM1+2*i,2)}")
        o(f"    s_waitcnt vmcnt({(7 if WLDS else 12)-i + (PF0 if PFPOS == 'd' and i > PFI else 0)})")
        o(f"    ds_write_b128 v{AD1+i}, {vr(4*i,4)} offset:{RAW}")
        if PF0 and PFPOS == "d" and i == PFI:
            o("    s_mov_b64 exec, -1")
            prefetch0()
    o(f"    s_waitcnt vmcnt({PF0 if PFPOS == 'd' else 0})")
    if PF0 and PFPOS == "c":
        o("    s_mov_b64 exec, -1")
        prefetch0()
    o(f"    s_cmp_eq_u64 {sr(sAny2,2)}, 0")
    o("    s_cbranch_scc1 K2_NO2D")
    for i in range(8):
        o(f"    s_mov_b64 exec, {sr(sM2+2*i,2)}")
        o(f"    s_cbranch_execz K2_NS2{i}")
        o(f"    v_add_lshl_u32 v{AD2+i}, v{AD2+i}, v{RK2+i}, 4")
        o(f"    ds_write_b128 v{AD2+i}, {vr(32+4*i,4)} offset:{RAW}")
        L(f"K2_NS2{i}")
    L("K2_NO2D")
    o("    s_mov_b64 exec, -1")
    if WLDS:
        o(f"    v_lshlrev_b32 v{TT}, 4, v{vLane}")
        o(f"    v_add_u32 v{TT}, {WST}, v{TT}")
        o(f"    s_cmp_lg_u32 s{sMode}, 0")
        o("    s_cbranch_scc1 K2_NOWST")
        o(f"    ds_write_b128 v{W+4}, {vr(W,4)}")
        L("K2_NOWST")
    o("    s_waitcnt lgkmcnt(0)")
    o("    s_barrier")
    stamp(5)
    if STAMP:
        o("    s_memtime s[100:101]")
        o("    s_waitcnt lgkmcnt(0)")
        o(f"    v_writelane_b32 v{STV}, s100, 12")
    if "prio" in EXP:
        o(f"    s_cmp_lt_u32 s{sWave}, 4")
        o("    s_cbranch_scc1 K2_NOPRIO")
        o("    s_setprio 1")
        L("K2_NOPRIO")

    def convert(ct, rr=RR, off=0):
        CO = AM1
        a0_, a1_, y0, y1, y2, m0, m1, vo = range(ct, ct + 8)
        o(f"    v_bitop3_b32 v{CO}, v{vPar}, v{rr+1}, v{rr} bitop3:0xca")
        o(f"    v_lshlrev_b32 v{y0}, 16, v{rr+2}")
        o(f"    v_lshlrev_b32 v{a0_}, 16, v{CO}")
        o(f"    v_and_b32 v{a1_}, 0xffff0000, v{CO}")
        o(f"    v_and_b32 v{y1}, 0xffff0000, v{rr+2}")
        o(f"    v_lshlrev_b32 v{y2}, 16, v{rr+3}")
        for u, y in enumerate((y0, y1, y2)):
            o(f"    v_mul_f32 v{m0}, v{a0_}, v{y}")
            o(f"    v_mul_f32 v{m1}, v{a1_}, v{y}")
            o(f"    v_cvt_pk_bf16_f32 v{CO+1+u}, v{m0}, v{m1}")
        o(f"    v_lshrrev_b32 v{vo}, 7, v{rr+3}")
        o(f"    v_and_b32 v{vo}, {hex(int(os.environ.get('SRCMASK','0x1fffe00'),16))}, v{vo}")
        o(f"    ds_write_b128 v{vCw}, {vr(CO,4)} offset:{off}")
        o(f"    ds_write_b32 v{vVw}, v{vo} offset:{off}")

    def loads_tile(x, v, vo):
        for r in range(8):
            o(f"    buffer_load_dword v{B+32*x+8*v+r}, v{vo+r}, {sr(sX,4)}, 0 offen offset:{v*128}")
    def smf(x, v, areg):
        if "q1" in EXP and v != 0:
            return
        if "q2" in EXP and v >= 2:
            return
        if "nomfma" not in EXP:
            o(f"    v_smfmac_f32_32x32x32_bf16 {vr(ACC+16*v,16)}, {vr(areg,4)}, {vr(B+32*x+8*v,8)}, v{vIdx}")
    def zero_tile(v):
        if "nomfma" not in EXP or "keepz" in EXP:
            o(f"    v_mfma_f32_32x32x8_bf16 {vr(ACC+16*v,16)}, {vr(ZR,2)}, {vr(ZR,2)}, 0")
    def mask_read(dst, sreg, tmp):
        o(f"    s_lshl_b32 s{sT}, s{sreg}, 5")
        o(f"    v_add_u32 v{tmp}, s{sT}, v{vMask}")
        o(f"    ds_read_b128 {vr(dst,4)}, v{tmp}")
    terms = [(0, 0, 0, 0, 1)] + [(2 + j, 2, 0, j + 1, 1) for j in range(3)]
    cross = {(2, 3): (0, 1), (3, 2): (0, -1), (3, 1): (1, 1), (1, 3): (1, -1), (1, 2): (2, 1), (2, 1): (2, -1)}
    for v in range(1, 4):
        terms.append((5 + v - 1, 3, v, 0, 1))
        for u in range(1, 4):
            if u == v:
                terms.append((1, 1, v, u, 1))
            else:
                i, sg = cross[(u, v)]
                terms.append((8 + i, 4, v, u, sg))
    first_v = {}
    for (si, p, v_, u, sg) in terms:
        first_v.setdefault(si, (v_, u))
    def fmas(v):
        if "noepi" in EXP:
            return
        tv = [t for t in terms if t[2] == v]
        if PK:
            for dh in range(2):
                for (si, p, v_, u, sg) in tv:
                    t = vr(TT + si, 2)
                    neg3 = " neg_lo:[1,0,0] neg_hi:[1,0,0]" if sg < 0 else ""
                    neg2 = " neg_lo:[1,0] neg_hi:[1,0]" if sg < 0 else ""
                    if dh == 0 and first_v[si] == (v_, u):
                        o(f"    v_pk_mul_f32 {t}, {vr(wreg(p,0),2)}, {vr(accr(v,u,0),2)}{neg2}")
                    else:
                        o(f"    v_pk_fma_f32 {t}, {vr(wreg(p,2*dh),2)}, {vr(accr(v,u,2*dh),2)}, {t}{neg3}")
        else:
            for d in range(4):
                for (si, p, v_, u, sg) in tv:
                    t = TT + si
                    ng = "-" if sg < 0 else ""
                    if d == 0 and first_v[si] == (v_, u):
                        o(f"    v_mul_f32 v{t}, {ng}v{wreg(p,d)}, v{accr(v,u,d)}")
                    elif sg > 0:
                        o(f"    v_fmac_f32 v{t}, v{wreg(p,d)}, v{accr(v,u,d)}")
                    else:
                        o(f"    v_fma_f32 v{t}, -v{wreg(p,d)}, v{accr(v,u,d)}, v{t}")
    def fold():
        if PK:
            for si in range(11):
                o(f"    v_add_f32 v{TT+si}, v{TT+si}, v{TT+si+1}")
    def commit_lds():
        t = lambda si: TT + si
        o(f"    v_cvt_pk_bf16_f32 v{TC}, v{t(0)}, v{t(1)}")
        for j in range(3):
            o(f"    v_cvt_pk_bf16_f32 v{TC+1+j}, v{t(2+j)}, v{t(5+j)}")
        o(f"    v_cvt_pk_bf16_f32 v{TC+4}, v{t(8)}, v{t(9)}")
        o(f"    v_cvt_pk_bf16_f32 v{TC+5}, v{t(10)}, v{t(10)}")
        o(f"    ds_write2st64_b32 v{vD4}, v{TC}, v{TC+1} offset0:0 offset1:1")
        o(f"    ds_write2st64_b32 v{vD4}, v{TC+2}, v{TC+3} offset0:2 offset1:3")
        o(f"    ds_write_b16 v{vD2}, v{TC+4}")
        o(f"    ds_write_b16_d16_hi v{vD2}, v{TC+4} offset:128")
        o(f"    ds_write_b16 v{vD2}, v{TC+5} offset:256")
        o(f"    v_add_u32 v{vD4}, {8*SDS}, v{vD4}")
        o(f"    v_add_u32 v{vD2}, {8*SDS}, v{vD2}")
    pcnt = [0]
    def prio_step():
        if PRIO:
            o(f"    s_and_b32 s{sT}, s{sSeg}, 15")
            for lvl, th in zip((2, 1, 0), PRIO):
                pcnt[0] += 1
                o(f"    s_cmp_lg_u32 s{sT}, {th*ZZ+ZZ-1}")
                o(f"    s_cbranch_scc1 K2_PR{pcnt[0]}")
                o(f"    s_setprio {lvl}")
                L(f"K2_PR{pcnt[0]}")
    def schedule_next():
        o(f"    s_sub_u32 s{sT}, s{sEnd}, 1")
        o(f"    s_and_b32 s{sHi}, s{sT}, 15")
        o(f"    s_add_u32 s{sHi}, s{sHi}, 1")
        o(f"    s_lshr_b32 s{sT}, s{sT}, 4")
        o(f"    s_sub_i32 s{sT2}, s{sNs}, 2")
        o(f"    s_add_u32 s{sT3}, s{sGen}, 1")
        o(f"    s_max_i32 s{sT2}, s{sT2}, s{sT3}")
        o(f"    s_min_u32 s{sGen}, s{sT}, s{sT2}")
        o(f"    s_sub_u32 s{sCnt}, s{sGen}, s{sT3}")

    o(f"    s_cmp_eq_u32 s{sNs}, 0")
    o("    s_cbranch_scc1 K2_EMPTY")
    o(f"    ds_read_b128 {vr(RR,4)}, v{vRaw}")
    o(f"    ds_read_b128 {vr(A[0],4)}, v{vRaw} offset:512")
    if PRIO or RP:
        o("    s_setprio 3")
    if RP:
        o(f"    s_mov_b32 s{sLeft}, s{sNs}")
        o(f"    s_mov_b32 s{sPT}, {RP[0]}")
    o(f"    s_mov_b32 s{sD0}, {RBLK}                ; delta for vA at end of this batch")
    o(f"    s_mov_b32 s{sD1}, {RBLK}")
    o(f"    s_mov_b32 s{sD2}, {-2*RBLK}")
    for v in range(4):
        zero_tile(v)
    o("    s_waitcnt lgkmcnt(1)")
    convert(VO[1])
    o(f"    ds_read_b128 {vr(VO[0],4)}, v{vV}")
    o(f"    ds_read_b128 {vr(VO[0]+4,4)}, v{vV} offset:32")
    o("    s_waitcnt lgkmcnt(4)")
    convert(VO[1], A[0], RBLK)
    o(f"    ds_read_b128 {vr(VO[1],4)}, v{vV} offset:64")
    o(f"    ds_read_b128 {vr(VO[1]+4,4)}, v{vV} offset:96")
    o(f"    v_add_u32 v{vRaw}, 1024, v{vRaw}")
    o(f"    v_add_u32 v{vCw}, {2*RBLK}, v{vCw}")
    o(f"    v_add_u32 v{vVw}, {2*RBLK}, v{vVw}")
    o(f"    v_add_u32 v{vV}, {RBLK}, v{vV}")
    o("    s_waitcnt lgkmcnt(4)")
    for r in range(8):
        o(f"    v_add_u32 v{VO[0]+r}, v{VO[0]+r}, v{vN4}")
    for r in range(8):
        thr = 8 * (r >> 2) + (r & 3) + 4
        if thr < 15:
            o(f"    s_cmp_gt_u32 s{sLo}, {thr}")
            o(f"    s_cbranch_scc1 K2_IZ{r}")
        for v in range(4):
            o(f"    buffer_load_dword v{B+8*v+r}, v{VO[0]+r}, {sr(sX,4)}, 0 offen offset:{v*128}")
        L(f"K2_IN{r}")
    o(f"    s_cmp_eq_u32 s{sNs}, 1")
    o("    s_cbranch_scc1 K2_INITD")
    o("    s_waitcnt lgkmcnt(0)")
    for r in range(8):
        o(f"    v_add_u32 v{VO[1]+r}, v{VO[1]+r}, v{vN4}")
    for v in range(4):
        if v == 3:
            o("    s_waitcnt vmcnt(55)")
        loads_tile(1, v, VO[1])
    L("K2_INITD")
    if ZZ > 1:
        o(f"    s_add_u32 s{sSeg}, s{sSeg}, {ZZ-1}")
    if WLDS:
        for p in range(5):
            o(f"    ds_read_b128 {vr(W+4*p,4)}, v{TT} offset:{p*1024}")
    o(f"    v_readlane_b32 s{sEnd}, v{vEnds}, s{sSeg}")
    o(f"    ds_read_b64_tr_b16 {vr(A[0],2)}, v{vA}")
    o(f"    ds_read_b64_tr_b16 {vr(A[0]+2,2)}, v{vA} offset:128")
    o(f"    ds_read_b128 {vr(VO[0],4)}, v{vV}")
    o(f"    ds_read_b128 {vr(VO[0]+4,4)}, v{vV} offset:32")
    o(f"    s_mov_b32 s{sGen}, 0")
    o(f"    s_mov_b32 s{sCnt}, 0")

    o(".p2align 3")
    L("K2_LOOP")
    for x in range(2):
        a_cur, a_nxt = A[x], A[x ^ 1]
        v_cur, v_nxt = VO[x], VO[x ^ 1]
        if x == 1:
            o(f"    v_add_u32 v{vA}, s{sD0}, v{vA}")
            o(f"    v_add_u32 v{vV}, s{sD1}, v{vV}")
        nx = x ^ 1
        if x == 0:
            o(f"    ds_read_b128 {vr(RR,4)}, v{vRaw}")
        o(f"    ds_read_b64_tr_b16 {vr(a_nxt,2)}, v{vA} offset:{nx*512}")
        o(f"    ds_read_b64_tr_b16 {vr(a_nxt+2,2)}, v{vA} offset:{nx*512+128}")
        o(f"    ds_read_b128 {vr(v_nxt,4)}, v{vV} offset:{nx*64}")
        o(f"    ds_read_b128 {vr(v_nxt+4,4)}, v{vV} offset:{nx*64+32}")
        o(f"    s_sub_u32 s{sCnt}, s{sCnt}, 1")
        o(f"    s_waitcnt lgkmcnt({5 if x == 0 else 4})")
        for r in range(8):
            o(f"    v_add_u32 v{v_cur+r}, v{v_cur+r}, v{vN4}")
        o(f"    s_cbranch_scc1 K2_SP{x}")
        for v in range(4):
            o("    s_waitcnt vmcnt(55)")
            smf(x, v, a_cur)
            loads_tile(x, v, v_cur)
        L(f"K2_NEXT{x}")
        if RP:
            o(f"    s_sub_u32 s{sLeft}, s{sLeft}, 1")
            o(f"    s_cmp_le_i32 s{sLeft}, s{sPT}")
            o(f"    s_cbranch_scc1 K2_RP{x}")
            L(f"K2_RPB{x}")
        if x == 0:
            o("    s_waitcnt lgkmcnt(4)")
            convert(v_cur)
            o(f"    v_add_u32 v{vRaw}, 512, v{vRaw}")
            o(f"    v_add_u32 v{vCw}, s{sD2}, v{vCw}")
            o(f"    v_add_u32 v{vVw}, s{sD2}, v{vVw}")
        else:
            o(f"    s_mov_b32 s{sT}, s{sD0}")
            o(f"    s_mov_b32 s{sD0}, s{sD1}")
            o(f"    s_mov_b32 s{sD1}, s{sD2}")
            o(f"    s_mov_b32 s{sD2}, s{sT}")
            o("    s_branch K2_LOOP")

    for x in range(2):
        a_cur = A[x]
        v_cur = VO[x]
        L(f"K2_SP{x}")
        o(f"    s_add_u32 s{sT}, s{sSeg}, {ZZ}")
        if ZZ == 3:
            o(f"    s_or_b32 s{sT2}, s{sSeg}, 15")
            o(f"    s_min_u32 s{sT}, s{sT}, s{sT2}")
        o(f"    v_readlane_b32 s{sNext}, v{vEnds}, s{sT}")
        o(f"    s_sub_u32 s{sRem}, s{sNs}, s{sGen}")
        o(f"    s_lshl_b32 s{sT3}, s{sGen}, 4")
        o(f"    s_cmp_le_u32 s{sRem}, 2")
        o(f"    s_cbranch_scc1 K2_GEN{x}")
        o(f"    s_cmp_le_u32 s{sGen}, s{sFast}")
        o(f"    s_cbranch_scc1 K2_GEN{x}")
        o(f"    s_add_u32 s{sT2}, s{sT3}, 16")
        o(f"    s_cmp_le_u32 s{sNext}, s{sT2}")
        o(f"    s_cbranch_scc1 K2_GEN{x}")
        for r in range(4):
            o(f"    v_and_b32 v{AM1+r}, v{a_cur+r}, v{LT+r}")
        for r in range(4):
            o(f"    v_bitop3_b32 v{AM2+r}, v{a_cur+r}, v{LT+r}, v{LT+r} bitop3:0x30")
        o("    s_waitcnt vmcnt(31)")
        for v in range(4):
            smf(x, v, AM1)
        o(f"    s_mov_b32 s{sSeg}, s{sT}")
        o(f"    s_mov_b32 s{sEnd}, s{sNext}")
        schedule_next()
        mask_read(LT, sHi, a_cur)
        for v in range(4):
            fmas(v)
            zero_tile(v)
            smf(x, v, AM2)
            loads_tile(x, v, v_cur)
        fold()
        commit_lds()
        prio_step()
        o(f"    s_branch K2_NEXT{x}")
        L(f"K2_GEN{x}")
        o(f"    s_cmp_ge_u32 s{sRem}, 2")
        o(f"    s_cbranch_scc1 K2_GW{x}")
        o("    s_waitcnt vmcnt(0)")
        L(f"K2_GW{x}")
        o(f"    s_cmp_eq_u32 s{sGen}, 0")
        o(f"    s_cselect_b32 s{sLo}, s{sLo}, 0")
        L(f"K2_GL{x}")
        o(f"    s_sub_u32 s{sRel}, s{sEnd}, s{sT3}")
        o(f"    s_min_u32 s{sHi}, s{sRel}, 16")
        mask_read(LT, sHi, AM1)
        mask_read(AM2, sLo, AM1 + 1)
        o("    s_waitcnt vmcnt(31) lgkmcnt(0)")
        for r in range(4):
            o(f"    v_bitop3_b32 v{AM1+r}, v{a_cur+r}, v{LT+r}, v{AM2+r} bitop3:0x40")
        o("    s_nop 1")
        for v in range(4):
            smf(x, v, AM1)
        o(f"    s_cmp_gt_u32 s{sRel}, 16")
        o(f"    s_cbranch_scc1 K2_GD{x}")
        o(f"    s_mov_b32 s{sRet}, {x}")
        o("    s_branch K2_EPI")
        L(f"K2_GD{x}")
        o(f"    s_cmp_le_u32 s{sRem}, 2")
        o(f"    s_cbranch_scc1 K2_NL{x}")
        for v in range(4):
            loads_tile(x, v, v_cur)
        if WFE:
            o(f"    s_branch K2_NL2{x}")
        L(f"K2_NL{x}")
        if WFE:
            o(f"    s_cmp_lg_u32 s{sWFl}, 0")
            o(f"    s_cbranch_scc1 K2_NL2{x}")
            wf_loads(AM2)
            L(f"K2_NL2{x}")
        o(f"    s_cmp_eq_u32 s{sRem}, 1")
        o("    s_cbranch_scc1 K2_STREAM_DONE")
        schedule_next()
        mask_read(LT, sHi, AM1)
        o(f"    s_branch K2_NEXT{x}")

    if RP:
        for x in range(2):
            L(f"K2_RP{x}")
            for lvl in range(3):
                if lvl < 2:
                    o(f"    s_cmp_lg_u32 s{sPT}, {RP[lvl]}")
                    o(f"    s_cbranch_scc1 K2_RP{x}_{lvl}")
                o(f"    s_setprio {2-lvl}")
                o(f"    s_mov_b32 s{sPT}, {RP[lvl+1] if lvl < 2 else -1}")
                o(f"    s_branch K2_RPB{x}")
                if lvl < 2:
                    L(f"K2_RP{x}_{lvl}")
    L("K2_EPI")
    if ZZ == 3:
        o(f"    s_or_b32 s{sT2}, s{sSeg}, 15")
    o(f"    s_add_u32 s{sSeg}, s{sSeg}, {ZZ}")
    if ZZ == 3:
        o(f"    s_min_u32 s{sSeg}, s{sSeg}, s{sT2}")
    o(f"    s_mov_b32 s{sLo}, s{sHi}")
    o(f"    v_readlane_b32 s{sEnd}, v{vEnds}, s{sSeg}")
    o("    s_nop 7")
    for v in range(4):
        fmas(v)
        zero_tile(v)
    fold()
    o(f"    s_cmp_lg_u32 s{sMode}, 0")
    o("    s_cbranch_scc1 K2_EPS")
    commit_lds()
    prio_step()
    L("K2_EPR")
    if EEX:
        o(f"    s_cmp_eq_u32 s{sEnd}, 0x7fffffff")
        o("    s_cbranch_scc1 K2_STREAM_DONE")
    o(f"    s_cmp_eq_u32 s{sRet}, 0")
    o("    s_cbranch_scc1 K2_GL0")
    o("    s_branch K2_GL1")
    L("K2_EPS")
    o("    s_waitcnt vmcnt(31)")
    for si in range(11):
        o(f"    buffer_atomic_add_f32 v{TT+si}, v{vSa}, {sr(sWS,4)}, 0 offen offset:{si*256}")
    o(f"    v_add_u32 v{vSa}, {8*2816}, v{vSa}")
    o("    s_waitcnt vmcnt(0)")
    o("    s_branch K2_EPR")
    for r in range(7):
        L(f"K2_IZ{r}")
        for v in range(4):
            o(f"    v_mov_b32 v{B+8*v+r}, 0")
        o(f"    s_branch K2_IN{r}")
    L("K2_EMPTY")
    o(f"    s_cmp_lg_u32 s{sMode}, 0")
    o("    s_cbranch_scc1 K2_STREAM_DONE")
    for si in range(11):
        o(f"    v_mov_b32 v{TT+si}, 0")
    o(f"    s_mov_b32 s{sT2}, 5")
    L("K2_EMPTYL")
    commit_lds()
    o(f"    s_sub_u32 s{sT2}, s{sT2}, 1")
    o(f"    s_cmp_lg_u32 s{sT2}, 0")
    o("    s_cbranch_scc1 K2_EMPTYL")
    o("    s_branch K2_POSTG")

    L("K2_GOSLOW")
    o(f"    s_mov_b32 s{sMode}, 1")
    o(f"    s_mov_b32 s{sFast}, -1")
    w_loads()
    if WLDS:
        o("    s_waitcnt vmcnt(0)")
        o(f"    ds_write_b128 v{W+4}, {vr(W,4)}")
    dump_addr()
    o(f"    v_mov_b32 v{TT}, 0")
    for k in range(5):
        for si in range(11):
            o(f"    buffer_store_dword v{TT}, v{vSa}, {sr(sWS,4)}, 0 offen offset:{si*256} sc1")
        o(f"    v_add_u32 v{vSa}, {8*2816}, v{vSa}")
        o("    s_waitcnt vmcnt(0)")
    o("    s_waitcnt vmcnt(0)")
    L("K2_SLOW_ROUND")
    o("    s_waitcnt lgkmcnt(0)")
    o("    s_barrier")
    o("    s_nop 7")
    lane_id()
    o(f"    v_lshlrev_b32 v2, 2, v{vLane}")
    o(f"    v_add_u32 v2, {CNT}, v2")
    o("    v_mov_b32 v3, 0")
    o("    ds_write2st64_b32 v2, v3, v3 offset0:0 offset1:1")
    lane_prep()
    hdr_loads()
    o(f"    v_add_u32 v{TM+1}, s{sJlo}, v{vJ}")
    o(f"    s_movk_i32 s{sT}, {CH}")
    o(f"    v_mad_u32_u24 v{TM+2}, v{vW0}, s{sT}, v{TM+1}")
    o(f"    v_cmp_gt_u32 {sr(sSave,2)}, 8, v{vJ}")
    o(f"    s_mov_b64 {sr(sAny2,2)}, 0")
    o(f"    v_mov_b32 v{TM+3}, 0")
    o(f"    v_lshlrev_b32 v{KY}, 1, v{TM+1}")
    o(f"    v_subrev_u32 v{KY+1}, 29, v{KY}")
    o(f"    v_min_u32 v{KY}, v{KY}, v{KY+1}")
    o(f"    v_lshl_add_u32 v{KY}, v{vW0}, 13, v{KY}")
    o(f"    s_lshl_b32 s{sT}, s{sBin}, 5")
    o(f"    s_add_u32 s{sT}, s{sT}, {WS_T2}")
    o(f"    v_add_u32 v{KY}, s{sT}, v{KY}")
    o("    s_waitcnt vmcnt(0)")
    for i in range(8):
        o(f"    v_lshrrev_b32 v{TM}, 16, v{HD+i}")
        o(f"    v_and_b32 v{AD2+i}, 0xffff, v{HD+i}")
        o(f"    v_cmp_lt_u32 vcc, v{TM+1}, v{TM}")
        o(f"    v_add_u32 v{AD2+i}, v{AD2+i}, v{TM+2}")
        o(f"    v_lshlrev_b32 v{RO+i}, 4, v{AD2+i}")
        o(f"    v_max_u32 v{TM+3}, v{TM+3}, v{TM}")
        o(f"    v_mov_b32 v{AD1+i}, 0")
        o(f"    s_and_b64 {sr(sM1+2*i,2)}, vcc, {sr(sSave,2)}")
        o(f"    s_mov_b64 exec, {sr(sM1+2*i,2)}")
        o(f"    s_cbranch_execz K2_SR{i}")
        o(f"    s_mov_b32 s{sT}, {i*4*CH*16}")
        o(f"    buffer_load_dwordx4 {vr(4*i,4)}, v{RO+i}, {sr(sWS,4)}, s{sT} offen")
        o(f"    v_cmp_lt_u32 vcc, 30, v{TM}")
        o(f"    v_add_u32 v{AD2+i}, {WS_KEY + i*4*CH}, v{AD2+i}")
        o(f"    v_add_u32 v{TM}, {i*32768}, v{KY}")
        o(f"    v_cndmask_b32 v{AD2+i}, v{TM}, v{AD2+i}, vcc")
        o(f"    buffer_load_ubyte v{AD1+i}, v{AD2+i}, {sr(sWS,4)}, 0 offen")
        L(f"K2_SR{i}")
        o("    s_mov_b64 exec, -1")
    o(f"    v_mov_b32 v{TM}, {MISC+4}")
    o(f"    ds_max_u32 v{TM}, v{TM+3}")
    o(f"    v_mov_b32 v{TM+4}, {CNT}")
    o("    s_waitcnt vmcnt(0) lgkmcnt(0)")
    o("    s_barrier")
    o(f"    ds_read_b32 v{TM}, v{TM}")
    o("    s_waitcnt lgkmcnt(0)")
    o(f"    v_readfirstlane_b32 s{sMax}, v{TM}")
    o(f"    v_mov_b32 v{TM}, 1")
    for i in range(8):
        o(f"    v_lshl_add_u32 v{AD1+i}, v{AD1+i}, 2, v{TM+4}")
    for i in range(8):
        o(f"    s_mov_b64 exec, {sr(sM1+2*i,2)}")
        o(f"    ds_add_rtn_u32 v{RK1+i}, v{AD1+i}, v{TM}")
    o("    s_mov_b64 exec, -1")
    o("    s_branch K2_RANKD")

    L("K2_STREAM_DONE")
    o(f"    s_cmp_eq_u32 s{sMode}, 0")
    o("    s_cbranch_scc1 K2_POSTG")
    o(f"    s_add_u32 s{sJlo}, s{sJlo}, 8")
    o(f"    s_cmp_lt_u32 s{sJlo}, s{sMax}")
    o("    s_cbranch_scc1 K2_SLOW_ROUND")
    o("    s_nop 7")
    lane_id()
    dump_addr()
    o(f"    s_mov_b32 s{sT2}, 5")
    L("K2_SLOWL")
    for si in range(11):
        o(f"    buffer_load_dword v{TT+si}, v{vSa}, {sr(sWS,4)}, 0 offen offset:{si*256} sc1")
    o(f"    v_add_u32 v{vSa}, {8*2816}, v{vSa}")
    o("    s_waitcnt vmcnt(0)")
    commit_lds()
    o(f"    s_sub_u32 s{sT2}, s{sT2}, 1")
    o(f"    s_cmp_lg_u32 s{sT2}, 0")
    o("    s_cbranch_scc1 K2_SLOWL")

    L("K2_POSTG")
    stamp(6)
    if STAMP:
        o("    s_memtime s[100:101]")
        o("    s_waitcnt lgkmcnt(0)")
        o(f"    v_writelane_b32 v{STV}, s100, 13")
    t0, t1 = 226, 227
    vLane = 246
    o(f"    s_cmp_lg_u32 s{sWFl}, 0")
    o("    s_cbranch_scc1 K2_NOWF")
    wf_loads(t0)
    L("K2_NOWF")
    o(f"    v_mbcnt_lo_u32_b32 v{vLane}, -1, 0")
    o(f"    v_mbcnt_hi_u32_b32 v{vLane}, -1, v{vLane}")
    o(f"    s_cmp_ge_u32 s{sWave}, 4")
    o("    s_cbranch_scc1 K2_GADDR")
    vB_, vOt, vB2, vB2x, vB0, vO2 = 220, 221, 222, 223, 224, 225
    o(f"    v_and_b32 v{t0}, 15, v{vLane}                ; nn")
    o(f"    v_lshrrev_b32 v{t1}, 4, v{vLane}             ; g")
    o(f"    v_mul_u32_u24 v{vB_}, {SDS}, v{t0}")
    o(f"    v_lshl_add_u32 v{vB_}, v{t1}, 4, v{vB_}")
    o(f"    v_add_u32 v{vB_}, {SD}, v{vB_}")
    o(f"    s_lshl_b32 s{sT3}, s{sWave}, 5               ; t*32 bytes")
    o(f"    s_add_u32 s{sT}, s{sT3}, {OUTT}")
    o(f"    v_mul_u32_u24 v{vOt}, {OUT_STRIDE}, v{t0}")
    o(f"    v_lshl_add_u32 v{vOt}, v{t1}, 3, v{vOt}")
    o(f"    v_add_u32 v{vOt}, s{sT}, v{vOt}")
    o(f"    v_and_b32 v0, 7, v{t0}")
    o(f"    v_lshrrev_b32 v1, 3, v{t0}")
    o(f"    v_mul_u32_u24 v{vB0}, {SDS}, v0")
    o(f"    v_lshl_add_u32 v{vB0}, v{t1}, 4, v{vB0}")
    o(f"    v_add_u32 v{vB0}, {SD + 32*SDS}, v{vB0}")
    o(f"    v_lshl_add_u32 v{vB2}, v1, 8, v{vB0}")
    o(f"    v_lshl_add_u32 v{vB2x}, v1, 7, v{vB0}")
    o(f"    v_cmp_eq_u32 {sr(sSave,2)}, 1, v1")
    o(f"    v_mul_u32_u24 v{vO2}, {OUT_STRIDE}, v0")
    o(f"    v_lshl_add_u32 v{vO2}, v{t1}, 3, v{vO2}")
    o(f"    s_add_u32 s{sT}, s{sT3}, {OUTT + 32*OUT_STRIDE}")
    o(f"    v_add_u32 v{vO2}, s{sT}, v{vO2}")
    o(f"    v_lshl_add_u32 v{t0}, v1, 7, v{vO2}")
    o(f"    v_mul_u32_u24 v1, 384, v1")
    o(f"    v_sub_u32 v{t1}, v{vO2}, v1")
    G = 184
    o(f"    v_mov_b32 v{G+12}, 0xbfb8aa3b           ; -log2(e)")
    L("K2_GADDR")
    o("    s_waitcnt lgkmcnt(0)")
    o("    s_barrier")
    stamp(7)
    o(f"    s_cmp_ge_u32 s{sWave}, 4")
    o("    s_cbranch_scc1 K2_NOGEMM")
    seq = []
    for T, ar, base in ((0, vB_, 0), (1, vB_, 16 * SDS), (2, vB0, 0)):
        for ks in range(4):
            seq.append((T, ks, ar, base + 64 * ks, ks == 0))
    for T in range(2):
        for blk in range(1, 4):
            di = 3 + 3 * T + blk - 1
            for ks in range(4):
                seq.append((di, 4 + ks, vB_, T * 16 * SDS + blk * 256 + 64 * ks, ks == 0))
            for ks in range(2):
                seq.append((di, 8 + ks, vB_, T * 16 * SDS + 1024 + 128 * (blk - 1) + 64 * ks, False))
    for ks in range(4):
        seq.append((9, 4 + ks, vB2, 256 + 64 * ks, ks == 0))
    for ks in range(2):
        seq.append((9, 8 + ks, vB2x, 1024 + 64 * ks, False))
    for ks in range(4):
        seq.append((10, 4 + ks, vB0, 768 + 64 * ks, ks == 0))
    for ks in range(2):
        seq.append((10, 8 + ks, vB0, 1024 + 256 + 64 * ks, False))
    BB = 64
    NB_ = 16
    DEPTH = 12
    DD = 0
    RS = 198
    def bread(i):
        o(f"    ds_read_b128 {vr(BB+4*(i%NB_),4)}, v{seq[i][2]} offset:{seq[i][3]}")
    for i in range(DEPTH):
        bread(i)
    o("    s_waitcnt vmcnt(0)")
    work = []
    for T in range(3):
        work += [(16, f"    v_mul_f32 v{G+4*T+r}, v{G+12}, v{DD+4*T+r}") for r in range(4)]
    for T in range(3):
        work += [(16, f"    v_exp_f32 v{G+4*T+r}, v{G+4*T+r}") for r in range(4)]
    for T in range(3):
        work += [(16, f"    v_add_f32 v{G+4*T+r}, 1.0, v{G+4*T+r}") for r in range(4)]
    for T in range(3):
        work += [(16, f"    v_rcp_f32 v{G+4*T+r}, v{G+4*T+r}") for r in range(4)]
    for T in range(3):
        work += [(16, f"    v_cvt_pk_bf16_f32 v{RS+2*T}, v{DD+4*T}, v{DD+4*T+1}"), (16, f"    v_cvt_pk_bf16_f32 v{RS+2*T+1}, v{DD+4*T+2}, v{DD+4*T+3}")]
    def fin(di):
        g0 = G + 4 * min((di - 3) // 3, 2)
        last = 12 + 6 * (di - 3) + 5
        ins = [f"    v_mul_f32 v{DD+4*di+r}, v{DD+4*di+r}, v{g0+r}" for r in range(4)]
        ins += [f"    v_cvt_pk_bf16_f32 v{RS+2*di}, v{DD+4*di}, v{DD+4*di+1}", f"    v_cvt_pk_bf16_f32 v{RS+2*di+1}, v{DD+4*di+2}, v{DD+4*di+3}"]
        return [(last + 5, x) for x in ins]
    for di in range(3, 11):
        work += fin(di)
    n = len(seq)
    assert n == 60
    for i, (di, f, ar, off, first) in enumerate(seq):
        if i % 2 == 0:
            cnt = min(i + DEPTH, n) - 2 - i
            o(f"    s_waitcnt lgkmcnt({max(cnt,0)})")
        d = vr(DD + 4 * di, 4)
        o(f"    v_mfma_f32_16x16x32_bf16 {d}, {vr(WF+4*f,4)}, {vr(BB+4*(i%NB_),4)}, {'0' if first else d}")
        if i + DEPTH < n:
            bread(i + DEPTH)
        k = 0
        while work and work[0][0] <= i and k < (2 if i + DEPTH < n else 3):
            o(work.pop(0)[1]); k += 1
    wr = []
    for T in range(2):
        wr.append(f"    ds_write_b64 v{vOt}, {vr(RS+2*T,2)} offset:{T*16*OUT_STRIDE}")
        for blk in range(1, 4):
            wr.append(f"    ds_write_b64 v{vOt}, {vr(RS+2*(3+3*T+blk-1),2)} offset:{T*16*OUT_STRIDE+blk*128}")
    early = [w for w in work if w[0] <= n - 1]
    late = [w for w in work if w[0] > n - 1]
    for w in early:
        o(w[1])
    for x_ in wr:
        o(x_)
    o("    s_nop 1")
    for w in late:
        o(w[1])
    o(f"    ds_write_b64 v{t0}, {vr(RS+18,2)} offset:128")
    o(f"    v_cndmask_b32 v{RS+20}, v{RS+20}, v{RS+4}, {sr(sSave,2)}")
    o(f"    v_cndmask_b32 v{RS+21}, v{RS+21}, v{RS+5}, {sr(sSave,2)}")
    o(f"    ds_write_b64 v{t1}, {vr(RS+20,2)} offset:384")
    L("K2_NOGEMM")
    o(f"    s_lshl_b32 s{sT}, s{sWave}, 6")
    o(f"    v_add_u32 v4, s{sT}, v{vLane}            ; tid")
    o("    v_lshrrev_b32 v0, 5, v4")
    o("    v_and_b32 v1, 31, v4")
    o(f"    v_mul_u32_u24 v2, {OUT_STRIDE}, v0")
    o("    v_lshl_add_u32 v2, v1, 4, v2")
    if OUTT:
        o(f"    v_add_u32 v2, {OUTT}, v2")
    o("    v_lshlrev_b32 v3, 4, v4")
    o("    v_add_u32 v16, 8192, v3")
    o("    v_add_u32 v17, 16384, v3")
    o("    s_waitcnt lgkmcnt(0)")
    o("    s_barrier")
    stamp(8)
    for r in range(3):
        o(f"    ds_read_b128 {vr(4+4*r,4)}, v2 offset:{r*16*OUT_STRIDE}")
    for r in range(3):
        if r == 2:
            o(f"    s_cmp_ge_u32 s{sWave}, 4")
            o("    s_cbranch_scc1 K2_FIN")
        o(f"    s_waitcnt lgkmcnt({2-r})")
        o(f"    buffer_store_dwordx4 {vr(4+4*r,4)}, v{[3,16,17][r]}, {sr(sOUT,4)}, 0 offen {OUTST}")
    L("K2_FIN")
    if STAMP:
        o("    s_waitcnt vmcnt(0)")
    stamp(9)
    stamp_dump(sWS, sWS + 1, sWave, 8, 65 << 20)
    L("K2_END")
    o("    s_endpgm")
    L("CODE_END")

gen_k1()
gen_k2()

o('.section .rodata,"a"')
def kd(name, vgpr, sgpr):
    o(".p2align 6")
    o(f".amdhsa_kernel {name}")
    o(f"  .amdhsa_next_free_vgpr {vgpr}")
    o(f"  .amdhsa_next_free_sgpr {sgpr}")
    o(f"  .amdhsa_accum_offset {(vgpr+3)//4*4}")
    o("  .amdhsa_group_segment_fixed_size 0")
    o("  .amdhsa_kernarg_size 96")
    o("  .amdhsa_user_sgpr_count 2")
    o("  .amdhsa_user_sgpr_kernarg_segment_ptr 1")
    o("  .amdhsa_system_sgpr_workgroup_id_x 1")
    o("  .amdhsa_float_denorm_mode_32 3")
    o(".end_amdhsa_kernel")
kd("tp_part_kernel", 80, 102 if STAMP else 72)
kd("tp_main_kernel", 256, 102 if STAMP else 92)

open(OUTFILE, "w").write("\n".join(lines) + "\n")
print("wrote", OUTFILE, len(lines), "lines; K2 LDS", K2_LDS)
```

```python
import sys, os

P = 1
OUTFILE = sys.argv[1] if len(sys.argv) > 1 else "standalone__tensor_product_equiv_equiformer__graph.s"
STAMP = int(os.environ.get("STAMP", "0"))
K1ST = os.environ.get("K1ST", "sc1")
K1LD2 = os.environ.get("K1LD2", "")
OUTST = os.environ.get("OUTST", "sc1")
K1LD = os.environ.get("K1LD", "nt")
EXP = os.environ.get("EXP", "")
K1SPL = int(os.environ.get("K1SPL", "1"))
TLBW = int(os.environ.get("TLBW", "0"))
K1ORD = int(os.environ.get("K1ORD", "2"))
T2E = int(os.environ.get("T2E", "0"))
ZZ = int(os.environ.get("ZZ", "1"))
K1MAP = int(os.environ.get("K1MAP", "0"))
PK = 0
WFE = int(os.environ.get("WFE", "0"))
EEX = int(os.environ.get("EEX", "1"))
RP = [int(t) for t in os.environ.get("RP", "").split(",") if t]
RMASK = int(os.environ.get("RMASK", "1"))
WLDS = int(os.environ.get("WLDS", "1"))
XEND = os.environ.get("XEND", "")
NEARLY = int(os.environ.get("NEARLY", "4"))
K1PF = int(os.environ.get("K1PF", "0"))
PF0 = int(os.environ.get("PF0", "1"))
PFPOS = os.environ.get("PFPOS", "d")
PFI = int(os.environ.get("PFI", "5"))
PFL = int(os.environ.get("PFL", "32"))
IDXN = int(os.environ.get("IDXN", "0"))
IDXN2 = int(os.environ.get("IDXN2", "3"))
CPF = int(os.environ.get("CPF", "3"))
VW = int(os.environ.get("VW", "48"))
PRIO = [int(t) for t in os.environ.get("PRIO", "2,3,4").split(",") if t]
XPF = int(os.environ.get("XPF", "0"))

N = 10000
E = 640000
NWG = 256
CH = 2500
BINM = 1677
PHM = (P << 23) // 10000
WS_REC = 0
WS_KEY = 10240000
WS_TAB = 10880000
WS_T2 = WS_TAB + 256 * 1024
WS_WF = WS_T2 + 256 * 8192
WS_WR = WS_WF + 40 * 1024
WS_S32 = WS_WR + 5 * 1024
WS_END = WS_S32 + 256 * 40 * 2816

lines = []
def o(s=""):
    lines.append(s)
def L(s):
    lines.append(s + ":")
def vr(a, n):
    return f"v[{a}:{a+n-1}]"
def sr(a, n):
    return f"s[{a}:{a+n-1}]"
def srd(d, lo, hi, nbytes):
    o(f"    s_mov_b32 s{d}, s{lo}")
    o(f"    s_and_b32 s{d+1}, s{hi}, 0xffff")
    o(f"    s_mov_b32 s{d+2}, {nbytes}")
    o(f"    s_mov_b32 s{d+3}, 0x00020000")

STV = 142
def stamp(i, vreg=STV):
    if STAMP:
        o("    s_memrealtime s[100:101]")
        o("    s_waitcnt lgkmcnt(0)")
        o(f"    v_writelane_b32 v{vreg}, s100, {i}")
def stamp_dump(wsl, wsh, wave_sgpr, nwaves, base, vreg=STV):
    if not STAMP:
        return
    o("    s_waitcnt lgkmcnt(0) vmcnt(0)")
    o("    s_mov_b64 exec, 0xffff")
    o(f"    s_mul_i32 s4, s2, {nwaves}")
    o(f"    s_add_u32 s4, s4, s{wave_sgpr}")
    o("    s_lshl_b32 s4, s4, 6")
    o(f"    s_add_u32 s4, s4, {base}")
    o(f"    s_mov_b32 s8, s{wsl}")
    o(f"    s_and_b32 s9, s{wsh}, 0xffff")
    o("    s_mov_b32 s10, 0x8000000")
    o("    s_mov_b32 s11, 0x00020000")
    o("    v_mbcnt_lo_u32_b32 v0, -1, 0")
    o("    v_lshl_add_u32 v0, v0, 2, s4")
    o(f"    buffer_store_dword v{vreg}, v0, s[8:11], 0 offen")
    o("    s_waitcnt vmcnt(0)")

K1_CNT = 0
K1_START = 1024
K1_KEY = 2048
K1_T2 = 4608
K1_REC = K1_T2 + 8192
K1_LDS = K1_REC + 40960

SLOTCAP = 3072
RAW = 0
RING = RAW + SLOTCAP * 16
RBLK = 1152
MASK = RING + 8 * 3 * RBLK
CNT = MASK + 1024
BASE = CNT + 512
MISC = BASE + 512
SD = MISC + 64
SDS = 1440
K2_LDS = SD + 48 * SDS
WST = SD + 40 * SDS
OUTT = RAW
OUT_STRIDE = 528
assert K2_LDS <= 163840, K2_LDS
assert SD % 16 == 0

KNAME = "standalone__tensor_product_equiv_equiformer__graph_kernel"
LISTF = int(os.environ.get("LISTF", "1"))
if LISTF:
    o(f"; @launch kernel={KNAME} grid=({NWG},1,1) block=(512,1,1) lds={K2_LDS}")
else:
    o(f"; @launch grid=({NWG},1,1) block=(512,1,1) lds={K2_LDS}")
o('.amdgcn_target "amdgcn-amd-amdhsa--gfx950"')
o(".text")

def gen_k1():
    SV = 127
    o(f".globl {KNAME}")
    o(".p2align 8")
    o(f".type {KNAME},@function")
    L(KNAME)
    o(f"    s_cmp_ge_u32 s2, {NWG}")
    o("    s_cbranch_scc1 K2_END")
    stamp(0, SV)
    o("    s_load_dwordx4 s[4:7], s[0:1], 8")
    o("    s_load_dwordx4 s[8:11], s[0:1], 24")
    o("    s_load_dwordx4 s[12:15], s[0:1], 48")
    o("    s_load_dwordx4 s[64:67], s[0:1], 80")
    o("    s_load_dwordx2 s[18:19], s[0:1], 40   ; w_rad")
    NE = 6
    D, S, EA = 4, 10, 16
    RH = [28, 32, 36]
    BN, RK, ST = 40, 46, 52
    T = 58
    P1, P2 = 64, 70
    C = 76
    TY = 90
    WFR = 96
    vL16, vT16 = 104, 105
    o("    v_lshrrev_b32 v2, 6, v0")
    o("    v_lshlrev_b32 v1, 2, v0               ; tid*4")
    o("    v_readfirstlane_b32 s50, v2")
    o(f"    s_mul_i32 s3, s2, {CH}")
    o("    v_add_u32 v2, s3, v1")
    o(f"    v_lshlrev_b32 v{T}, 2, v2")
    o(f"    v_lshlrev_b32 v{T+1}, 3, v2")
    o(f"    v_mul_u32_u24 v{T+2}, 6, v2")
    o("    s_add_u32 s51, s3, 2048")
    o("    v_lshl_add_u32 v2, v0, 1, s51")
    o(f"    v_lshlrev_b32 v{T+3}, 2, v2")
    o(f"    v_lshlrev_b32 v{T+4}, 3, v2")
    o(f"    v_mul_u32_u24 v{T+5}, 6, v2")
    o("    v_cmp_gt_u32 vcc, 226, v0")
    o("    s_mov_b64 s[60:61], vcc")
    o("    s_waitcnt lgkmcnt(0)")
    o("    s_mov_b32 s16, s66")
    o("    s_mov_b32 s17, s67")
    stamp(1, SV)
    lab = [0]
    def grpB(fn):
        lab[0] += 1
        o("    s_cmp_ge_u32 s50, 4")
        o(f"    s_cbranch_scc1 K1_GB{lab[0]}")
        o("    s_mov_b64 exec, s[60:61]")
        fn()
        o("    s_mov_b64 exec, -1")
        L(f"K1_GB{lab[0]}")
    srd(20, 10, 11, E * 4)
    grpB(lambda: o(f"    buffer_load_dwordx2 {vr(D+4,2)}, v{T+3}, s[20:23], 0 offen {K1LD}"))
    o(f"    buffer_load_dwordx4 {vr(D,4)}, v{T}, s[20:23], 0 offen {K1LD}")
    srd(24, 8, 9, E * 4)
    srd(28, 6, 7, E * 8)
    srd(32, 4, 5, E * 6)
    o(f"    v_lshlrev_b32 v{vT16}, 4, v0")
    o(f"    v_and_b32 v{vL16}, 63, v0")
    o(f"    v_lshlrev_b32 v{vL16}, 4, v{vL16}")
    for i in range(4):
        o(f"    v_mov_b32 v{80+i}, -1")
        o(f"    v_mov_b32 v{84+i}, 0")
    o(f"    ds_write_b128 v{vT16}, v[80:83] offset:{K1_T2}")
    o(f"    ds_write_b128 v{vL16}, v[84:87] offset:{K1_CNT}")
    o(f"    s_mul_i32 s36, s2, {CH*16}")
    o("    s_add_u32 s36, s16, s36")
    o("    s_addc_u32 s37, s17, 0")
    o("    s_and_b32 s37, s37, 0xffff")
    o(f"    s_mov_b32 s38, {CH*16}")
    o("    s_mov_b32 s39, 0x00020000")
    o(f"    s_add_u32 s40, s3, {WS_KEY}")
    o("    s_add_u32 s40, s16, s40")
    o("    s_addc_u32 s41, s17, 0")
    o("    s_and_b32 s41, s41, 0xffff")
    o(f"    s_mov_b32 s42, {CH}")
    o("    s_mov_b32 s43, 0x00020000")
    srd(44, 16, 17, WS_END)
    srd(68, 64, 65, 256)
    o("    s_mov_b32 s62, 0x05040100")
    o("    s_mov_b32 s63, 0x05040302")
    for r in range(1, 5):
        o(f"    v_add_u32 v{vT16+r}, {r*8192}, v{vT16}")
    o("    v_mov_b32 v2, 1")
    o("    s_waitcnt lgkmcnt(0)")
    o("    s_barrier")
    o(f"    buffer_load_dwordx4 {vr(S,4)}, v{T}, s[24:27], 0 offen {K1LD}")
    o(f"    buffer_load_dwordx3 {vr(RH[0],3)}, v{T+2}, s[32:35], 0 offen")
    o(f"    buffer_load_dwordx3 {vr(RH[1],3)}, v{T+2}, s[32:35], 0 offen offset:12")
    o("    s_waitcnt vmcnt(3)")
    stamp(2, SV)
    def hist(js):
        for j in js:
            o(f"    v_mul_u32_u24 v{D+j}, {BINM}, v{D+j}")
        for j in js:
            o(f"    v_lshrrev_b32 v{BN+j}, 14, v{D+j}")
        for j in js:
            o(f"    v_and_b32 v{BN+j}, 0x3fc, v{BN+j}")
        for j in js:
            o(f"    ds_add_rtn_u32 v{RK+j}, v{BN+j}, v2 offset:{K1_CNT}")
    hist(range(4))
    def hb():
        hist(range(4, 6))
        o(f"    buffer_load_dwordx2 {vr(S+4,2)}, v{T+3}, s[24:27], 0 offen {K1LD}")
        o(f"    buffer_load_dwordx3 {vr(RH[2],3)}, v{T+5}, s[32:35], 0 offen")
        o(f"    buffer_load_dwordx4 {vr(EA+8,4)}, v{T+4}, s[28:31], 0 offen")
    grpB(hb)
    o("    s_waitcnt lgkmcnt(0)")
    o("    s_barrier")
    stamp(3, SV)
    o(f"    ds_read_b128 {vr(C,4)}, v{vL16} offset:{K1_CNT}")
    o(f"    buffer_load_dwordx4 {vr(EA,4)}, v{T+1}, s[28:31], 0 offen")
    o(f"    buffer_load_dwordx4 {vr(EA+4,4)}, v{T+1}, s[28:31], 0 offen offset:16")
    for j in range(NE):
        o(f"    v_and_b32 v{D+j}, 0xffff, v{D+j}")
        o(f"    v_mul_u32_u24 v{D+j}, 40018, v{D+j}")
        o(f"    v_bfe_u32 v{ST+j}, v{D+j}, 26, 3       ; local&7")
        o(f"    v_lshrrev_b32 v{D+j}, 29, v{D+j}       ; local>>3")
        o(f"    v_lshl_add_u32 v{D+j}, v{ST+j}, 4, v{D+j}")
    o("    s_waitcnt lgkmcnt(0)")
    o(f"    v_add_u32 v84, v{C}, v{C+1}")
    o(f"    v_add_u32 v85, v84, v{C+2}")
    o(f"    v_add_u32 v86, v85, v{C+3}")
    o("    v_mov_b32 v87, v86")
    o(f"    v_max3_u32 v88, v{C}, v{C+1}, v{C+2}")
    o(f"    v_max_u32 v88, v88, v{C+3}")
    o("    v_cmp_lt_u32 vcc, 30, v88")
    o("    s_mov_b64 s[54:55], vcc")
    fill = []
    for j in range(NE):
        fill.append(f"    v_min_u32 v{P1+j}, 29, v{RK+j}")
        fill.append(f"    v_lshlrev_b32 v{P1+j}, 1, v{P1+j}")
        fill.append(f"    v_subrev_u32 v{P2+j}, 29, v{P1+j}")
        fill.append(f"    v_min_u32 v{P1+j}, v{P1+j}, v{P2+j}")
    def two():
        o(fill.pop(0)); o(fill.pop(0))
    two()
    for sh in (1, 2, 4, 8):
        o(f"    v_add_u32_dpp v87, v87, v87 row_shr:{sh} row_mask:0xf bank_mask:0xf bound_ctrl:0")
        two()
    o("    v_add_u32_dpp v87, v87, v87 row_bcast:15 row_mask:0xa bank_mask:0xf")
    two()
    o("    v_add_u32_dpp v87, v87, v87 row_bcast:31 row_mask:0xc bank_mask:0xf")
    o("    v_sub_u32 v80, v87, v86")
    o(f"    v_add_u32 v81, v80, v{C}")
    o("    v_add_u32 v82, v80, v84")
    o("    v_add_u32 v83, v80, v85")
    o(f"    ds_write_b128 v{vL16}, v[80:83] offset:{K1_START}")
    for j in range(NE):
        o(f"    ds_read_b32 v{ST+j}, v{BN+j} offset:{K1_START}")
    while fill:
        o(fill.pop(0))
    for j in range(NE):
        o(f"    v_lshl_add_u32 v{P1+j}, v{BN+j}, 3, v{P1+j}")
    for j in range(4):
        o(f"    ds_write_b8 v{P1+j}, v{D+j} offset:{K1_T2}")
    grpB(lambda: [o(f"    ds_write_b8 v{P1+j}, v{D+j} offset:{K1_T2}") for j in (4, 5)])
    o("    s_cmp_lg_u32 s50, 6")
    o("    s_cbranch_scc1 K1_NOTAB")
    o("    s_waitcnt lgkmcnt(6)")
    o(f"    v_lshlrev_b32 v88, 3, v{vL16}")
    for j in range(4):
        o(f"    v_cmp_lt_u32 vcc, 30, v{C+j}")
        o(f"    v_or_b32 v89, 0x8000, v{80+j}")
        o(f"    v_lshl_or_b32 v{C+j}, v{C+j}, 16, v{80+j}")
        o(f"    v_cndmask_b32 v89, v{80+j}, v89, vcc")
        o(f"    ds_write_b16 v88, v89 offset:{K1_T2 + 32*j + 30}")
    L("K1_NOTAB")
    o("    s_waitcnt lgkmcnt(0)")
    for j in range(NE):
        o(f"    v_add_u32 v{ST+j}, v{ST+j}, v{RK+j}     ; pos")
    o("    s_cmp_eq_u64 s[54:55], 0")
    o("    s_cbranch_scc1 K1_NOKEY")
    for j in range(4):
        o(f"    ds_write_b8 v{ST+j}, v{D+j} offset:{K1_KEY}")
    grpB(lambda: [o(f"    ds_write_b8 v{ST+j}, v{D+j} offset:{K1_KEY}") for j in (4, 5)])
    o("    s_waitcnt lgkmcnt(0)")
    L("K1_NOKEY")
    for j in range(NE):
        o(f"    v_lshlrev_b32 v{RK+j}, 4, v{ST+j}")
    o("    s_waitcnt vmcnt(2)")
    yp = []
    for q in range(3):
        R = RH[q]
        o(f"    v_alignbit_b32 v{TY+2*q}, v{R+2}, v{R+1}, 16")
        o(f"    v_perm_b32 v{TY+2*q+1}, v{S+2*q+1}, v{R+2}, s63")
        o(f"    v_perm_b32 v{R+1}, v{S+2*q}, v{R+1}, s62")
        yp += [R, TY + 2 * q]
    for j in range(4):
        o(f"    ds_write_b64 v{RK+j}, {vr(yp[j],2)} offset:{K1_REC+8}")
    def wb():
        for j in (4, 5):
            o(f"    ds_write_b64 v{RK+j}, {vr(yp[j],2)} offset:{K1_REC+8}")
            o(f"    ds_write_b64 v{RK+j}, {vr(EA+2*j,2)} offset:{K1_REC}")
    grpB(wb)
    o("    s_waitcnt vmcnt(1)")
    for j in range(4):
        if j == 2:
            o("    s_waitcnt vmcnt(0)")
            stamp(4, SV)
        o(f"    ds_write_b64 v{RK+j}, {vr(EA+2*j,2)} offset:{K1_REC}")
    o("    s_cmp_lt_u32 s2, 45")
    o("    s_cselect_b32 s53, s50, 0")
    o("    s_mul_i32 s51, s2, 26")
    o("    s_lshr_b32 s51, s51, 8                ; t")
    o("    s_mul_i32 s52, s51, 10")
    o("    s_sub_u32 s52, s2, s52                ; q")
    o("    s_cmp_lt_u32 s52, 4")
    o("    s_cselect_b32 s56, s12, s14")
    o("    s_cselect_b32 s57, s13, s15")
    o("    s_movk_i32 s58, 16384")
    o("    s_cselect_b32 s58, s58, 24576")
    o("    s_cmp_ge_u32 s2, 40")
    o("    s_cselect_b32 s56, s18, s56")
    o("    s_cselect_b32 s57, s19, s57")
    o("    s_cselect_b32 s58, 2560, s58")
    o("    s_and_b32 s57, s57, 0xffff")
    o("    s_mov_b32 s59, 0x00020000")
    o("    s_cmp_lg_u32 s53, 7")
    o("    s_cbranch_scc1 K1_AUXD")
    o("    v_and_b32 v110, 63, v0")
    o("    s_cmp_ge_u32 s2, 40")
    o("    s_cbranch_scc1 K1_AUXR")
    o("    v_lshrrev_b32 v111, 4, v110           ; g'")
    o("    v_and_b32 v112, 15, v110")
    o("    v_lshlrev_b32 v112, 1, v112")
    o("    s_lshl_b32 s48, s51, 5")
    o("    v_add_u32 v112, s48, v112             ; (16t+m)*2")
    o("    s_cmp_ge_u32 s52, 8")
    o("    s_cbranch_scc1 K1_FRAGX")
    o("    s_and_b32 s48, s52, 1")
    o("    s_lshl_b32 s48, s48, 5")
    o("    s_bfe_u32 s49, s52, 0x10001")
    o("    s_add_u32 s48, s48, s49")
    o("    s_lshl_b32 s48, s48, 7")
    o("    v_lshl_add_u32 v112, v111, 10, v112")
    o("    v_add_u32 v112, s48, v112")
    o("    v_add_u32 v113, 8192, v112")
    for i in range(8):
        o(f"    buffer_load_ushort v{WFR+i}, v{112+(i&1)}, s[56:59], 0 offen offset:{(i>>1)*256}")
    o("    s_branch K1_AUXD")
    L("K1_FRAGX")
    o("    s_and_b32 s48, s52, 1")
    o("    s_add_u32 s48, s48, 128")
    o("    s_lshl_b32 s48, s48, 7")
    o("    v_lshl_add_u32 v112, v111, 11, v112")
    o("    v_add_u32 v112, s48, v112")
    for i in range(8):
        o(f"    buffer_load_ushort v{WFR+i}, v112, s[56:59], 0 offen offset:{i*256}")
    o("    s_branch K1_AUXD")
    L("K1_AUXR")
    o("    v_and_b32 v111, 31, v110")
    o("    v_lshrrev_b32 v112, 5, v110")
    o("    v_lshlrev_b32 v111, 2, v111")
    o("    v_lshl_add_u32 v111, v112, 1, v111")
    o("    s_sub_u32 s48, s2, 40")
    o("    s_lshl_b32 s48, s48, 7")
    o("    v_add_u32 v111, s48, v111")
    for d in range(4):
        o(f"    v_mov_b32 v{WFR+2*d}, 0")
        o(f"    buffer_load_ushort v{WFR+2*d+1}, v111, s[56:59], 0 offen offset:{d*640}")
    L("K1_AUXD")
    o("    s_waitcnt lgkmcnt(0)")
    o("    s_barrier")
    stamp(5, SV)
    for r in range(5):
        o(f"    ds_read_b128 {vr(4+4*r,4)}, v{vT16} offset:{K1_REC + r*8192}")
    o(f"    ds_read_b128 v[24:27], v{vT16} offset:{K1_T2}")
    for r in range(5):
        o(f"    s_waitcnt lgkmcnt({5-r})")
        o(f"    buffer_store_dwordx4 {vr(4+4*r,4)}, v{vT16+r}, s[36:39], 0 offen sc1")
    o("    s_lshl_b32 s52, s2, 13")
    o(f"    s_add_u32 s52, s52, {WS_T2}")
    o("    s_waitcnt lgkmcnt(0)")
    o(f"    buffer_store_dwordx4 v[24:27], v{vT16}, s[44:47], s52 offen sc1")
    o("    s_cmp_lg_u32 s50, 6")
    o("    s_cbranch_scc1 K1_NT1")
    o("    s_lshl_b32 s52, s2, 10")
    o(f"    s_add_u32 s52, s52, {WS_TAB}")
    o(f"    buffer_store_dwordx4 {vr(C,4)}, v{vL16}, s[44:47], s52 offen sc1")
    L("K1_NT1")
    o("    s_cmp_eq_u64 s[54:55], 0")
    o("    s_cbranch_scc1 K1_NOKEY2")
    o(f"    ds_read2st64_b32 v[28:29], v1 offset0:{K1_KEY//256} offset1:{K1_KEY//256+8}")
    o("    v_add_u32 v30, 2048, v1")
    o("    s_waitcnt lgkmcnt(0)")
    o("    buffer_store_dword v28, v1, s[40:43], 0 offen sc1")
    o("    buffer_store_dword v29, v30, s[40:43], 0 offen sc1")
    L("K1_NOKEY2")
    o("    s_cmp_lg_u32 s53, 7")
    o("    s_cbranch_scc1 K1_AUXE")
    o("    s_waitcnt vmcnt(6)")
    for p in range(4):
        o(f"    v_lshl_or_b32 v{WFR+p}, v{WFR+2*p+1}, 16, v{WFR+2*p}")
    o("    s_lshl_b32 s52, s2, 10")
    o(f"    s_add_u32 s52, s52, {WS_WF}")
    o(f"    buffer_store_dwordx4 {vr(WFR,4)}, v{vL16}, s[44:47], s52 offen sc1")
    L("K1_AUXE")
    stamp(6, SV)
    o("    s_waitcnt vmcnt(0)")
    o("    s_barrier")
    stamp(7, SV)
    o("    s_cmp_lg_u32 s50, 7")
    o("    s_cbranch_scc1 K1_WAIT")
    o("    s_and_b32 s48, s2, 7")
    o("    s_lshl_b32 s48, s48, 5")
    o("    v_mov_b32 v4, s48")
    o(f"    v_lshlrev_b32 v5, 1, v{vL16}          ; lane*32")
    o("    s_mov_b64 exec, 1")
    o("    buffer_atomic_add v2, v4, s[68:71], 0 offen sc1")
    o("    s_mov_b64 exec, 0xff")
    o("    s_mov_b32 s48, 0")
    L("K1_POLL")
    o("    buffer_load_dword v6, v5, s[68:71], 0 offen sc1")
    o("    s_add_u32 s48, s48, 1")
    o("    s_waitcnt vmcnt(0)")
    o("    v_cmp_ne_u32 vcc, 32, v6")
    o("    s_cbranch_vccz K1_POLLD")
    o("    s_cmp_gt_u32 s48, 0x80000")
    o("    s_cbranch_scc1 K1_POLLD")
    o("    s_sleep 2")
    o("    s_branch K1_POLL")
    L("K1_POLLD")
    o("    s_mov_b64 exec, -1")
    L("K1_WAIT")
    if STAMP:
        o("    v_mov_b32 v126, v0")
        stamp_dump(16, 17, 50, 10, 64 << 20, SV)
        o("    s_mov_b64 exec, -1")
        o("    v_mov_b32 v0, v126")
    o("    s_barrier")

def gen_k2():
    B, ACC, S, W = 0, 64, 128, 184
    A = [204, 208]
    VO = [212, 220]
    LT, AM1, AM2 = 228, 232, 236
    RR = 240
    ZR = 244
    vA, vV, vRaw, vCw, vVw, vN4, vMask, vEnds, vPar, vIdx = range(246, 256)
    vLane = 125
    TT = 128
    vD4, vD2, vSa = 139, 140, 141
    TC = AM1
    WF = 144
    sX, sWS, sOUT, sWR = 12, 16, 20, 24
    sBin, sNN, sWave, sMode, sJlo, sMax = 28, 29, 30, 31, 32, 33
    sNs, sGen, sCnt, sSeg, sK, sLo, sHi, sRel, sRet, sRem = range(34, 44)
    sD0, sD1, sD2 = 44, 45, 46
    sEnd, sNext = 54, 55
    sWFl = 88
    sLeft, sPT = 89, 90
    sFast = 38
    sT, sT2, sT3 = 47, 48, 49
    sSave = 50
    sAny2 = 52
    sM1 = 56
    sM2 = 72
    sLM = 24
    sOv = 26

    def accr(v, u, d):
        cc = 2 * (d >> 1) + (u >> 1)
        e = 2 * (u & 1) + (d & 1)
        return ACC + 16 * v + 4 * cc + e
    def wreg(p, d):
        return W + 4 * p + d

    stamp(0)
    o("    s_load_dwordx2 s[4:5], s[0:1], 0      ; x")
    o("    s_load_dwordx2 s[8:9], s[0:1], 72     ; out")
    o("    s_load_dwordx2 s[10:11], s[0:1], 88   ; ws")
    o("    v_lshrrev_b32 v1, 6, v0")
    o(f"    v_and_b32 v{vLane}, 63, v0")
    o(f"    v_readfirstlane_b32 s{sWave}, v1")
    o(f"    s_and_b32 s{sBin}, s2, 7")
    o(f"    s_lshl_b32 s{sBin}, s{sBin}, 5")
    o(f"    s_lshr_b32 s{sT}, s2, 3")
    o(f"    s_add_u32 s{sBin}, s{sBin}, s{sT}")
    HD, KY, RK1, RK2, AD1, AD2, RO, TM = 64, 72, 80, 88, 96, 104, 112, 120
    vW0, vJ = 126, 127

    def prefetch0():
        o(f"    s_lshr_b32 s{sT}, s2, 3")
        o(f"    s_lshl_b32 s{sT}, s{sT}, 3")
        o(f"    s_add_u32 s{sT}, s{sT}, s{sWave}")
        o(f"    s_lshl_b32 s{sT}, s{sT}, 13")
        o(f"    v_lshl_add_u32 v143, v{vLane}, 7, s{sT}")
        if PFL < 64:
            o(f"    s_mov_b64 exec, {hex((1 << PFL) - 1)}")
        for i in range(PF0):
            o(f"    buffer_load_dword v143, v143, {sr(sX,4)}, 0 offen")
            if i + 1 < PF0:
                o(f"    v_add_u32 v143, {256*8192}, v143")
    def w_loads():
        if WLDS:
            return
        o(f"    s_mov_b32 s{sT}, {WS_WR}")
        for p in range(5):
            if p == 4:
                o(f"    s_add_u32 s{sT}, s{sT}, 4096")
            o(f"    buffer_load_dwordx4 {vr(W+4*p,4)}, v{TM+1}, {sr(sWS,4)}, s{sT} offen offset:{(p%4)*1024}")
    def dump_addr():
        o(f"    s_mul_i32 s{sT}, s{sWave}, {SDS}")
        o(f"    s_add_u32 s{sT}, s{sT}, {SD}")
        o(f"    v_lshl_add_u32 v{vD4}, v{vLane}, 2, s{sT}")
        o(f"    s_add_u32 s{sT}, s{sT}, 1024")
        o(f"    v_lshl_add_u32 v{vD2}, v{vLane}, 1, s{sT}")
        o(f"    s_mul_i32 s{sT}, s{sBin}, 40")
        o(f"    s_add_u32 s{sT}, s{sT}, s{sWave}")
        o(f"    s_mul_i32 s{sT}, s{sT}, 2816")
        o(f"    s_add_u32 s{sT}, s{sT}, {WS_S32}")
        o(f"    v_lshl_add_u32 v{vSa}, v{vLane}, 2, s{sT}")
    def wf_loads(tmp):
        o(f"    v_mbcnt_lo_u32_b32 v{tmp}, -1, 0")
        o(f"    v_mbcnt_hi_u32_b32 v{tmp}, -1, v{tmp}")
        o(f"    s_mul_i32 s{sT}, s{sWave}, 10240")
        o(f"    v_lshlrev_b32 v{tmp}, 4, v{tmp}")
        o(f"    s_add_u32 s{sT}, s{sT}, {WS_WF}")
        for f in range(10):
            if f == 4 or f == 8:
                o(f"    s_add_u32 s{sT}, s{sT}, 4096")
            o(f"    buffer_load_dwordx4 {vr(WF+4*f,4)}, v{tmp}, {sr(sWS,4)}, s{sT} offen offset:{(f%4)*1024} sc1")
        o(f"    s_mov_b32 s{sWFl}, 1")
    def lane_id():
        o(f"    v_mbcnt_lo_u32_b32 v{vLane}, -1, 0")
        o(f"    v_mbcnt_hi_u32_b32 v{vLane}, -1, v{vLane}")
    def lane_prep():
        o(f"    v_lshrrev_b32 v{vW0}, 4, v{vLane}")
        o(f"    s_lshl_b32 s{sT}, s{sWave}, 5")
        o(f"    v_add_u32 v{vW0}, s{sT}, v{vW0}")
        o(f"    v_and_b32 v{vJ}, 15, v{vLane}")
        o(f"    v_lshlrev_b32 v{TM}, 10, v{vW0}")
    def hdr_loads():
        o(f"    s_lshl_b32 s{sT}, s{sBin}, 2")
        o(f"    s_add_u32 s{sT}, s{sT}, {WS_TAB}")
        for i in range(8):
            o(f"    buffer_load_dword v{HD+i}, v{TM}, {sr(sWS,4)}, s{sT} offen sc1")
            if i < 7:
                o(f"    s_add_u32 s{sT}, s{sT}, 4096")
    lane_prep()
    o(f"    v_lshlrev_b32 v{TM+1}, 13, v{vW0}")
    o(f"    v_lshl_add_u32 v{TM+1}, v{vJ}, 1, v{TM+1}")
    o(f"    s_lshl_b32 s{sT}, s{sBin}, 5")
    o(f"    s_add_u32 s{sT}, s{sT}, {WS_T2}")
    o("    s_waitcnt lgkmcnt(0)")
    stamp(1)
    srd(sWS, 10, 11, WS_END)
    for i in range(8):
        o(f"    buffer_load_ushort v{KY+i}, v{TM+1}, {sr(sWS,4)}, s{sT} offen sc1")
        if i < 7:
            o(f"    s_add_u32 s{sT}, s{sT}, 32768")
    if WLDS:
        o(f"    v_lshlrev_b32 v{W+4}, 4, v0                 ; tid*16")
        o(f"    v_min_u32 v{W+4}, 5104, v{W+4}")
        o(f"    s_mov_b32 s{sT}, {WS_WR}")
        o(f"    buffer_load_dwordx4 {vr(W,4)}, v{W+4}, {sr(sWS,4)}, s{sT} offen sc1")
    srd(sX, 4, 5, N * 512)
    o(f"    v_and_b32 v{TM+2}, 31, v{vLane}")
    o(f"    v_lshlrev_b32 v{vN4}, 2, v{TM+2}")
    o(f"    v_lshrrev_b32 v{TM+3}, 5, v{vLane}      ; g = l>>5")
    o(f"    s_lshl_b32 s{sT}, s{sBin}, 16")
    o(f"    s_add_u32 s{sT}, s{sT}, {BINM-1}")
    o(f"    s_mul_hi_u32 s{sT2}, s{sT}, 0x27144e     ; n0")
    o(f"    s_add_u32 s{sT}, s{sT}, 0x10000")
    o(f"    s_mul_hi_u32 s{sT}, s{sT}, 0x27144e")
    o(f"    s_min_u32 s{sT}, s{sT}, {N}")
    o(f"    s_sub_u32 s{sNN}, s{sT}, s{sT2}")
    o(f"    s_lshl_b32 s{sT}, s{sT2}, 9")
    o(f"    s_add_u32 s{sOUT}, s8, s{sT}")
    o(f"    s_addc_u32 s{sOUT+1}, s9, 0")
    o(f"    s_and_b32 s{sOUT+1}, s{sOUT+1}, 0xffff")
    o(f"    s_lshl_b32 s{sOUT+2}, s{sNN}, 9")
    o(f"    s_mov_b32 s{sOUT+3}, 0x00020000")
    o(f"    s_mov_b32 s{sMode}, 0")
    o(f"    s_mov_b32 s{sFast}, 0")
    o(f"    s_lshr_b32 s{sWFl}, s{sWave}, 2")
    o(f"    s_mov_b32 s{sJlo}, 0")
    o("    v_lshrrev_b32 v5, 3, v0               ; e")
    o("    v_and_b32 v6, 7, v0")
    o("    v_lshlrev_b32 v6, 1, v6               ; 8ha+2p")
    o("    v_sub_u32 v5, v5, v6                  ; e-(8ha+2p)")
    o("    v_med3_i32 v5, v5, 0, 2")
    o("    v_lshlrev_b32 v5, 4, v5")
    o("    v_mov_b32 v6, -1")
    o("    v_mov_b32 v7, 0")
    o("    v_lshlrev_b64 v[6:7], v5, v[6:7]")
    o("    v_cmp_gt_u32 vcc, 256, v0")
    o("    v_lshlrev_b32 v3, 2, v0")
    o(f"    v_add_u32 v3, {MASK}, v3")
    o("    v_cndmask_b32 v2, 0, v7, vcc")
    o("    ds_write_b32 v3, v2")
    o("    v_mov_b32 v2, 0")
    o(f"    v_mov_b32 v3, {MISC}")
    o("    ds_write2_b32 v3, v2, v2 offset0:0 offset1:1")
    o(f"    v_mov_b32 v{ZR}, 0")
    o(f"    v_mov_b32 v{ZR+1}, 0")
    o(f"    v_and_b32 v4, 1, v{vLane}")
    o(f"    v_sub_u32 v{vPar}, 0, v4")
    o(f"    v_bfe_u32 v4, v{vLane}, 2, 1")
    o(f"    v_mul_u32_u24 v{vIdx}, 0x5555, v4")
    o(f"    v_add_u32 v{vIdx}, 0x8888, v{vIdx}       ; 0x8888 / 0xdddd")
    o(f"    v_lshlrev_b32 v{vMask}, 4, v{TM+3}")
    o(f"    v_add_u32 v{vMask}, {MASK}, v{vMask}")
    o("    s_waitcnt lgkmcnt(0)")
    o(f"    s_movk_i32 s{sT}, {CH}")
    o(f"    v_mad_u32_u24 v{TM+2}, v{vW0}, s{sT}, v{vJ}   ; w0*2500 + j")
    o(f"    s_mov_b32 s{sLM}, 0x7fff7fff")
    o(f"    s_mov_b32 s{sLM+1}, 0x7fff7fff")
    o(f"    s_mov_b64 {sr(sOv,2)}, -1")
    o(f"    s_mov_b64 {sr(sAny2,2)}, 0")
    o(f"    v_mov_b32 v{TM+4}, {CNT}")
    o(f"    v_lshlrev_b32 v{TM+1}, 4, v{vLane}")
    o("    s_barrier")
    def rec_load(i):
        o(f"    s_mov_b32 s{sT}, {i*4*CH*16}")
        if RMASK:
            o(f"    s_or_b64 exec, {sr(sM1+2*i,2)}, 1")
        o(f"    buffer_load_dwordx4 {vr(4*i,4)}, v{RO+i}, {sr(sWS,4)}, s{sT} offen sc1")
        if RMASK:
            o("    s_mov_b64 exec, -1")
    o(f"    v_mov_b32 v{TM}, 1")
    for i in range(8):
        o(f"    s_waitcnt vmcnt({7 - i + min(i, NEARLY) + WLDS})")
        if i == 0:
            stamp(2)
        o(f"    v_mov_b32_dpp v{RO+i}, v{KY+i} row_newbcast:15 row_mask:0xf bank_mask:0xf")
        o(f"    v_and_b32 v{AD1+i}, 0xff, v{KY+i}")
        o(f"    v_and_b32 v{RO+i}, 0xfff, v{RO+i}")
        o(f"    v_cmp_gt_u32 vcc, 0x80, v{AD1+i}")
        o(f"    v_add_lshl_u32 v{RO+i}, v{RO+i}, v{TM+2}, 4")
        o(f"    v_lshl_add_u32 v{AD1+i}, v{AD1+i}, 2, v{TM+4}")
        o(f"    s_and_b64 {sr(sM1+2*i,2)}, vcc, {sr(sLM,2)}")
        if i < NEARLY:
            rec_load(i)
        o(f"    v_cmp_gt_u32 vcc, 0x8000, v{KY+i}")
        o(f"    s_mov_b64 exec, {sr(sM1+2*i,2)}")
        o(f"    ds_add_rtn_u32 v{RK1+i}, v{AD1+i}, v{TM}")
        o("    s_mov_b64 exec, -1")
        o(f"    s_and_b64 {sr(sM2+2*i,2)}, vcc, {sr(sLM,2)}")
        o(f"    s_and_b64 {sr(sOv,2)}, {sr(sOv,2)}, vcc")
        o(f"    s_or_b64 {sr(sAny2,2)}, {sr(sAny2,2)}, {sr(sM2+2*i,2)}")
    o("    s_cbranch_scc0 K2_NO2B")
    o("    s_waitcnt lgkmcnt(4)")
    for i in range(8):
        o(f"    s_mov_b64 exec, {sr(sM2+2*i,2)}")
        o(f"    s_cbranch_execz K2_NK2{i}")
        o(f"    v_lshrrev_b32 v{AD2+i}, 8, v{KY+i}")
        o(f"    v_lshl_add_u32 v{AD2+i}, v{AD2+i}, 2, v{TM+4}")
        o(f"    ds_add_rtn_u32 v{RK2+i}, v{AD2+i}, v{TM}")
        L(f"K2_NK2{i}")
    o("    s_mov_b64 exec, -1")
    L("K2_NO2B")
    if WLDS:
        o(f"    v_add_u32 v{W+4}, {WST}, v{W+4}")
    o(f"    s_or_b64 {sr(sOv,2)}, {sr(sOv,2)}, {sr(sLM,2)}")
    o(f"    s_cmp_eq_u64 {sr(sOv,2)}, -1")
    o("    s_cbranch_scc1 K2_RANKD")
    o(f"    v_mov_b32 v{TM}, {MISC}")
    o(f"    ds_write_b32 v{TM}, v{TM}")
    L("K2_RANKD")
    c0, c1, i0, i1, tt0, tt1, e0, e1, p0, p1, a0, a1, b0, b1, ad, mx = range(204, 220)
    o(f"    v_lshlrev_b32 v{ad}, 2, v{vLane}")
    o(f"    v_add_u32 v{ad}, {CNT}, v{ad}")
    o(f"    v_mov_b32 v{mx}, {MISC}")
    o("    s_waitcnt lgkmcnt(0)")
    o("    s_barrier")
    stamp(3)
    o(f"    ds_read2st64_b32 v[{c0}:{c1}], v{ad} offset0:0 offset1:1")
    o(f"    ds_read_b32 v{mx}, v{mx}")
    o(f"    s_cmp_lg_u32 s{sMode}, 0")
    o("    s_cbranch_scc1 K2_NOLATE")
    for i in range(NEARLY, NEARLY + 2):
        rec_load(i)
    L("K2_NOLATE")
    o("    s_waitcnt lgkmcnt(0)")
    o(f"    v_mov_b32 v{i0}, v{c0}")
    o(f"    v_mov_b32 v{i1}, v{c1}")
    o(f"    v_readfirstlane_b32 s{sT3}, v{mx}")
    for sh in (1, 2, 4, 8):
        o(f"    v_add_u32_dpp v{i0}, v{i0}, v{i0} row_shr:{sh} row_mask:0xf bank_mask:0xf bound_ctrl:0")
        o(f"    v_add_u32_dpp v{i1}, v{i1}, v{i1} row_shr:{sh} row_mask:0xf bank_mask:0xf bound_ctrl:0")
        o("    s_nop 0")
    o(f"    v_mov_b32_dpp v{tt0}, v{i0} row_newbcast:15 row_mask:0xf bank_mask:0xf")
    o(f"    v_mov_b32_dpp v{tt1}, v{i1} row_newbcast:15 row_mask:0xf bank_mask:0xf")
    o(f"    v_add_u32 v{e0}, 15, v{tt0}")
    o(f"    v_add_u32 v{e1}, 15, v{tt1}")
    o(f"    v_and_b32 v{e0}, -16, v{e0}")
    o(f"    v_and_b32 v{e1}, -16, v{e1}")
    o(f"    v_mov_b32 v{p0}, v{e0}")
    o(f"    v_mov_b32 v{p1}, v{e1}")
    o(f"    v_add_u32_dpp v{e0}, v{e0}, v{e0} row_bcast:15 row_mask:0xa bank_mask:0xf")
    o(f"    v_add_u32_dpp v{e1}, v{e1}, v{e1} row_bcast:15 row_mask:0xa bank_mask:0xf")
    o("    s_nop 0")
    o(f"    v_add_u32_dpp v{e0}, v{e0}, v{e0} row_bcast:31 row_mask:0xc bank_mask:0xf")
    o(f"    v_add_u32_dpp v{e1}, v{e1}, v{e1} row_bcast:31 row_mask:0xc bank_mask:0xf")
    o("    s_nop 0")
    o(f"    v_readlane_b32 s{sT}, v{e0}, 63")
    o(f"    v_readlane_b32 s{sT2}, v{e1}, 63")
    o(f"    v_sub_u32 v{a0}, v{e0}, v{tt0}")
    o(f"    v_add_u32 v{e1}, s{sT}, v{e1}")
    o(f"    v_add_u32 v{a0}, v{a0}, v{i0}")
    o(f"    v_sub_u32 v{a1}, v{e1}, v{tt1}")
    o(f"    v_add_u32 v{a1}, v{a1}, v{i1}")
    o(f"    v_sub_u32 v{b0}, v{a0}, v{c0}")
    o(f"    v_sub_u32 v{b1}, v{a1}, v{c1}")
    o(f"    ds_write2st64_b32 v{ad}, v{b0}, v{b1} offset0:2 offset1:3")
    o(f"    s_add_u32 s{sT}, s{sT}, s{sT2}")
    o(f"    s_cmp_gt_u32 s{sT}, {SLOTCAP-96}")
    o(f"    s_cselect_b32 s{sT}, 1, 0")
    o(f"    s_cmp_lg_u32 s{sT3}, 0")
    o(f"    s_cselect_b32 s{sT}, 1, s{sT}")
    o(f"    s_cmp_gt_u32 s{sT}, s{sMode}")
    o("    s_cbranch_scc1 K2_GOSLOW")
    for i in range(8):
        o(f"    ds_read_b32 v{AD1+i}, v{AD1+i} offset:512")
    o(f"    s_cmp_lg_u32 s{sMode}, 0")
    o("    s_cbranch_scc1 K2_NO2C")
    for i in range(NEARLY + 2, 8):
        rec_load(i)
    w_loads()
    o(f"    s_cmp_eq_u64 {sr(sAny2,2)}, 0")
    o("    s_cbranch_scc1 K2_NO2C")
    o("    s_waitcnt lgkmcnt(4)")
    for i in range(8):
        o(f"    s_mov_b64 exec, {sr(sM2+2*i,2)}")
        o(f"    s_cbranch_execz K2_NR2{i}")
        o(f"    s_mov_b32 s{sT}, {i*4*CH*16}")
        o(f"    buffer_load_dwordx4 {vr(32+4*i,4)}, v{RO+i}, {sr(sWS,4)}, s{sT} offen offset:240 sc1")
        o(f"    ds_read_b32 v{AD2+i}, v{AD2+i} offset:512")
        L(f"K2_NR2{i}")
    o("    s_mov_b64 exec, -1")
    L("K2_NO2C")
    o(f"    s_cmp_lt_u32 s{sWave}, 4")
    o("    s_cselect_b64 vcc, -1, 0")
    o(f"    v_cndmask_b32 v{a0}, v{a1}, v{a0}, vcc")
    o(f"    v_cndmask_b32 v{e0}, v{e1}, v{e0}, vcc")
    o(f"    v_cndmask_b32 v{p0}, v{p1}, v{p0}, vcc")
    o(f"    v_cndmask_b32 v{tt0}, v{tt1}, v{tt0}, vcc")
    o(f"    s_and_b32 s{sSeg}, s{sWave}, 3")
    o(f"    s_lshl_b32 s{sSeg}, s{sSeg}, 4")
    o("    s_nop 0")
    o(f"    v_readlane_b32 s{sT}, v{e0}, s{sSeg}")
    o(f"    v_readlane_b32 s{sT2}, v{p0}, s{sSeg}")
    o(f"    v_readlane_b32 s{sT3}, v{tt0}, s{sSeg}")
    o(f"    v_and_b32 v{b0}, 15, v{vLane}")
    o(f"    v_cmp_le_u32 vcc, {5*ZZ}, v{b0}")
    o(f"    v_mov_b32 v{b0}, 0x7fffffff")
    o(f"    s_sub_u32 s{sT}, s{sT}, s{sT2}")
    o(f"    s_sub_u32 s{sLo}, s{sT2}, s{sT3}         ; pad")
    o(f"    s_lshr_b32 s{sNs}, s{sT2}, 4")
    o(f"    v_subrev_u32 v{vEnds}, s{sT}, v{a0}")
    o(f"    v_cndmask_b32 v{vEnds}, v{vEnds}, v{b0}, vcc")
    o(f"    v_lshrrev_b32 v{vRaw}, 1, v{vLane}")
    o(f"    v_add_u32 v{vRaw}, s{sT}, v{vRaw}")
    o(f"    v_lshlrev_b32 v{vRaw}, 4, v{vRaw}")
    if RAW:
        o(f"    v_add_u32 v{vRaw}, {RAW}, v{vRaw}")
    o(f"    s_mul_i32 s{sT}, s{sWave}, {3*RBLK}")
    o(f"    s_add_u32 s{sT}, s{sT}, {RING}")
    o(f"    s_add_u32 s{sT2}, s{sT}, 1024")
    o(f"    v_lshrrev_b32 v{b0}, 5, v{vLane}         ; ha / g")
    o(f"    v_bfe_u32 v{b1}, v{vLane}, 2, 2          ; rho")
    o(f"    v_lshl_add_u32 v{b1}, v{b0}, 3, v{b1}")
    o(f"    v_bfe_u32 v{c0}, v{vLane}, 1, 1")
    o(f"    v_bfe_u32 v{c1}, v{vLane}, 4, 1")
    o(f"    v_lshl_add_u32 v{c0}, v{c1}, 1, v{c0}")
    o(f"    v_lshl_add_u32 v{c0}, v{c0}, 3, s{sT}")
    o(f"    v_lshl_add_u32 v{vA}, v{b1}, 5, v{c0}")
    o(f"    v_lshl_add_u32 v{vV}, v{b0}, 4, s{sT2}")
    o(f"    v_lshl_add_u32 v{vCw}, v{vLane}, 4, s{sT}")
    o(f"    v_lshrrev_b32 v{b0}, 1, v{vLane}")
    o(f"    v_lshl_add_u32 v{vVw}, v{b0}, 2, s{sT2}")
    dump_addr()
    o("    s_waitcnt lgkmcnt(0)")
    for i in range(8):
        o(f"    v_add_lshl_u32 v{AD1+i}, v{AD1+i}, v{RK1+i}, 4")
    stamp(4)
    for i in range(8):
        o(f"    s_mov_b64 exec, {sr(sM1+2*i,2)}")
        o(f"    s_waitcnt vmcnt({(7 if WLDS else 12)-i + (PF0 if PFPOS == 'd' and i > PFI else 0)})")
        o(f"    ds_write_b128 v{AD1+i}, {vr(4*i,4)} offset:{RAW}")
        if PF0 and PFPOS == "d" and i == PFI:
            o("    s_mov_b64 exec, -1")
            prefetch0()
    o(f"    s_waitcnt vmcnt({PF0 if PFPOS == 'd' else 0})")
    if PF0 and PFPOS == "c":
        o("    s_mov_b64 exec, -1")
        prefetch0()
    o(f"    s_cmp_eq_u64 {sr(sAny2,2)}, 0")
    o("    s_cbranch_scc1 K2_NO2D")
    for i in range(8):
        o(f"    s_mov_b64 exec, {sr(sM2+2*i,2)}")
        o(f"    s_cbranch_execz K2_NS2{i}")
        o(f"    v_add_lshl_u32 v{AD2+i}, v{AD2+i}, v{RK2+i}, 4")
        o(f"    ds_write_b128 v{AD2+i}, {vr(32+4*i,4)} offset:{RAW}")
        L(f"K2_NS2{i}")
    L("K2_NO2D")
    o("    s_mov_b64 exec, -1")
    if WLDS:
        o(f"    v_lshlrev_b32 v{TT}, 4, v{vLane}")
        o(f"    v_add_u32 v{TT}, {WST}, v{TT}")
        o(f"    s_cmp_lg_u32 s{sMode}, 0")
        o("    s_cbranch_scc1 K2_NOWST")
        o(f"    ds_write_b128 v{W+4}, {vr(W,4)}")
        L("K2_NOWST")
    o("    s_waitcnt lgkmcnt(0)")
    o("    s_barrier")
    stamp(5)
    if STAMP:
        o("    s_memtime s[100:101]")
        o("    s_waitcnt lgkmcnt(0)")
        o(f"    v_writelane_b32 v{STV}, s100, 12")
    if "prio" in EXP:
        o(f"    s_cmp_lt_u32 s{sWave}, 4")
        o("    s_cbranch_scc1 K2_NOPRIO")
        o("    s_setprio 1")
        L("K2_NOPRIO")

    def convert(ct, rr=RR, off=0):
        CO = AM1
        a0_, a1_, y0, y1, y2, m0, m1, vo = range(ct, ct + 8)
        o(f"    v_bitop3_b32 v{CO}, v{vPar}, v{rr+1}, v{rr} bitop3:0xca")
        o(f"    v_lshlrev_b32 v{y0}, 16, v{rr+2}")
        o(f"    v_lshlrev_b32 v{a0_}, 16, v{CO}")
        o(f"    v_and_b32 v{a1_}, 0xffff0000, v{CO}")
        o(f"    v_and_b32 v{y1}, 0xffff0000, v{rr+2}")
        o(f"    v_lshlrev_b32 v{y2}, 16, v{rr+3}")
        for u, y in enumerate((y0, y1, y2)):
            o(f"    v_mul_f32 v{m0}, v{a0_}, v{y}")
            o(f"    v_mul_f32 v{m1}, v{a1_}, v{y}")
            o(f"    v_cvt_pk_bf16_f32 v{CO+1+u}, v{m0}, v{m1}")
        o(f"    v_lshrrev_b32 v{vo}, 7, v{rr+3}")
        o(f"    v_and_b32 v{vo}, {hex(int(os.environ.get('SRCMASK','0x1fffe00'),16))}, v{vo}")
        o(f"    ds_write_b128 v{vCw}, {vr(CO,4)} offset:{off}")
        o(f"    ds_write_b32 v{vVw}, v{vo} offset:{off}")

    def loads_tile(x, v, vo):
        for r in range(8):
            o(f"    buffer_load_dword v{B+32*x+8*v+r}, v{vo+r}, {sr(sX,4)}, 0 offen offset:{v*128}")
    def smf(x, v, areg):
        if "q1" in EXP and v != 0:
            return
        if "q2" in EXP and v >= 2:
            return
        if "nomfma" not in EXP:
            o(f"    v_smfmac_f32_32x32x32_bf16 {vr(ACC+16*v,16)}, {vr(areg,4)}, {vr(B+32*x+8*v,8)}, v{vIdx}")
    def zero_tile(v):
        if "nomfma" not in EXP or "keepz" in EXP:
            o(f"    v_mfma_f32_32x32x8_bf16 {vr(ACC+16*v,16)}, {vr(ZR,2)}, {vr(ZR,2)}, 0")
    def mask_read(dst, sreg, tmp):
        o(f"    s_lshl_b32 s{sT}, s{sreg}, 5")
        o(f"    v_add_u32 v{tmp}, s{sT}, v{vMask}")
        o(f"    ds_read_b128 {vr(dst,4)}, v{tmp}")
    terms = [(0, 0, 0, 0, 1)] + [(2 + j, 2, 0, j + 1, 1) for j in range(3)]
    cross = {(2, 3): (0, 1), (3, 2): (0, -1), (3, 1): (1, 1), (1, 3): (1, -1), (1, 2): (2, 1), (2, 1): (2, -1)}
    for v in range(1, 4):
        terms.append((5 + v - 1, 3, v, 0, 1))
        for u in range(1, 4):
            if u == v:
                terms.append((1, 1, v, u, 1))
            else:
                i, sg = cross[(u, v)]
                terms.append((8 + i, 4, v, u, sg))
    first_v = {}
    for (si, p, v_, u, sg) in terms:
        first_v.setdefault(si, (v_, u))
    def fmas(v):
        if "noepi" in EXP:
            return
        tv = [t for t in terms if t[2] == v]
        if PK:
            for dh in range(2):
                for (si, p, v_, u, sg) in tv:
                    t = vr(TT + si, 2)
                    neg3 = " neg_lo:[1,0,0] neg_hi:[1,0,0]" if sg < 0 else ""
                    neg2 = " neg_lo:[1,0] neg_hi:[1,0]" if sg < 0 else ""
                    if dh == 0 and first_v[si] == (v_, u):
                        o(f"    v_pk_mul_f32 {t}, {vr(wreg(p,0),2)}, {vr(accr(v,u,0),2)}{neg2}")
                    else:
                        o(f"    v_pk_fma_f32 {t}, {vr(wreg(p,2*dh),2)}, {vr(accr(v,u,2*dh),2)}, {t}{neg3}")
        else:
            for d in range(4):
                for (si, p, v_, u, sg) in tv:
                    t = TT + si
                    ng = "-" if sg < 0 else ""
                    if d == 0 and first_v[si] == (v_, u):
                        o(f"    v_mul_f32 v{t}, {ng}v{wreg(p,d)}, v{accr(v,u,d)}")
                    elif sg > 0:
                        o(f"    v_fmac_f32 v{t}, v{wreg(p,d)}, v{accr(v,u,d)}")
                    else:
                        o(f"    v_fma_f32 v{t}, -v{wreg(p,d)}, v{accr(v,u,d)}, v{t}")
    def fold():
        if PK:
            for si in range(11):
                o(f"    v_add_f32 v{TT+si}, v{TT+si}, v{TT+si+1}")
    def commit_lds():
        t = lambda si: TT + si
        o(f"    v_cvt_pk_bf16_f32 v{TC}, v{t(0)}, v{t(1)}")
        for j in range(3):
            o(f"    v_cvt_pk_bf16_f32 v{TC+1+j}, v{t(2+j)}, v{t(5+j)}")
        o(f"    v_cvt_pk_bf16_f32 v{TC+4}, v{t(8)}, v{t(9)}")
        o(f"    v_cvt_pk_bf16_f32 v{TC+5}, v{t(10)}, v{t(10)}")
        o(f"    ds_write2st64_b32 v{vD4}, v{TC}, v{TC+1} offset0:0 offset1:1")
        o(f"    ds_write2st64_b32 v{vD4}, v{TC+2}, v{TC+3} offset0:2 offset1:3")
        o(f"    ds_write_b16 v{vD2}, v{TC+4}")
        o(f"    ds_write_b16_d16_hi v{vD2}, v{TC+4} offset:128")
        o(f"    ds_write_b16 v{vD2}, v{TC+5} offset:256")
        o(f"    v_add_u32 v{vD4}, {8*SDS}, v{vD4}")
        o(f"    v_add_u32 v{vD2}, {8*SDS}, v{vD2}")
    pcnt = [0]
    def prio_step():
        if PRIO:
            o(f"    s_and_b32 s{sT}, s{sSeg}, 15")
            for lvl, th in zip((2, 1, 0), PRIO):
                pcnt[0] += 1
                o(f"    s_cmp_lg_u32 s{sT}, {th*ZZ+ZZ-1}")
                o(f"    s_cbranch_scc1 K2_PR{pcnt[0]}")
                o(f"    s_setprio {lvl}")
                L(f"K2_PR{pcnt[0]}")
    def schedule_next():
        o(f"    s_sub_u32 s{sT}, s{sEnd}, 1")
        o(f"    s_and_b32 s{sHi}, s{sT}, 15")
        o(f"    s_add_u32 s{sHi}, s{sHi}, 1")
        o(f"    s_lshr_b32 s{sT}, s{sT}, 4")
        o(f"    s_sub_i32 s{sT2}, s{sNs}, 2")
        o(f"    s_add_u32 s{sT3}, s{sGen}, 1")
        o(f"    s_max_i32 s{sT2}, s{sT2}, s{sT3}")
        o(f"    s_min_u32 s{sGen}, s{sT}, s{sT2}")
        o(f"    s_sub_u32 s{sCnt}, s{sGen}, s{sT3}")

    o(f"    s_cmp_eq_u32 s{sNs}, 0")
    o("    s_cbranch_scc1 K2_EMPTY")
    o(f"    ds_read_b128 {vr(RR,4)}, v{vRaw}")
    o(f"    ds_read_b128 {vr(A[0],4)}, v{vRaw} offset:512")
    if PRIO or RP:
        o("    s_setprio 3")
    if RP:
        o(f"    s_mov_b32 s{sLeft}, s{sNs}")
        o(f"    s_mov_b32 s{sPT}, {RP[0]}")
    o(f"    s_mov_b32 s{sD0}, {RBLK}")
    o(f"    s_mov_b32 s{sD1}, {RBLK}")
    o(f"    s_mov_b32 s{sD2}, {-2*RBLK}")
    for v in range(4):
        zero_tile(v)
    o("    s_waitcnt lgkmcnt(1)")
    convert(VO[1])
    o(f"    ds_read_b128 {vr(VO[0],4)}, v{vV}")
    o(f"    ds_read_b128 {vr(VO[0]+4,4)}, v{vV} offset:32")
    o("    s_waitcnt lgkmcnt(4)")
    convert(VO[1], A[0], RBLK)
    o(f"    ds_read_b128 {vr(VO[1],4)}, v{vV} offset:64")
    o(f"    ds_read_b128 {vr(VO[1]+4,4)}, v{vV} offset:96")
    o(f"    v_add_u32 v{vRaw}, 1024, v{vRaw}")
    o(f"    v_add_u32 v{vCw}, {2*RBLK}, v{vCw}")
    o(f"    v_add_u32 v{vVw}, {2*RBLK}, v{vVw}")
    o(f"    v_add_u32 v{vV}, {RBLK}, v{vV}")
    o("    s_waitcnt lgkmcnt(4)")
    for r in range(8):
        o(f"    v_add_u32 v{VO[0]+r}, v{VO[0]+r}, v{vN4}")
    for r in range(8):
        thr = 8 * (r >> 2) + (r & 3) + 4
        if thr < 15:
            o(f"    s_cmp_gt_u32 s{sLo}, {thr}")
            o(f"    s_cbranch_scc1 K2_IZ{r}")
        for v in range(4):
            o(f"    buffer_load_dword v{B+8*v+r}, v{VO[0]+r}, {sr(sX,4)}, 0 offen offset:{v*128}")
        L(f"K2_IN{r}")
    o(f"    s_cmp_eq_u32 s{sNs}, 1")
    o("    s_cbranch_scc1 K2_INITD")
    o("    s_waitcnt lgkmcnt(0)")
    for r in range(8):
        o(f"    v_add_u32 v{VO[1]+r}, v{VO[1]+r}, v{vN4}")
    for v in range(4):
        if v == 3:
            o("    s_waitcnt vmcnt(55)")
        loads_tile(1, v, VO[1])
    L("K2_INITD")
    if ZZ > 1:
        o(f"    s_add_u32 s{sSeg}, s{sSeg}, {ZZ-1}")
    if WLDS:
        for p in range(5):
            o(f"    ds_read_b128 {vr(W+4*p,4)}, v{TT} offset:{p*1024}")
    o(f"    v_readlane_b32 s{sEnd}, v{vEnds}, s{sSeg}")
    o(f"    ds_read_b64_tr_b16 {vr(A[0],2)}, v{vA}")
    o(f"    ds_read_b64_tr_b16 {vr(A[0]+2,2)}, v{vA} offset:128")
    o(f"    ds_read_b128 {vr(VO[0],4)}, v{vV}")
    o(f"    ds_read_b128 {vr(VO[0]+4,4)}, v{vV} offset:32")
    o(f"    s_mov_b32 s{sGen}, 0")
    o(f"    s_mov_b32 s{sCnt}, 0")

    o(".p2align 3")
    L("K2_LOOP")
    for x in range(2):
        a_cur, a_nxt = A[x], A[x ^ 1]
        v_cur, v_nxt = VO[x], VO[x ^ 1]
        if x == 1:
            o(f"    v_add_u32 v{vA}, s{sD0}, v{vA}")
            o(f"    v_add_u32 v{vV}, s{sD1}, v{vV}")
        nx = x ^ 1
        if x == 0:
            o(f"    ds_read_b128 {vr(RR,4)}, v{vRaw}")
        o(f"    ds_read_b64_tr_b16 {vr(a_nxt,2)}, v{vA} offset:{nx*512}")
        o(f"    ds_read_b64_tr_b16 {vr(a_nxt+2,2)}, v{vA} offset:{nx*512+128}")
        o(f"    ds_read_b128 {vr(v_nxt,4)}, v{vV} offset:{nx*64}")
        o(f"    ds_read_b128 {vr(v_nxt+4,4)}, v{vV} offset:{nx*64+32}")
        o(f"    s_sub_u32 s{sCnt}, s{sCnt}, 1")
        o(f"    s_waitcnt lgkmcnt({5 if x == 0 else 4})")
        for r in range(8):
            o(f"    v_add_u32 v{v_cur+r}, v{v_cur+r}, v{vN4}")
        o(f"    s_cbranch_scc1 K2_SP{x}")
        for v in range(4):
            o("    s_waitcnt vmcnt(55)")
            smf(x, v, a_cur)
            loads_tile(x, v, v_cur)
        L(f"K2_NEXT{x}")
        if RP:
            o(f"    s_sub_u32 s{sLeft}, s{sLeft}, 1")
            o(f"    s_cmp_le_i32 s{sLeft}, s{sPT}")
            o(f"    s_cbranch_scc1 K2_RP{x}")
            L(f"K2_RPB{x}")
        if x == 0:
            o("    s_waitcnt lgkmcnt(4)")
            convert(v_cur)
            o(f"    v_add_u32 v{vRaw}, 512, v{vRaw}")
            o(f"    v_add_u32 v{vCw}, s{sD2}, v{vCw}")
            o(f"    v_add_u32 v{vVw}, s{sD2}, v{vVw}")
        else:
            o(f"    s_mov_b32 s{sT}, s{sD0}")
            o(f"    s_mov_b32 s{sD0}, s{sD1}")
            o(f"    s_mov_b32 s{sD1}, s{sD2}")
            o(f"    s_mov_b32 s{sD2}, s{sT}")
            o("    s_branch K2_LOOP")

    for x in range(2):
        a_cur = A[x]
        v_cur = VO[x]
        L(f"K2_SP{x}")
        o(f"    s_add_u32 s{sT}, s{sSeg}, {ZZ}")
        if ZZ == 3:
            o(f"    s_or_b32 s{sT2}, s{sSeg}, 15")
            o(f"    s_min_u32 s{sT}, s{sT}, s{sT2}")
        o(f"    v_readlane_b32 s{sNext}, v{vEnds}, s{sT}")
        o(f"    s_sub_u32 s{sRem}, s{sNs}, s{sGen}")
        o(f"    s_lshl_b32 s{sT3}, s{sGen}, 4")
        o(f"    s_cmp_le_u32 s{sRem}, 2")
        o(f"    s_cbranch_scc1 K2_GEN{x}")
        o(f"    s_cmp_le_u32 s{sGen}, s{sFast}")
        o(f"    s_cbranch_scc1 K2_GEN{x}")
        o(f"    s_add_u32 s{sT2}, s{sT3}, 16")
        o(f"    s_cmp_le_u32 s{sNext}, s{sT2}")
        o(f"    s_cbranch_scc1 K2_GEN{x}")
        for r in range(4):
            o(f"    v_and_b32 v{AM1+r}, v{a_cur+r}, v{LT+r}")
        for r in range(4):
            o(f"    v_bitop3_b32 v{AM2+r}, v{a_cur+r}, v{LT+r}, v{LT+r} bitop3:0x30")
        o("    s_waitcnt vmcnt(31)")
        for v in range(4):
            smf(x, v, AM1)
        o(f"    s_mov_b32 s{sSeg}, s{sT}")
        o(f"    s_mov_b32 s{sEnd}, s{sNext}")
        schedule_next()
        mask_read(LT, sHi, a_cur)
        for v in range(4):
            fmas(v)
            zero_tile(v)
            smf(x, v, AM2)
            loads_tile(x, v, v_cur)
        fold()
        commit_lds()
        prio_step()
        o(f"    s_branch K2_NEXT{x}")
        L(f"K2_GEN{x}")
        o(f"    s_cmp_ge_u32 s{sRem}, 2")
        o(f"    s_cbranch_scc1 K2_GW{x}")
        o("    s_waitcnt vmcnt(0)")
        L(f"K2_GW{x}")
        o(f"    s_cmp_eq_u32 s{sGen}, 0")
        o(f"    s_cselect_b32 s{sLo}, s{sLo}, 0")
        L(f"K2_GL{x}")
        o(f"    s_sub_u32 s{sRel}, s{sEnd}, s{sT3}")
        o(f"    s_min_u32 s{sHi}, s{sRel}, 16")
        mask_read(LT, sHi, AM1)
        mask_read(AM2, sLo, AM1 + 1)
        o("    s_waitcnt vmcnt(31) lgkmcnt(0)")
        for r in range(4):
            o(f"    v_bitop3_b32 v{AM1+r}, v{a_cur+r}, v{LT+r}, v{AM2+r} bitop3:0x40")
        o("    s_nop 1")
        for v in range(4):
            smf(x, v, AM1)
        o(f"    s_cmp_gt_u32 s{sRel}, 16")
        o(f"    s_cbranch_scc1 K2_GD{x}")
        o(f"    s_mov_b32 s{sRet}, {x}")
        o("    s_branch K2_EPI")
        L(f"K2_GD{x}")
        o(f"    s_cmp_le_u32 s{sRem}, 2")
        o(f"    s_cbranch_scc1 K2_NL{x}")
        for v in range(4):
            loads_tile(x, v, v_cur)
        if WFE:
            o(f"    s_branch K2_NL2{x}")
        L(f"K2_NL{x}")
        if WFE:
            o(f"    s_cmp_lg_u32 s{sWFl}, 0")
            o(f"    s_cbranch_scc1 K2_NL2{x}")
            wf_loads(AM2)
            L(f"K2_NL2{x}")
        o(f"    s_cmp_eq_u32 s{sRem}, 1")
        o("    s_cbranch_scc1 K2_STREAM_DONE")
        schedule_next()
        mask_read(LT, sHi, AM1)
        o(f"    s_branch K2_NEXT{x}")

    if RP:
        for x in range(2):
            L(f"K2_RP{x}")
            for lvl in range(3):
                if lvl < 2:
                    o(f"    s_cmp_lg_u32 s{sPT}, {RP[lvl]}")
                    o(f"    s_cbranch_scc1 K2_RP{x}_{lvl}")
                o(f"    s_setprio {2-lvl}")
                o(f"    s_mov_b32 s{sPT}, {RP[lvl+1] if lvl < 2 else -1}")
                o(f"    s_branch K2_RPB{x}")
                if lvl < 2:
                    L(f"K2_RP{x}_{lvl}")
    L("K2_EPI")
    if ZZ == 3:
        o(f"    s_or_b32 s{sT2}, s{sSeg}, 15")
    o(f"    s_add_u32 s{sSeg}, s{sSeg}, {ZZ}")
    if ZZ == 3:
        o(f"    s_min_u32 s{sSeg}, s{sSeg}, s{sT2}")
    o(f"    s_mov_b32 s{sLo}, s{sHi}")
    o(f"    v_readlane_b32 s{sEnd}, v{vEnds}, s{sSeg}")
    o("    s_nop 7")
    for v in range(4):
        fmas(v)
        zero_tile(v)
    fold()
    o(f"    s_cmp_lg_u32 s{sMode}, 0")
    o("    s_cbranch_scc1 K2_EPS")
    commit_lds()
    prio_step()
    L("K2_EPR")
    if EEX:
        o(f"    s_cmp_eq_u32 s{sEnd}, 0x7fffffff")
        o("    s_cbranch_scc1 K2_STREAM_DONE")
    o(f"    s_cmp_eq_u32 s{sRet}, 0")
    o("    s_cbranch_scc1 K2_GL0")
    o("    s_branch K2_GL1")
    L("K2_EPS")
    o("    s_waitcnt vmcnt(31)")
    for si in range(11):
        o(f"    buffer_atomic_add_f32 v{TT+si}, v{vSa}, {sr(sWS,4)}, 0 offen offset:{si*256}")
    o(f"    v_add_u32 v{vSa}, {8*2816}, v{vSa}")
    o("    s_waitcnt vmcnt(0)")
    o("    s_branch K2_EPR")
    for r in range(7):
        L(f"K2_IZ{r}")
        for v in range(4):
            o(f"    v_mov_b32 v{B+8*v+r}, 0")
        o(f"    s_branch K2_IN{r}")
    L("K2_EMPTY")
    o(f"    s_cmp_lg_u32 s{sMode}, 0")
    o("    s_cbranch_scc1 K2_STREAM_DONE")
    for si in range(11):
        o(f"    v_mov_b32 v{TT+si}, 0")
    o(f"    s_mov_b32 s{sT2}, 5")
    L("K2_EMPTYL")
    commit_lds()
    o(f"    s_sub_u32 s{sT2}, s{sT2}, 1")
    o(f"    s_cmp_lg_u32 s{sT2}, 0")
    o("    s_cbranch_scc1 K2_EMPTYL")
    o("    s_branch K2_POSTG")

    L("K2_GOSLOW")
    o(f"    s_mov_b32 s{sMode}, 1")
    o(f"    s_mov_b32 s{sFast}, -1")
    w_loads()
    if WLDS:
        o("    s_waitcnt vmcnt(0)")
        o(f"    ds_write_b128 v{W+4}, {vr(W,4)}")
    dump_addr()
    o(f"    v_mov_b32 v{TT}, 0")
    for k in range(5):
        for si in range(11):
            o(f"    buffer_store_dword v{TT}, v{vSa}, {sr(sWS,4)}, 0 offen offset:{si*256} sc1")
        o(f"    v_add_u32 v{vSa}, {8*2816}, v{vSa}")
        o("    s_waitcnt vmcnt(0)")
    o("    s_waitcnt vmcnt(0)")
    L("K2_SLOW_ROUND")
    o("    s_waitcnt lgkmcnt(0)")
    o("    s_barrier")
    o("    s_nop 7")
    lane_id()
    o(f"    v_lshlrev_b32 v2, 2, v{vLane}")
    o(f"    v_add_u32 v2, {CNT}, v2")
    o("    v_mov_b32 v3, 0")
    o("    ds_write2st64_b32 v2, v3, v3 offset0:0 offset1:1")
    lane_prep()
    hdr_loads()
    o(f"    v_add_u32 v{TM+1}, s{sJlo}, v{vJ}")
    o(f"    s_movk_i32 s{sT}, {CH}")
    o(f"    v_mad_u32_u24 v{TM+2}, v{vW0}, s{sT}, v{TM+1}")
    o(f"    v_cmp_gt_u32 {sr(sSave,2)}, 8, v{vJ}")
    o(f"    s_mov_b64 {sr(sAny2,2)}, 0")
    o(f"    v_mov_b32 v{TM+3}, 0")
    o(f"    v_lshlrev_b32 v{KY}, 1, v{TM+1}")
    o(f"    v_subrev_u32 v{KY+1}, 29, v{KY}")
    o(f"    v_min_u32 v{KY}, v{KY}, v{KY+1}")
    o(f"    v_lshl_add_u32 v{KY}, v{vW0}, 13, v{KY}")
    o(f"    s_lshl_b32 s{sT}, s{sBin}, 5")
    o(f"    s_add_u32 s{sT}, s{sT}, {WS_T2}")
    o(f"    v_add_u32 v{KY}, s{sT}, v{KY}")
    o("    s_waitcnt vmcnt(0)")
    for i in range(8):
        o(f"    v_lshrrev_b32 v{TM}, 16, v{HD+i}")
        o(f"    v_and_b32 v{AD2+i}, 0xffff, v{HD+i}")
        o(f"    v_cmp_lt_u32 vcc, v{TM+1}, v{TM}")
        o(f"    v_add_u32 v{AD2+i}, v{AD2+i}, v{TM+2}")
        o(f"    v_lshlrev_b32 v{RO+i}, 4, v{AD2+i}")
        o(f"    v_max_u32 v{TM+3}, v{TM+3}, v{TM}")
        o(f"    v_mov_b32 v{AD1+i}, 0")
        o(f"    s_and_b64 {sr(sM1+2*i,2)}, vcc, {sr(sSave,2)}")
        o(f"    s_mov_b64 exec, {sr(sM1+2*i,2)}")
        o(f"    s_cbranch_execz K2_SR{i}")
        o(f"    s_mov_b32 s{sT}, {i*4*CH*16}")
        o(f"    buffer_load_dwordx4 {vr(4*i,4)}, v{RO+i}, {sr(sWS,4)}, s{sT} offen sc1")
        o(f"    v_cmp_lt_u32 vcc, 30, v{TM}")
        o(f"    v_add_u32 v{AD2+i}, {WS_KEY + i*4*CH}, v{AD2+i}")
        o(f"    v_add_u32 v{TM}, {i*32768}, v{KY}")
        o(f"    v_cndmask_b32 v{AD2+i}, v{TM}, v{AD2+i}, vcc")
        o(f"    buffer_load_ubyte v{AD1+i}, v{AD2+i}, {sr(sWS,4)}, 0 offen sc1")
        L(f"K2_SR{i}")
        o("    s_mov_b64 exec, -1")
    o(f"    v_mov_b32 v{TM}, {MISC+4}")
    o(f"    ds_max_u32 v{TM}, v{TM+3}")
    o(f"    v_mov_b32 v{TM+4}, {CNT}")
    o("    s_waitcnt vmcnt(0) lgkmcnt(0)")
    o("    s_barrier")
    o(f"    ds_read_b32 v{TM}, v{TM}")
    o("    s_waitcnt lgkmcnt(0)")
    o(f"    v_readfirstlane_b32 s{sMax}, v{TM}")
    o(f"    v_mov_b32 v{TM}, 1")
    for i in range(8):
        o(f"    v_lshl_add_u32 v{AD1+i}, v{AD1+i}, 2, v{TM+4}")
    for i in range(8):
        o(f"    s_mov_b64 exec, {sr(sM1+2*i,2)}")
        o(f"    ds_add_rtn_u32 v{RK1+i}, v{AD1+i}, v{TM}")
    o("    s_mov_b64 exec, -1")
    o("    s_branch K2_RANKD")

    L("K2_STREAM_DONE")
    o(f"    s_cmp_eq_u32 s{sMode}, 0")
    o("    s_cbranch_scc1 K2_POSTG")
    o(f"    s_add_u32 s{sJlo}, s{sJlo}, 8")
    o(f"    s_cmp_lt_u32 s{sJlo}, s{sMax}")
    o("    s_cbranch_scc1 K2_SLOW_ROUND")
    o("    s_nop 7")
    lane_id()
    dump_addr()
    o(f"    s_mov_b32 s{sT2}, 5")
    L("K2_SLOWL")
    for si in range(11):
        o(f"    buffer_load_dword v{TT+si}, v{vSa}, {sr(sWS,4)}, 0 offen offset:{si*256} sc1")
    o(f"    v_add_u32 v{vSa}, {8*2816}, v{vSa}")
    o("    s_waitcnt vmcnt(0)")
    commit_lds()
    o(f"    s_sub_u32 s{sT2}, s{sT2}, 1")
    o(f"    s_cmp_lg_u32 s{sT2}, 0")
    o("    s_cbranch_scc1 K2_SLOWL")

    L("K2_POSTG")
    stamp(6)
    if STAMP:
        o("    s_memtime s[100:101]")
        o("    s_waitcnt lgkmcnt(0)")
        o(f"    v_writelane_b32 v{STV}, s100, 13")
    t0, t1 = 226, 227
    vLane = 246
    o(f"    s_cmp_lg_u32 s{sWFl}, 0")
    o("    s_cbranch_scc1 K2_NOWF")
    wf_loads(t0)
    L("K2_NOWF")
    o(f"    v_mbcnt_lo_u32_b32 v{vLane}, -1, 0")
    o(f"    v_mbcnt_hi_u32_b32 v{vLane}, -1, v{vLane}")
    o(f"    s_cmp_ge_u32 s{sWave}, 4")
    o("    s_cbranch_scc1 K2_GADDR")
    vB_, vOt, vB2, vB2x, vB0, vO2 = 220, 221, 222, 223, 224, 225
    o(f"    v_and_b32 v{t0}, 15, v{vLane}                ; nn")
    o(f"    v_lshrrev_b32 v{t1}, 4, v{vLane}             ; g")
    o(f"    v_mul_u32_u24 v{vB_}, {SDS}, v{t0}")
    o(f"    v_lshl_add_u32 v{vB_}, v{t1}, 4, v{vB_}")
    o(f"    v_add_u32 v{vB_}, {SD}, v{vB_}")
    o(f"    s_lshl_b32 s{sT3}, s{sWave}, 5               ; t*32 bytes")
    o(f"    s_add_u32 s{sT}, s{sT3}, {OUTT}")
    o(f"    v_mul_u32_u24 v{vOt}, {OUT_STRIDE}, v{t0}")
    o(f"    v_lshl_add_u32 v{vOt}, v{t1}, 3, v{vOt}")
    o(f"    v_add_u32 v{vOt}, s{sT}, v{vOt}")
    o(f"    v_and_b32 v0, 7, v{t0}")
    o(f"    v_lshrrev_b32 v1, 3, v{t0}")
    o(f"    v_mul_u32_u24 v{vB0}, {SDS}, v0")
    o(f"    v_lshl_add_u32 v{vB0}, v{t1}, 4, v{vB0}")
    o(f"    v_add_u32 v{vB0}, {SD + 32*SDS}, v{vB0}")
    o(f"    v_lshl_add_u32 v{vB2}, v1, 8, v{vB0}")
    o(f"    v_lshl_add_u32 v{vB2x}, v1, 7, v{vB0}")
    o(f"    v_cmp_eq_u32 {sr(sSave,2)}, 1, v1")
    o(f"    v_mul_u32_u24 v{vO2}, {OUT_STRIDE}, v0")
    o(f"    v_lshl_add_u32 v{vO2}, v{t1}, 3, v{vO2}")
    o(f"    s_add_u32 s{sT}, s{sT3}, {OUTT + 32*OUT_STRIDE}")
    o(f"    v_add_u32 v{vO2}, s{sT}, v{vO2}")
    o(f"    v_lshl_add_u32 v{t0}, v1, 7, v{vO2}")
    o(f"    v_mul_u32_u24 v1, 384, v1")
    o(f"    v_sub_u32 v{t1}, v{vO2}, v1")
    G = 184
    o(f"    v_mov_b32 v{G+12}, 0xbfb8aa3b           ; -log2(e)")
    L("K2_GADDR")
    o("    s_waitcnt lgkmcnt(0)")
    o("    s_barrier")
    stamp(7)
    o(f"    s_cmp_ge_u32 s{sWave}, 4")
    o("    s_cbranch_scc1 K2_NOGEMM")
    seq = []
    for T, ar, base in ((0, vB_, 0), (1, vB_, 16 * SDS), (2, vB0, 0)):
        for ks in range(4):
            seq.append((T, ks, ar, base + 64 * ks, ks == 0))
    for T in range(2):
        for blk in range(1, 4):
            di = 3 + 3 * T + blk - 1
            for ks in range(4):
                seq.append((di, 4 + ks, vB_, T * 16 * SDS + blk * 256 + 64 * ks, ks == 0))
            for ks in range(2):
                seq.append((di, 8 + ks, vB_, T * 16 * SDS + 1024 + 128 * (blk - 1) + 64 * ks, False))
    for ks in range(4):
        seq.append((9, 4 + ks, vB2, 256 + 64 * ks, ks == 0))
    for ks in range(2):
        seq.append((9, 8 + ks, vB2x, 1024 + 64 * ks, False))
    for ks in range(4):
        seq.append((10, 4 + ks, vB0, 768 + 64 * ks, ks == 0))
    for ks in range(2):
        seq.append((10, 8 + ks, vB0, 1024 + 256 + 64 * ks, False))
    BB = 64
    NB_ = 16
    DEPTH = 12
    DD = 0
    RS = 198
    def bread(i):
        o(f"    ds_read_b128 {vr(BB+4*(i%NB_),4)}, v{seq[i][2]} offset:{seq[i][3]}")
    for i in range(DEPTH):
        bread(i)
    o("    s_waitcnt vmcnt(0)")
    work = []
    for T in range(3):
        work += [(16, f"    v_mul_f32 v{G+4*T+r}, v{G+12}, v{DD+4*T+r}") for r in range(4)]
    for T in range(3):
        work += [(16, f"    v_exp_f32 v{G+4*T+r}, v{G+4*T+r}") for r in range(4)]
    for T in range(3):
        work += [(16, f"    v_add_f32 v{G+4*T+r}, 1.0, v{G+4*T+r}") for r in range(4)]
    for T in range(3):
        work += [(16, f"    v_rcp_f32 v{G+4*T+r}, v{G+4*T+r}") for r in range(4)]
    for T in range(3):
        work += [(16, f"    v_cvt_pk_bf16_f32 v{RS+2*T}, v{DD+4*T}, v{DD+4*T+1}"), (16, f"    v_cvt_pk_bf16_f32 v{RS+2*T+1}, v{DD+4*T+2}, v{DD+4*T+3}")]
    def fin(di):
        g0 = G + 4 * min((di - 3) // 3, 2)
        last = 12 + 6 * (di - 3) + 5
        ins = [f"    v_mul_f32 v{DD+4*di+r}, v{DD+4*di+r}, v{g0+r}" for r in range(4)]
        ins += [f"    v_cvt_pk_bf16_f32 v{RS+2*di}, v{DD+4*di}, v{DD+4*di+1}", f"    v_cvt_pk_bf16_f32 v{RS+2*di+1}, v{DD+4*di+2}, v{DD+4*di+3}"]
        return [(last + 5, x) for x in ins]
    for di in range(3, 11):
        work += fin(di)
    n = len(seq)
    assert n == 60
    for i, (di, f, ar, off, first) in enumerate(seq):
        if i % 2 == 0:
            cnt = min(i + DEPTH, n) - 2 - i
            o(f"    s_waitcnt lgkmcnt({max(cnt,0)})")
        d = vr(DD + 4 * di, 4)
        o(f"    v_mfma_f32_16x16x32_bf16 {d}, {vr(WF+4*f,4)}, {vr(BB+4*(i%NB_),4)}, {'0' if first else d}")
        if i + DEPTH < n:
            bread(i + DEPTH)
        k = 0
        while work and work[0][0] <= i and k < (2 if i + DEPTH < n else 3):
            o(work.pop(0)[1]); k += 1
    wr = []
    for T in range(2):
        wr.append(f"    ds_write_b64 v{vOt}, {vr(RS+2*T,2)} offset:{T*16*OUT_STRIDE}")
        for blk in range(1, 4):
            wr.append(f"    ds_write_b64 v{vOt}, {vr(RS+2*(3+3*T+blk-1),2)} offset:{T*16*OUT_STRIDE+blk*128}")
    early = [w for w in work if w[0] <= n - 1]
    late = [w for w in work if w[0] > n - 1]
    for w in early:
        o(w[1])
    for x_ in wr:
        o(x_)
    o("    s_nop 1")
    for w in late:
        o(w[1])
    o(f"    ds_write_b64 v{t0}, {vr(RS+18,2)} offset:128")
    o(f"    v_cndmask_b32 v{RS+20}, v{RS+20}, v{RS+4}, {sr(sSave,2)}")
    o(f"    v_cndmask_b32 v{RS+21}, v{RS+21}, v{RS+5}, {sr(sSave,2)}")
    o(f"    ds_write_b64 v{t1}, {vr(RS+20,2)} offset:384")
    L("K2_NOGEMM")
    o(f"    s_lshl_b32 s{sT}, s{sWave}, 6")
    o(f"    v_add_u32 v4, s{sT}, v{vLane}            ; tid")
    o("    v_lshrrev_b32 v0, 5, v4")
    o("    v_and_b32 v1, 31, v4")
    o(f"    v_mul_u32_u24 v2, {OUT_STRIDE}, v0")
    o("    v_lshl_add_u32 v2, v1, 4, v2")
    if OUTT:
        o(f"    v_add_u32 v2, {OUTT}, v2")
    o("    v_lshlrev_b32 v3, 4, v4")
    o("    v_add_u32 v16, 8192, v3")
    o("    v_add_u32 v17, 16384, v3")
    o("    s_waitcnt lgkmcnt(0)")
    o("    s_barrier")
    stamp(8)
    for r in range(3):
        o(f"    ds_read_b128 {vr(4+4*r,4)}, v2 offset:{r*16*OUT_STRIDE}")
    for r in range(3):
        if r == 2:
            o(f"    s_cmp_ge_u32 s{sWave}, 4")
            o("    s_cbranch_scc1 K2_FIN")
        o(f"    s_waitcnt lgkmcnt({2-r})")
        o(f"    buffer_store_dwordx4 {vr(4+4*r,4)}, v{[3,16,17][r]}, {sr(sOUT,4)}, 0 offen {OUTST}")
    L("K2_FIN")
    if STAMP:
        o("    s_waitcnt vmcnt(0)")
    stamp(9)
    stamp_dump(sWS, sWS + 1, sWave, 8, 65 << 20)
    L("K2_END")
    o("    s_endpgm")
    L("CODE_END")

gen_k1()
gen_k2()

o('.section .rodata,"a"')
def kd(name, vgpr, sgpr):
    o(".p2align 6")
    o(f".amdhsa_kernel {name}")
    o(f"  .amdhsa_next_free_vgpr {vgpr}")
    o(f"  .amdhsa_next_free_sgpr {sgpr}")
    o(f"  .amdhsa_accum_offset {(vgpr+3)//4*4}")
    o("  .amdhsa_group_segment_fixed_size 0")
    o("  .amdhsa_kernarg_size 96")
    o("  .amdhsa_user_sgpr_count 2")
    o("  .amdhsa_user_sgpr_kernarg_segment_ptr 1")
    o("  .amdhsa_system_sgpr_workgroup_id_x 1")
    o("  .amdhsa_float_denorm_mode_32 3")
    o(".end_amdhsa_kernel")
kd(KNAME, 256, 102 if STAMP else 92)

open(OUTFILE, "w").write("\n".join(lines) + "\n")
print("wrote", OUTFILE, len(lines), "lines; K2 LDS", K2_LDS)
```

```python
import sys, os

P = 1
OUTFILE = sys.argv[1] if len(sys.argv) > 1 else "standalone__tensor_product_equiv_equiformer__graph.s"
STAMP = int(os.environ.get("STAMP", "0"))
K1ST = os.environ.get("K1ST", "sc1")
K1LD2 = os.environ.get("K1LD2", "")
OUTST = os.environ.get("OUTST", "sc1")
K1LD = os.environ.get("K1LD", "nt")
EXP = os.environ.get("EXP", "")
PFA = int(os.environ.get("PFA", "0"))
ST2 = int(os.environ.get("ST2", "1"))
K1SPL = int(os.environ.get("K1SPL", "1"))
TLBW = int(os.environ.get("TLBW", "0"))
K1ORD = int(os.environ.get("K1ORD", "2"))
T2E = int(os.environ.get("T2E", "0"))
ZZ = int(os.environ.get("ZZ", "1"))
K1MAP = int(os.environ.get("K1MAP", "0"))
PK = 0
WFE = int(os.environ.get("WFE", "0"))
EEX = int(os.environ.get("EEX", "1"))
RP = [int(t) for t in os.environ.get("RP", "").split(",") if t]
RMASK = int(os.environ.get("RMASK", "1"))
WLDS = int(os.environ.get("WLDS", "1"))
XEND = os.environ.get("XEND", "")
NEARLY = int(os.environ.get("NEARLY", "4"))
K1PF = int(os.environ.get("K1PF", "0"))
PF0 = int(os.environ.get("PF0", "1"))
PFPOS = os.environ.get("PFPOS", "d")
PFI = int(os.environ.get("PFI", "5"))
PFL = int(os.environ.get("PFL", "32"))
IDXN = int(os.environ.get("IDXN", "0"))
IDXN2 = int(os.environ.get("IDXN2", "3"))
CPF = int(os.environ.get("CPF", "3"))
VW = int(os.environ.get("VW", "48"))
PRIO = [int(t) for t in os.environ.get("PRIO", "2,3,4").split(",") if t]
XPF = int(os.environ.get("XPF", "0"))

N = 10000
E = 640000
NWG = 256
CH = 2500
BINM = 1677
PHM = (P << 23) // 10000
WS_REC = 0
WS_KEY = 10240000
WS_TAB = 10880000
WS_T2 = WS_TAB + 256 * 1024
WS_WF = WS_T2 + 256 * 8192
WS_WR = WS_WF + 40 * 1024
WS_S32 = WS_WR + 5 * 1024
WS_END = WS_S32 + 256 * 40 * 2816

lines = []
def o(s=""):
    lines.append(s)
def L(s):
    lines.append(s + ":")
def vr(a, n):
    return f"v[{a}:{a+n-1}]"
def sr(a, n):
    return f"s[{a}:{a+n-1}]"
def srd(d, lo, hi, nbytes):
    o(f"    s_mov_b32 s{d}, s{lo}")
    o(f"    s_and_b32 s{d+1}, s{hi}, 0xffff")
    o(f"    s_mov_b32 s{d+2}, {nbytes}")
    o(f"    s_mov_b32 s{d+3}, 0x00020000")

STV = 142
def stamp(i, vreg=STV):
    if STAMP:
        o("    s_memrealtime s[100:101]")
        o("    s_waitcnt lgkmcnt(0)")
        o(f"    v_writelane_b32 v{vreg}, s100, {i}")
def stamp_dump(wsl, wsh, wave_sgpr, nwaves, base, vreg=STV):
    if not STAMP:
        return
    o("    s_waitcnt lgkmcnt(0) vmcnt(0)")
    o("    s_mov_b64 exec, 0xffff")
    o(f"    s_mul_i32 s4, s2, {nwaves}")
    o(f"    s_add_u32 s4, s4, s{wave_sgpr}")
    o("    s_lshl_b32 s4, s4, 6")
    o(f"    s_add_u32 s4, s4, {base}")
    o(f"    s_mov_b32 s8, s{wsl}")
    o(f"    s_and_b32 s9, s{wsh}, 0xffff")
    o("    s_mov_b32 s10, 0x8000000")
    o("    s_mov_b32 s11, 0x00020000")
    o("    v_mbcnt_lo_u32_b32 v0, -1, 0")
    o("    v_lshl_add_u32 v0, v0, 2, s4")
    o(f"    buffer_store_dword v{vreg}, v0, s[8:11], 0 offen")
    o("    s_waitcnt vmcnt(0)")

K1_CNT = 0
K1_START = 1024
K1_KEY = 2048
K1_T2 = 4608
K1_REC = K1_T2 + 8192
K1_LDS = K1_REC + 40960

SLOTCAP = 3072
RAW = 0
RING = RAW + SLOTCAP * 16
RBLK = 1152
MASK = RING + 8 * 3 * RBLK
CNT = MASK + 1024
BASE = CNT + 512
MISC = BASE + 512
SD = MISC + 64
SDS = 1440
K2_LDS = SD + 48 * SDS
WST = SD + 40 * SDS
OUTT = RAW
OUT_STRIDE = 528
assert K2_LDS <= 163840, K2_LDS
assert SD % 16 == 0

for _l in """Equivariant tensor-product message passing (N=10000 nodes, E=640000 edges, C=64), two launches.
Kernarg: x, rhat, e_attr, src, dst, w_rad, w_si0, w_si1, cg_eps, out, debug, ws (8-byte pointers).
Reformulation: all per-edge work is linear in x[src], so per destination node
  T[(u,d)][v][c] = sum_e a_d(e) * Yext_u(e) * x[src_e][v][c]      (Yext = (1, rhat), 16 x 256 values per node)
is accumulated on the matrix cores, contracted with w_rad over d (per channel), combined over (u,v) with the
Levi-Civita signs into the 11 path sums, and only then multiplied by w_si0 / w_si1 and gated.
tp_part_kernel: every workgroup counting-sorts 2500 edges by destination bin (39-40 nodes) into 16-byte records
  {a[4], Y[3], src} plus a per-(producer,bin) key table in ws; an extra wave re-lays-out the weights.
tp_main_kernel: one workgroup per bin; sorts its records by node in LDS, each wave streams 5 nodes:
  dword gathers of x rows feed v_smfmac_f32_32x32x32_bf16 (2:4 index picks even/odd channel), then a small GEMM.
  Oversized segments / bins fall back to a multi-round path, so any dst distribution is handled.""".split("\n"):
    o("; " + _l)
o(f"; @launch kernel=tp_part_kernel grid=({NWG},1,1) block=(704,1,1) lds={K1_LDS}")
o(f"; @launch kernel=tp_main_kernel grid=({NWG},1,1) block=(512,1,1) lds={K2_LDS}")
o('.amdgcn_target "amdgcn-amd-amdhsa--gfx950"')
o(".text")

def gen_k1():
    SV = 79
    o(".globl tp_part_kernel")
    o(".p2align 8")
    o(".type tp_part_kernel,@function")
    L("tp_part_kernel")
    o(f"    s_cmp_ge_u32 s2, {NWG}")
    o("    s_cbranch_scc1 K1_END")
    if K1MAP:
        o("    s_and_b32 s3, s2, 7")
        o("    s_lshl_b32 s3, s3, 5")
        o("    s_lshr_b32 s2, s2, 3")
        o("    s_add_u32 s2, s2, s3")
    stamp(0, SV)
    o("    s_load_dwordx4 s[4:7], s[0:1], 8")
    o("    s_load_dwordx4 s[8:11], s[0:1], 24")
    o("    s_load_dwordx2 s[16:17], s[0:1], 88   ; ws")
    o("    s_load_dwordx2 s[64:65], s[0:1], 0    ; x")
    def code_pf():
        o("    s_cmp_lg_u32 s50, 8")
        o("    s_cbranch_scc1 K1_NOCPF")
        o("    s_getpc_b64 s[66:67]")
        L("K1_PC")
        o("    v_and_b32 v78, 3, v0")
        o("    s_lshr_b32 s68, s2, 3")
        o("    s_lshl_b32 s68, s68, 9")
        o("    v_lshl_add_u32 v78, v78, 7, s68")
        o(f"    v_min_u32 v77, CODE_END-K1_PC-4, v78")
        o("    s_mov_b64 exec, 15")
        o(f"    global_load_dword v76, v77, s[66:67]")
        o("    s_mov_b64 exec, -1")
        L("K1_NOCPF")
    def xtouch():
        XL = int(os.environ.get("XL", "16"))
        srd(68, 64, 65, N * 512)
        o("    s_lshr_b32 s66, s2, 3")
        o("    s_mul_i32 s66, s66, 10")
        o("    s_add_u32 s66, s66, s50")
        o(f"    s_mul_i32 s66, s66, {XL*128}")
        o(f"    s_add_u32 s66, s66, {1<<21}")
        o("    v_lshl_add_u32 v77, v70, 3, s66")
        o(f"    s_mov_b64 exec, {hex((1<<XL)-1)}")
        o("    buffer_load_dword v78, v77, s[68:71], 0 offen")
        o("    s_mov_b64 exec, -1")
    D, S, EA, RA, RB = 4, 8, 12, 20, 24
    BN, RK, ST = 28, 32, 36
    T = 40
    WFR = 48
    C = 56
    o("    v_lshrrev_b32 v70, 6, v0")
    o("    v_lshlrev_b32 v1, 2, v0               ; tid*4")
    o("    v_readfirstlane_b32 s50, v70")
    o(f"    s_mul_i32 s3, s2, {CH}")
    o("    v_add_u32 v2, s3, v1")
    o("    v_lshlrev_b32 v3, 2, v2")
    o(f"    v_lshlrev_b32 v{T}, 3, v2")
    o(f"    v_mul_u32_u24 v{T+1}, 6, v2")
    o("    s_cmp_eq_u32 s50, 10")
    o("    s_cbranch_scc1 K1_AUX")
    o("    s_waitcnt lgkmcnt(0)")
    stamp(1, SV)
    srd(20, 10, 11, E * 4)
    o(f"    buffer_load_dwordx4 {vr(D,4)}, v3, s[20:23], 0 offen {K1LD}")
    srd(24, 8, 9, E * 4)
    srd(28, 6, 7, E * 8)
    srd(32, 4, 5, E * 6)
    def payload1():
        o(f"    buffer_load_dwordx4 {vr(S,4)}, v3, s[24:27], 0 offen {K1LD}")
        o(f"    buffer_load_dwordx3 {vr(RA,3)}, v{T+1}, s[32:35], 0 offen {K1LD2}")
        o(f"    buffer_load_dwordx3 {vr(RB,3)}, v{T+1}, s[32:35], 0 offen offset:12 {K1LD2}")
    def payload2():
        o(f"    buffer_load_dwordx4 {vr(EA,4)}, v{T}, s[28:31], 0 offen {K1LD2}")
        o(f"    buffer_load_dwordx4 {vr(EA+4,4)}, v{T}, s[28:31], 0 offen offset:16 {K1LD2}")
    o("    v_lshlrev_b32 v71, 4, v0              ; tid*16")
    o("    v_and_b32 v70, 63, v0")
    o("    v_lshlrev_b32 v70, 4, v70             ; lane*16")
    o("    s_cmp_lt_u32 s50, 8")
    o("    s_cselect_b32 s51, -1, 0")
    for i in range(4):
        o(f"    v_mov_b32 v{60+i}, s51")
    o("    s_cbranch_scc0 K1_INIT2")
    o(f"    ds_write_b128 v71, v[60:63] offset:{K1_T2}")
    o("    s_branch K1_INIT3")
    L("K1_INIT2")
    o(f"    ds_write_b128 v70, v[60:63] offset:{K1_CNT}")
    L("K1_INIT3")
    o(f"    s_mul_i32 s36, s2, {CH*16}")
    o("    s_add_u32 s36, s16, s36")
    o("    s_addc_u32 s37, s17, 0")
    o("    s_and_b32 s37, s37, 0xffff")
    o(f"    s_mov_b32 s38, {CH*16}")
    o("    s_mov_b32 s39, 0x00020000")
    o(f"    s_add_u32 s40, s3, {WS_KEY}")
    o("    s_add_u32 s40, s16, s40")
    o("    s_addc_u32 s41, s17, 0")
    o("    s_and_b32 s41, s41, 0xffff")
    o(f"    s_mov_b32 s42, {CH}")
    o("    s_mov_b32 s43, 0x00020000")
    srd(44, 16, 17, WS_END)
    o("    s_mov_b32 s62, 0x05040100")
    o("    s_mov_b32 s63, 0x05040302")
    for r in range(1, 4):
        o(f"    v_add_u32 v{71+r}, {r*10240}, v71")
    o("    s_waitcnt lgkmcnt(0)")
    o("    s_barrier")
    payload1()
    if K1ORD == 1:
        payload2()
    if CPF == 1:
        code_pf()
    o(f"    v_cmp_gt_u32 vcc, {CH//4}, v0")
    o("    s_mov_b64 s[60:61], vcc")
    o("    s_mov_b64 exec, vcc")
    o("    v_mov_b32 v2, 1")
    o(f"    s_waitcnt vmcnt({5 if K1ORD == 1 else 3})")
    stamp(2, SV)
    for j in range(4):
        o(f"    v_mul_u32_u24 v{D+j}, {BINM}, v{D+j}")
    for j in range(4):
        o(f"    v_lshrrev_b32 v{BN+j}, 14, v{D+j}")
    for j in range(4):
        o(f"    v_and_b32 v{BN+j}, 0x3fc, v{BN+j}")
    for j in range(4):
        o(f"    ds_add_rtn_u32 v{RK+j}, v{BN+j}, v2 offset:{K1_CNT}")
    o("    s_mov_b64 exec, -1")
    if K1ORD == 3:
        payload2()
    o("    s_waitcnt lgkmcnt(0)")
    o("    s_barrier")
    stamp(3, SV)
    o(f"    ds_read_b128 {vr(C,4)}, v70 offset:{K1_CNT}")
    if K1ORD == 2:
        payload2()
    for j in range(4):
        o(f"    v_and_b32 v{D+j}, 0xffff, v{D+j}")
        o(f"    v_mul_u32_u24 v{D+j}, 40018, v{D+j}")
        o(f"    v_bfe_u32 v{ST+j}, v{D+j}, 26, 3       ; local&7")
        o(f"    v_lshrrev_b32 v{D+j}, 29, v{D+j}       ; local>>3")
        if ZZ > 1:
            o(f"    v_and_b32 v{44+j}, 1, v{D+j}             ; k&1")
            o(f"    v_mul_u32_u24 v{D+j}, {ZZ}, v{D+j}")
        o(f"    v_lshl_add_u32 v{D+j}, v{ST+j}, 4, v{D+j}")
    o("    s_waitcnt lgkmcnt(0)")
    o(f"    v_add_u32 v64, v{C}, v{C+1}")
    o(f"    v_add_u32 v65, v64, v{C+2}")
    o(f"    v_add_u32 v66, v65, v{C+3}")
    o("    v_mov_b32 v67, v66")
    o(f"    v_max3_u32 v68, v{C}, v{C+1}, v{C+2}")
    o(f"    v_max_u32 v68, v68, v{C+3}")
    o("    v_cmp_lt_u32 vcc, 30, v68")
    o("    s_mov_b64 s[54:55], vcc")
    fill = []
    for j in range(4):
        fill.append(f"    v_min_u32 v{WFR+j}, 29, v{RK+j}")
        fill.append(f"    v_lshlrev_b32 v{WFR+j}, 1, v{WFR+j}")
        fill.append(f"    v_subrev_u32 v{WFR+4+j}, 29, v{WFR+j}")
        fill.append(f"    v_min_u32 v{WFR+j}, v{WFR+j}, v{WFR+4+j}")
    def two():
        o(fill.pop(0)); o(fill.pop(0))
    two()
    for sh in (1, 2, 4, 8):
        o(f"    v_add_u32_dpp v67, v67, v67 row_shr:{sh} row_mask:0xf bank_mask:0xf bound_ctrl:0")
        two()
    o("    v_add_u32_dpp v67, v67, v67 row_bcast:15 row_mask:0xa bank_mask:0xf")
    two()
    o("    v_add_u32_dpp v67, v67, v67 row_bcast:31 row_mask:0xc bank_mask:0xf")
    o("    v_sub_u32 v60, v67, v66")
    o(f"    v_add_u32 v61, v60, v{C}")
    o("    v_add_u32 v62, v60, v64")
    o("    v_add_u32 v63, v60, v65")
    o(f"    ds_write_b128 v70, v[60:63] offset:{K1_START}")
    for j in range(4):
        o(f"    ds_read_b32 v{ST+j}, v{BN+j} offset:{K1_START}")
    while fill:
        o(fill.pop(0))
    for j in range(4):
        o(f"    v_lshl_add_u32 v{WFR+j}, v{BN+j}, 3, v{WFR+j}")
    o("    s_cmp_lt_u32 s50, 8")
    o("    s_cbranch_scc1 K1_NOTAB")
    o("    v_lshlrev_b32 v68, 3, v70")
    for j in range(4):
        o(f"    v_cmp_lt_u32 vcc, 30, v{C+j}")
        o(f"    v_or_b32 v69, 0x8000, v{60+j}")
        o(f"    v_lshl_or_b32 v{C+j}, v{C+j}, 16, v{60+j}")
        o(f"    v_cndmask_b32 v69, v{60+j}, v69, vcc")
        o(f"    ds_write_b16 v68, v69 offset:{K1_T2 + 32*j + 30}")
    L("K1_NOTAB")
    o("    s_mov_b64 exec, s[60:61]")
    if P > 1:
        o("    s_waitcnt vmcnt(4)")
        for j in range(4):
            o(f"    v_mul_u32_u24 v{WFR+4+j}, {PHM}, v{S+j}")
            o(f"    v_lshrrev_b32 v{WFR+4+j}, 23, v{WFR+4+j}")
            o(f"    v_mad_u32_u24 v{D+j}, v{WFR+4+j}, 5, v{D+j}")
    if ZZ > 1:
        o("    s_waitcnt vmcnt(4)")
        for j in range(4):
            o(f"    v_mul_u32_u24 v{WFR+4+j}, {(ZZ << 23) // 10000}, v{S+j}")
            o(f"    v_lshrrev_b32 v{WFR+4+j}, 23, v{WFR+4+j}     ; sub")
            o(f"    v_sub_u32 v64, {ZZ-1}, v{WFR+4+j}")
            o(f"    v_sub_u32 v64, v64, v{WFR+4+j}")
            o(f"    v_mad_i32_i24 v64, v64, v{44+j}, v{WFR+4+j}")
            o(f"    v_add_u32 v{D+j}, v{D+j}, v64")
    for j in range(4):
        o(f"    ds_write_b8 v{WFR+j}, v{D+j} offset:{K1_T2}")
    o("    s_waitcnt lgkmcnt(4)")
    for j in range(4):
        o(f"    v_add_u32 v{ST+j}, v{ST+j}, v{RK+j}     ; pos")
    o("    s_cmp_eq_u64 s[54:55], 0")
    o("    s_cbranch_scc1 K1_NOKEY")
    for j in range(4):
        o(f"    ds_write_b8 v{ST+j}, v{D+j} offset:{K1_KEY}")
    o("    s_waitcnt lgkmcnt(0)")
    L("K1_NOKEY")
    for j in range(4):
        o(f"    v_lshlrev_b32 v{RK+j}, 4, v{ST+j}")
        o(f"    v_add_u32 v{RK+j}, {K1_REC}, v{RK+j}")
    TY = 44
    def t2_out(wait):
        o("    s_cmp_lt_u32 s50, 8")
        o("    s_cbranch_scc0 K1_NT2")
        o("    s_lshl_b32 s52, s2, 13")
        o(f"    s_add_u32 s52, s52, {WS_T2}")
        o(f"    s_waitcnt lgkmcnt({wait})")
        o(f"    buffer_store_dwordx4 v[60:63], v71, s[44:47], s52 offen {K1ST}")
        o("    s_branch K1_NT1")
        L("K1_NT2")
        o("    s_lshl_b32 s52, s2, 10")
        o(f"    s_add_u32 s52, s52, {WS_TAB}")
        o(f"    buffer_store_dwordx4 {vr(C,4)}, v70, s[44:47], s52 offen {K1ST}")
        L("K1_NT1")
    if T2E:
        o("    s_mov_b64 exec, -1")
        o("    s_waitcnt lgkmcnt(0)")
        o("    s_barrier")
        o(f"    ds_read_b128 v[60:63], v71 offset:{K1_T2}")
        t2_out(0)
        o("    s_mov_b64 exec, s[60:61]")
    o(f"    s_waitcnt vmcnt({2+T2E})")
    o(f"    v_alignbit_b32 v{TY}, v{RA+2}, v{RA+1}, 16")
    o(f"    v_perm_b32 v{TY+1}, v{S+1}, v{RA+2}, s63")
    o(f"    v_perm_b32 v{RA+1}, v{S}, v{RA+1}, s62")
    o(f"    v_alignbit_b32 v{TY+2}, v{RB+2}, v{RB+1}, 16")
    o(f"    v_perm_b32 v{TY+3}, v{S+3}, v{RB+2}, s63")
    o(f"    v_perm_b32 v{RB+1}, v{S+2}, v{RB+1}, s62")
    yp = [RA, TY, RB, TY + 2]
    if K1SPL:
        for j in range(4):
            o(f"    ds_write_b64 v{RK+j}, {vr(yp[j],2)} offset:8")
    o(f"    s_waitcnt vmcnt({1+T2E})")
    for j in range(4):
        if j == 2:
            o(f"    s_waitcnt vmcnt({T2E})")
            stamp(4, SV)
        if K1SPL:
            o(f"    ds_write_b64 v{RK+j}, {vr(EA+2*j,2)}")
        else:
            o(f"    ds_write2_b64 v{RK+j}, {vr(EA+2*j,2)}, {vr(yp[j],2)} offset0:0 offset1:1")
    o("    s_mov_b64 exec, -1")
    if CPF == 2:
        code_pf()
    o("    s_waitcnt lgkmcnt(0)")
    o("    s_barrier")
    stamp(5, SV)
    if XEND == "mid":
        xtouch()
    for r in range(4):
        o(f"    ds_read_b128 {vr(4+4*r,4)}, v71 offset:{K1_REC + r*10240}")
    if not T2E:
        o(f"    ds_read_b128 v[60:63], v71 offset:{K1_T2}")
    o(f"    ds_read_b32 v20, v1 offset:{K1_KEY}")
    for r in range(4):
        o(f"    s_waitcnt lgkmcnt({5-T2E-r})")
        o(f"    buffer_store_dwordx4 {vr(4+4*r,4)}, v{71+r}, s[36:39], 0 offen {K1ST}")
    if not T2E:
        t2_out(1)
    o("    s_cmp_eq_u64 s[54:55], 0")
    o("    s_cbranch_scc1 K1_NOKEY2")
    o("    s_waitcnt lgkmcnt(0)")
    o("    buffer_store_dword v20, v1, s[40:43], 0 offen")
    L("K1_NOKEY2")
    if XEND == "end2":
        xtouch()
    if XEND == "end":
        xtouch()
    stamp(6, SV)
    if STAMP:
        o("    s_waitcnt vmcnt(0)")
    stamp(7, SV)
    stamp_dump(16, 17, 50, 10, 64 << 20, SV)
    L("K1_END")
    o("    s_endpgm")
    L("K1_AUX")
    if "auxoff" in EXP:
        o("    s_endpgm")
    o("    s_load_dwordx2 s[18:19], s[0:1], 40   ; w_rad")
    o("    s_load_dwordx4 s[12:15], s[0:1], 48")
    o("    v_and_b32 v0, 63, v0")
    o("    s_barrier")
    o("    s_waitcnt lgkmcnt(0)")
    if CPF == 3:
        o("    s_getpc_b64 s[66:67]")
        L("K1_PC")
        o("    s_lshr_b32 s68, s2, 3")
        o("    s_lshl_b32 s68, s68, 9")
        o("    s_min_u32 s68, s68, CODE_END-K1_PC-452")
        for i in range(8):
            o(f"    s_load_dword s{32+i}, s[66:67], s68")
            o("    s_add_u32 s68, s68, 64")
    if TLBW & 1:
        o("    s_load_dword s29, s[18:19], 0")
        o("    s_load_dword s30, s[12:13], 0")
        o("    s_load_dword s31, s[14:15], 0")
    o("    s_barrier")
    o("    s_cmp_ge_u32 s2, 45")
    o("    s_cbranch_scc1 K1_END")
    srd(44, 16, 17, WS_END)
    o("    s_cmp_ge_u32 s2, 40")
    o("    s_cbranch_scc1 K1_AUXR")
    o("    s_mul_i32 s51, s2, 26")
    o("    s_lshr_b32 s51, s51, 8                ; t")
    o("    s_mul_i32 s52, s51, 10")
    o("    s_sub_u32 s52, s2, s52                ; q")
    o("    s_cmp_lt_u32 s52, 4")
    o("    s_cselect_b32 s56, s12, s14")
    o("    s_cselect_b32 s57, s13, s15")
    o("    s_movk_i32 s58, 16384")
    o("    s_cselect_b32 s58, s58, 24576")
    o("    s_and_b32 s57, s57, 0xffff")
    o("    s_mov_b32 s59, 0x00020000")
    o("    v_lshrrev_b32 v70, 4, v0              ; g'")
    o("    v_and_b32 v71, 15, v0")
    o("    v_lshlrev_b32 v71, 1, v71")
    o("    s_lshl_b32 s53, s51, 5")
    o("    v_add_u32 v71, s53, v71               ; (16t+m)*2")
    o("    s_cmp_ge_u32 s52, 8")
    o("    s_cbranch_scc1 K1_FRAGX")
    o("    s_and_b32 s53, s52, 1")
    o("    s_lshl_b32 s53, s53, 5")
    o("    s_bfe_u32 s55, s52, 0x10001           ; (q>>1)&1")
    o("    s_add_u32 s53, s53, s55")
    o("    s_lshl_b32 s53, s53, 7")
    o("    v_lshl_add_u32 v71, v70, 10, v71")
    o("    v_add_u32 v71, s53, v71")
    o("    v_add_u32 v72, 8192, v71")
    for i in range(8):
        o(f"    buffer_load_ushort v{WFR+i}, v{71+(i&1)}, s[56:59], 0 offen offset:{(i>>1)*256}")
    o("    s_branch K1_FRAGW")
    L("K1_FRAGX")
    o("    s_and_b32 s53, s52, 1")
    o("    s_add_u32 s53, s53, 128")
    o("    s_lshl_b32 s53, s53, 7")
    o("    v_lshl_add_u32 v71, v70, 11, v71")
    o("    v_add_u32 v71, s53, v71")
    for i in range(8):
        o(f"    buffer_load_ushort v{WFR+i}, v71, s[56:59], 0 offen offset:{i*256}")
    L("K1_FRAGW")
    for _ in range(1 + T2E):
        o("    s_barrier")
    o("    s_waitcnt vmcnt(0)")
    for p in range(4):
        o(f"    v_lshl_or_b32 v{WFR+p}, v{WFR+2*p+1}, 16, v{WFR+2*p}")
    o("    s_branch K1_AUXS")
    L("K1_AUXR")
    srd(56, 18, 19, 2560)
    o("    v_and_b32 v70, 31, v0")
    o("    v_lshrrev_b32 v71, 5, v0")
    o("    v_lshlrev_b32 v70, 2, v70")
    o("    v_lshl_add_u32 v70, v71, 1, v70")
    o("    s_sub_u32 s52, s2, 40")
    o("    s_lshl_b32 s52, s52, 7")
    o("    v_add_u32 v70, s52, v70")
    for d in range(4):
        o(f"    buffer_load_ushort v{WFR+d}, v70, s[56:59], 0 offen offset:{d*640}")
    for _ in range(1 + T2E):
        o("    s_barrier")
    o("    s_waitcnt vmcnt(0)")
    for d in range(4):
        o(f"    v_lshlrev_b32 v{WFR+d}, 16, v{WFR+d}")
    L("K1_AUXS")
    o("    s_lshl_b32 s52, s2, 10")
    o(f"    s_add_u32 s52, s52, {WS_WF}")
    o("    v_lshlrev_b32 v70, 4, v0")
    o(f"    buffer_store_dwordx4 {vr(WFR,4)}, v70, s[44:47], s52 offen {K1ST}")
    o("    s_endpgm")

def gen_k2():
    B, ACC, S, W = 0, 64, 128, 184
    A = [204, 208]
    VO = [212, 220]
    LT, AM1, AM2 = 228, 232, 236
    RR = 240
    ZR = 244
    vA, vV, vRaw, vCw, vVw, vN4, vMask, vEnds, vPar, vIdx = range(246, 256)
    vLane = 125
    TT = 128
    vD4, vD2, vSa = 139, 140, 141
    TC = AM1
    WF = 144
    sX, sWS, sOUT, sWR = 12, 16, 20, 24
    sBin, sNN, sWave, sMode, sJlo, sMax = 28, 29, 30, 31, 32, 33
    sNs, sGen, sCnt, sSeg, sK, sLo, sHi, sRel, sRet, sRem = range(34, 44)
    sD0, sD1, sD2 = 44, 45, 46
    sEnd, sNext = 54, 55
    sWFl = 88
    sLeft, sPT = 89, 90
    sFast = 38
    sT, sT2, sT3 = 47, 48, 49
    sSave = 50
    sAny2 = 52
    sM1 = 56
    sM2 = 72
    sLM = 24
    sOv = 26

    def accr(v, u, d):
        cc = 2 * (d >> 1) + (u >> 1)
        e = 2 * (u & 1) + (d & 1)
        return ACC + 16 * v + 4 * cc + e
    def wreg(p, d):
        return W + 4 * p + d

    o(".globl tp_main_kernel")
    o(f".p2align {os.environ.get('K2AL', '8')}")
    o(".type tp_main_kernel,@function")
    L("tp_main_kernel")
    o(f"    s_cmp_ge_u32 s2, {NWG}")
    o("    s_cbranch_scc1 K2_END")
    stamp(0)
    o("    s_load_dwordx2 s[4:5], s[0:1], 0      ; x")
    o("    s_load_dwordx2 s[8:9], s[0:1], 72     ; out")
    o("    s_load_dwordx2 s[10:11], s[0:1], 88   ; ws")
    o("    v_lshrrev_b32 v1, 6, v0")
    o(f"    v_and_b32 v{vLane}, 63, v0")
    o(f"    v_readfirstlane_b32 s{sWave}, v1")
    o(f"    s_and_b32 s{sBin}, s2, 7")
    o(f"    s_lshl_b32 s{sBin}, s{sBin}, 5")
    o(f"    s_lshr_b32 s{sT}, s2, 3")
    o(f"    s_add_u32 s{sBin}, s{sBin}, s{sT}")
    HD, KY, RK1, RK2, AD1, AD2, RO, TM = 64, 72, 80, 88, 96, 104, 112, 120
    vW0, vJ = 126, 127

    def prefetch0():
        o(f"    s_lshr_b32 s{sT}, s2, 3")
        o(f"    s_lshl_b32 s{sT}, s{sT}, 3")
        o(f"    s_add_u32 s{sT}, s{sT}, s{sWave}")
        o(f"    s_lshl_b32 s{sT}, s{sT}, 13")
        o(f"    v_lshl_add_u32 v143, v{vLane}, 7, s{sT}")
        if PFL < 64:
            o(f"    s_mov_b64 exec, {hex((1 << PFL) - 1)}")
        for i in range(PF0):
            o(f"    buffer_load_dword v143, v143, {sr(sX,4)}, 0 offen")
            if i + 1 < PF0:
                o(f"    v_add_u32 v143, {256*8192}, v143")
    def w_loads():
        if WLDS:
            return
        o(f"    s_mov_b32 s{sT}, {WS_WR}")
        for p in range(5):
            if p == 4:
                o(f"    s_add_u32 s{sT}, s{sT}, 4096")
            o(f"    buffer_load_dwordx4 {vr(W+4*p,4)}, v{TM+1}, {sr(sWS,4)}, s{sT} offen offset:{(p%4)*1024}")
    def dump_addr():
        o(f"    s_mul_i32 s{sT}, s{sWave}, {SDS}")
        o(f"    s_add_u32 s{sT}, s{sT}, {SD}")
        o(f"    v_lshl_add_u32 v{vD4}, v{vLane}, 2, s{sT}")
        o(f"    s_add_u32 s{sT}, s{sT}, 1024")
        o(f"    v_lshl_add_u32 v{vD2}, v{vLane}, 1, s{sT}")
        o(f"    s_mul_i32 s{sT}, s{sBin}, 40")
        o(f"    s_add_u32 s{sT}, s{sT}, s{sWave}")
        o(f"    s_mul_i32 s{sT}, s{sT}, 2816")
        o(f"    s_add_u32 s{sT}, s{sT}, {WS_S32}")
        o(f"    v_lshl_add_u32 v{vSa}, v{vLane}, 2, s{sT}")
    def wf_loads(tmp):
        o(f"    v_mbcnt_lo_u32_b32 v{tmp}, -1, 0")
        o(f"    v_mbcnt_hi_u32_b32 v{tmp}, -1, v{tmp}")
        o(f"    s_mul_i32 s{sT}, s{sWave}, 10240")
        o(f"    v_lshlrev_b32 v{tmp}, 4, v{tmp}")
        o(f"    s_add_u32 s{sT}, s{sT}, {WS_WF}")
        for f in range(10):
            if f == 4 or f == 8:
                o(f"    s_add_u32 s{sT}, s{sT}, 4096")
            o(f"    buffer_load_dwordx4 {vr(WF+4*f,4)}, v{tmp}, {sr(sWS,4)}, s{sT} offen offset:{(f%4)*1024}")
        o(f"    s_mov_b32 s{sWFl}, 1")
    def lane_id():
        o(f"    v_mbcnt_lo_u32_b32 v{vLane}, -1, 0")
        o(f"    v_mbcnt_hi_u32_b32 v{vLane}, -1, v{vLane}")
    def lane_prep():
        o(f"    v_lshrrev_b32 v{vW0}, 4, v{vLane}")
        o(f"    s_lshl_b32 s{sT}, s{sWave}, 5")
        o(f"    v_add_u32 v{vW0}, s{sT}, v{vW0}")
        o(f"    v_and_b32 v{vJ}, 15, v{vLane}")
        o(f"    v_lshlrev_b32 v{TM}, 10, v{vW0}")
    def hdr_loads():
        o(f"    s_lshl_b32 s{sT}, s{sBin}, 2")
        o(f"    s_add_u32 s{sT}, s{sT}, {WS_TAB}")
        for i in range(8):
            o(f"    buffer_load_dword v{HD+i}, v{TM}, {sr(sWS,4)}, s{sT} offen")
            if i < 7:
                o(f"    s_add_u32 s{sT}, s{sT}, 4096")
    lane_prep()
    o(f"    v_lshlrev_b32 v{TM+1}, 13, v{vW0}")
    o(f"    v_lshl_add_u32 v{TM+1}, v{vJ}, 1, v{TM+1}")
    o(f"    s_lshl_b32 s{sT}, s{sBin}, 5")
    o(f"    s_add_u32 s{sT}, s{sT}, {WS_T2}")
    o("    s_waitcnt lgkmcnt(0)")
    stamp(1)
    srd(sWS, 10, 11, WS_END)
    for i in range(8):
        o(f"    buffer_load_ushort v{KY+i}, v{TM+1}, {sr(sWS,4)}, s{sT} offen")
        if i < 7:
            o(f"    s_add_u32 s{sT}, s{sT}, 32768")
    if WLDS:
        o(f"    v_lshlrev_b32 v{W+4}, 4, v0                 ; tid*16")
        o(f"    v_min_u32 v{W+4}, 5104, v{W+4}")
        o(f"    s_mov_b32 s{sT}, {WS_WR}")
        o(f"    buffer_load_dwordx4 {vr(W,4)}, v{W+4}, {sr(sWS,4)}, s{sT} offen")
    srd(sX, 4, 5, N * 512)
    if PFA:
        o(f"    s_lshr_b32 s{sT}, s2, 3")
        o(f"    s_lshl_b32 s{sT}, s{sT}, 3")
        o(f"    s_add_u32 s{sT}, s{sT}, s{sWave}")
        o(f"    s_lshl_b32 s{sT}, s{sT}, 13")
        o(f"    s_add_u32 s{sT}, s{sT}, 4096")
        o(f"    v_lshl_add_u32 v143, v{vLane}, 7, s{sT}")
        o(f"    s_mov_b64 exec, {hex((1 << PFA) - 1)}")
        o(f"    buffer_load_dword v143, v143, {sr(sX,4)}, 0 offen")
        o("    s_mov_b64 exec, -1")
    o(f"    v_and_b32 v{TM+2}, 31, v{vLane}")
    o(f"    v_lshlrev_b32 v{vN4}, 2, v{TM+2}")
    o(f"    v_lshrrev_b32 v{TM+3}, 5, v{vLane}      ; g = l>>5")
    o(f"    s_lshl_b32 s{sT}, s{sBin}, 16")
    o(f"    s_add_u32 s{sT}, s{sT}, {BINM-1}")
    o(f"    s_mul_hi_u32 s{sT2}, s{sT}, 0x27144e     ; n0")
    o(f"    s_add_u32 s{sT}, s{sT}, 0x10000")
    o(f"    s_mul_hi_u32 s{sT}, s{sT}, 0x27144e")
    o(f"    s_min_u32 s{sT}, s{sT}, {N}")
    o(f"    s_sub_u32 s{sNN}, s{sT}, s{sT2}")
    o(f"    s_lshl_b32 s{sT}, s{sT2}, 9")
    o(f"    s_add_u32 s{sOUT}, s8, s{sT}")
    o(f"    s_addc_u32 s{sOUT+1}, s9, 0")
    o(f"    s_and_b32 s{sOUT+1}, s{sOUT+1}, 0xffff")
    o(f"    s_lshl_b32 s{sOUT+2}, s{sNN}, 9")
    o(f"    s_mov_b32 s{sOUT+3}, 0x00020000")
    o(f"    s_mov_b32 s{sMode}, 0")
    o(f"    s_mov_b32 s{sFast}, 0")
    o(f"    s_lshr_b32 s{sWFl}, s{sWave}, 2")
    o(f"    s_mov_b32 s{sJlo}, 0")
    o("    v_lshrrev_b32 v5, 3, v0               ; e")
    o("    v_and_b32 v6, 7, v0")
    o("    v_lshlrev_b32 v6, 1, v6               ; 8ha+2p")
    o("    v_sub_u32 v5, v5, v6                  ; e-(8ha+2p)")
    o("    v_med3_i32 v5, v5, 0, 2")
    o("    v_lshlrev_b32 v5, 4, v5")
    o("    v_mov_b32 v6, -1")
    o("    v_mov_b32 v7, 0")
    o("    v_lshlrev_b64 v[6:7], v5, v[6:7]")
    o("    v_cmp_gt_u32 vcc, 256, v0")
    o("    v_lshlrev_b32 v3, 2, v0")
    o(f"    v_add_u32 v3, {MASK}, v3")
    o("    v_cndmask_b32 v2, 0, v7, vcc")
    o("    ds_write_b32 v3, v2")
    o("    v_mov_b32 v2, 0")
    o(f"    v_mov_b32 v3, {MISC}")
    o("    ds_write2_b32 v3, v2, v2 offset0:0 offset1:1")
    o(f"    v_mov_b32 v{ZR}, 0")
    o(f"    v_mov_b32 v{ZR+1}, 0")
    o(f"    v_and_b32 v4, 1, v{vLane}")
    o(f"    v_sub_u32 v{vPar}, 0, v4")
    o(f"    v_bfe_u32 v4, v{vLane}, 2, 1")
    o(f"    v_mul_u32_u24 v{vIdx}, 0x5555, v4")
    o(f"    v_add_u32 v{vIdx}, 0x8888, v{vIdx}       ; 0x8888 / 0xdddd")
    o(f"    v_lshlrev_b32 v{vMask}, 4, v{TM+3}")
    o(f"    v_add_u32 v{vMask}, {MASK}, v{vMask}")
    o("    s_waitcnt lgkmcnt(0)")
    o(f"    s_movk_i32 s{sT}, {CH}")
    o(f"    v_mad_u32_u24 v{TM+2}, v{vW0}, s{sT}, v{vJ}   ; w0*2500 + j")
    o(f"    s_mov_b32 s{sLM}, 0x7fff7fff")
    o(f"    s_mov_b32 s{sLM+1}, 0x7fff7fff")
    o(f"    s_mov_b64 {sr(sOv,2)}, -1")
    o(f"    s_mov_b64 {sr(sAny2,2)}, 0")
    o(f"    v_mov_b32 v{TM+4}, {CNT}")
    o(f"    v_lshlrev_b32 v{TM+1}, 4, v{vLane}")
    o("    s_barrier")
    def rec_load(i):
        o(f"    s_mov_b32 s{sT}, {i*4*CH*16}")
        if "onelane" in EXP:
            o("    s_mov_b64 exec, 1")
        elif RMASK:
            o(f"    s_or_b64 exec, {sr(sM1+2*i,2)}, 1")
        o(f"    buffer_load_dwordx4 {vr(4*i,4)}, v{RO+i}, {sr(sWS,4)}, s{sT} offen")
        if RMASK:
            o("    s_mov_b64 exec, -1")
    o(f"    v_mov_b32 v{TM}, 1")
    for i in range(8):
        o(f"    s_waitcnt vmcnt({7 - i + min(i, NEARLY) + WLDS + (1 if PFA else 0)})")
        if i == 0:
            stamp(2)
        o(f"    v_mov_b32_dpp v{RO+i}, v{KY+i} row_newbcast:15 row_mask:0xf bank_mask:0xf")
        o(f"    v_and_b32 v{AD1+i}, 0xff, v{KY+i}")
        o(f"    v_and_b32 v{RO+i}, 0xfff, v{RO+i}")
        o(f"    v_cmp_gt_u32 vcc, 0x80, v{AD1+i}")
        o(f"    v_add_lshl_u32 v{RO+i}, v{RO+i}, v{TM+2}, 4")
        o(f"    v_lshl_add_u32 v{AD1+i}, v{AD1+i}, 2, v{TM+4}")
        o(f"    s_and_b64 {sr(sM1+2*i,2)}, vcc, {sr(sLM,2)}")
        if i < NEARLY:
            rec_load(i)
        o(f"    v_cmp_gt_u32 vcc, 0x8000, v{KY+i}")
        o(f"    s_mov_b64 exec, {sr(sM1+2*i,2)}")
        o(f"    ds_add_rtn_u32 v{RK1+i}, v{AD1+i}, v{TM}")
        o("    s_mov_b64 exec, -1")
        o(f"    s_and_b64 {sr(sM2+2*i,2)}, vcc, {sr(sLM,2)}")
        o(f"    s_and_b64 {sr(sOv,2)}, {sr(sOv,2)}, vcc")
        o(f"    s_or_b64 {sr(sAny2,2)}, {sr(sAny2,2)}, {sr(sM2+2*i,2)}")
    o("    s_cbranch_scc0 K2_NO2B")
    o("    s_waitcnt lgkmcnt(4)")
    for i in range(8):
        o(f"    s_mov_b64 exec, {sr(sM2+2*i,2)}")
        o(f"    s_cbranch_execz K2_NK2{i}")
        o(f"    v_lshrrev_b32 v{AD2+i}, 8, v{KY+i}")
        o(f"    v_lshl_add_u32 v{AD2+i}, v{AD2+i}, 2, v{TM+4}")
        o(f"    ds_add_rtn_u32 v{RK2+i}, v{AD2+i}, v{TM}")
        L(f"K2_NK2{i}")
    o("    s_mov_b64 exec, -1")
    L("K2_NO2B")
    if WLDS:
        o(f"    v_add_u32 v{W+4}, {WST}, v{W+4}")
    o(f"    s_or_b64 {sr(sOv,2)}, {sr(sOv,2)}, {sr(sLM,2)}")
    o(f"    s_cmp_eq_u64 {sr(sOv,2)}, -1")
    o("    s_cbranch_scc1 K2_RANKD")
    o(f"    v_mov_b32 v{TM}, {MISC}")
    o(f"    ds_write_b32 v{TM}, v{TM}")
    L("K2_RANKD")
    c0, c1, i0, i1, tt0, tt1, e0, e1, p0, p1, a0, a1, b0, b1, ad, mx = range(204, 220)
    o(f"    v_lshlrev_b32 v{ad}, 2, v{vLane}")
    o(f"    v_add_u32 v{ad}, {CNT}, v{ad}")
    o(f"    v_mov_b32 v{mx}, {MISC}")
    o("    s_waitcnt lgkmcnt(0)")
    o("    s_barrier")
    stamp(3)
    o(f"    ds_read2st64_b32 v[{c0}:{c1}], v{ad} offset0:0 offset1:1")
    o(f"    ds_read_b32 v{mx}, v{mx}")
    o(f"    s_cmp_lg_u32 s{sMode}, 0")
    o("    s_cbranch_scc1 K2_NOLATE")
    for i in range(NEARLY, NEARLY + 2):
        rec_load(i)
    L("K2_NOLATE")
    o("    s_waitcnt lgkmcnt(0)")
    o(f"    v_mov_b32 v{i0}, v{c0}")
    o(f"    v_mov_b32 v{i1}, v{c1}")
    o(f"    v_readfirstlane_b32 s{sT3}, v{mx}")
    for sh in (1, 2, 4, 8):
        o(f"    v_add_u32_dpp v{i0}, v{i0}, v{i0} row_shr:{sh} row_mask:0xf bank_mask:0xf bound_ctrl:0")
        o(f"    v_add_u32_dpp v{i1}, v{i1}, v{i1} row_shr:{sh} row_mask:0xf bank_mask:0xf bound_ctrl:0")
        o("    s_nop 0")
    o(f"    v_mov_b32_dpp v{tt0}, v{i0} row_newbcast:15 row_mask:0xf bank_mask:0xf")
    o(f"    v_mov_b32_dpp v{tt1}, v{i1} row_newbcast:15 row_mask:0xf bank_mask:0xf")
    o(f"    v_add_u32 v{e0}, 15, v{tt0}")
    o(f"    v_add_u32 v{e1}, 15, v{tt1}")
    o(f"    v_and_b32 v{e0}, -16, v{e0}")
    o(f"    v_and_b32 v{e1}, -16, v{e1}")
    o(f"    v_mov_b32 v{p0}, v{e0}")
    o(f"    v_mov_b32 v{p1}, v{e1}")
    o(f"    v_add_u32_dpp v{e0}, v{e0}, v{e0} row_bcast:15 row_mask:0xa bank_mask:0xf")
    o(f"    v_add_u32_dpp v{e1}, v{e1}, v{e1} row_bcast:15 row_mask:0xa bank_mask:0xf")
    o("    s_nop 0")
    o(f"    v_add_u32_dpp v{e0}, v{e0}, v{e0} row_bcast:31 row_mask:0xc bank_mask:0xf")
    o(f"    v_add_u32_dpp v{e1}, v{e1}, v{e1} row_bcast:31 row_mask:0xc bank_mask:0xf")
    o("    s_nop 0")
    o(f"    v_readlane_b32 s{sT}, v{e0}, 63")
    o(f"    v_readlane_b32 s{sT2}, v{e1}, 63")
    o(f"    v_sub_u32 v{a0}, v{e0}, v{tt0}")
    o(f"    v_add_u32 v{e1}, s{sT}, v{e1}")
    o(f"    v_add_u32 v{a0}, v{a0}, v{i0}            ; absolute end slot of entry")
    o(f"    v_sub_u32 v{a1}, v{e1}, v{tt1}")
    o(f"    v_add_u32 v{a1}, v{a1}, v{i1}")
    o(f"    v_sub_u32 v{b0}, v{a0}, v{c0}")
    o(f"    v_sub_u32 v{b1}, v{a1}, v{c1}")
    o(f"    ds_write2st64_b32 v{ad}, v{b0}, v{b1} offset0:2 offset1:3")
    o(f"    s_add_u32 s{sT}, s{sT}, s{sT2}")
    o(f"    s_cmp_gt_u32 s{sT}, {SLOTCAP-96}")
    o(f"    s_cselect_b32 s{sT}, 1, 0")
    o(f"    s_cmp_lg_u32 s{sT3}, 0")
    o(f"    s_cselect_b32 s{sT}, 1, s{sT}")
    o(f"    s_cmp_gt_u32 s{sT}, s{sMode}")
    o("    s_cbranch_scc1 K2_GOSLOW")
    for i in range(8):
        o(f"    ds_read_b32 v{AD1+i}, v{AD1+i} offset:512")
    o(f"    s_cmp_lg_u32 s{sMode}, 0")
    o("    s_cbranch_scc1 K2_NO2C")
    for i in range(NEARLY + 2, 8):
        rec_load(i)
    w_loads()
    o(f"    s_cmp_eq_u64 {sr(sAny2,2)}, 0")
    o("    s_cbranch_scc1 K2_NO2C")
    o("    s_waitcnt lgkmcnt(4)")
    for i in range(8):
        o(f"    s_mov_b64 exec, {sr(sM2+2*i,2)}")
        o(f"    s_cbranch_execz K2_NR2{i}")
        o(f"    s_mov_b32 s{sT}, {i*4*CH*16}")
        o(f"    buffer_load_dwordx4 {vr(32+4*i,4)}, v{RO+i}, {sr(sWS,4)}, s{sT} offen offset:240")
        o(f"    ds_read_b32 v{AD2+i}, v{AD2+i} offset:512")
        L(f"K2_NR2{i}")
    o("    s_mov_b64 exec, -1")
    L("K2_NO2C")
    o(f"    s_cmp_lt_u32 s{sWave}, 4")
    o("    s_cselect_b64 vcc, -1, 0")
    o(f"    v_cndmask_b32 v{a0}, v{a1}, v{a0}, vcc")
    o(f"    v_cndmask_b32 v{e0}, v{e1}, v{e0}, vcc")
    o(f"    v_cndmask_b32 v{p0}, v{p1}, v{p0}, vcc")
    o(f"    v_cndmask_b32 v{tt0}, v{tt1}, v{tt0}, vcc")
    o(f"    s_and_b32 s{sSeg}, s{sWave}, 3")
    o(f"    s_lshl_b32 s{sSeg}, s{sSeg}, 4")
    o("    s_nop 0")
    o(f"    v_readlane_b32 s{sT}, v{e0}, s{sSeg}")
    o(f"    v_readlane_b32 s{sT2}, v{p0}, s{sSeg}")
    o(f"    v_readlane_b32 s{sT3}, v{tt0}, s{sSeg}")
    o(f"    v_and_b32 v{b0}, 15, v{vLane}")
    o(f"    v_cmp_le_u32 vcc, {5*ZZ}, v{b0}")
    o(f"    v_mov_b32 v{b0}, 0x7fffffff")
    o(f"    s_sub_u32 s{sT}, s{sT}, s{sT2}")
    o(f"    s_sub_u32 s{sLo}, s{sT2}, s{sT3}         ; pad")
    o(f"    s_lshr_b32 s{sNs}, s{sT2}, 4")
    o(f"    v_subrev_u32 v{vEnds}, s{sT}, v{a0}")
    o(f"    v_cndmask_b32 v{vEnds}, v{vEnds}, v{b0}, vcc")
    o(f"    v_lshrrev_b32 v{vRaw}, 1, v{vLane}")
    o(f"    v_add_u32 v{vRaw}, s{sT}, v{vRaw}")
    o(f"    v_lshlrev_b32 v{vRaw}, 4, v{vRaw}")
    if RAW:
        o(f"    v_add_u32 v{vRaw}, {RAW}, v{vRaw}")
    o(f"    s_mul_i32 s{sT}, s{sWave}, {3*RBLK}")
    o(f"    s_add_u32 s{sT}, s{sT}, {RING}")
    o(f"    s_add_u32 s{sT2}, s{sT}, 1024")
    o(f"    v_lshrrev_b32 v{b0}, 5, v{vLane}         ; ha / g")
    o(f"    v_bfe_u32 v{b1}, v{vLane}, 2, 2          ; rho")
    o(f"    v_lshl_add_u32 v{b1}, v{b0}, 3, v{b1}")
    o(f"    v_bfe_u32 v{c0}, v{vLane}, 1, 1")
    o(f"    v_bfe_u32 v{c1}, v{vLane}, 4, 1")
    o(f"    v_lshl_add_u32 v{c0}, v{c1}, 1, v{c0}")
    o(f"    v_lshl_add_u32 v{c0}, v{c0}, 3, s{sT}")
    o(f"    v_lshl_add_u32 v{vA}, v{b1}, 5, v{c0}")
    o(f"    v_lshl_add_u32 v{vV}, v{b0}, 4, s{sT2}")
    o(f"    v_lshl_add_u32 v{vCw}, v{vLane}, 4, s{sT}")
    o(f"    v_lshrrev_b32 v{b0}, 1, v{vLane}")
    o(f"    v_lshl_add_u32 v{vVw}, v{b0}, 2, s{sT2}")
    dump_addr()
    o("    s_waitcnt lgkmcnt(0)")
    for i in range(8):
        o(f"    v_add_lshl_u32 v{AD1+i}, v{AD1+i}, v{RK1+i}, 4")
    stamp(4)
    for i in range(8):
        o(f"    s_mov_b64 exec, {sr(sM1+2*i,2)}")
        o(f"    s_waitcnt vmcnt({(7 if WLDS else 12)-i + (PF0 if PFPOS == 'd' and i > PFI else 0)})")
        if "noscat" not in EXP:
            o(f"    ds_write_b128 v{AD1+i}, {vr(4*i,4)} offset:{RAW}")
        if PF0 and PFPOS == "d" and i == PFI:
            o("    s_mov_b64 exec, -1")
            prefetch0()
    o(f"    s_waitcnt vmcnt({PF0 if PFPOS == 'd' else 0})")
    if PF0 and PFPOS == "c":
        o("    s_mov_b64 exec, -1")
        prefetch0()
    o(f"    s_cmp_eq_u64 {sr(sAny2,2)}, 0")
    o("    s_cbranch_scc1 K2_NO2D")
    for i in range(8):
        o(f"    s_mov_b64 exec, {sr(sM2+2*i,2)}")
        o(f"    s_cbranch_execz K2_NS2{i}")
        o(f"    v_add_lshl_u32 v{AD2+i}, v{AD2+i}, v{RK2+i}, 4")
        o(f"    ds_write_b128 v{AD2+i}, {vr(32+4*i,4)} offset:{RAW}")
        L(f"K2_NS2{i}")
    L("K2_NO2D")
    o("    s_mov_b64 exec, -1")
    if WLDS:
        o(f"    v_lshlrev_b32 v{TT}, 4, v{vLane}")
        o(f"    v_add_u32 v{TT}, {WST}, v{TT}")
        o(f"    s_cmp_lg_u32 s{sMode}, 0")
        o("    s_cbranch_scc1 K2_NOWST")
        o(f"    ds_write_b128 v{W+4}, {vr(W,4)}")
        L("K2_NOWST")
    o("    s_waitcnt lgkmcnt(0)")
    o("    s_barrier")
    stamp(5)
    if STAMP:
        o("    s_memtime s[100:101]")
        o("    s_waitcnt lgkmcnt(0)")
        o(f"    v_writelane_b32 v{STV}, s100, 12")
    if "prio" in EXP:
        o(f"    s_cmp_lt_u32 s{sWave}, 4")
        o("    s_cbranch_scc1 K2_NOPRIO")
        o("    s_setprio 1")
        L("K2_NOPRIO")

    def convert(ct, rr=RR, off=0):
        CO = AM1
        a0_, a1_, y0, y1, y2, m0, m1, vo = range(ct, ct + 8)
        o(f"    v_bitop3_b32 v{CO}, v{vPar}, v{rr+1}, v{rr} bitop3:0xca")
        o(f"    v_lshlrev_b32 v{y0}, 16, v{rr+2}")
        o(f"    v_lshlrev_b32 v{a0_}, 16, v{CO}")
        o(f"    v_and_b32 v{a1_}, 0xffff0000, v{CO}")
        o(f"    v_and_b32 v{y1}, 0xffff0000, v{rr+2}")
        o(f"    v_lshlrev_b32 v{y2}, 16, v{rr+3}")
        for u, y in enumerate((y0, y1, y2)):
            o(f"    v_mul_f32 v{m0}, v{a0_}, v{y}")
            o(f"    v_mul_f32 v{m1}, v{a1_}, v{y}")
            o(f"    v_cvt_pk_bf16_f32 v{CO+1+u}, v{m0}, v{m1}")
        o(f"    v_lshrrev_b32 v{vo}, 7, v{rr+3}")
        o(f"    v_and_b32 v{vo}, {hex(int(os.environ.get('SRCMASK','0x1fffe00'),16))}, v{vo}")
        o(f"    ds_write_b128 v{vCw}, {vr(CO,4)} offset:{off}")
        o(f"    ds_write_b32 v{vVw}, v{vo} offset:{off}")

    def loads_tile(x, v, vo):
        for r in range(8):
            o(f"    buffer_load_dword v{B+32*x+8*v+r}, v{vo+r}, {sr(sX,4)}, 0 offen offset:{v*128}")
    def smf(x, v, areg):
        if "q1" in EXP and v != 0:
            return
        if "q2" in EXP and v >= 2:
            return
        if "nomfma" not in EXP:
            o(f"    v_smfmac_f32_32x32x32_bf16 {vr(ACC+16*v,16)}, {vr(areg,4)}, {vr(B+32*x+8*v,8)}, v{vIdx}")
    def zero_tile(v):
        if "nomfma" not in EXP or "keepz" in EXP:
            o(f"    v_mfma_f32_32x32x8_bf16 {vr(ACC+16*v,16)}, {vr(ZR,2)}, {vr(ZR,2)}, 0")
    def mask_read(dst, sreg, tmp):
        o(f"    s_lshl_b32 s{sT}, s{sreg}, 5")
        o(f"    v_add_u32 v{tmp}, s{sT}, v{vMask}")
        o(f"    ds_read_b128 {vr(dst,4)}, v{tmp}")
    terms = [(0, 0, 0, 0, 1)] + [(2 + j, 2, 0, j + 1, 1) for j in range(3)]
    cross = {(2, 3): (0, 1), (3, 2): (0, -1), (3, 1): (1, 1), (1, 3): (1, -1), (1, 2): (2, 1), (2, 1): (2, -1)}
    for v in range(1, 4):
        terms.append((5 + v - 1, 3, v, 0, 1))
        for u in range(1, 4):
            if u == v:
                terms.append((1, 1, v, u, 1))
            else:
                i, sg = cross[(u, v)]
                terms.append((8 + i, 4, v, u, sg))
    first_v = {}
    for (si, p, v_, u, sg) in terms:
        first_v.setdefault(si, (v_, u))
    def fmas(v):
        if "noepi" in EXP:
            return
        tv = [t for t in terms if t[2] == v]
        if PK:
            for dh in range(2):
                for (si, p, v_, u, sg) in tv:
                    t = vr(TT + si, 2)
                    neg3 = " neg_lo:[1,0,0] neg_hi:[1,0,0]" if sg < 0 else ""
                    neg2 = " neg_lo:[1,0] neg_hi:[1,0]" if sg < 0 else ""
                    if dh == 0 and first_v[si] == (v_, u):
                        o(f"    v_pk_mul_f32 {t}, {vr(wreg(p,0),2)}, {vr(accr(v,u,0),2)}{neg2}")
                    else:
                        o(f"    v_pk_fma_f32 {t}, {vr(wreg(p,2*dh),2)}, {vr(accr(v,u,2*dh),2)}, {t}{neg3}")
        else:
            for d in range(4):
                for (si, p, v_, u, sg) in tv:
                    t = TT + si
                    ng = "-" if sg < 0 else ""
                    if d == 0 and first_v[si] == (v_, u):
                        o(f"    v_mul_f32 v{t}, {ng}v{wreg(p,d)}, v{accr(v,u,d)}")
                    elif sg > 0:
                        o(f"    v_fmac_f32 v{t}, v{wreg(p,d)}, v{accr(v,u,d)}")
                    else:
                        o(f"    v_fma_f32 v{t}, -v{wreg(p,d)}, v{accr(v,u,d)}, v{t}")
    def fold():
        if PK:
            for si in range(11):
                o(f"    v_add_f32 v{TT+si}, v{TT+si}, v{TT+si+1}")
    def commit_lds():
        t = lambda si: TT + si
        o(f"    v_cvt_pk_bf16_f32 v{TC}, v{t(0)}, v{t(1)}")
        for j in range(3):
            o(f"    v_cvt_pk_bf16_f32 v{TC+1+j}, v{t(2+j)}, v{t(5+j)}")
        o(f"    v_cvt_pk_bf16_f32 v{TC+4}, v{t(8)}, v{t(9)}")
        o(f"    v_cvt_pk_bf16_f32 v{TC+5}, v{t(10)}, v{t(10)}")
        o(f"    ds_write2st64_b32 v{vD4}, v{TC}, v{TC+1} offset0:0 offset1:1")
        o(f"    ds_write2st64_b32 v{vD4}, v{TC+2}, v{TC+3} offset0:2 offset1:3")
        o(f"    ds_write_b16 v{vD2}, v{TC+4}")
        o(f"    ds_write_b16_d16_hi v{vD2}, v{TC+4} offset:128")
        o(f"    ds_write_b16 v{vD2}, v{TC+5} offset:256")
        o(f"    v_add_u32 v{vD4}, {8*SDS}, v{vD4}")
        o(f"    v_add_u32 v{vD2}, {8*SDS}, v{vD2}")
    pcnt = [0]
    def prio_step():
        if PRIO:
            o(f"    s_and_b32 s{sT}, s{sSeg}, 15")
            for lvl, th in zip((2, 1, 0), PRIO):
                pcnt[0] += 1
                o(f"    s_cmp_lg_u32 s{sT}, {th*ZZ+ZZ-1}")
                o(f"    s_cbranch_scc1 K2_PR{pcnt[0]}")
                o(f"    s_setprio {lvl}")
                L(f"K2_PR{pcnt[0]}")
    def schedule_next():
        o(f"    s_sub_u32 s{sT}, s{sEnd}, 1")
        o(f"    s_and_b32 s{sHi}, s{sT}, 15")
        o(f"    s_add_u32 s{sHi}, s{sHi}, 1")
        o(f"    s_lshr_b32 s{sT}, s{sT}, 4")
        o(f"    s_sub_i32 s{sT2}, s{sNs}, 2")
        o(f"    s_add_u32 s{sT3}, s{sGen}, 1")
        o(f"    s_max_i32 s{sT2}, s{sT2}, s{sT3}")
        o(f"    s_min_u32 s{sGen}, s{sT}, s{sT2}")
        o(f"    s_sub_u32 s{sCnt}, s{sGen}, s{sT3}")

    o(f"    s_cmp_eq_u32 s{sNs}, 0")
    o("    s_cbranch_scc1 K2_EMPTY")
    o(f"    ds_read_b128 {vr(RR,4)}, v{vRaw}")
    o(f"    ds_read_b128 {vr(A[0],4)}, v{vRaw} offset:512")
    if PRIO or RP:
        o("    s_setprio 3")
    if RP:
        o(f"    s_mov_b32 s{sLeft}, s{sNs}")
        o(f"    s_mov_b32 s{sPT}, {RP[0]}")
    o(f"    s_mov_b32 s{sD0}, {RBLK}                ; delta for vA at end of this batch")
    o(f"    s_mov_b32 s{sD1}, {RBLK}")
    o(f"    s_mov_b32 s{sD2}, {-2*RBLK}")
    for v in range(4):
        zero_tile(v)
    o("    s_waitcnt lgkmcnt(1)")
    convert(VO[1])
    o(f"    ds_read_b128 {vr(VO[0],4)}, v{vV}")
    o(f"    ds_read_b128 {vr(VO[0]+4,4)}, v{vV} offset:32")
    if not ST2:
        o("    s_waitcnt lgkmcnt(4)")
        convert(VO[1], A[0], RBLK)
    o(f"    ds_read_b128 {vr(VO[1],4)}, v{vV} offset:64")
    o(f"    ds_read_b128 {vr(VO[1]+4,4)}, v{vV} offset:96")
    o(f"    v_add_u32 v{vRaw}, 1024, v{vRaw}")
    if not ST2:
        o(f"    v_add_u32 v{vCw}, {2*RBLK}, v{vCw}")
        o(f"    v_add_u32 v{vVw}, {2*RBLK}, v{vVw}")
    o(f"    v_add_u32 v{vV}, {RBLK}, v{vV}")
    o(f"    s_waitcnt lgkmcnt({2 if ST2 else 4})")
    for r in range(8):
        o(f"    v_add_u32 v{VO[0]+r}, v{VO[0]+r}, v{vN4}")
    for r in range(8):
        thr = 8 * (r >> 2) + (r & 3) + 4
        if thr < 15:
            o(f"    s_cmp_gt_u32 s{sLo}, {thr}")
            o(f"    s_cbranch_scc1 K2_IZ{r}")
        for v in range(4):
            o(f"    buffer_load_dword v{B+8*v+r}, v{VO[0]+r}, {sr(sX,4)}, 0 offen offset:{v*128}")
        L(f"K2_IN{r}")
    o(f"    s_cmp_eq_u32 s{sNs}, 1")
    o("    s_cbranch_scc1 K2_INITD")
    o("    s_waitcnt lgkmcnt(0)")
    for r in range(8):
        o(f"    v_add_u32 v{VO[1]+r}, v{VO[1]+r}, v{vN4}")
    for v in range(4):
        if v == 3:
            o("    s_waitcnt vmcnt(55)")
        loads_tile(1, v, VO[1])
    L("K2_INITD")
    if ST2:
        o("    s_waitcnt lgkmcnt(0)")
        convert(VO[1], A[0], RBLK)
        o(f"    v_add_u32 v{vCw}, {2*RBLK}, v{vCw}")
        o(f"    v_add_u32 v{vVw}, {2*RBLK}, v{vVw}")
    if ZZ > 1:
        o(f"    s_add_u32 s{sSeg}, s{sSeg}, {ZZ-1}")
    if WLDS:
        for p in range(5):
            o(f"    ds_read_b128 {vr(W+4*p,4)}, v{TT} offset:{p*1024}")
    o(f"    v_readlane_b32 s{sEnd}, v{vEnds}, s{sSeg}")
    o(f"    ds_read_b64_tr_b16 {vr(A[0],2)}, v{vA}")
    o(f"    ds_read_b64_tr_b16 {vr(A[0]+2,2)}, v{vA} offset:128")
    o(f"    ds_read_b128 {vr(VO[0],4)}, v{vV}")
    o(f"    ds_read_b128 {vr(VO[0]+4,4)}, v{vV} offset:32")
    o(f"    s_mov_b32 s{sGen}, 0")
    o(f"    s_mov_b32 s{sCnt}, 0")

    o(".p2align 3")
    L("K2_LOOP")
    for x in range(2):
        a_cur, a_nxt = A[x], A[x ^ 1]
        v_cur, v_nxt = VO[x], VO[x ^ 1]
        if x == 1:
            o(f"    v_add_u32 v{vA}, s{sD0}, v{vA}")
            o(f"    v_add_u32 v{vV}, s{sD1}, v{vV}")
        nx = x ^ 1
        if x == 0:
            o(f"    ds_read_b128 {vr(RR,4)}, v{vRaw}")
        o(f"    ds_read_b64_tr_b16 {vr(a_nxt,2)}, v{vA} offset:{nx*512}")
        o(f"    ds_read_b64_tr_b16 {vr(a_nxt+2,2)}, v{vA} offset:{nx*512+128}")
        o(f"    ds_read_b128 {vr(v_nxt,4)}, v{vV} offset:{nx*64}")
        o(f"    ds_read_b128 {vr(v_nxt+4,4)}, v{vV} offset:{nx*64+32}")
        o(f"    s_sub_u32 s{sCnt}, s{sCnt}, 1")
        o(f"    s_waitcnt lgkmcnt({5 if x == 0 else 4})")
        for r in range(8):
            o(f"    v_add_u32 v{v_cur+r}, v{v_cur+r}, v{vN4}")
        o(f"    s_cbranch_scc1 K2_SP{x}")
        for v in range(4):
            o("    s_waitcnt vmcnt(55)")
            smf(x, v, a_cur)
            loads_tile(x, v, v_cur)
        L(f"K2_NEXT{x}")
        if RP:
            o(f"    s_sub_u32 s{sLeft}, s{sLeft}, 1")
            o(f"    s_cmp_le_i32 s{sLeft}, s{sPT}")
            o(f"    s_cbranch_scc1 K2_RP{x}")
            L(f"K2_RPB{x}")
        if x == 0:
            o("    s_waitcnt lgkmcnt(4)")
            convert(v_cur)
            o(f"    v_add_u32 v{vRaw}, 512, v{vRaw}")
            o(f"    v_add_u32 v{vCw}, s{sD2}, v{vCw}")
            o(f"    v_add_u32 v{vVw}, s{sD2}, v{vVw}")
        else:
            o(f"    s_mov_b32 s{sT}, s{sD0}")
            o(f"    s_mov_b32 s{sD0}, s{sD1}")
            o(f"    s_mov_b32 s{sD1}, s{sD2}")
            o(f"    s_mov_b32 s{sD2}, s{sT}")
            o("    s_branch K2_LOOP")

    for x in range(2):
        a_cur = A[x]
        v_cur = VO[x]
        L(f"K2_SP{x}")
        o(f"    s_add_u32 s{sT}, s{sSeg}, {ZZ}")
        if ZZ == 3:
            o(f"    s_or_b32 s{sT2}, s{sSeg}, 15")
            o(f"    s_min_u32 s{sT}, s{sT}, s{sT2}")
        o(f"    v_readlane_b32 s{sNext}, v{vEnds}, s{sT}")
        o(f"    s_sub_u32 s{sRem}, s{sNs}, s{sGen}")
        o(f"    s_lshl_b32 s{sT3}, s{sGen}, 4")
        o(f"    s_cmp_le_u32 s{sRem}, 2")
        o(f"    s_cbranch_scc1 K2_GEN{x}")
        o(f"    s_cmp_le_u32 s{sGen}, s{sFast}")
        o(f"    s_cbranch_scc1 K2_GEN{x}")
        o(f"    s_add_u32 s{sT2}, s{sT3}, 16")
        o(f"    s_cmp_le_u32 s{sNext}, s{sT2}")
        o(f"    s_cbranch_scc1 K2_GEN{x}")
        for r in range(4):
            o(f"    v_and_b32 v{AM1+r}, v{a_cur+r}, v{LT+r}")
        for r in range(4):
            o(f"    v_bitop3_b32 v{AM2+r}, v{a_cur+r}, v{LT+r}, v{LT+r} bitop3:0x30")
        o("    s_waitcnt vmcnt(31)")
        for v in range(4):
            smf(x, v, AM1)
        o(f"    s_mov_b32 s{sSeg}, s{sT}")
        o(f"    s_mov_b32 s{sEnd}, s{sNext}")
        schedule_next()
        mask_read(LT, sHi, a_cur)
        for v in range(4):
            fmas(v)
            zero_tile(v)
            smf(x, v, AM2)
            loads_tile(x, v, v_cur)
        fold()
        commit_lds()
        prio_step()
        o(f"    s_branch K2_NEXT{x}")
        L(f"K2_GEN{x}")
        o(f"    s_cmp_ge_u32 s{sRem}, 2")
        o(f"    s_cbranch_scc1 K2_GW{x}")
        o("    s_waitcnt vmcnt(0)")
        L(f"K2_GW{x}")
        o(f"    s_cmp_eq_u32 s{sGen}, 0")
        o(f"    s_cselect_b32 s{sLo}, s{sLo}, 0")
        L(f"K2_GL{x}")
        o(f"    s_sub_u32 s{sRel}, s{sEnd}, s{sT3}")
        o(f"    s_min_u32 s{sHi}, s{sRel}, 16")
        mask_read(LT, sHi, AM1)
        mask_read(AM2, sLo, AM1 + 1)
        o("    s_waitcnt vmcnt(31) lgkmcnt(0)")
        for r in range(4):
            o(f"    v_bitop3_b32 v{AM1+r}, v{a_cur+r}, v{LT+r}, v{AM2+r} bitop3:0x40")
        o("    s_nop 1")
        for v in range(4):
            smf(x, v, AM1)
        o(f"    s_cmp_gt_u32 s{sRel}, 16")
        o(f"    s_cbranch_scc1 K2_GD{x}")
        o(f"    s_mov_b32 s{sRet}, {x}")
        o("    s_branch K2_EPI")
        L(f"K2_GD{x}")
        o(f"    s_cmp_le_u32 s{sRem}, 2")
        o(f"    s_cbranch_scc1 K2_NL{x}")
        for v in range(4):
            loads_tile(x, v, v_cur)
        if WFE:
            o(f"    s_branch K2_NL2{x}")
        L(f"K2_NL{x}")
        if WFE:
            o(f"    s_cmp_lg_u32 s{sWFl}, 0")
            o(f"    s_cbranch_scc1 K2_NL2{x}")
            wf_loads(AM2)
            L(f"K2_NL2{x}")
        o(f"    s_cmp_eq_u32 s{sRem}, 1")
        o("    s_cbranch_scc1 K2_STREAM_DONE")
        schedule_next()
        mask_read(LT, sHi, AM1)
        o(f"    s_branch K2_NEXT{x}")

    if RP:
        for x in range(2):
            L(f"K2_RP{x}")
            for lvl in range(3):
                if lvl < 2:
                    o(f"    s_cmp_lg_u32 s{sPT}, {RP[lvl]}")
                    o(f"    s_cbranch_scc1 K2_RP{x}_{lvl}")
                o(f"    s_setprio {2-lvl}")
                o(f"    s_mov_b32 s{sPT}, {RP[lvl+1] if lvl < 2 else -1}")
                o(f"    s_branch K2_RPB{x}")
                if lvl < 2:
                    L(f"K2_RP{x}_{lvl}")
    L("K2_EPI")
    if ZZ == 3:
        o(f"    s_or_b32 s{sT2}, s{sSeg}, 15")
    o(f"    s_add_u32 s{sSeg}, s{sSeg}, {ZZ}")
    if ZZ == 3:
        o(f"    s_min_u32 s{sSeg}, s{sSeg}, s{sT2}")
    o(f"    s_mov_b32 s{sLo}, s{sHi}")
    o(f"    v_readlane_b32 s{sEnd}, v{vEnds}, s{sSeg}")
    o("    s_nop 7")
    for v in range(4):
        fmas(v)
        zero_tile(v)
    fold()
    o(f"    s_cmp_lg_u32 s{sMode}, 0")
    o("    s_cbranch_scc1 K2_EPS")
    commit_lds()
    prio_step()
    L("K2_EPR")
    if EEX:
        o(f"    s_cmp_eq_u32 s{sEnd}, 0x7fffffff")
        o("    s_cbranch_scc1 K2_STREAM_DONE")
    o(f"    s_cmp_eq_u32 s{sRet}, 0")
    o("    s_cbranch_scc1 K2_GL0")
    o("    s_branch K2_GL1")
    L("K2_EPS")
    o("    s_waitcnt vmcnt(31)")
    for si in range(11):
        o(f"    buffer_atomic_add_f32 v{TT+si}, v{vSa}, {sr(sWS,4)}, 0 offen offset:{si*256}")
    o(f"    v_add_u32 v{vSa}, {8*2816}, v{vSa}")
    o("    s_waitcnt vmcnt(0)")
    o("    s_branch K2_EPR")
    for r in range(7):
        L(f"K2_IZ{r}")
        for v in range(4):
            o(f"    v_mov_b32 v{B+8*v+r}, 0")
        o(f"    s_branch K2_IN{r}")
    L("K2_EMPTY")
    o(f"    s_cmp_lg_u32 s{sMode}, 0")
    o("    s_cbranch_scc1 K2_STREAM_DONE")
    for si in range(11):
        o(f"    v_mov_b32 v{TT+si}, 0")
    o(f"    s_mov_b32 s{sT2}, 5")
    L("K2_EMPTYL")
    commit_lds()
    o(f"    s_sub_u32 s{sT2}, s{sT2}, 1")
    o(f"    s_cmp_lg_u32 s{sT2}, 0")
    o("    s_cbranch_scc1 K2_EMPTYL")
    o("    s_branch K2_POSTG")

    L("K2_GOSLOW")
    o(f"    s_mov_b32 s{sMode}, 1")
    o(f"    s_mov_b32 s{sFast}, -1")
    w_loads()
    if WLDS:
        o("    s_waitcnt vmcnt(0)")
        o(f"    ds_write_b128 v{W+4}, {vr(W,4)}")
    dump_addr()
    o(f"    v_mov_b32 v{TT}, 0")
    for k in range(5):
        for si in range(11):
            o(f"    buffer_store_dword v{TT}, v{vSa}, {sr(sWS,4)}, 0 offen offset:{si*256} sc1")
        o(f"    v_add_u32 v{vSa}, {8*2816}, v{vSa}")
        o("    s_waitcnt vmcnt(0)")
    o("    s_waitcnt vmcnt(0)")
    L("K2_SLOW_ROUND")
    o("    s_waitcnt lgkmcnt(0)")
    o("    s_barrier")
    o("    s_nop 7")
    lane_id()
    o(f"    v_lshlrev_b32 v2, 2, v{vLane}")
    o(f"    v_add_u32 v2, {CNT}, v2")
    o("    v_mov_b32 v3, 0")
    o("    ds_write2st64_b32 v2, v3, v3 offset0:0 offset1:1")
    lane_prep()
    hdr_loads()
    o(f"    v_add_u32 v{TM+1}, s{sJlo}, v{vJ}")
    o(f"    s_movk_i32 s{sT}, {CH}")
    o(f"    v_mad_u32_u24 v{TM+2}, v{vW0}, s{sT}, v{TM+1}")
    o(f"    v_cmp_gt_u32 {sr(sSave,2)}, 8, v{vJ}")
    o(f"    s_mov_b64 {sr(sAny2,2)}, 0")
    o(f"    v_mov_b32 v{TM+3}, 0")
    o(f"    v_lshlrev_b32 v{KY}, 1, v{TM+1}")
    o(f"    v_subrev_u32 v{KY+1}, 29, v{KY}")
    o(f"    v_min_u32 v{KY}, v{KY}, v{KY+1}")
    o(f"    v_lshl_add_u32 v{KY}, v{vW0}, 13, v{KY}")
    o(f"    s_lshl_b32 s{sT}, s{sBin}, 5")
    o(f"    s_add_u32 s{sT}, s{sT}, {WS_T2}")
    o(f"    v_add_u32 v{KY}, s{sT}, v{KY}")
    o("    s_waitcnt vmcnt(0)")
    for i in range(8):
        o(f"    v_lshrrev_b32 v{TM}, 16, v{HD+i}")
        o(f"    v_and_b32 v{AD2+i}, 0xffff, v{HD+i}")
        o(f"    v_cmp_lt_u32 vcc, v{TM+1}, v{TM}")
        o(f"    v_add_u32 v{AD2+i}, v{AD2+i}, v{TM+2}")
        o(f"    v_lshlrev_b32 v{RO+i}, 4, v{AD2+i}")
        o(f"    v_max_u32 v{TM+3}, v{TM+3}, v{TM}")
        o(f"    v_mov_b32 v{AD1+i}, 0")
        o(f"    s_and_b64 {sr(sM1+2*i,2)}, vcc, {sr(sSave,2)}")
        o(f"    s_mov_b64 exec, {sr(sM1+2*i,2)}")
        o(f"    s_cbranch_execz K2_SR{i}")
        o(f"    s_mov_b32 s{sT}, {i*4*CH*16}")
        o(f"    buffer_load_dwordx4 {vr(4*i,4)}, v{RO+i}, {sr(sWS,4)}, s{sT} offen")
        o(f"    v_cmp_lt_u32 vcc, 30, v{TM}")
        o(f"    v_add_u32 v{AD2+i}, {WS_KEY + i*4*CH}, v{AD2+i}")
        o(f"    v_add_u32 v{TM}, {i*32768}, v{KY}")
        o(f"    v_cndmask_b32 v{AD2+i}, v{TM}, v{AD2+i}, vcc")
        o(f"    buffer_load_ubyte v{AD1+i}, v{AD2+i}, {sr(sWS,4)}, 0 offen")
        L(f"K2_SR{i}")
        o("    s_mov_b64 exec, -1")
    o(f"    v_mov_b32 v{TM}, {MISC+4}")
    o(f"    ds_max_u32 v{TM}, v{TM+3}")
    o(f"    v_mov_b32 v{TM+4}, {CNT}")
    o("    s_waitcnt vmcnt(0) lgkmcnt(0)")
    o("    s_barrier")
    o(f"    ds_read_b32 v{TM}, v{TM}")
    o("    s_waitcnt lgkmcnt(0)")
    o(f"    v_readfirstlane_b32 s{sMax}, v{TM}")
    o(f"    v_mov_b32 v{TM}, 1")
    for i in range(8):
        o(f"    v_lshl_add_u32 v{AD1+i}, v{AD1+i}, 2, v{TM+4}")
    for i in range(8):
        o(f"    s_mov_b64 exec, {sr(sM1+2*i,2)}")
        o(f"    ds_add_rtn_u32 v{RK1+i}, v{AD1+i}, v{TM}")
    o("    s_mov_b64 exec, -1")
    o("    s_branch K2_RANKD")

    L("K2_STREAM_DONE")
    o(f"    s_cmp_eq_u32 s{sMode}, 0")
    o("    s_cbranch_scc1 K2_POSTG")
    o(f"    s_add_u32 s{sJlo}, s{sJlo}, 8")
    o(f"    s_cmp_lt_u32 s{sJlo}, s{sMax}")
    o("    s_cbranch_scc1 K2_SLOW_ROUND")
    o("    s_nop 7")
    lane_id()
    dump_addr()
    o(f"    s_mov_b32 s{sT2}, 5")
    L("K2_SLOWL")
    for si in range(11):
        o(f"    buffer_load_dword v{TT+si}, v{vSa}, {sr(sWS,4)}, 0 offen offset:{si*256} sc1")
    o(f"    v_add_u32 v{vSa}, {8*2816}, v{vSa}")
    o("    s_waitcnt vmcnt(0)")
    commit_lds()
    o(f"    s_sub_u32 s{sT2}, s{sT2}, 1")
    o(f"    s_cmp_lg_u32 s{sT2}, 0")
    o("    s_cbranch_scc1 K2_SLOWL")

    L("K2_POSTG")
    stamp(6)
    if STAMP:
        o("    s_memtime s[100:101]")
        o("    s_waitcnt lgkmcnt(0)")
        o(f"    v_writelane_b32 v{STV}, s100, 13")
    t0, t1 = 226, 227
    vLane = 246
    o(f"    s_cmp_lg_u32 s{sWFl}, 0")
    o("    s_cbranch_scc1 K2_NOWF")
    wf_loads(t0)
    L("K2_NOWF")
    o(f"    v_mbcnt_lo_u32_b32 v{vLane}, -1, 0")
    o(f"    v_mbcnt_hi_u32_b32 v{vLane}, -1, v{vLane}")
    o(f"    s_cmp_ge_u32 s{sWave}, 4")
    o("    s_cbranch_scc1 K2_GADDR")
    vB_, vOt, vB2, vB2x, vB0, vO2 = 220, 221, 222, 223, 224, 225
    o(f"    v_and_b32 v{t0}, 15, v{vLane}                ; nn")
    o(f"    v_lshrrev_b32 v{t1}, 4, v{vLane}             ; g")
    o(f"    v_mul_u32_u24 v{vB_}, {SDS}, v{t0}")
    o(f"    v_lshl_add_u32 v{vB_}, v{t1}, 4, v{vB_}")
    o(f"    v_add_u32 v{vB_}, {SD}, v{vB_}")
    o(f"    s_lshl_b32 s{sT3}, s{sWave}, 5               ; t*32 bytes")
    o(f"    s_add_u32 s{sT}, s{sT3}, {OUTT}")
    o(f"    v_mul_u32_u24 v{vOt}, {OUT_STRIDE}, v{t0}")
    o(f"    v_lshl_add_u32 v{vOt}, v{t1}, 3, v{vOt}")
    o(f"    v_add_u32 v{vOt}, s{sT}, v{vOt}")
    o(f"    v_and_b32 v0, 7, v{t0}")
    o(f"    v_lshrrev_b32 v1, 3, v{t0}")
    o(f"    v_mul_u32_u24 v{vB0}, {SDS}, v0")
    o(f"    v_lshl_add_u32 v{vB0}, v{t1}, 4, v{vB0}")
    o(f"    v_add_u32 v{vB0}, {SD + 32*SDS}, v{vB0}")
    o(f"    v_lshl_add_u32 v{vB2}, v1, 8, v{vB0}")
    o(f"    v_lshl_add_u32 v{vB2x}, v1, 7, v{vB0}")
    o(f"    v_cmp_eq_u32 {sr(sSave,2)}, 1, v1")
    o(f"    v_mul_u32_u24 v{vO2}, {OUT_STRIDE}, v0")
    o(f"    v_lshl_add_u32 v{vO2}, v{t1}, 3, v{vO2}")
    o(f"    s_add_u32 s{sT}, s{sT3}, {OUTT + 32*OUT_STRIDE}")
    o(f"    v_add_u32 v{vO2}, s{sT}, v{vO2}")
    o(f"    v_lshl_add_u32 v{t0}, v1, 7, v{vO2}")
    o(f"    v_mul_u32_u24 v1, 384, v1")
    o(f"    v_sub_u32 v{t1}, v{vO2}, v1")
    G = 184
    o(f"    v_mov_b32 v{G+12}, 0xbfb8aa3b           ; -log2(e)")
    L("K2_GADDR")
    o("    s_waitcnt lgkmcnt(0)")
    o("    s_barrier")
    stamp(7)
    o(f"    s_cmp_ge_u32 s{sWave}, 4")
    o("    s_cbranch_scc1 K2_NOGEMM")
    seq = []
    for T, ar, base in ((0, vB_, 0), (1, vB_, 16 * SDS), (2, vB0, 0)):
        for ks in range(4):
            seq.append((T, ks, ar, base + 64 * ks, ks == 0))
    for T in range(2):
        for blk in range(1, 4):
            di = 3 + 3 * T + blk - 1
            for ks in range(4):
                seq.append((di, 4 + ks, vB_, T * 16 * SDS + blk * 256 + 64 * ks, ks == 0))
            for ks in range(2):
                seq.append((di, 8 + ks, vB_, T * 16 * SDS + 1024 + 128 * (blk - 1) + 64 * ks, False))
    for ks in range(4):
        seq.append((9, 4 + ks, vB2, 256 + 64 * ks, ks == 0))
    for ks in range(2):
        seq.append((9, 8 + ks, vB2x, 1024 + 64 * ks, False))
    for ks in range(4):
        seq.append((10, 4 + ks, vB0, 768 + 64 * ks, ks == 0))
    for ks in range(2):
        seq.append((10, 8 + ks, vB0, 1024 + 256 + 64 * ks, False))
    BB = 64
    NB_ = 16
    DEPTH = 12
    DD = 0
    RS = 198
    def bread(i):
        o(f"    ds_read_b128 {vr(BB+4*(i%NB_),4)}, v{seq[i][2]} offset:{seq[i][3]}")
    for i in range(DEPTH):
        bread(i)
    o("    s_waitcnt vmcnt(0)")
    work = []
    for T in range(3):
        work += [(16, f"    v_mul_f32 v{G+4*T+r}, v{G+12}, v{DD+4*T+r}") for r in range(4)]
    for T in range(3):
        work += [(16, f"    v_exp_f32 v{G+4*T+r}, v{G+4*T+r}") for r in range(4)]
    for T in range(3):
        work += [(16, f"    v_add_f32 v{G+4*T+r}, 1.0, v{G+4*T+r}") for r in range(4)]
    for T in range(3):
        work += [(16, f"    v_rcp_f32 v{G+4*T+r}, v{G+4*T+r}") for r in range(4)]
    for T in range(3):
        work += [(16, f"    v_cvt_pk_bf16_f32 v{RS+2*T}, v{DD+4*T}, v{DD+4*T+1}"), (16, f"    v_cvt_pk_bf16_f32 v{RS+2*T+1}, v{DD+4*T+2}, v{DD+4*T+3}")]
    def fin(di):
        g0 = G + 4 * min((di - 3) // 3, 2)
        last = 12 + 6 * (di - 3) + 5
        ins = [f"    v_mul_f32 v{DD+4*di+r}, v{DD+4*di+r}, v{g0+r}" for r in range(4)]
        ins += [f"    v_cvt_pk_bf16_f32 v{RS+2*di}, v{DD+4*di}, v{DD+4*di+1}", f"    v_cvt_pk_bf16_f32 v{RS+2*di+1}, v{DD+4*di+2}, v{DD+4*di+3}"]
        return [(last + 5, x) for x in ins]
    for di in range(3, 11):
        work += fin(di)
    n = len(seq)
    assert n == 60
    for i, (di, f, ar, off, first) in enumerate(seq):
        if i % 2 == 0:
            cnt = min(i + DEPTH, n) - 2 - i
            o(f"    s_waitcnt lgkmcnt({max(cnt,0)})")
        d = vr(DD + 4 * di, 4)
        o(f"    v_mfma_f32_16x16x32_bf16 {d}, {vr(WF+4*f,4)}, {vr(BB+4*(i%NB_),4)}, {'0' if first else d}")
        if i + DEPTH < n:
            bread(i + DEPTH)
        k = 0
        while work and work[0][0] <= i and k < (2 if i + DEPTH < n else 3):
            o(work.pop(0)[1]); k += 1
    wr = []
    for T in range(2):
        wr.append(f"    ds_write_b64 v{vOt}, {vr(RS+2*T,2)} offset:{T*16*OUT_STRIDE}")
        for blk in range(1, 4):
            wr.append(f"    ds_write_b64 v{vOt}, {vr(RS+2*(3+3*T+blk-1),2)} offset:{T*16*OUT_STRIDE+blk*128}")
    early = [w for w in work if w[0] <= n - 1]
    late = [w for w in work if w[0] > n - 1]
    for w in early:
        o(w[1])
    for x_ in wr:
        o(x_)
    o("    s_nop 1")
    for w in late:
        o(w[1])
    o(f"    ds_write_b64 v{t0}, {vr(RS+18,2)} offset:128")
    o(f"    v_cndmask_b32 v{RS+20}, v{RS+20}, v{RS+4}, {sr(sSave,2)}")
    o(f"    v_cndmask_b32 v{RS+21}, v{RS+21}, v{RS+5}, {sr(sSave,2)}")
    o(f"    ds_write_b64 v{t1}, {vr(RS+20,2)} offset:384")
    L("K2_NOGEMM")
    o(f"    s_lshl_b32 s{sT}, s{sWave}, 6")
    o(f"    v_add_u32 v4, s{sT}, v{vLane}            ; tid")
    o("    v_lshrrev_b32 v0, 5, v4")
    o("    v_and_b32 v1, 31, v4")
    o(f"    v_mul_u32_u24 v2, {OUT_STRIDE}, v0")
    o("    v_lshl_add_u32 v2, v1, 4, v2")
    if OUTT:
        o(f"    v_add_u32 v2, {OUTT}, v2")
    o("    v_lshlrev_b32 v3, 4, v4")
    o("    v_add_u32 v16, 8192, v3")
    o("    v_add_u32 v17, 16384, v3")
    o("    s_waitcnt lgkmcnt(0)")
    o("    s_barrier")
    stamp(8)
    for r in range(3):
        o(f"    ds_read_b128 {vr(4+4*r,4)}, v2 offset:{r*16*OUT_STRIDE}")
    for r in range(3):
        if r == 2:
            o(f"    s_cmp_ge_u32 s{sWave}, 4")
            o("    s_cbranch_scc1 K2_FIN")
        o(f"    s_waitcnt lgkmcnt({2-r})")
        o(f"    buffer_store_dwordx4 {vr(4+4*r,4)}, v{[3,16,17][r]}, {sr(sOUT,4)}, 0 offen {OUTST}")
    L("K2_FIN")
    if STAMP:
        o("    s_waitcnt vmcnt(0)")
    stamp(9)
    stamp_dump(sWS, sWS + 1, sWave, 8, 65 << 20)
    L("K2_END")
    o("    s_endpgm")
    L("CODE_END")

gen_k1()
gen_k2()

o('.section .rodata,"a"')
def kd(name, vgpr, sgpr):
    o(".p2align 6")
    o(f".amdhsa_kernel {name}")
    o(f"  .amdhsa_next_free_vgpr {vgpr}")
    o(f"  .amdhsa_next_free_sgpr {sgpr}")
    o(f"  .amdhsa_accum_offset {(vgpr+3)//4*4}")
    o("  .amdhsa_group_segment_fixed_size 0")
    o("  .amdhsa_kernarg_size 96")
    o("  .amdhsa_user_sgpr_count 2")
    o("  .amdhsa_user_sgpr_kernarg_segment_ptr 1")
    o("  .amdhsa_system_sgpr_workgroup_id_x 1")
    o("  .amdhsa_float_denorm_mode_32 3")
    o(".end_amdhsa_kernel")
kd("tp_part_kernel", 80, 102 if STAMP else 72)
kd("tp_main_kernel", 256, 102 if STAMP else 92)

open(OUTFILE, "w").write("\n".join(lines) + "\n")
print("wrote", OUTFILE, len(lines), "lines; K2 LDS", K2_LDS)
```

```python
import sys, os

P = 1
OUTFILE = sys.argv[1] if len(sys.argv) > 1 else "standalone__tensor_product_equiv_equiformer__graph.s"
STAMP = int(os.environ.get("STAMP", "0"))
K1ST = os.environ.get("K1ST", "sc1")
K1LD2 = os.environ.get("K1LD2", "")
OUTST = os.environ.get("OUTST", "sc1")
K1LD = os.environ.get("K1LD", "nt")
EXP = os.environ.get("EXP", "")
PFA = int(os.environ.get("PFA", "0"))
ST2 = int(os.environ.get("ST2", "1"))
K1SPL = int(os.environ.get("K1SPL", "1"))
TLBW = int(os.environ.get("TLBW", "0"))
K1ORD = int(os.environ.get("K1ORD", "2"))
T2E = int(os.environ.get("T2E", "0"))
ZZ = int(os.environ.get("ZZ", "1"))
K1MAP = int(os.environ.get("K1MAP", "0"))
PK = 0
WFE = int(os.environ.get("WFE", "0"))
GPRI = int(os.environ.get("GPRI", "1"))
EEX = int(os.environ.get("EEX", "1"))
RP = [int(t) for t in os.environ.get("RP", "").split(",") if t]
RMASK = int(os.environ.get("RMASK", "1"))
WLDS = int(os.environ.get("WLDS", "1"))
XEND = os.environ.get("XEND", "")
NEARLY = int(os.environ.get("NEARLY", "4"))
K1PF = int(os.environ.get("K1PF", "0"))
PF0 = int(os.environ.get("PF0", "1"))
PFPOS = os.environ.get("PFPOS", "d")
PFI = int(os.environ.get("PFI", "5"))
PFL = int(os.environ.get("PFL", "32"))
IDXN = int(os.environ.get("IDXN", "0"))
IDXN2 = int(os.environ.get("IDXN2", "3"))
CPF = int(os.environ.get("CPF", "3"))
VW = int(os.environ.get("VW", "48"))
PRIO = [int(t) for t in os.environ.get("PRIO", "2,3,4").split(",") if t]
XPF = int(os.environ.get("XPF", "0"))

N = 10000
E = 640000
NWG = 256
CH = 2500
BINM = 1677
PHM = (P << 23) // 10000
WS_REC = 0
WS_KEY = 10240000
WS_TAB = 10880000
WS_T2 = WS_TAB + 256 * 1024
WS_WF = WS_T2 + 256 * 8192
WS_WR = WS_WF + 40 * 1024
WS_S32 = WS_WR + 5 * 1024
WS_END = WS_S32 + 256 * 40 * 2816

lines = []
def o(s=""):
    lines.append(s)
def L(s):
    lines.append(s + ":")
def vr(a, n):
    return f"v[{a}:{a+n-1}]"
def sr(a, n):
    return f"s[{a}:{a+n-1}]"
def srd(d, lo, hi, nbytes):
    o(f"    s_mov_b32 s{d}, s{lo}")
    o(f"    s_and_b32 s{d+1}, s{hi}, 0xffff")
    o(f"    s_mov_b32 s{d+2}, {nbytes}")
    o(f"    s_mov_b32 s{d+3}, 0x00020000")

STV = 142
def stamp(i, vreg=STV):
    if STAMP:
        o("    s_memrealtime s[100:101]")
        o("    s_waitcnt lgkmcnt(0)")
        o(f"    v_writelane_b32 v{vreg}, s100, {i}")
def stamp_dump(wsl, wsh, wave_sgpr, nwaves, base, vreg=STV):
    if not STAMP:
        return
    o("    s_waitcnt lgkmcnt(0) vmcnt(0)")
    o("    s_mov_b64 exec, 0xffff")
    o(f"    s_mul_i32 s4, s2, {nwaves}")
    o(f"    s_add_u32 s4, s4, s{wave_sgpr}")
    o("    s_lshl_b32 s4, s4, 6")
    o(f"    s_add_u32 s4, s4, {base}")
    o(f"    s_mov_b32 s8, s{wsl}")
    o(f"    s_and_b32 s9, s{wsh}, 0xffff")
    o("    s_mov_b32 s10, 0x8000000")
    o("    s_mov_b32 s11, 0x00020000")
    o("    v_mbcnt_lo_u32_b32 v0, -1, 0")
    o("    v_lshl_add_u32 v0, v0, 2, s4")
    o(f"    buffer_store_dword v{vreg}, v0, s[8:11], 0 offen")
    o("    s_waitcnt vmcnt(0)")

K1_CNT = 0
K1_START = 1024
K1_KEY = 2048
K1_T2 = 4608
K1_REC = K1_T2 + 8192
K1_LDS = K1_REC + 40960

SLOTCAP = 3072
RAW = 0
RING = RAW + SLOTCAP * 16
RBLK = 1152
MASK = RING + 8 * 3 * RBLK
CNT = MASK + 1024
BASE = CNT + 512
MISC = BASE + 512
SD = MISC + 64
SDS = 1440
K2_LDS = SD + 40 * SDS + 5120 + 40 * 528
WST = SD + 40 * SDS
OUTT = WST + 5120
OUT_STRIDE = 528
assert K2_LDS <= 163840, K2_LDS
assert SD % 16 == 0

for _l in """Equivariant tensor-product message passing (N=10000 nodes, E=640000 edges, C=64), two launches.
Kernarg: x, rhat, e_attr, src, dst, w_rad, w_si0, w_si1, cg_eps, out, debug, ws (8-byte pointers).
Reformulation: all per-edge work is linear in x[src], so per destination node
  T[(u,d)][v][c] = sum_e a_d(e) * Yext_u(e) * x[src_e][v][c]      (Yext = (1, rhat), 16 x 256 values per node)
is accumulated on the matrix cores, contracted with w_rad over d (per channel), combined over (u,v) with the
Levi-Civita signs into the 11 path sums, and only then multiplied by w_si0 / w_si1 and gated.
tp_part_kernel: every workgroup counting-sorts 2500 edges by destination bin (39-40 nodes) into 16-byte records
  {a[4], Y[3], src} plus a per-(producer,bin) key table in ws; an extra wave re-lays-out the weights.
tp_main_kernel: one workgroup per bin; sorts its records by node in LDS, each wave streams 5 nodes:
  dword gathers of x rows feed v_smfmac_f32_32x32x32_bf16 (2:4 index picks even/odd channel), then a small GEMM.
  Oversized segments / bins fall back to a multi-round path, so any dst distribution is handled.""".split("\n"):
    o("; " + _l)
o(f"; @launch kernel=tp_part_kernel grid=({NWG},1,1) block=(704,1,1) lds={K1_LDS}")
o(f"; @launch kernel=tp_main_kernel grid=({NWG},1,1) block=(512,1,1) lds={K2_LDS}")
o('.amdgcn_target "amdgcn-amd-amdhsa--gfx950"')
o(".text")

def gen_k1():
    SV = 79
    o(".globl tp_part_kernel")
    o(".p2align 8")
    o(".type tp_part_kernel,@function")
    L("tp_part_kernel")
    o(f"    s_cmp_ge_u32 s2, {NWG}")
    o("    s_cbranch_scc1 K1_END")
    if K1MAP:
        o("    s_and_b32 s3, s2, 7")
        o("    s_lshl_b32 s3, s3, 5")
        o("    s_lshr_b32 s2, s2, 3")
        o("    s_add_u32 s2, s2, s3")
    stamp(0, SV)
    o("    s_load_dwordx4 s[4:7], s[0:1], 8")
    o("    s_load_dwordx4 s[8:11], s[0:1], 24")
    o("    s_load_dwordx2 s[16:17], s[0:1], 88   ; ws")
    o("    s_load_dwordx2 s[64:65], s[0:1], 0    ; x")
    def code_pf():
        o("    s_cmp_lg_u32 s50, 8")
        o("    s_cbranch_scc1 K1_NOCPF")
        o("    s_getpc_b64 s[66:67]")
        L("K1_PC")
        o("    v_and_b32 v78, 3, v0")
        o("    s_lshr_b32 s68, s2, 3")
        o("    s_lshl_b32 s68, s68, 9")
        o("    v_lshl_add_u32 v78, v78, 7, s68")
        o(f"    v_min_u32 v77, CODE_END-K1_PC-4, v78")
        o("    s_mov_b64 exec, 15")
        o(f"    global_load_dword v76, v77, s[66:67]")
        o("    s_mov_b64 exec, -1")
        L("K1_NOCPF")
    def xtouch():
        XL = int(os.environ.get("XL", "16"))
        srd(68, 64, 65, N * 512)
        o("    s_lshr_b32 s66, s2, 3")
        o("    s_mul_i32 s66, s66, 10")
        o("    s_add_u32 s66, s66, s50")
        o(f"    s_mul_i32 s66, s66, {XL*128}")
        o(f"    s_add_u32 s66, s66, {1<<21}")
        o("    v_lshl_add_u32 v77, v70, 3, s66")
        o(f"    s_mov_b64 exec, {hex((1<<XL)-1)}")
        o("    buffer_load_dword v78, v77, s[68:71], 0 offen")
        o("    s_mov_b64 exec, -1")
    D, S, EA, RA, RB = 4, 8, 12, 20, 24
    BN, RK, ST = 28, 32, 36
    T = 40
    WFR = 48
    C = 56
    o("    v_lshrrev_b32 v70, 6, v0")
    o("    v_lshlrev_b32 v1, 2, v0               ; tid*4")
    o("    v_readfirstlane_b32 s50, v70")
    o(f"    s_mul_i32 s3, s2, {CH}")
    o("    v_add_u32 v2, s3, v1")
    o("    v_lshlrev_b32 v3, 2, v2")
    o(f"    v_lshlrev_b32 v{T}, 3, v2")
    o(f"    v_mul_u32_u24 v{T+1}, 6, v2")
    o("    s_cmp_eq_u32 s50, 10")
    o("    s_cbranch_scc1 K1_AUX")
    o("    s_waitcnt lgkmcnt(0)")
    stamp(1, SV)
    srd(20, 10, 11, E * 4)
    o(f"    buffer_load_dwordx4 {vr(D,4)}, v3, s[20:23], 0 offen {K1LD}")
    srd(24, 8, 9, E * 4)
    srd(28, 6, 7, E * 8)
    srd(32, 4, 5, E * 6)
    def payload1():
        o(f"    buffer_load_dwordx4 {vr(S,4)}, v3, s[24:27], 0 offen {K1LD}")
        o(f"    buffer_load_dwordx3 {vr(RA,3)}, v{T+1}, s[32:35], 0 offen {K1LD2}")
        o(f"    buffer_load_dwordx3 {vr(RB,3)}, v{T+1}, s[32:35], 0 offen offset:12 {K1LD2}")
    def payload2():
        o(f"    buffer_load_dwordx4 {vr(EA,4)}, v{T}, s[28:31], 0 offen {K1LD2}")
        o(f"    buffer_load_dwordx4 {vr(EA+4,4)}, v{T}, s[28:31], 0 offen offset:16 {K1LD2}")
    o("    v_lshlrev_b32 v71, 4, v0              ; tid*16")
    o("    v_and_b32 v70, 63, v0")
    o("    v_lshlrev_b32 v70, 4, v70             ; lane*16")
    o("    s_cmp_lt_u32 s50, 8")
    o("    s_cselect_b32 s51, -1, 0")
    for i in range(4):
        o(f"    v_mov_b32 v{60+i}, s51")
    o("    s_cbranch_scc0 K1_INIT2")
    o(f"    ds_write_b128 v71, v[60:63] offset:{K1_T2}")
    o("    s_branch K1_INIT3")
    L("K1_INIT2")
    o(f"    ds_write_b128 v70, v[60:63] offset:{K1_CNT}")
    L("K1_INIT3")
    o(f"    s_mul_i32 s36, s2, {CH*16}")
    o("    s_add_u32 s36, s16, s36")
    o("    s_addc_u32 s37, s17, 0")
    o("    s_and_b32 s37, s37, 0xffff")
    o(f"    s_mov_b32 s38, {CH*16}")
    o("    s_mov_b32 s39, 0x00020000")
    o(f"    s_add_u32 s40, s3, {WS_KEY}")
    o("    s_add_u32 s40, s16, s40")
    o("    s_addc_u32 s41, s17, 0")
    o("    s_and_b32 s41, s41, 0xffff")
    o(f"    s_mov_b32 s42, {CH}")
    o("    s_mov_b32 s43, 0x00020000")
    srd(44, 16, 17, WS_END)
    o("    s_mov_b32 s62, 0x05040100")
    o("    s_mov_b32 s63, 0x05040302")
    for r in range(1, 4):
        o(f"    v_add_u32 v{71+r}, {r*10240}, v71")
    o("    s_waitcnt lgkmcnt(0)")
    o("    s_barrier")
    payload1()
    if K1ORD == 1:
        payload2()
    if CPF == 1:
        code_pf()
    o(f"    v_cmp_gt_u32 vcc, {CH//4}, v0")
    o("    s_mov_b64 s[60:61], vcc")
    o("    s_mov_b64 exec, vcc")
    o("    v_mov_b32 v2, 1")
    o(f"    s_waitcnt vmcnt({5 if K1ORD == 1 else 3})")
    stamp(2, SV)
    for j in range(4):
        o(f"    v_mul_u32_u24 v{D+j}, {BINM}, v{D+j}")
    for j in range(4):
        o(f"    v_lshrrev_b32 v{BN+j}, 14, v{D+j}")
    for j in range(4):
        o(f"    v_and_b32 v{BN+j}, 0x3fc, v{BN+j}")
    for j in range(4):
        o(f"    ds_add_rtn_u32 v{RK+j}, v{BN+j}, v2 offset:{K1_CNT}")
    o("    s_mov_b64 exec, -1")
    if K1ORD == 3:
        payload2()
    o("    s_waitcnt lgkmcnt(0)")
    o("    s_barrier")
    stamp(3, SV)
    o(f"    ds_read_b128 {vr(C,4)}, v70 offset:{K1_CNT}")
    if K1ORD == 2:
        payload2()
    for j in range(4):
        o(f"    v_and_b32 v{D+j}, 0xffff, v{D+j}")
        o(f"    v_mul_u32_u24 v{D+j}, 40018, v{D+j}")
        o(f"    v_bfe_u32 v{ST+j}, v{D+j}, 26, 3       ; local&7")
        o(f"    v_lshrrev_b32 v{D+j}, 29, v{D+j}       ; local>>3")
        if ZZ > 1:
            o(f"    v_and_b32 v{44+j}, 1, v{D+j}             ; k&1")
            o(f"    v_mul_u32_u24 v{D+j}, {ZZ}, v{D+j}")
        o(f"    v_lshl_add_u32 v{D+j}, v{ST+j}, 4, v{D+j}")
    o("    s_waitcnt lgkmcnt(0)")
    o(f"    v_add_u32 v64, v{C}, v{C+1}")
    o(f"    v_add_u32 v65, v64, v{C+2}")
    o(f"    v_add_u32 v66, v65, v{C+3}")
    o("    v_mov_b32 v67, v66")
    o(f"    v_max3_u32 v68, v{C}, v{C+1}, v{C+2}")
    o(f"    v_max_u32 v68, v68, v{C+3}")
    o("    v_cmp_lt_u32 vcc, 30, v68")
    o("    s_mov_b64 s[54:55], vcc")
    fill = []
    for j in range(4):
        fill.append(f"    v_min_u32 v{WFR+j}, 29, v{RK+j}")
        fill.append(f"    v_lshlrev_b32 v{WFR+j}, 1, v{WFR+j}")
        fill.append(f"    v_subrev_u32 v{WFR+4+j}, 29, v{WFR+j}")
        fill.append(f"    v_min_u32 v{WFR+j}, v{WFR+j}, v{WFR+4+j}")
    def two():
        o(fill.pop(0)); o(fill.pop(0))
    two()
    for sh in (1, 2, 4, 8):
        o(f"    v_add_u32_dpp v67, v67, v67 row_shr:{sh} row_mask:0xf bank_mask:0xf bound_ctrl:0")
        two()
    o("    v_add_u32_dpp v67, v67, v67 row_bcast:15 row_mask:0xa bank_mask:0xf")
    two()
    o("    v_add_u32_dpp v67, v67, v67 row_bcast:31 row_mask:0xc bank_mask:0xf")
    o("    v_sub_u32 v60, v67, v66")
    o(f"    v_add_u32 v61, v60, v{C}")
    o("    v_add_u32 v62, v60, v64")
    o("    v_add_u32 v63, v60, v65")
    o(f"    ds_write_b128 v70, v[60:63] offset:{K1_START}")
    for j in range(4):
        o(f"    ds_read_b32 v{ST+j}, v{BN+j} offset:{K1_START}")
    while fill:
        o(fill.pop(0))
    for j in range(4):
        o(f"    v_lshl_add_u32 v{WFR+j}, v{BN+j}, 3, v{WFR+j}")
    o("    s_cmp_lt_u32 s50, 8")
    o("    s_cbranch_scc1 K1_NOTAB")
    o("    v_lshlrev_b32 v68, 3, v70")
    for j in range(4):
        o(f"    v_cmp_lt_u32 vcc, 30, v{C+j}")
        o(f"    v_or_b32 v69, 0x8000, v{60+j}")
        o(f"    v_lshl_or_b32 v{C+j}, v{C+j}, 16, v{60+j}")
        o(f"    v_cndmask_b32 v69, v{60+j}, v69, vcc")
        o(f"    ds_write_b16 v68, v69 offset:{K1_T2 + 32*j + 30}")
    L("K1_NOTAB")
    o("    s_mov_b64 exec, s[60:61]")
    if P > 1:
        o("    s_waitcnt vmcnt(4)")
        for j in range(4):
            o(f"    v_mul_u32_u24 v{WFR+4+j}, {PHM}, v{S+j}")
            o(f"    v_lshrrev_b32 v{WFR+4+j}, 23, v{WFR+4+j}")
            o(f"    v_mad_u32_u24 v{D+j}, v{WFR+4+j}, 5, v{D+j}")
    if ZZ > 1:
        o("    s_waitcnt vmcnt(4)")
        for j in range(4):
            o(f"    v_mul_u32_u24 v{WFR+4+j}, {(ZZ << 23) // 10000}, v{S+j}")
            o(f"    v_lshrrev_b32 v{WFR+4+j}, 23, v{WFR+4+j}     ; sub")
            o(f"    v_sub_u32 v64, {ZZ-1}, v{WFR+4+j}")
            o(f"    v_sub_u32 v64, v64, v{WFR+4+j}")
            o(f"    v_mad_i32_i24 v64, v64, v{44+j}, v{WFR+4+j}")
            o(f"    v_add_u32 v{D+j}, v{D+j}, v64")
    for j in range(4):
        o(f"    ds_write_b8 v{WFR+j}, v{D+j} offset:{K1_T2}")
    o("    s_waitcnt lgkmcnt(4)")
    for j in range(4):
        o(f"    v_add_u32 v{ST+j}, v{ST+j}, v{RK+j}     ; pos")
    o("    s_cmp_eq_u64 s[54:55], 0")
    o("    s_cbranch_scc1 K1_NOKEY")
    for j in range(4):
        o(f"    ds_write_b8 v{ST+j}, v{D+j} offset:{K1_KEY}")
    o("    s_waitcnt lgkmcnt(0)")
    L("K1_NOKEY")
    for j in range(4):
        o(f"    v_lshlrev_b32 v{RK+j}, 4, v{ST+j}")
        o(f"    v_add_u32 v{RK+j}, {K1_REC}, v{RK+j}")
    TY = 44
    def t2_out(wait):
        o("    s_cmp_lt_u32 s50, 8")
        o("    s_cbranch_scc0 K1_NT2")
        o("    s_lshl_b32 s52, s2, 13")
        o(f"    s_add_u32 s52, s52, {WS_T2}")
        o(f"    s_waitcnt lgkmcnt({wait})")
        o(f"    buffer_store_dwordx4 v[60:63], v71, s[44:47], s52 offen {K1ST}")
        o("    s_branch K1_NT1")
        L("K1_NT2")
        o("    s_lshl_b32 s52, s2, 10")
        o(f"    s_add_u32 s52, s52, {WS_TAB}")
        o(f"    buffer_store_dwordx4 {vr(C,4)}, v70, s[44:47], s52 offen {K1ST}")
        L("K1_NT1")
    if T2E:
        o("    s_mov_b64 exec, -1")
        o("    s_waitcnt lgkmcnt(0)")
        o("    s_barrier")
        o(f"    ds_read_b128 v[60:63], v71 offset:{K1_T2}")
        t2_out(0)
        o("    s_mov_b64 exec, s[60:61]")
    o(f"    s_waitcnt vmcnt({2+T2E})")
    o(f"    v_alignbit_b32 v{TY}, v{RA+2}, v{RA+1}, 16")
    o(f"    v_perm_b32 v{TY+1}, v{S+1}, v{RA+2}, s63")
    o(f"    v_perm_b32 v{RA+1}, v{S}, v{RA+1}, s62")
    o(f"    v_alignbit_b32 v{TY+2}, v{RB+2}, v{RB+1}, 16")
    o(f"    v_perm_b32 v{TY+3}, v{S+3}, v{RB+2}, s63")
    o(f"    v_perm_b32 v{RB+1}, v{S+2}, v{RB+1}, s62")
    yp = [RA, TY, RB, TY + 2]
    if K1SPL:
        for j in range(4):
            o(f"    ds_write_b64 v{RK+j}, {vr(yp[j],2)} offset:8")
    o(f"    s_waitcnt vmcnt({1+T2E})")
    for j in range(4):
        if j == 2:
            o(f"    s_waitcnt vmcnt({T2E})")
            stamp(4, SV)
        if K1SPL:
            o(f"    ds_write_b64 v{RK+j}, {vr(EA+2*j,2)}")
        else:
            o(f"    ds_write2_b64 v{RK+j}, {vr(EA+2*j,2)}, {vr(yp[j],2)} offset0:0 offset1:1")
    o("    s_mov_b64 exec, -1")
    if CPF == 2:
        code_pf()
    o("    s_waitcnt lgkmcnt(0)")
    o("    s_barrier")
    stamp(5, SV)
    if XEND == "mid":
        xtouch()
    for r in range(4):
        o(f"    ds_read_b128 {vr(4+4*r,4)}, v71 offset:{K1_REC + r*10240}")
    if not T2E:
        o(f"    ds_read_b128 v[60:63], v71 offset:{K1_T2}")
    o(f"    ds_read_b32 v20, v1 offset:{K1_KEY}")
    for r in range(4):
        o(f"    s_waitcnt lgkmcnt({5-T2E-r})")
        o(f"    buffer_store_dwordx4 {vr(4+4*r,4)}, v{71+r}, s[36:39], 0 offen {K1ST}")
    if not T2E:
        t2_out(1)
    o("    s_cmp_eq_u64 s[54:55], 0")
    o("    s_cbranch_scc1 K1_NOKEY2")
    o("    s_waitcnt lgkmcnt(0)")
    o("    buffer_store_dword v20, v1, s[40:43], 0 offen")
    L("K1_NOKEY2")
    if XEND == "end2":
        xtouch()
    if XEND == "end":
        xtouch()
    stamp(6, SV)
    if STAMP:
        o("    s_waitcnt vmcnt(0)")
    stamp(7, SV)
    stamp_dump(16, 17, 50, 10, 64 << 20, SV)
    L("K1_END")
    o("    s_endpgm")
    L("K1_AUX")
    if "auxoff" in EXP:
        o("    s_endpgm")
    o("    s_load_dwordx2 s[18:19], s[0:1], 40   ; w_rad")
    o("    s_load_dwordx4 s[12:15], s[0:1], 48")
    o("    v_and_b32 v0, 63, v0")
    o("    s_barrier")
    o("    s_waitcnt lgkmcnt(0)")
    if CPF == 3:
        o("    s_getpc_b64 s[66:67]")
        L("K1_PC")
        o("    s_lshr_b32 s68, s2, 3")
        o("    s_lshl_b32 s68, s68, 9")
        o("    s_min_u32 s68, s68, CODE_END-K1_PC-452")
        for i in range(8):
            o(f"    s_load_dword s{32+i}, s[66:67], s68")
            o("    s_add_u32 s68, s68, 64")
    if TLBW & 1:
        o("    s_load_dword s29, s[18:19], 0")
        o("    s_load_dword s30, s[12:13], 0")
        o("    s_load_dword s31, s[14:15], 0")
    o("    s_barrier")
    o("    s_cmp_ge_u32 s2, 45")
    o("    s_cbranch_scc1 K1_END")
    srd(44, 16, 17, WS_END)
    o("    s_cmp_ge_u32 s2, 40")
    o("    s_cbranch_scc1 K1_AUXR")
    o("    s_mul_i32 s51, s2, 26")
    o("    s_lshr_b32 s51, s51, 8                ; t")
    o("    s_mul_i32 s52, s51, 10")
    o("    s_sub_u32 s52, s2, s52                ; q")
    o("    s_cmp_lt_u32 s52, 4")
    o("    s_cselect_b32 s56, s12, s14")
    o("    s_cselect_b32 s57, s13, s15")
    o("    s_movk_i32 s58, 16384")
    o("    s_cselect_b32 s58, s58, 24576")
    o("    s_and_b32 s57, s57, 0xffff")
    o("    s_mov_b32 s59, 0x00020000")
    o("    v_lshrrev_b32 v70, 4, v0              ; g'")
    o("    v_and_b32 v71, 15, v0")
    o("    v_lshlrev_b32 v71, 1, v71")
    o("    s_lshl_b32 s53, s51, 5")
    o("    v_add_u32 v71, s53, v71               ; (16t+m)*2")
    o("    s_cmp_ge_u32 s52, 8")
    o("    s_cbranch_scc1 K1_FRAGX")
    o("    s_and_b32 s53, s52, 1")
    o("    s_lshl_b32 s53, s53, 5")
    o("    s_bfe_u32 s55, s52, 0x10001           ; (q>>1)&1")
    o("    s_add_u32 s53, s53, s55")
    o("    s_lshl_b32 s53, s53, 7")
    o("    v_lshl_add_u32 v71, v70, 10, v71")
    o("    v_add_u32 v71, s53, v71")
    o("    v_add_u32 v72, 8192, v71")
    for i in range(8):
        o(f"    buffer_load_ushort v{WFR+i}, v{71+(i&1)}, s[56:59], 0 offen offset:{(i>>1)*256}")
    o("    s_branch K1_FRAGW")
    L("K1_FRAGX")
    o("    s_and_b32 s53, s52, 1")
    o("    s_add_u32 s53, s53, 128")
    o("    s_lshl_b32 s53, s53, 7")
    o("    v_lshl_add_u32 v71, v70, 11, v71")
    o("    v_add_u32 v71, s53, v71")
    for i in range(8):
        o(f"    buffer_load_ushort v{WFR+i}, v71, s[56:59], 0 offen offset:{i*256}")
    L("K1_FRAGW")
    for _ in range(1 + T2E):
        o("    s_barrier")
    o("    s_waitcnt vmcnt(0)")
    for p in range(4):
        o(f"    v_lshl_or_b32 v{WFR+p}, v{WFR+2*p+1}, 16, v{WFR+2*p}")
    o("    s_branch K1_AUXS")
    L("K1_AUXR")
    srd(56, 18, 19, 2560)
    o("    v_and_b32 v70, 31, v0")
    o("    v_lshrrev_b32 v71, 5, v0")
    o("    v_lshlrev_b32 v70, 2, v70")
    o("    v_lshl_add_u32 v70, v71, 1, v70")
    o("    s_sub_u32 s52, s2, 40")
    o("    s_lshl_b32 s52, s52, 7")
    o("    v_add_u32 v70, s52, v70")
    for d in range(4):
        o(f"    buffer_load_ushort v{WFR+d}, v70, s[56:59], 0 offen offset:{d*640}")
    for _ in range(1 + T2E):
        o("    s_barrier")
    o("    s_waitcnt vmcnt(0)")
    for d in range(4):
        o(f"    v_lshlrev_b32 v{WFR+d}, 16, v{WFR+d}")
    L("K1_AUXS")
    o("    s_lshl_b32 s52, s2, 10")
    o(f"    s_add_u32 s52, s52, {WS_WF}")
    o("    v_lshlrev_b32 v70, 4, v0")
    o(f"    buffer_store_dwordx4 {vr(WFR,4)}, v70, s[44:47], s52 offen {K1ST}")
    o("    s_endpgm")

def gen_k2():
    B, ACC, S, W = 0, 64, 128, 184
    A = [204, 208]
    VO = [212, 220]
    LT, AM1, AM2 = 228, 232, 236
    RR = 240
    ZR = 244
    vA, vV, vRaw, vCw, vVw, vN4, vMask, vEnds, vPar, vIdx = range(246, 256)
    vLane = 125
    TT = 128
    vD4, vD2, vSa = 139, 140, 141
    TC = AM1
    WF = 144
    sX, sWS, sOUT, sWR = 12, 16, 20, 24
    sBin, sNN, sWave, sMode, sJlo, sMax = 28, 29, 30, 31, 32, 33
    sNs, sGen, sCnt, sSeg, sK, sLo, sHi, sRel, sRet, sRem = range(34, 44)
    sD0, sD1, sD2 = 44, 45, 46
    sEnd, sNext = 54, 55
    sWFl = 88
    sLeft, sPT = 89, 90
    sFast = 38
    sT, sT2, sT3 = 47, 48, 49
    sSave = 50
    sAny2 = 52
    sM1 = 56
    sM2 = 72
    sLM = 24
    sOv = 26

    def accr(v, u, d):
        cc = 2 * (d >> 1) + (u >> 1)
        e = 2 * (u & 1) + (d & 1)
        return ACC + 16 * v + 4 * cc + e
    def wreg(p, d):
        return W + 4 * p + d

    o(".globl tp_main_kernel")
    o(f".p2align {os.environ.get('K2AL', '8')}")
    o(".type tp_main_kernel,@function")
    L("tp_main_kernel")
    o(f"    s_cmp_ge_u32 s2, {NWG}")
    o("    s_cbranch_scc1 K2_END")
    stamp(0)
    o("    s_load_dwordx2 s[4:5], s[0:1], 0      ; x")
    o("    s_load_dwordx2 s[8:9], s[0:1], 72     ; out")
    o("    s_load_dwordx2 s[10:11], s[0:1], 88   ; ws")
    o("    v_lshrrev_b32 v1, 6, v0")
    o(f"    v_and_b32 v{vLane}, 63, v0")
    o(f"    v_readfirstlane_b32 s{sWave}, v1")
    o(f"    s_and_b32 s{sBin}, s2, 7")
    o(f"    s_lshl_b32 s{sBin}, s{sBin}, 5")
    o(f"    s_lshr_b32 s{sT}, s2, 3")
    o(f"    s_add_u32 s{sBin}, s{sBin}, s{sT}")
    HD, KY, RK1, RK2, AD1, AD2, RO, TM = 64, 72, 80, 88, 96, 104, 112, 120
    vW0, vJ = 126, 127

    def prefetch0():
        o(f"    s_lshr_b32 s{sT}, s2, 3")
        o(f"    s_lshl_b32 s{sT}, s{sT}, 3")
        o(f"    s_add_u32 s{sT}, s{sT}, s{sWave}")
        o(f"    s_lshl_b32 s{sT}, s{sT}, 13")
        o(f"    v_lshl_add_u32 v143, v{vLane}, 7, s{sT}")
        if PFL < 64:
            o(f"    s_mov_b64 exec, {hex((1 << PFL) - 1)}")
        for i in range(PF0):
            o(f"    buffer_load_dword v143, v143, {sr(sX,4)}, 0 offen")
            if i + 1 < PF0:
                o(f"    v_add_u32 v143, {256*8192}, v143")
    def w_loads():
        if WLDS:
            return
        o(f"    s_mov_b32 s{sT}, {WS_WR}")
        for p in range(5):
            if p == 4:
                o(f"    s_add_u32 s{sT}, s{sT}, 4096")
            o(f"    buffer_load_dwordx4 {vr(W+4*p,4)}, v{TM+1}, {sr(sWS,4)}, s{sT} offen offset:{(p%4)*1024}")
    def dump_addr():
        o(f"    s_mul_i32 s{sT}, s{sWave}, {SDS}")
        o(f"    s_add_u32 s{sT}, s{sT}, {SD}")
        o(f"    v_lshl_add_u32 v{vD4}, v{vLane}, 2, s{sT}")
        o(f"    s_add_u32 s{sT}, s{sT}, 1024")
        o(f"    v_lshl_add_u32 v{vD2}, v{vLane}, 1, s{sT}")
        o(f"    s_mul_i32 s{sT}, s{sBin}, 40")
        o(f"    s_add_u32 s{sT}, s{sT}, s{sWave}")
        o(f"    s_mul_i32 s{sT}, s{sT}, 2816")
        o(f"    s_add_u32 s{sT}, s{sT}, {WS_S32}")
        o(f"    v_lshl_add_u32 v{vSa}, v{vLane}, 2, s{sT}")
    def wf_loads(tmp):
        o(f"    v_mbcnt_lo_u32_b32 v{tmp}, -1, 0")
        o(f"    v_mbcnt_hi_u32_b32 v{tmp}, -1, v{tmp}")
        o(f"    s_mul_i32 s{sT}, s{sWave}, 10240")
        o(f"    v_lshlrev_b32 v{tmp}, 4, v{tmp}")
        o(f"    s_add_u32 s{sT}, s{sT}, {WS_WF}")
        for f in range(10):
            if f == 4 or f == 8:
                o(f"    s_add_u32 s{sT}, s{sT}, 4096")
            o(f"    buffer_load_dwordx4 {vr(WF+4*f,4)}, v{tmp}, {sr(sWS,4)}, s{sT} offen offset:{(f%4)*1024}")
        o(f"    s_mov_b32 s{sWFl}, 1")
    def lane_id():
        o(f"    v_mbcnt_lo_u32_b32 v{vLane}, -1, 0")
        o(f"    v_mbcnt_hi_u32_b32 v{vLane}, -1, v{vLane}")
    def lane_prep():
        o(f"    v_lshrrev_b32 v{vW0}, 4, v{vLane}")
        o(f"    s_lshl_b32 s{sT}, s{sWave}, 5")
        o(f"    v_add_u32 v{vW0}, s{sT}, v{vW0}")
        o(f"    v_and_b32 v{vJ}, 15, v{vLane}")
        o(f"    v_lshlrev_b32 v{TM}, 10, v{vW0}")
    def hdr_loads():
        o(f"    s_lshl_b32 s{sT}, s{sBin}, 2")
        o(f"    s_add_u32 s{sT}, s{sT}, {WS_TAB}")
        for i in range(8):
            o(f"    buffer_load_dword v{HD+i}, v{TM}, {sr(sWS,4)}, s{sT} offen")
            if i < 7:
                o(f"    s_add_u32 s{sT}, s{sT}, 4096")
    lane_prep()
    o(f"    v_lshlrev_b32 v{TM+1}, 13, v{vW0}")
    o(f"    v_lshl_add_u32 v{TM+1}, v{vJ}, 1, v{TM+1}")
    o(f"    s_lshl_b32 s{sT}, s{sBin}, 5")
    o(f"    s_add_u32 s{sT}, s{sT}, {WS_T2}")
    o("    s_waitcnt lgkmcnt(0)")
    stamp(1)
    srd(sWS, 10, 11, WS_END)
    for i in range(8):
        o(f"    buffer_load_ushort v{KY+i}, v{TM+1}, {sr(sWS,4)}, s{sT} offen")
        if i < 7:
            o(f"    s_add_u32 s{sT}, s{sT}, 32768")
    if WLDS:
        o(f"    v_lshlrev_b32 v{W+4}, 4, v0                 ; tid*16")
        o(f"    v_min_u32 v{W+4}, 5104, v{W+4}")
        o(f"    s_mov_b32 s{sT}, {WS_WR}")
        o(f"    buffer_load_dwordx4 {vr(W,4)}, v{W+4}, {sr(sWS,4)}, s{sT} offen")
    srd(sX, 4, 5, N * 512)
    if PFA:
        o(f"    s_lshr_b32 s{sT}, s2, 3")
        o(f"    s_lshl_b32 s{sT}, s{sT}, 3")
        o(f"    s_add_u32 s{sT}, s{sT}, s{sWave}")
        o(f"    s_lshl_b32 s{sT}, s{sT}, 13")
        o(f"    s_add_u32 s{sT}, s{sT}, 4096")
        o(f"    v_lshl_add_u32 v143, v{vLane}, 7, s{sT}")
        o(f"    s_mov_b64 exec, {hex((1 << PFA) - 1)}")
        o(f"    buffer_load_dword v143, v143, {sr(sX,4)}, 0 offen")
        o("    s_mov_b64 exec, -1")
    o(f"    v_and_b32 v{TM+2}, 31, v{vLane}")
    o(f"    v_lshlrev_b32 v{vN4}, 2, v{TM+2}")
    o(f"    v_lshrrev_b32 v{TM+3}, 5, v{vLane}      ; g = l>>5")
    o(f"    s_lshl_b32 s{sT}, s{sBin}, 16")
    o(f"    s_add_u32 s{sT}, s{sT}, {BINM-1}")
    o(f"    s_mul_hi_u32 s{sT2}, s{sT}, 0x27144e     ; n0")
    o(f"    s_add_u32 s{sT}, s{sT}, 0x10000")
    o(f"    s_mul_hi_u32 s{sT}, s{sT}, 0x27144e")
    o(f"    s_min_u32 s{sT}, s{sT}, {N}")
    o(f"    s_sub_u32 s{sNN}, s{sT}, s{sT2}")
    o(f"    s_lshl_b32 s{sT}, s{sT2}, 9")
    o(f"    s_add_u32 s{sOUT}, s8, s{sT}")
    o(f"    s_addc_u32 s{sOUT+1}, s9, 0")
    o(f"    s_and_b32 s{sOUT+1}, s{sOUT+1}, 0xffff")
    o(f"    s_lshl_b32 s{sOUT+2}, s{sNN}, 9")
    o(f"    s_mov_b32 s{sOUT+3}, 0x00020000")
    o(f"    s_mov_b32 s{sMode}, 0")
    o(f"    s_mov_b32 s{sFast}, 0")
    o(f"    s_lshr_b32 s{sWFl}, s{sWave}, 2")
    o(f"    s_mov_b32 s{sJlo}, 0")
    o("    v_lshrrev_b32 v5, 3, v0               ; e")
    o("    v_and_b32 v6, 7, v0")
    o("    v_lshlrev_b32 v6, 1, v6               ; 8ha+2p")
    o("    v_sub_u32 v5, v5, v6                  ; e-(8ha+2p)")
    o("    v_med3_i32 v5, v5, 0, 2")
    o("    v_lshlrev_b32 v5, 4, v5")
    o("    v_mov_b32 v6, -1")
    o("    v_mov_b32 v7, 0")
    o("    v_lshlrev_b64 v[6:7], v5, v[6:7]")
    o("    v_cmp_gt_u32 vcc, 256, v0")
    o("    v_lshlrev_b32 v3, 2, v0")
    o(f"    v_add_u32 v3, {MASK}, v3")
    o("    v_cndmask_b32 v2, 0, v7, vcc")
    o("    ds_write_b32 v3, v2")
    o("    v_mov_b32 v2, 0")
    o(f"    v_mov_b32 v3, {MISC}")
    o("    ds_write2_b32 v3, v2, v2 offset0:0 offset1:1")
    o("    ds_write_b32 v3, v2 offset:8")
    o(f"    v_mov_b32 v{ZR}, 0")
    o(f"    v_mov_b32 v{ZR+1}, 0")
    o(f"    v_and_b32 v4, 1, v{vLane}")
    o(f"    v_sub_u32 v{vPar}, 0, v4")
    o(f"    v_bfe_u32 v4, v{vLane}, 2, 1")
    o(f"    v_mul_u32_u24 v{vIdx}, 0x5555, v4")
    o(f"    v_add_u32 v{vIdx}, 0x8888, v{vIdx}       ; 0x8888 / 0xdddd")
    o(f"    v_lshlrev_b32 v{vMask}, 4, v{TM+3}")
    o(f"    v_add_u32 v{vMask}, {MASK}, v{vMask}")
    o("    s_waitcnt lgkmcnt(0)")
    o(f"    s_movk_i32 s{sT}, {CH}")
    o(f"    v_mad_u32_u24 v{TM+2}, v{vW0}, s{sT}, v{vJ}   ; w0*2500 + j")
    o(f"    s_mov_b32 s{sLM}, 0x7fff7fff")
    o(f"    s_mov_b32 s{sLM+1}, 0x7fff7fff")
    o(f"    s_mov_b64 {sr(sOv,2)}, -1")
    o(f"    s_mov_b64 {sr(sAny2,2)}, 0")
    o(f"    v_mov_b32 v{TM+4}, {CNT}")
    o(f"    v_lshlrev_b32 v{TM+1}, 4, v{vLane}")
    o("    s_barrier")
    def rec_load(i):
        o(f"    s_mov_b32 s{sT}, {i*4*CH*16}")
        if "onelane" in EXP:
            o("    s_mov_b64 exec, 1")
        elif RMASK:
            o(f"    s_or_b64 exec, {sr(sM1+2*i,2)}, 1")
        o(f"    buffer_load_dwordx4 {vr(4*i,4)}, v{RO+i}, {sr(sWS,4)}, s{sT} offen")
        if RMASK:
            o("    s_mov_b64 exec, -1")
    o(f"    v_mov_b32 v{TM}, 1")
    for i in range(8):
        o(f"    s_waitcnt vmcnt({7 - i + min(i, NEARLY) + WLDS + (1 if PFA else 0)})")
        if i == 0:
            stamp(2)
        o(f"    v_mov_b32_dpp v{RO+i}, v{KY+i} row_newbcast:15 row_mask:0xf bank_mask:0xf")
        o(f"    v_and_b32 v{AD1+i}, 0xff, v{KY+i}")
        o(f"    v_and_b32 v{RO+i}, 0xfff, v{RO+i}")
        o(f"    v_cmp_gt_u32 vcc, 0x80, v{AD1+i}")
        o(f"    v_add_lshl_u32 v{RO+i}, v{RO+i}, v{TM+2}, 4")
        o(f"    v_lshl_add_u32 v{AD1+i}, v{AD1+i}, 2, v{TM+4}")
        o(f"    s_and_b64 {sr(sM1+2*i,2)}, vcc, {sr(sLM,2)}")
        if i < NEARLY:
            rec_load(i)
        o(f"    v_cmp_gt_u32 vcc, 0x8000, v{KY+i}")
        o(f"    s_mov_b64 exec, {sr(sM1+2*i,2)}")
        o(f"    ds_add_rtn_u32 v{RK1+i}, v{AD1+i}, v{TM}")
        o("    s_mov_b64 exec, -1")
        o(f"    s_and_b64 {sr(sM2+2*i,2)}, vcc, {sr(sLM,2)}")
        o(f"    s_and_b64 {sr(sOv,2)}, {sr(sOv,2)}, vcc")
        o(f"    s_or_b64 {sr(sAny2,2)}, {sr(sAny2,2)}, {sr(sM2+2*i,2)}")
    o("    s_cbranch_scc0 K2_NO2B")
    o("    s_waitcnt lgkmcnt(4)")
    for i in range(8):
        o(f"    s_mov_b64 exec, {sr(sM2+2*i,2)}")
        o(f"    s_cbranch_execz K2_NK2{i}")
        o(f"    v_lshrrev_b32 v{AD2+i}, 8, v{KY+i}")
        o(f"    v_lshl_add_u32 v{AD2+i}, v{AD2+i}, 2, v{TM+4}")
        o(f"    ds_add_rtn_u32 v{RK2+i}, v{AD2+i}, v{TM}")
        L(f"K2_NK2{i}")
    o("    s_mov_b64 exec, -1")
    L("K2_NO2B")
    if WLDS:
        o(f"    v_add_u32 v{W+4}, {WST}, v{W+4}")
    o(f"    s_or_b64 {sr(sOv,2)}, {sr(sOv,2)}, {sr(sLM,2)}")
    o(f"    s_cmp_eq_u64 {sr(sOv,2)}, -1")
    o("    s_cbranch_scc1 K2_RANKD")
    o(f"    v_mov_b32 v{TM}, {MISC}")
    o(f"    ds_write_b32 v{TM}, v{TM}")
    L("K2_RANKD")
    c0, c1, i0, i1, tt0, tt1, e0, e1, p0, p1, a0, a1, b0, b1, ad, mx = range(204, 220)
    o(f"    v_lshlrev_b32 v{ad}, 2, v{vLane}")
    o(f"    v_add_u32 v{ad}, {CNT}, v{ad}")
    o(f"    v_mov_b32 v{mx}, {MISC}")
    o("    s_waitcnt lgkmcnt(0)")
    o("    s_barrier")
    stamp(3)
    o(f"    ds_read2st64_b32 v[{c0}:{c1}], v{ad} offset0:0 offset1:1")
    o(f"    ds_read_b32 v{mx}, v{mx}")
    o(f"    s_cmp_lg_u32 s{sMode}, 0")
    o("    s_cbranch_scc1 K2_NOLATE")
    for i in range(NEARLY, NEARLY + 2):
        rec_load(i)
    L("K2_NOLATE")
    o("    s_waitcnt lgkmcnt(0)")
    o(f"    v_mov_b32 v{i0}, v{c0}")
    o(f"    v_mov_b32 v{i1}, v{c1}")
    o(f"    v_readfirstlane_b32 s{sT3}, v{mx}")
    for sh in (1, 2, 4, 8):
        o(f"    v_add_u32_dpp v{i0}, v{i0}, v{i0} row_shr:{sh} row_mask:0xf bank_mask:0xf bound_ctrl:0")
        o(f"    v_add_u32_dpp v{i1}, v{i1}, v{i1} row_shr:{sh} row_mask:0xf bank_mask:0xf bound_ctrl:0")
        o("    s_nop 0")
    o(f"    v_mov_b32_dpp v{tt0}, v{i0} row_newbcast:15 row_mask:0xf bank_mask:0xf")
    o(f"    v_mov_b32_dpp v{tt1}, v{i1} row_newbcast:15 row_mask:0xf bank_mask:0xf")
    o(f"    v_add_u32 v{e0}, 15, v{tt0}")
    o(f"    v_add_u32 v{e1}, 15, v{tt1}")
    o(f"    v_and_b32 v{e0}, -16, v{e0}")
    o(f"    v_and_b32 v{e1}, -16, v{e1}")
    o(f"    v_mov_b32 v{p0}, v{e0}")
    o(f"    v_mov_b32 v{p1}, v{e1}")
    o(f"    v_add_u32_dpp v{e0}, v{e0}, v{e0} row_bcast:15 row_mask:0xa bank_mask:0xf")
    o(f"    v_add_u32_dpp v{e1}, v{e1}, v{e1} row_bcast:15 row_mask:0xa bank_mask:0xf")
    o("    s_nop 0")
    o(f"    v_add_u32_dpp v{e0}, v{e0}, v{e0} row_bcast:31 row_mask:0xc bank_mask:0xf")
    o(f"    v_add_u32_dpp v{e1}, v{e1}, v{e1} row_bcast:31 row_mask:0xc bank_mask:0xf")
    o("    s_nop 0")
    o(f"    v_readlane_b32 s{sT}, v{e0}, 63")
    o(f"    v_readlane_b32 s{sT2}, v{e1}, 63")
    o(f"    v_sub_u32 v{a0}, v{e0}, v{tt0}")
    o(f"    v_add_u32 v{e1}, s{sT}, v{e1}")
    o(f"    v_add_u32 v{a0}, v{a0}, v{i0}            ; absolute end slot of entry")
    o(f"    v_sub_u32 v{a1}, v{e1}, v{tt1}")
    o(f"    v_add_u32 v{a1}, v{a1}, v{i1}")
    o(f"    v_sub_u32 v{b0}, v{a0}, v{c0}")
    o(f"    v_sub_u32 v{b1}, v{a1}, v{c1}")
    o(f"    ds_write2st64_b32 v{ad}, v{b0}, v{b1} offset0:2 offset1:3")
    o(f"    s_add_u32 s{sT}, s{sT}, s{sT2}")
    o(f"    s_cmp_gt_u32 s{sT}, {SLOTCAP-96}")
    o(f"    s_cselect_b32 s{sT}, 1, 0")
    o(f"    s_cmp_lg_u32 s{sT3}, 0")
    o(f"    s_cselect_b32 s{sT}, 1, s{sT}")
    o(f"    s_cmp_gt_u32 s{sT}, s{sMode}")
    o("    s_cbranch_scc1 K2_GOSLOW")
    for i in range(8):
        o(f"    ds_read_b32 v{AD1+i}, v{AD1+i} offset:512")
    o(f"    s_cmp_lg_u32 s{sMode}, 0")
    o("    s_cbranch_scc1 K2_NO2C")
    for i in range(NEARLY + 2, 8):
        rec_load(i)
    w_loads()
    o(f"    s_cmp_eq_u64 {sr(sAny2,2)}, 0")
    o("    s_cbranch_scc1 K2_NO2C")
    o("    s_waitcnt lgkmcnt(4)")
    for i in range(8):
        o(f"    s_mov_b64 exec, {sr(sM2+2*i,2)}")
        o(f"    s_cbranch_execz K2_NR2{i}")
        o(f"    s_mov_b32 s{sT}, {i*4*CH*16}")
        o(f"    buffer_load_dwordx4 {vr(32+4*i,4)}, v{RO+i}, {sr(sWS,4)}, s{sT} offen offset:240")
        o(f"    ds_read_b32 v{AD2+i}, v{AD2+i} offset:512")
        L(f"K2_NR2{i}")
    o("    s_mov_b64 exec, -1")
    L("K2_NO2C")
    o(f"    s_cmp_lt_u32 s{sWave}, 4")
    o("    s_cselect_b64 vcc, -1, 0")
    o(f"    v_cndmask_b32 v{a0}, v{a1}, v{a0}, vcc")
    o(f"    v_cndmask_b32 v{e0}, v{e1}, v{e0}, vcc")
    o(f"    v_cndmask_b32 v{p0}, v{p1}, v{p0}, vcc")
    o(f"    v_cndmask_b32 v{tt0}, v{tt1}, v{tt0}, vcc")
    o(f"    s_and_b32 s{sSeg}, s{sWave}, 3")
    o(f"    s_lshl_b32 s{sSeg}, s{sSeg}, 4")
    o("    s_nop 0")
    o(f"    v_readlane_b32 s{sT}, v{e0}, s{sSeg}")
    o(f"    v_readlane_b32 s{sT2}, v{p0}, s{sSeg}")
    o(f"    v_readlane_b32 s{sT3}, v{tt0}, s{sSeg}")
    o(f"    v_and_b32 v{b0}, 15, v{vLane}")
    o(f"    v_cmp_le_u32 vcc, {5*ZZ}, v{b0}")
    o(f"    v_mov_b32 v{b0}, 0x7fffffff")
    o(f"    s_sub_u32 s{sT}, s{sT}, s{sT2}")
    o(f"    s_sub_u32 s{sLo}, s{sT2}, s{sT3}         ; pad")
    o(f"    s_lshr_b32 s{sNs}, s{sT2}, 4")
    o(f"    v_subrev_u32 v{vEnds}, s{sT}, v{a0}")
    o(f"    v_cndmask_b32 v{vEnds}, v{vEnds}, v{b0}, vcc")
    o(f"    v_lshrrev_b32 v{vRaw}, 1, v{vLane}")
    o(f"    v_add_u32 v{vRaw}, s{sT}, v{vRaw}")
    o(f"    v_lshlrev_b32 v{vRaw}, 4, v{vRaw}")
    if RAW:
        o(f"    v_add_u32 v{vRaw}, {RAW}, v{vRaw}")
    o(f"    s_mul_i32 s{sT}, s{sWave}, {3*RBLK}")
    o(f"    s_add_u32 s{sT}, s{sT}, {RING}")
    o(f"    s_add_u32 s{sT2}, s{sT}, 1024")
    o(f"    v_lshrrev_b32 v{b0}, 5, v{vLane}         ; ha / g")
    o(f"    v_bfe_u32 v{b1}, v{vLane}, 2, 2          ; rho")
    o(f"    v_lshl_add_u32 v{b1}, v{b0}, 3, v{b1}")
    o(f"    v_bfe_u32 v{c0}, v{vLane}, 1, 1")
    o(f"    v_bfe_u32 v{c1}, v{vLane}, 4, 1")
    o(f"    v_lshl_add_u32 v{c0}, v{c1}, 1, v{c0}")
    o(f"    v_lshl_add_u32 v{c0}, v{c0}, 3, s{sT}")
    o(f"    v_lshl_add_u32 v{vA}, v{b1}, 5, v{c0}")
    o(f"    v_lshl_add_u32 v{vV}, v{b0}, 4, s{sT2}")
    o(f"    v_lshl_add_u32 v{vCw}, v{vLane}, 4, s{sT}")
    o(f"    v_lshrrev_b32 v{b0}, 1, v{vLane}")
    o(f"    v_lshl_add_u32 v{vVw}, v{b0}, 2, s{sT2}")
    dump_addr()
    o("    s_waitcnt lgkmcnt(0)")
    for i in range(8):
        o(f"    v_add_lshl_u32 v{AD1+i}, v{AD1+i}, v{RK1+i}, 4")
    stamp(4)
    for i in range(8):
        o(f"    s_mov_b64 exec, {sr(sM1+2*i,2)}")
        o(f"    s_waitcnt vmcnt({(7 if WLDS else 12)-i + (PF0 if PFPOS == 'd' and i > PFI else 0)})")
        if "noscat" not in EXP:
            o(f"    ds_write_b128 v{AD1+i}, {vr(4*i,4)} offset:{RAW}")
        if PF0 and PFPOS == "d" and i == PFI:
            o("    s_mov_b64 exec, -1")
            prefetch0()
    o(f"    s_waitcnt vmcnt({PF0 if PFPOS == 'd' else 0})")
    if PF0 and PFPOS == "c":
        o("    s_mov_b64 exec, -1")
        prefetch0()
    o(f"    s_cmp_eq_u64 {sr(sAny2,2)}, 0")
    o("    s_cbranch_scc1 K2_NO2D")
    for i in range(8):
        o(f"    s_mov_b64 exec, {sr(sM2+2*i,2)}")
        o(f"    s_cbranch_execz K2_NS2{i}")
        o(f"    v_add_lshl_u32 v{AD2+i}, v{AD2+i}, v{RK2+i}, 4")
        o(f"    ds_write_b128 v{AD2+i}, {vr(32+4*i,4)} offset:{RAW}")
        L(f"K2_NS2{i}")
    L("K2_NO2D")
    o("    s_mov_b64 exec, -1")
    if WLDS:
        o(f"    v_lshlrev_b32 v{TT}, 4, v{vLane}")
        o(f"    v_add_u32 v{TT}, {WST}, v{TT}")
        o(f"    s_cmp_lg_u32 s{sMode}, 0")
        o("    s_cbranch_scc1 K2_NOWST")
        o(f"    ds_write_b128 v{W+4}, {vr(W,4)}")
        L("K2_NOWST")
    o("    s_waitcnt lgkmcnt(0)")
    o("    s_barrier")
    stamp(5)
    if STAMP:
        o("    s_memtime s[100:101]")
        o("    s_waitcnt lgkmcnt(0)")
        o(f"    v_writelane_b32 v{STV}, s100, 12")
    if "prio" in EXP:
        o(f"    s_cmp_lt_u32 s{sWave}, 4")
        o("    s_cbranch_scc1 K2_NOPRIO")
        o("    s_setprio 1")
        L("K2_NOPRIO")

    def convert(ct, rr=RR, off=0):
        CO = AM1
        a0_, a1_, y0, y1, y2, m0, m1, vo = range(ct, ct + 8)
        o(f"    v_bitop3_b32 v{CO}, v{vPar}, v{rr+1}, v{rr} bitop3:0xca")
        o(f"    v_lshlrev_b32 v{y0}, 16, v{rr+2}")
        o(f"    v_lshlrev_b32 v{a0_}, 16, v{CO}")
        o(f"    v_and_b32 v{a1_}, 0xffff0000, v{CO}")
        o(f"    v_and_b32 v{y1}, 0xffff0000, v{rr+2}")
        o(f"    v_lshlrev_b32 v{y2}, 16, v{rr+3}")
        for u, y in enumerate((y0, y1, y2)):
            o(f"    v_mul_f32 v{m0}, v{a0_}, v{y}")
            o(f"    v_mul_f32 v{m1}, v{a1_}, v{y}")
            o(f"    v_cvt_pk_bf16_f32 v{CO+1+u}, v{m0}, v{m1}")
        o(f"    v_lshrrev_b32 v{vo}, 7, v{rr+3}")
        o(f"    v_and_b32 v{vo}, {hex(int(os.environ.get('SRCMASK','0x1fffe00'),16))}, v{vo}")
        o(f"    ds_write_b128 v{vCw}, {vr(CO,4)} offset:{off}")
        o(f"    ds_write_b32 v{vVw}, v{vo} offset:{off}")

    def loads_tile(x, v, vo):
        for r in range(8):
            o(f"    buffer_load_dword v{B+32*x+8*v+r}, v{vo+r}, {sr(sX,4)}, 0 offen offset:{v*128}")
    def smf(x, v, areg):
        if "q1" in EXP and v != 0:
            return
        if "q2" in EXP and v >= 2:
            return
        if "nomfma" not in EXP:
            o(f"    v_smfmac_f32_32x32x32_bf16 {vr(ACC+16*v,16)}, {vr(areg,4)}, {vr(B+32*x+8*v,8)}, v{vIdx}")
    def zero_tile(v):
        if "nomfma" not in EXP or "keepz" in EXP:
            o(f"    v_mfma_f32_32x32x8_bf16 {vr(ACC+16*v,16)}, {vr(ZR,2)}, {vr(ZR,2)}, 0")
    def mask_read(dst, sreg, tmp):
        o(f"    s_lshl_b32 s{sT}, s{sreg}, 5")
        o(f"    v_add_u32 v{tmp}, s{sT}, v{vMask}")
        o(f"    ds_read_b128 {vr(dst,4)}, v{tmp}")
    terms = [(0, 0, 0, 0, 1)] + [(2 + j, 2, 0, j + 1, 1) for j in range(3)]
    cross = {(2, 3): (0, 1), (3, 2): (0, -1), (3, 1): (1, 1), (1, 3): (1, -1), (1, 2): (2, 1), (2, 1): (2, -1)}
    for v in range(1, 4):
        terms.append((5 + v - 1, 3, v, 0, 1))
        for u in range(1, 4):
            if u == v:
                terms.append((1, 1, v, u, 1))
            else:
                i, sg = cross[(u, v)]
                terms.append((8 + i, 4, v, u, sg))
    first_v = {}
    for (si, p, v_, u, sg) in terms:
        first_v.setdefault(si, (v_, u))
    def fmas(v):
        if "noepi" in EXP:
            return
        tv = [t for t in terms if t[2] == v]
        if PK:
            for dh in range(2):
                for (si, p, v_, u, sg) in tv:
                    t = vr(TT + si, 2)
                    neg3 = " neg_lo:[1,0,0] neg_hi:[1,0,0]" if sg < 0 else ""
                    neg2 = " neg_lo:[1,0] neg_hi:[1,0]" if sg < 0 else ""
                    if dh == 0 and first_v[si] == (v_, u):
                        o(f"    v_pk_mul_f32 {t}, {vr(wreg(p,0),2)}, {vr(accr(v,u,0),2)}{neg2}")
                    else:
                        o(f"    v_pk_fma_f32 {t}, {vr(wreg(p,2*dh),2)}, {vr(accr(v,u,2*dh),2)}, {t}{neg3}")
        else:
            for d in range(4):
                for (si, p, v_, u, sg) in tv:
                    t = TT + si
                    ng = "-" if sg < 0 else ""
                    if d == 0 and first_v[si] == (v_, u):
                        o(f"    v_mul_f32 v{t}, {ng}v{wreg(p,d)}, v{accr(v,u,d)}")
                    elif sg > 0:
                        o(f"    v_fmac_f32 v{t}, v{wreg(p,d)}, v{accr(v,u,d)}")
                    else:
                        o(f"    v_fma_f32 v{t}, -v{wreg(p,d)}, v{accr(v,u,d)}, v{t}")
    def fold():
        if PK:
            for si in range(11):
                o(f"    v_add_f32 v{TT+si}, v{TT+si}, v{TT+si+1}")
    def commit_lds():
        t = lambda si: TT + si
        o(f"    v_cvt_pk_bf16_f32 v{TC}, v{t(0)}, v{t(1)}")
        for j in range(3):
            o(f"    v_cvt_pk_bf16_f32 v{TC+1+j}, v{t(2+j)}, v{t(5+j)}")
        o(f"    v_cvt_pk_bf16_f32 v{TC+4}, v{t(8)}, v{t(9)}")
        o(f"    v_cvt_pk_bf16_f32 v{TC+5}, v{t(10)}, v{t(10)}")
        o(f"    ds_write2st64_b32 v{vD4}, v{TC}, v{TC+1} offset0:0 offset1:1")
        o(f"    ds_write2st64_b32 v{vD4}, v{TC+2}, v{TC+3} offset0:2 offset1:3")
        o(f"    ds_write_b16 v{vD2}, v{TC+4}")
        o(f"    ds_write_b16_d16_hi v{vD2}, v{TC+4} offset:128")
        o(f"    ds_write_b16 v{vD2}, v{TC+5} offset:256")
        o(f"    v_add_u32 v{vD4}, {8*SDS}, v{vD4}")
        o(f"    v_add_u32 v{vD2}, {8*SDS}, v{vD2}")
    def signal4():
        o(f"    v_mov_b32 v{AM2+2}, {MISC+8}")
        o(f"    v_mov_b32 v{AM2+3}, 1")
        o("    s_mov_b64 exec, 1")
        o(f"    ds_add_u32 v{AM2+2}, v{AM2+3}")
        o("    s_mov_b64 exec, -1")
    pcnt = [0]
    def prio_step():
        pcnt[0] += 1
        o(f"    s_and_b32 s{sT}, s{sSeg}, 15")
        o(f"    s_cmp_lg_u32 s{sT}, 4")
        o(f"    s_cbranch_scc1 K2_PR{pcnt[0]}")
        signal4()
        L(f"K2_PR{pcnt[0]}")
        if PRIO:
            o(f"    s_and_b32 s{sT}, s{sSeg}, 15")
            for lvl, th in zip((2, 1, 0), PRIO):
                pcnt[0] += 1
                o(f"    s_cmp_lg_u32 s{sT}, {th*ZZ+ZZ-1}")
                o(f"    s_cbranch_scc1 K2_PR{pcnt[0]}")
                o(f"    s_setprio {lvl}")
                L(f"K2_PR{pcnt[0]}")
    def schedule_next():
        o(f"    s_sub_u32 s{sT}, s{sEnd}, 1")
        o(f"    s_and_b32 s{sHi}, s{sT}, 15")
        o(f"    s_add_u32 s{sHi}, s{sHi}, 1")
        o(f"    s_lshr_b32 s{sT}, s{sT}, 4")
        o(f"    s_sub_i32 s{sT2}, s{sNs}, 2")
        o(f"    s_add_u32 s{sT3}, s{sGen}, 1")
        o(f"    s_max_i32 s{sT2}, s{sT2}, s{sT3}")
        o(f"    s_min_u32 s{sGen}, s{sT}, s{sT2}")
        o(f"    s_sub_u32 s{sCnt}, s{sGen}, s{sT3}")

    o(f"    s_cmp_eq_u32 s{sNs}, 0")
    o("    s_cbranch_scc1 K2_EMPTY")
    o(f"    ds_read_b128 {vr(RR,4)}, v{vRaw}")
    o(f"    ds_read_b128 {vr(A[0],4)}, v{vRaw} offset:512")
    if PRIO or RP:
        o("    s_setprio 3")
    if RP:
        o(f"    s_mov_b32 s{sLeft}, s{sNs}")
        o(f"    s_mov_b32 s{sPT}, {RP[0]}")
    o(f"    s_mov_b32 s{sD0}, {RBLK}                ; delta for vA at end of this batch")
    o(f"    s_mov_b32 s{sD1}, {RBLK}")
    o(f"    s_mov_b32 s{sD2}, {-2*RBLK}")
    for v in range(4):
        zero_tile(v)
    o("    s_waitcnt lgkmcnt(1)")
    convert(VO[1])
    o(f"    ds_read_b128 {vr(VO[0],4)}, v{vV}")
    o(f"    ds_read_b128 {vr(VO[0]+4,4)}, v{vV} offset:32")
    if not ST2:
        o("    s_waitcnt lgkmcnt(4)")
        convert(VO[1], A[0], RBLK)
    o(f"    ds_read_b128 {vr(VO[1],4)}, v{vV} offset:64")
    o(f"    ds_read_b128 {vr(VO[1]+4,4)}, v{vV} offset:96")
    o(f"    v_add_u32 v{vRaw}, 1024, v{vRaw}")
    if not ST2:
        o(f"    v_add_u32 v{vCw}, {2*RBLK}, v{vCw}")
        o(f"    v_add_u32 v{vVw}, {2*RBLK}, v{vVw}")
    o(f"    v_add_u32 v{vV}, {RBLK}, v{vV}")
    o(f"    s_waitcnt lgkmcnt({2 if ST2 else 4})")
    for r in range(8):
        o(f"    v_add_u32 v{VO[0]+r}, v{VO[0]+r}, v{vN4}")
    for r in range(8):
        thr = 8 * (r >> 2) + (r & 3) + 4
        if thr < 15:
            o(f"    s_cmp_gt_u32 s{sLo}, {thr}")
            o(f"    s_cbranch_scc1 K2_IZ{r}")
        for v in range(4):
            o(f"    buffer_load_dword v{B+8*v+r}, v{VO[0]+r}, {sr(sX,4)}, 0 offen offset:{v*128}")
        L(f"K2_IN{r}")
    o(f"    s_cmp_eq_u32 s{sNs}, 1")
    o("    s_cbranch_scc1 K2_INITD")
    o("    s_waitcnt lgkmcnt(0)")
    for r in range(8):
        o(f"    v_add_u32 v{VO[1]+r}, v{VO[1]+r}, v{vN4}")
    for v in range(4):
        if v == 3:
            o("    s_waitcnt vmcnt(55)")
        loads_tile(1, v, VO[1])
    L("K2_INITD")
    if ST2:
        o("    s_waitcnt lgkmcnt(0)")
        convert(VO[1], A[0], RBLK)
        o(f"    v_add_u32 v{vCw}, {2*RBLK}, v{vCw}")
        o(f"    v_add_u32 v{vVw}, {2*RBLK}, v{vVw}")
    if ZZ > 1:
        o(f"    s_add_u32 s{sSeg}, s{sSeg}, {ZZ-1}")
    if WLDS:
        for p in range(5):
            o(f"    ds_read_b128 {vr(W+4*p,4)}, v{TT} offset:{p*1024}")
    o(f"    v_readlane_b32 s{sEnd}, v{vEnds}, s{sSeg}")
    o(f"    ds_read_b64_tr_b16 {vr(A[0],2)}, v{vA}")
    o(f"    ds_read_b64_tr_b16 {vr(A[0]+2,2)}, v{vA} offset:128")
    o(f"    ds_read_b128 {vr(VO[0],4)}, v{vV}")
    o(f"    ds_read_b128 {vr(VO[0]+4,4)}, v{vV} offset:32")
    o(f"    s_mov_b32 s{sGen}, 0")
    o(f"    s_mov_b32 s{sCnt}, 0")

    o(".p2align 3")
    L("K2_LOOP")
    for x in range(2):
        a_cur, a_nxt = A[x], A[x ^ 1]
        v_cur, v_nxt = VO[x], VO[x ^ 1]
        if x == 1:
            o(f"    v_add_u32 v{vA}, s{sD0}, v{vA}")
            o(f"    v_add_u32 v{vV}, s{sD1}, v{vV}")
        nx = x ^ 1
        if x == 0:
            o(f"    ds_read_b128 {vr(RR,4)}, v{vRaw}")
        o(f"    ds_read_b64_tr_b16 {vr(a_nxt,2)}, v{vA} offset:{nx*512}")
        o(f"    ds_read_b64_tr_b16 {vr(a_nxt+2,2)}, v{vA} offset:{nx*512+128}")
        o(f"    ds_read_b128 {vr(v_nxt,4)}, v{vV} offset:{nx*64}")
        o(f"    ds_read_b128 {vr(v_nxt+4,4)}, v{vV} offset:{nx*64+32}")
        o(f"    s_sub_u32 s{sCnt}, s{sCnt}, 1")
        o(f"    s_waitcnt lgkmcnt({5 if x == 0 else 4})")
        for r in range(8):
            o(f"    v_add_u32 v{v_cur+r}, v{v_cur+r}, v{vN4}")
        o(f"    s_cbranch_scc1 K2_SP{x}")
        for v in range(4):
            o("    s_waitcnt vmcnt(55)")
            smf(x, v, a_cur)
            loads_tile(x, v, v_cur)
        L(f"K2_NEXT{x}")
        if RP:
            o(f"    s_sub_u32 s{sLeft}, s{sLeft}, 1")
            o(f"    s_cmp_le_i32 s{sLeft}, s{sPT}")
            o(f"    s_cbranch_scc1 K2_RP{x}")
            L(f"K2_RPB{x}")
        if x == 0:
            o("    s_waitcnt lgkmcnt(4)")
            convert(v_cur)
            o(f"    v_add_u32 v{vRaw}, 512, v{vRaw}")
            o(f"    v_add_u32 v{vCw}, s{sD2}, v{vCw}")
            o(f"    v_add_u32 v{vVw}, s{sD2}, v{vVw}")
        else:
            o(f"    s_mov_b32 s{sT}, s{sD0}")
            o(f"    s_mov_b32 s{sD0}, s{sD1}")
            o(f"    s_mov_b32 s{sD1}, s{sD2}")
            o(f"    s_mov_b32 s{sD2}, s{sT}")
            o("    s_branch K2_LOOP")

    for x in range(2):
        a_cur = A[x]
        v_cur = VO[x]
        L(f"K2_SP{x}")
        o(f"    s_add_u32 s{sT}, s{sSeg}, {ZZ}")
        if ZZ == 3:
            o(f"    s_or_b32 s{sT2}, s{sSeg}, 15")
            o(f"    s_min_u32 s{sT}, s{sT}, s{sT2}")
        o(f"    v_readlane_b32 s{sNext}, v{vEnds}, s{sT}")
        o(f"    s_sub_u32 s{sRem}, s{sNs}, s{sGen}")
        o(f"    s_lshl_b32 s{sT3}, s{sGen}, 4")
        o(f"    s_cmp_le_u32 s{sRem}, 2")
        o(f"    s_cbranch_scc1 K2_GEN{x}")
        o(f"    s_cmp_le_u32 s{sGen}, s{sFast}")
        o(f"    s_cbranch_scc1 K2_GEN{x}")
        o(f"    s_add_u32 s{sT2}, s{sT3}, 16")
        o(f"    s_cmp_le_u32 s{sNext}, s{sT2}")
        o(f"    s_cbranch_scc1 K2_GEN{x}")
        for r in range(4):
            o(f"    v_and_b32 v{AM1+r}, v{a_cur+r}, v{LT+r}")
        for r in range(4):
            o(f"    v_bitop3_b32 v{AM2+r}, v{a_cur+r}, v{LT+r}, v{LT+r} bitop3:0x30")
        o("    s_waitcnt vmcnt(31)")
        for v in range(4):
            smf(x, v, AM1)
        o(f"    s_mov_b32 s{sSeg}, s{sT}")
        o(f"    s_mov_b32 s{sEnd}, s{sNext}")
        schedule_next()
        mask_read(LT, sHi, a_cur)
        for v in range(4):
            fmas(v)
            zero_tile(v)
            smf(x, v, AM2)
            loads_tile(x, v, v_cur)
        fold()
        commit_lds()
        prio_step()
        o(f"    s_branch K2_NEXT{x}")
        L(f"K2_GEN{x}")
        o(f"    s_cmp_ge_u32 s{sRem}, 2")
        o(f"    s_cbranch_scc1 K2_GW{x}")
        o("    s_waitcnt vmcnt(0)")
        L(f"K2_GW{x}")
        o(f"    s_cmp_eq_u32 s{sGen}, 0")
        o(f"    s_cselect_b32 s{sLo}, s{sLo}, 0")
        L(f"K2_GL{x}")
        o(f"    s_sub_u32 s{sRel}, s{sEnd}, s{sT3}")
        o(f"    s_min_u32 s{sHi}, s{sRel}, 16")
        mask_read(LT, sHi, AM1)
        mask_read(AM2, sLo, AM1 + 1)
        o("    s_waitcnt vmcnt(31) lgkmcnt(0)")
        for r in range(4):
            o(f"    v_bitop3_b32 v{AM1+r}, v{a_cur+r}, v{LT+r}, v{AM2+r} bitop3:0x40")
        o("    s_nop 1")
        for v in range(4):
            smf(x, v, AM1)
        o(f"    s_cmp_gt_u32 s{sRel}, 16")
        o(f"    s_cbranch_scc1 K2_GD{x}")
        o(f"    s_mov_b32 s{sRet}, {x}")
        o("    s_branch K2_EPI")
        L(f"K2_GD{x}")
        o(f"    s_cmp_le_u32 s{sRem}, 2")
        o(f"    s_cbranch_scc1 K2_NL{x}")
        for v in range(4):
            loads_tile(x, v, v_cur)
        if WFE:
            o(f"    s_branch K2_NL2{x}")
        L(f"K2_NL{x}")
        if WFE:
            o(f"    s_cmp_lg_u32 s{sWFl}, 0")
            o(f"    s_cbranch_scc1 K2_NL2{x}")
            wf_loads(AM2)
            L(f"K2_NL2{x}")
        o(f"    s_cmp_eq_u32 s{sRem}, 1")
        o("    s_cbranch_scc1 K2_STREAM_DONE")
        schedule_next()
        mask_read(LT, sHi, AM1)
        o(f"    s_branch K2_NEXT{x}")

    if RP:
        for x in range(2):
            L(f"K2_RP{x}")
            for lvl in range(3):
                if lvl < 2:
                    o(f"    s_cmp_lg_u32 s{sPT}, {RP[lvl]}")
                    o(f"    s_cbranch_scc1 K2_RP{x}_{lvl}")
                o(f"    s_setprio {2-lvl}")
                o(f"    s_mov_b32 s{sPT}, {RP[lvl+1] if lvl < 2 else -1}")
                o(f"    s_branch K2_RPB{x}")
                if lvl < 2:
                    L(f"K2_RP{x}_{lvl}")
    L("K2_EPI")
    if ZZ == 3:
        o(f"    s_or_b32 s{sT2}, s{sSeg}, 15")
    o(f"    s_add_u32 s{sSeg}, s{sSeg}, {ZZ}")
    if ZZ == 3:
        o(f"    s_min_u32 s{sSeg}, s{sSeg}, s{sT2}")
    o(f"    s_mov_b32 s{sLo}, s{sHi}")
    o(f"    v_readlane_b32 s{sEnd}, v{vEnds}, s{sSeg}")
    o("    s_nop 7")
    for v in range(4):
        fmas(v)
        zero_tile(v)
    fold()
    o(f"    s_cmp_lg_u32 s{sMode}, 0")
    o("    s_cbranch_scc1 K2_EPS")
    commit_lds()
    prio_step()
    L("K2_EPR")
    if EEX:
        o(f"    s_cmp_eq_u32 s{sEnd}, 0x7fffffff")
        o("    s_cbranch_scc1 K2_STREAM_DONE")
    o(f"    s_cmp_eq_u32 s{sRet}, 0")
    o("    s_cbranch_scc1 K2_GL0")
    o("    s_branch K2_GL1")
    L("K2_EPS")
    o("    s_waitcnt vmcnt(31)")
    for si in range(11):
        o(f"    buffer_atomic_add_f32 v{TT+si}, v{vSa}, {sr(sWS,4)}, 0 offen offset:{si*256}")
    o(f"    v_add_u32 v{vSa}, {8*2816}, v{vSa}")
    o("    s_waitcnt vmcnt(0)")
    o("    s_branch K2_EPR")
    for r in range(7):
        L(f"K2_IZ{r}")
        for v in range(4):
            o(f"    v_mov_b32 v{B+8*v+r}, 0")
        o(f"    s_branch K2_IN{r}")
    L("K2_EMPTY")
    o(f"    s_cmp_lg_u32 s{sMode}, 0")
    o("    s_cbranch_scc1 K2_STREAM_DONE")
    for si in range(11):
        o(f"    v_mov_b32 v{TT+si}, 0")
    o(f"    s_mov_b32 s{sT2}, 5")
    L("K2_EMPTYL")
    commit_lds()
    o(f"    s_sub_u32 s{sT2}, s{sT2}, 1")
    o(f"    s_cmp_lg_u32 s{sT2}, 0")
    o("    s_cbranch_scc1 K2_EMPTYL")
    signal4()
    o("    s_branch K2_POSTG")

    L("K2_GOSLOW")
    o(f"    s_mov_b32 s{sMode}, 1")
    o(f"    s_mov_b32 s{sFast}, -1")
    w_loads()
    if WLDS:
        o("    s_waitcnt vmcnt(0)")
        o(f"    ds_write_b128 v{W+4}, {vr(W,4)}")
    dump_addr()
    o(f"    v_mov_b32 v{TT}, 0")
    for k in range(5):
        for si in range(11):
            o(f"    buffer_store_dword v{TT}, v{vSa}, {sr(sWS,4)}, 0 offen offset:{si*256} sc1")
        o(f"    v_add_u32 v{vSa}, {8*2816}, v{vSa}")
        o("    s_waitcnt vmcnt(0)")
    o("    s_waitcnt vmcnt(0)")
    L("K2_SLOW_ROUND")
    o("    s_waitcnt lgkmcnt(0)")
    o("    s_barrier")
    o("    s_nop 7")
    lane_id()
    o(f"    v_lshlrev_b32 v2, 2, v{vLane}")
    o(f"    v_add_u32 v2, {CNT}, v2")
    o("    v_mov_b32 v3, 0")
    o("    ds_write2st64_b32 v2, v3, v3 offset0:0 offset1:1")
    lane_prep()
    hdr_loads()
    o(f"    v_add_u32 v{TM+1}, s{sJlo}, v{vJ}")
    o(f"    s_movk_i32 s{sT}, {CH}")
    o(f"    v_mad_u32_u24 v{TM+2}, v{vW0}, s{sT}, v{TM+1}")
    o(f"    v_cmp_gt_u32 {sr(sSave,2)}, 8, v{vJ}")
    o(f"    s_mov_b64 {sr(sAny2,2)}, 0")
    o(f"    v_mov_b32 v{TM+3}, 0")
    o(f"    v_lshlrev_b32 v{KY}, 1, v{TM+1}")
    o(f"    v_subrev_u32 v{KY+1}, 29, v{KY}")
    o(f"    v_min_u32 v{KY}, v{KY}, v{KY+1}")
    o(f"    v_lshl_add_u32 v{KY}, v{vW0}, 13, v{KY}")
    o(f"    s_lshl_b32 s{sT}, s{sBin}, 5")
    o(f"    s_add_u32 s{sT}, s{sT}, {WS_T2}")
    o(f"    v_add_u32 v{KY}, s{sT}, v{KY}")
    o("    s_waitcnt vmcnt(0)")
    for i in range(8):
        o(f"    v_lshrrev_b32 v{TM}, 16, v{HD+i}")
        o(f"    v_and_b32 v{AD2+i}, 0xffff, v{HD+i}")
        o(f"    v_cmp_lt_u32 vcc, v{TM+1}, v{TM}")
        o(f"    v_add_u32 v{AD2+i}, v{AD2+i}, v{TM+2}")
        o(f"    v_lshlrev_b32 v{RO+i}, 4, v{AD2+i}")
        o(f"    v_max_u32 v{TM+3}, v{TM+3}, v{TM}")
        o(f"    v_mov_b32 v{AD1+i}, 0")
        o(f"    s_and_b64 {sr(sM1+2*i,2)}, vcc, {sr(sSave,2)}")
        o(f"    s_mov_b64 exec, {sr(sM1+2*i,2)}")
        o(f"    s_cbranch_execz K2_SR{i}")
        o(f"    s_mov_b32 s{sT}, {i*4*CH*16}")
        o(f"    buffer_load_dwordx4 {vr(4*i,4)}, v{RO+i}, {sr(sWS,4)}, s{sT} offen")
        o(f"    v_cmp_lt_u32 vcc, 30, v{TM}")
        o(f"    v_add_u32 v{AD2+i}, {WS_KEY + i*4*CH}, v{AD2+i}")
        o(f"    v_add_u32 v{TM}, {i*32768}, v{KY}")
        o(f"    v_cndmask_b32 v{AD2+i}, v{TM}, v{AD2+i}, vcc")
        o(f"    buffer_load_ubyte v{AD1+i}, v{AD2+i}, {sr(sWS,4)}, 0 offen")
        L(f"K2_SR{i}")
        o("    s_mov_b64 exec, -1")
    o(f"    v_mov_b32 v{TM}, {MISC+4}")
    o(f"    ds_max_u32 v{TM}, v{TM+3}")
    o(f"    v_mov_b32 v{TM+4}, {CNT}")
    o("    s_waitcnt vmcnt(0) lgkmcnt(0)")
    o("    s_barrier")
    o(f"    ds_read_b32 v{TM}, v{TM}")
    o("    s_waitcnt lgkmcnt(0)")
    o(f"    v_readfirstlane_b32 s{sMax}, v{TM}")
    o(f"    v_mov_b32 v{TM}, 1")
    for i in range(8):
        o(f"    v_lshl_add_u32 v{AD1+i}, v{AD1+i}, 2, v{TM+4}")
    for i in range(8):
        o(f"    s_mov_b64 exec, {sr(sM1+2*i,2)}")
        o(f"    ds_add_rtn_u32 v{RK1+i}, v{AD1+i}, v{TM}")
    o("    s_mov_b64 exec, -1")
    o("    s_branch K2_RANKD")

    L("K2_STREAM_DONE")
    o(f"    s_cmp_eq_u32 s{sMode}, 0")
    o("    s_cbranch_scc1 K2_POSTG")
    o(f"    s_add_u32 s{sJlo}, s{sJlo}, 8")
    o(f"    s_cmp_lt_u32 s{sJlo}, s{sMax}")
    o("    s_cbranch_scc1 K2_SLOW_ROUND")
    o("    s_nop 7")
    lane_id()
    dump_addr()
    o(f"    s_mov_b32 s{sT2}, 5")
    L("K2_SLOWL")
    for si in range(11):
        o(f"    buffer_load_dword v{TT+si}, v{vSa}, {sr(sWS,4)}, 0 offen offset:{si*256} sc1")
    o(f"    v_add_u32 v{vSa}, {8*2816}, v{vSa}")
    o("    s_waitcnt vmcnt(0)")
    commit_lds()
    o(f"    s_sub_u32 s{sT2}, s{sT2}, 1")
    o(f"    s_cmp_lg_u32 s{sT2}, 0")
    o("    s_cbranch_scc1 K2_SLOWL")
    signal4()

    L("K2_POSTG")
    stamp(6)
    if STAMP:
        o("    s_memtime s[100:101]")
        o("    s_waitcnt lgkmcnt(0)")
        o(f"    v_writelane_b32 v{STV}, s100, 13")
    t0, t1 = 226, 227
    vLane = 246
    o(f"    s_cmp_lg_u32 s{sWFl}, 0")
    o("    s_cbranch_scc1 K2_NOWF")
    wf_loads(t0)
    L("K2_NOWF")
    o(f"    v_mbcnt_lo_u32_b32 v{vLane}, -1, 0")
    o(f"    v_mbcnt_hi_u32_b32 v{vLane}, -1, v{vLane}")
    o(f"    s_cmp_ge_u32 s{sWave}, 4")
    o("    s_cbranch_scc1 K2_GADDR")
    vB_, vOt, vB2, vB2x, vB0, vO2 = 220, 221, 222, 223, 224, 225
    o(f"    v_and_b32 v{t0}, 15, v{vLane}                ; nn")
    o(f"    v_lshrrev_b32 v{t1}, 4, v{vLane}             ; g")
    o(f"    v_mul_u32_u24 v{vB_}, {SDS}, v{t0}")
    o(f"    v_lshl_add_u32 v{vB_}, v{t1}, 4, v{vB_}")
    o(f"    v_add_u32 v{vB_}, {SD}, v{vB_}")
    o(f"    s_lshl_b32 s{sT3}, s{sWave}, 5               ; t*32 bytes")
    o(f"    s_add_u32 s{sT}, s{sT3}, {OUTT}")
    o(f"    v_mul_u32_u24 v{vOt}, {OUT_STRIDE}, v{t0}")
    o(f"    v_lshl_add_u32 v{vOt}, v{t1}, 3, v{vOt}")
    o(f"    v_add_u32 v{vOt}, s{sT}, v{vOt}")
    o(f"    v_and_b32 v0, 7, v{t0}")
    o(f"    v_lshrrev_b32 v1, 3, v{t0}")
    o(f"    v_mul_u32_u24 v{vB0}, {SDS}, v0")
    o(f"    v_lshl_add_u32 v{vB0}, v{t1}, 4, v{vB0}")
    o(f"    v_add_u32 v{vB0}, {SD + 32*SDS}, v{vB0}")
    o(f"    v_lshl_add_u32 v{vB2}, v1, 8, v{vB0}")
    o(f"    v_lshl_add_u32 v{vB2x}, v1, 7, v{vB0}")
    o(f"    v_cmp_eq_u32 {sr(sSave,2)}, 1, v1")
    o(f"    v_mul_u32_u24 v{vO2}, {OUT_STRIDE}, v0")
    o(f"    v_lshl_add_u32 v{vO2}, v{t1}, 3, v{vO2}")
    o(f"    s_add_u32 s{sT}, s{sT3}, {OUTT + 32*OUT_STRIDE}")
    o(f"    v_add_u32 v{vO2}, s{sT}, v{vO2}")
    o(f"    v_lshl_add_u32 v{t0}, v1, 7, v{vO2}")
    o(f"    v_mul_u32_u24 v1, 384, v1")
    o(f"    v_sub_u32 v{t1}, v{vO2}, v1")
    G = 184
    o(f"    v_mov_b32 v{G+12}, 0xbfb8aa3b           ; -log2(e)")
    BB = 64
    NB_ = 16
    DEPTH = 12
    DD = 0
    RS = 198
    def gemm(seq, work, wr, tail_ins):
        n = len(seq)
        def bread(i):
            o(f"    ds_read_b128 {vr(BB+4*(i%NB_),4)}, v{seq[i][2]} offset:{seq[i][3]}")
        for i in range(min(DEPTH, n)):
            bread(i)
        o("    s_waitcnt vmcnt(0)")
        for i, (di, f, ar, off, first) in enumerate(seq):
            if i % 2 == 0:
                cnt = min(i + DEPTH, n) - 2 - i
                o(f"    s_waitcnt lgkmcnt({max(cnt,0)})")
            d = vr(DD + 4 * di, 4)
            o(f"    v_mfma_f32_16x16x32_bf16 {d}, {vr(WF+4*f,4)}, {vr(BB+4*(i%NB_),4)}, {'0' if first else d}")
            if i + DEPTH < n:
                bread(i + DEPTH)
            k = 0
            while work and work[0][0] <= i and k < (2 if i + DEPTH < n else 3):
                o(work.pop(0)[1]); k += 1
        early = [w for w in work if w[0] <= n - 1]
        late = [w for w in work if w[0] > n - 1]
        for w in early:
            o(w[1])
        for x_ in wr:
            o(x_)
        pad = 9 - len(early) - len(wr)
        if pad > 0:
            o(f"    s_nop {pad-1}")
        for w in late:
            o(w[1])
        for x_ in tail_ins:
            o(x_)
    def gate_work(Ts, start):
        w = []
        for op in ("v_mul_f32 v{g}, v{c}, v{d}", "v_exp_f32 v{g}, v{g}", "v_add_f32 v{g}, 1.0, v{g}", "v_rcp_f32 v{g}, v{g}"):
            for T in Ts:
                w += [(start, "    " + op.format(g=G + 4 * T + r, c=G + 12, d=DD + 4 * T + r)) for r in range(4)]
        for T in Ts:
            w += [(start, f"    v_cvt_pk_bf16_f32 v{RS+2*T}, v{DD+4*T}, v{DD+4*T+1}"), (start, f"    v_cvt_pk_bf16_f32 v{RS+2*T+1}, v{DD+4*T+2}, v{DD+4*T+3}")]
        return w
    def fin(di, last):
        g0 = G + 4 * min((di - 3) // 3, 2)
        ins = [f"    v_mul_f32 v{DD+4*di+r}, v{DD+4*di+r}, v{g0+r}" for r in range(4)]
        ins += [f"    v_cvt_pk_bf16_f32 v{RS+2*di}, v{DD+4*di}, v{DD+4*di+1}", f"    v_cvt_pk_bf16_f32 v{RS+2*di+1}, v{DD+4*di+2}, v{DD+4*di+3}"]
        return [(last + 5, x) for x in ins]
    if GPRI:
        o("    s_setprio 0")
    o(f"    v_mov_b32 v2, {MISC+8}")
    L("K2_SPIN")
    o("    ds_read_b32 v3, v2")
    o("    s_waitcnt lgkmcnt(0)")
    o(f"    v_readfirstlane_b32 s{sT}, v3")
    o("    s_nop 3")
    o(f"    s_cmp_ge_u32 s{sT}, 8")
    o("    s_cbranch_scc1 K2_SPIND")
    o("    s_sleep 1")
    o("    s_branch K2_SPIN")
    L("K2_SPIND")
    seq = []
    for T in range(2):
        for ks in range(4):
            seq.append((T, ks, vB_, T * 16 * SDS + 64 * ks, ks == 0))
    work = gate_work((0, 1), 12)
    for T in range(2):
        for blk in range(1, 4):
            di = 3 + 3 * T + blk - 1
            for ks in range(4):
                seq.append((di, 4 + ks, vB_, T * 16 * SDS + blk * 256 + 64 * ks, ks == 0))
            for ks in range(2):
                seq.append((di, 8 + ks, vB_, T * 16 * SDS + 1024 + 128 * (blk - 1) + 64 * ks, False))
            work += fin(di, len(seq) - 1)
    wr = []
    for T in range(2):
        wr.append(f"    ds_write_b64 v{vOt}, {vr(RS+2*T,2)} offset:{T*16*OUT_STRIDE}")
        for blk in range(1, 4):
            wr.append(f"    ds_write_b64 v{vOt}, {vr(RS+2*(3+3*T+blk-1),2)} offset:{T*16*OUT_STRIDE+blk*128}")
    gemm(seq, work, wr[:-1], wr[-1:])
    L("K2_GADDR")
    vC, vS = 228, 229
    o(f"    s_and_b32 s{sT}, s{sWave}, 3")
    o(f"    s_lshl_b32 s{sT}, s{sT}, 6")
    o(f"    v_add_u32 v{vS}, s{sT}, v{vLane}            ; 0..255")
    o(f"    v_lshrrev_b32 v{vC}, 5, v{vS}")
    o(f"    v_and_b32 v230, 31, v{vS}")
    o(f"    v_mul_u32_u24 v{vC}, {OUT_STRIDE}, v{vC}")
    o(f"    v_lshl_add_u32 v{vC}, v230, 4, v{vC}")
    o(f"    v_add_u32 v{vC}, {OUTT}, v{vC}")
    o(f"    v_lshlrev_b32 v{vS}, 4, v{vS}")
    o("    s_waitcnt lgkmcnt(0)")
    o("    s_barrier")
    stamp(7)
    o(f"    s_cmp_lt_u32 s{sWave}, 4")
    o("    s_cbranch_scc1 K2_GEMM2")
    for r in range(4):
        o(f"    ds_read_b128 {vr(4+4*r,4)}, v{vC} offset:{r*8*OUT_STRIDE}")
    for r in range(1, 4):
        o(f"    v_add_u32 v{vS+1+r}, {r*4096}, v{vS}")
    for r in range(4):
        o(f"    s_waitcnt lgkmcnt({3-r})")
        o(f"    buffer_store_dwordx4 {vr(4+4*r,4)}, v{vS if r == 0 else vS+1+r}, {sr(sOUT,4)}, 0 offen {OUTST}")
    o("    s_barrier                             ; B6")
    stamp(8)
    o("    s_branch K2_FIN")
    L("K2_GEMM2")
    seq = [(2, ks, vB0, 64 * ks, ks == 0) for ks in range(4)]
    work = gate_work((2,), 9)
    for ks in range(4):
        seq.append((9, 4 + ks, vB2, 256 + 64 * ks, ks == 0))
    for ks in range(2):
        seq.append((9, 8 + ks, vB2x, 1024 + 64 * ks, False))
    work += fin(9, len(seq) - 1)
    for ks in range(4):
        seq.append((10, 4 + ks, vB0, 768 + 64 * ks, ks == 0))
    for ks in range(2):
        seq.append((10, 8 + ks, vB0, 1024 + 256 + 64 * ks, False))
    work += fin(10, len(seq) - 1)
    gemm(seq, work, [f"    ds_write_b64 v{t0}, {vr(RS+18,2)} offset:128"],
         [f"    v_cndmask_b32 v{RS+20}, v{RS+20}, v{RS+4}, {sr(sSave,2)}",
          f"    v_cndmask_b32 v{RS+21}, v{RS+21}, v{RS+5}, {sr(sSave,2)}",
          f"    ds_write_b64 v{t1}, {vr(RS+20,2)} offset:384"])
    o(f"    v_add_u32 v{vS}, 16384, v{vS}")
    o("    s_waitcnt lgkmcnt(0)")
    o("    s_barrier                             ; B6: tail tile staged (waves 4..7 have ended)")
    stamp(8)
    o(f"    ds_read_b128 v[4:7], v{vC} offset:{32*OUT_STRIDE}")
    o("    s_waitcnt lgkmcnt(0)")
    o(f"    buffer_store_dwordx4 v[4:7], v{vS}, {sr(sOUT,4)}, 0 offen {OUTST}")
    L("K2_FIN")
    if STAMP:
        o("    s_waitcnt vmcnt(0)")
    stamp(9)
    stamp_dump(sWS, sWS + 1, sWave, 8, 65 << 20)
    L("K2_END")
    o("    s_endpgm")
    L("CODE_END")

gen_k1()
gen_k2()

o('.section .rodata,"a"')
def kd(name, vgpr, sgpr):
    o(".p2align 6")
    o(f".amdhsa_kernel {name}")
    o(f"  .amdhsa_next_free_vgpr {vgpr}")
    o(f"  .amdhsa_next_free_sgpr {sgpr}")
    o(f"  .amdhsa_accum_offset {(vgpr+3)//4*4}")
    o("  .amdhsa_group_segment_fixed_size 0")
    o("  .amdhsa_kernarg_size 96")
    o("  .amdhsa_user_sgpr_count 2")
    o("  .amdhsa_user_sgpr_kernarg_segment_ptr 1")
    o("  .amdhsa_system_sgpr_workgroup_id_x 1")
    o("  .amdhsa_float_denorm_mode_32 3")
    o(".end_amdhsa_kernel")
kd("tp_part_kernel", 80, 102 if STAMP else 72)
kd("tp_main_kernel", 256, 102 if STAMP else 92)

open(OUTFILE, "w").write("\n".join(lines) + "\n")
print("wrote", OUTFILE, len(lines), "lines; K2 LDS", K2_LDS)
```

```python
import sys, os

P = 1
OUTFILE = sys.argv[1] if len(sys.argv) > 1 else "standalone__tensor_product_equiv_equiformer__graph.s"
STAMP = int(os.environ.get("STAMP", "0"))
K1ST = os.environ.get("K1ST", "sc1")
K1LD2 = os.environ.get("K1LD2", "")
OUTST = os.environ.get("OUTST", "sc1")
K1LD = os.environ.get("K1LD", "nt")
EXP = os.environ.get("EXP", "")
PFA = int(os.environ.get("PFA", "0"))
ST2 = int(os.environ.get("ST2", "1"))
K1SPL = int(os.environ.get("K1SPL", "1"))
TLBW = int(os.environ.get("TLBW", "0"))
K1ORD = int(os.environ.get("K1ORD", "2"))
T2E = int(os.environ.get("T2E", "0"))
ZZ = int(os.environ.get("ZZ", "1"))
K1MAP = int(os.environ.get("K1MAP", "0"))
PK = 0
WFE = int(os.environ.get("WFE", "0"))
GPRI = int(os.environ.get("GPRI", "1"))
EEX = int(os.environ.get("EEX", "1"))
RP = [int(t) for t in os.environ.get("RP", "").split(",") if t]
RMASK = int(os.environ.get("RMASK", "1"))
WLDS = int(os.environ.get("WLDS", "1"))
XEND = os.environ.get("XEND", "")
NEARLY = int(os.environ.get("NEARLY", "4"))
K1PF = int(os.environ.get("K1PF", "0"))
PF0 = int(os.environ.get("PF0", "1"))
PFPOS = os.environ.get("PFPOS", "d")
PFI = int(os.environ.get("PFI", "5"))
PFL = int(os.environ.get("PFL", "32"))
IDXN = int(os.environ.get("IDXN", "0"))
IDXN2 = int(os.environ.get("IDXN2", "3"))
CPF = int(os.environ.get("CPF", "3"))
VW = int(os.environ.get("VW", "48"))
PRIO = [int(t) for t in os.environ.get("PRIO", "2,3,4").split(",") if t]
XPF = int(os.environ.get("XPF", "0"))

N = 10000
E = 640000
NWG = 256
CH = 2500
BINM = 1677
PHM = (P << 23) // 10000
WS_REC = 0
WS_KEY = 10240000
WS_TAB = 10880000
WS_T2 = WS_TAB + 256 * 1024
WS_WF = WS_T2 + 256 * 8192
WS_WR = WS_WF + 40 * 1024
WS_S32 = WS_WR + 5 * 1024
WS_END = WS_S32 + 256 * 40 * 2816

lines = []
def o(s=""):
    lines.append(s)
def L(s):
    lines.append(s + ":")
def vr(a, n):
    return f"v[{a}:{a+n-1}]"
def sr(a, n):
    return f"s[{a}:{a+n-1}]"
def srd(d, lo, hi, nbytes):
    o(f"    s_mov_b32 s{d}, s{lo}")
    o(f"    s_and_b32 s{d+1}, s{hi}, 0xffff")
    o(f"    s_mov_b32 s{d+2}, {nbytes}")
    o(f"    s_mov_b32 s{d+3}, 0x00020000")

STV = 142
def stamp(i, vreg=STV):
    if STAMP:
        o("    s_memrealtime s[100:101]")
        o("    s_waitcnt lgkmcnt(0)")
        o(f"    v_writelane_b32 v{vreg}, s100, {i}")
def stamp_dump(wsl, wsh, wave_sgpr, nwaves, base, vreg=STV):
    if not STAMP:
        return
    o("    s_waitcnt lgkmcnt(0) vmcnt(0)")
    o("    s_mov_b64 exec, 0xffff")
    o(f"    s_mul_i32 s4, s2, {nwaves}")
    o(f"    s_add_u32 s4, s4, s{wave_sgpr}")
    o("    s_lshl_b32 s4, s4, 6")
    o(f"    s_add_u32 s4, s4, {base}")
    o(f"    s_mov_b32 s8, s{wsl}")
    o(f"    s_and_b32 s9, s{wsh}, 0xffff")
    o("    s_mov_b32 s10, 0x8000000")
    o("    s_mov_b32 s11, 0x00020000")
    o("    v_mbcnt_lo_u32_b32 v0, -1, 0")
    o("    v_lshl_add_u32 v0, v0, 2, s4")
    o(f"    buffer_store_dword v{vreg}, v0, s[8:11], 0 offen")
    o("    s_waitcnt vmcnt(0)")

K1_CNT = 0
K1_START = 1024
K1_KEY = 2048
K1_T2 = 4608
K1_REC = K1_T2 + 8192
K1_LDS = K1_REC + 40960

SLOTCAP = 3072
RAW = 0
RING = RAW + SLOTCAP * 16
RBLK = 1152
MASK = RING + 8 * 3 * RBLK
CNT = MASK + 1024
BASE = CNT + 512
MISC = BASE + 512
SD = MISC + 64
SDS = 1440
K2_LDS = SD + 40 * SDS + 5120 + 40 * 528
WST = SD + 40 * SDS
OUTT = WST + 5120
OUT_STRIDE = 528
assert K2_LDS <= 163840, K2_LDS
assert SD % 16 == 0

for _l in """Equivariant tensor-product message passing (N=10000 nodes, E=640000 edges, C=64), two launches.
Kernarg: x, rhat, e_attr, src, dst, w_rad, w_si0, w_si1, cg_eps, out, debug, ws (8-byte pointers).
Reformulation: all per-edge work is linear in x[src], so per destination node
  T[(u,d)][v][c] = sum_e a_d(e) * Yext_u(e) * x[src_e][v][c]      (Yext = (1, rhat), 16 x 256 values per node)
is accumulated on the matrix cores, contracted with w_rad over d (per channel), combined over (u,v) with the
Levi-Civita signs into the 11 path sums, and only then multiplied by w_si0 / w_si1 and gated.
tp_part_kernel: every workgroup counting-sorts 2500 edges by destination bin (39-40 nodes) into 16-byte records
  {a[4], Y[3], src} plus a per-(producer,bin) key table in ws; an extra wave re-lays-out the weights.
tp_main_kernel: one workgroup per bin; sorts its records by node in LDS, each wave streams 5 nodes:
  dword gathers of x rows feed v_smfmac_f32_32x32x32_bf16 (2:4 index picks even/odd channel), then a small GEMM.
  Oversized segments / bins fall back to a multi-round path, so any dst distribution is handled.""".split("\n"):
    o("; " + _l)
o(f"; @launch kernel=tp_part_kernel grid=({NWG},1,1) block=(704,1,1) lds={K1_LDS}")
o(f"; @launch kernel=tp_main_kernel grid=({NWG},1,1) block=(512,1,1) lds={K2_LDS}")
o('.amdgcn_target "amdgcn-amd-amdhsa--gfx950"')
o(".text")

def gen_k1():
    SV = 79
    o(".globl tp_part_kernel")
    o(".p2align 8")
    o(".type tp_part_kernel,@function")
    L("tp_part_kernel")
    o(f"    s_cmp_ge_u32 s2, {NWG}")
    o("    s_cbranch_scc1 K1_END")
    if K1MAP:
        o("    s_and_b32 s3, s2, 7")
        o("    s_lshl_b32 s3, s3, 5")
        o("    s_lshr_b32 s2, s2, 3")
        o("    s_add_u32 s2, s2, s3")
    stamp(0, SV)
    o("    s_load_dwordx4 s[4:7], s[0:1], 8")
    o("    s_load_dwordx4 s[8:11], s[0:1], 24")
    o("    s_load_dwordx2 s[16:17], s[0:1], 88   ; ws")
    o("    s_load_dwordx2 s[64:65], s[0:1], 0    ; x")
    def code_pf():
        o("    s_cmp_lg_u32 s50, 8")
        o("    s_cbranch_scc1 K1_NOCPF")
        o("    s_getpc_b64 s[66:67]")
        L("K1_PC")
        o("    v_and_b32 v78, 3, v0")
        o("    s_lshr_b32 s68, s2, 3")
        o("    s_lshl_b32 s68, s68, 9")
        o("    v_lshl_add_u32 v78, v78, 7, s68")
        o(f"    v_min_u32 v77, CODE_END-K1_PC-4, v78")
        o("    s_mov_b64 exec, 15")
        o(f"    global_load_dword v76, v77, s[66:67]")
        o("    s_mov_b64 exec, -1")
        L("K1_NOCPF")
    def xtouch():
        XL = int(os.environ.get("XL", "16"))
        srd(68, 64, 65, N * 512)
        o("    s_lshr_b32 s66, s2, 3")
        o("    s_mul_i32 s66, s66, 10")
        o("    s_add_u32 s66, s66, s50")
        o(f"    s_mul_i32 s66, s66, {XL*128}")
        o(f"    s_add_u32 s66, s66, {1<<21}")
        o("    v_lshl_add_u32 v77, v70, 3, s66")
        o(f"    s_mov_b64 exec, {hex((1<<XL)-1)}")
        o("    buffer_load_dword v78, v77, s[68:71], 0 offen")
        o("    s_mov_b64 exec, -1")
    D, S, EA, RA, RB = 4, 8, 12, 20, 24
    BN, RK, ST = 28, 32, 36
    T = 40
    WFR = 48
    C = 56
    o("    v_lshrrev_b32 v70, 6, v0")
    o("    v_lshlrev_b32 v1, 2, v0               ; tid*4")
    o("    v_readfirstlane_b32 s50, v70")
    o(f"    s_mul_i32 s3, s2, {CH}")
    o("    v_add_u32 v2, s3, v1")
    o("    v_lshlrev_b32 v3, 2, v2")
    o(f"    v_lshlrev_b32 v{T}, 3, v2")
    o(f"    v_mul_u32_u24 v{T+1}, 6, v2")
    o("    s_cmp_eq_u32 s50, 10")
    o("    s_cbranch_scc1 K1_AUX")
    o("    s_waitcnt lgkmcnt(0)")
    stamp(1, SV)
    srd(20, 10, 11, E * 4)
    o(f"    buffer_load_dwordx4 {vr(D,4)}, v3, s[20:23], 0 offen {K1LD}")
    srd(24, 8, 9, E * 4)
    srd(28, 6, 7, E * 8)
    srd(32, 4, 5, E * 6)
    def payload1():
        o(f"    buffer_load_dwordx4 {vr(S,4)}, v3, s[24:27], 0 offen {K1LD}")
        o(f"    buffer_load_dwordx3 {vr(RA,3)}, v{T+1}, s[32:35], 0 offen {K1LD2}")
        o(f"    buffer_load_dwordx3 {vr(RB,3)}, v{T+1}, s[32:35], 0 offen offset:12 {K1LD2}")
    def payload2():
        o(f"    buffer_load_dwordx4 {vr(EA,4)}, v{T}, s[28:31], 0 offen {K1LD2}")
        o(f"    buffer_load_dwordx4 {vr(EA+4,4)}, v{T}, s[28:31], 0 offen offset:16 {K1LD2}")
    o("    v_lshlrev_b32 v71, 4, v0              ; tid*16")
    o("    v_and_b32 v70, 63, v0")
    o("    v_lshlrev_b32 v70, 4, v70             ; lane*16")
    o("    s_cmp_lt_u32 s50, 8")
    o("    s_cselect_b32 s51, -1, 0")
    for i in range(4):
        o(f"    v_mov_b32 v{60+i}, s51")
    o("    s_cbranch_scc0 K1_INIT2")
    o(f"    ds_write_b128 v71, v[60:63] offset:{K1_T2}")
    o("    s_branch K1_INIT3")
    L("K1_INIT2")
    o(f"    ds_write_b128 v70, v[60:63] offset:{K1_CNT}")
    L("K1_INIT3")
    o(f"    s_mul_i32 s36, s2, {CH*16}")
    o("    s_add_u32 s36, s16, s36")
    o("    s_addc_u32 s37, s17, 0")
    o("    s_and_b32 s37, s37, 0xffff")
    o(f"    s_mov_b32 s38, {CH*16}")
    o("    s_mov_b32 s39, 0x00020000")
    o(f"    s_add_u32 s40, s3, {WS_KEY}")
    o("    s_add_u32 s40, s16, s40")
    o("    s_addc_u32 s41, s17, 0")
    o("    s_and_b32 s41, s41, 0xffff")
    o(f"    s_mov_b32 s42, {CH}")
    o("    s_mov_b32 s43, 0x00020000")
    srd(44, 16, 17, WS_END)
    o("    s_mov_b32 s62, 0x05040100")
    o("    s_mov_b32 s63, 0x05040302")
    for r in range(1, 4):
        o(f"    v_add_u32 v{71+r}, {r*10240}, v71")
    o("    s_waitcnt lgkmcnt(0)")
    o("    s_barrier")
    payload1()
    if K1ORD == 1:
        payload2()
    if CPF == 1:
        code_pf()
    o(f"    v_cmp_gt_u32 vcc, {CH//4}, v0")
    o("    s_mov_b64 s[60:61], vcc")
    o("    s_mov_b64 exec, vcc")
    o("    v_mov_b32 v2, 1")
    o(f"    s_waitcnt vmcnt({5 if K1ORD == 1 else 3})")
    stamp(2, SV)
    for j in range(4):
        o(f"    v_mul_u32_u24 v{D+j}, {BINM}, v{D+j}")
    for j in range(4):
        o(f"    v_lshrrev_b32 v{BN+j}, 14, v{D+j}")
    for j in range(4):
        o(f"    v_and_b32 v{BN+j}, 0x3fc, v{BN+j}")
    for j in range(4):
        o(f"    ds_add_rtn_u32 v{RK+j}, v{BN+j}, v2 offset:{K1_CNT}")
    o("    s_mov_b64 exec, -1")
    if K1ORD == 3:
        payload2()
    o("    s_waitcnt lgkmcnt(0)")
    o("    s_barrier")
    stamp(3, SV)
    o(f"    ds_read_b128 {vr(C,4)}, v70 offset:{K1_CNT}")
    if K1ORD == 2:
        payload2()
    for j in range(4):
        o(f"    v_and_b32 v{D+j}, 0xffff, v{D+j}")
        o(f"    v_mul_u32_u24 v{D+j}, 40018, v{D+j}")
        o(f"    v_bfe_u32 v{ST+j}, v{D+j}, 26, 3       ; local&7")
        o(f"    v_lshrrev_b32 v{D+j}, 29, v{D+j}       ; local>>3")
        if ZZ > 1:
            o(f"    v_and_b32 v{44+j}, 1, v{D+j}             ; k&1")
            o(f"    v_mul_u32_u24 v{D+j}, {ZZ}, v{D+j}")
        o(f"    v_lshl_add_u32 v{D+j}, v{ST+j}, 4, v{D+j}")
    o("    s_waitcnt lgkmcnt(0)")
    o(f"    v_add_u32 v64, v{C}, v{C+1}")
    o(f"    v_add_u32 v65, v64, v{C+2}")
    o(f"    v_add_u32 v66, v65, v{C+3}")
    o("    v_mov_b32 v67, v66")
    o(f"    v_max3_u32 v68, v{C}, v{C+1}, v{C+2}")
    o(f"    v_max_u32 v68, v68, v{C+3}")
    o("    v_cmp_lt_u32 vcc, 30, v68")
    o("    s_mov_b64 s[54:55], vcc")
    fill = []
    for j in range(4):
        fill.append(f"    v_min_u32 v{WFR+j}, 29, v{RK+j}")
        fill.append(f"    v_lshlrev_b32 v{WFR+j}, 1, v{WFR+j}")
        fill.append(f"    v_subrev_u32 v{WFR+4+j}, 29, v{WFR+j}")
        fill.append(f"    v_min_u32 v{WFR+j}, v{WFR+j}, v{WFR+4+j}")
    def two():
        o(fill.pop(0)); o(fill.pop(0))
    two()
    for sh in (1, 2, 4, 8):
        o(f"    v_add_u32_dpp v67, v67, v67 row_shr:{sh} row_mask:0xf bank_mask:0xf bound_ctrl:0")
        two()
    o("    v_add_u32_dpp v67, v67, v67 row_bcast:15 row_mask:0xa bank_mask:0xf")
    two()
    o("    v_add_u32_dpp v67, v67, v67 row_bcast:31 row_mask:0xc bank_mask:0xf")
    o("    v_sub_u32 v60, v67, v66")
    o(f"    v_add_u32 v61, v60, v{C}")
    o("    v_add_u32 v62, v60, v64")
    o("    v_add_u32 v63, v60, v65")
    o(f"    ds_write_b128 v70, v[60:63] offset:{K1_START}")
    for j in range(4):
        o(f"    ds_read_b32 v{ST+j}, v{BN+j} offset:{K1_START}")
    while fill:
        o(fill.pop(0))
    for j in range(4):
        o(f"    v_lshl_add_u32 v{WFR+j}, v{BN+j}, 3, v{WFR+j}")
    o("    s_cmp_lt_u32 s50, 8")
    o("    s_cbranch_scc1 K1_NOTAB")
    o("    v_lshlrev_b32 v68, 3, v70")
    for j in range(4):
        o(f"    v_cmp_lt_u32 vcc, 30, v{C+j}")
        o(f"    v_or_b32 v69, 0x8000, v{60+j}")
        o(f"    v_lshl_or_b32 v{C+j}, v{C+j}, 16, v{60+j}")
        o(f"    v_cndmask_b32 v69, v{60+j}, v69, vcc")
        o(f"    ds_write_b16 v68, v69 offset:{K1_T2 + 32*j + 30}")
    L("K1_NOTAB")
    o("    s_mov_b64 exec, s[60:61]")
    if P > 1:
        o("    s_waitcnt vmcnt(4)")
        for j in range(4):
            o(f"    v_mul_u32_u24 v{WFR+4+j}, {PHM}, v{S+j}")
            o(f"    v_lshrrev_b32 v{WFR+4+j}, 23, v{WFR+4+j}")
            o(f"    v_mad_u32_u24 v{D+j}, v{WFR+4+j}, 5, v{D+j}")
    if ZZ > 1:
        o("    s_waitcnt vmcnt(4)")
        for j in range(4):
            o(f"    v_mul_u32_u24 v{WFR+4+j}, {(ZZ << 23) // 10000}, v{S+j}")
            o(f"    v_lshrrev_b32 v{WFR+4+j}, 23, v{WFR+4+j}     ; sub")
            o(f"    v_sub_u32 v64, {ZZ-1}, v{WFR+4+j}")
            o(f"    v_sub_u32 v64, v64, v{WFR+4+j}")
            o(f"    v_mad_i32_i24 v64, v64, v{44+j}, v{WFR+4+j}")
            o(f"    v_add_u32 v{D+j}, v{D+j}, v64")
    for j in range(4):
        o(f"    ds_write_b8 v{WFR+j}, v{D+j} offset:{K1_T2}")
    o("    s_waitcnt lgkmcnt(4)")
    for j in range(4):
        o(f"    v_add_u32 v{ST+j}, v{ST+j}, v{RK+j}     ; pos")
    o("    s_cmp_eq_u64 s[54:55], 0")
    o("    s_cbranch_scc1 K1_NOKEY")
    for j in range(4):
        o(f"    ds_write_b8 v{ST+j}, v{D+j} offset:{K1_KEY}")
    o("    s_waitcnt lgkmcnt(0)")
    L("K1_NOKEY")
    for j in range(4):
        o(f"    v_lshlrev_b32 v{RK+j}, 4, v{ST+j}")
        o(f"    v_add_u32 v{RK+j}, {K1_REC}, v{RK+j}")
    TY = 44
    def t2_out(wait):
        o("    s_cmp_lt_u32 s50, 8")
        o("    s_cbranch_scc0 K1_NT2")
        o("    s_lshl_b32 s52, s2, 13")
        o(f"    s_add_u32 s52, s52, {WS_T2}")
        o(f"    s_waitcnt lgkmcnt({wait})")
        o(f"    buffer_store_dwordx4 v[60:63], v71, s[44:47], s52 offen {K1ST}")
        o("    s_branch K1_NT1")
        L("K1_NT2")
        o("    s_lshl_b32 s52, s2, 10")
        o(f"    s_add_u32 s52, s52, {WS_TAB}")
        o(f"    buffer_store_dwordx4 {vr(C,4)}, v70, s[44:47], s52 offen {K1ST}")
        L("K1_NT1")
    if T2E:
        o("    s_mov_b64 exec, -1")
        o("    s_waitcnt lgkmcnt(0)")
        o("    s_barrier")
        o(f"    ds_read_b128 v[60:63], v71 offset:{K1_T2}")
        t2_out(0)
        o("    s_mov_b64 exec, s[60:61]")
    o(f"    s_waitcnt vmcnt({2+T2E})")
    o(f"    v_alignbit_b32 v{TY}, v{RA+2}, v{RA+1}, 16")
    o(f"    v_perm_b32 v{TY+1}, v{S+1}, v{RA+2}, s63")
    o(f"    v_perm_b32 v{RA+1}, v{S}, v{RA+1}, s62")
    o(f"    v_alignbit_b32 v{TY+2}, v{RB+2}, v{RB+1}, 16")
    o(f"    v_perm_b32 v{TY+3}, v{S+3}, v{RB+2}, s63")
    o(f"    v_perm_b32 v{RB+1}, v{S+2}, v{RB+1}, s62")
    yp = [RA, TY, RB, TY + 2]
    if K1SPL:
        for j in range(4):
            o(f"    ds_write_b64 v{RK+j}, {vr(yp[j],2)} offset:8")
    o(f"    s_waitcnt vmcnt({1+T2E})")
    for j in range(4):
        if j == 2:
            o(f"    s_waitcnt vmcnt({T2E})")
            stamp(4, SV)
        if K1SPL:
            o(f"    ds_write_b64 v{RK+j}, {vr(EA+2*j,2)}")
        else:
            o(f"    ds_write2_b64 v{RK+j}, {vr(EA+2*j,2)}, {vr(yp[j],2)} offset0:0 offset1:1")
    o("    s_mov_b64 exec, -1")
    if CPF == 2:
        code_pf()
    o("    s_waitcnt lgkmcnt(0)")
    o("    s_barrier")
    stamp(5, SV)
    if XEND == "mid":
        xtouch()
    for r in range(4):
        o(f"    ds_read_b128 {vr(4+4*r,4)}, v71 offset:{K1_REC + r*10240}")
    if not T2E:
        o(f"    ds_read_b128 v[60:63], v71 offset:{K1_T2}")
    o(f"    ds_read_b32 v20, v1 offset:{K1_KEY}")
    for r in range(4):
        o(f"    s_waitcnt lgkmcnt({5-T2E-r})")
        o(f"    buffer_store_dwordx4 {vr(4+4*r,4)}, v{71+r}, s[36:39], 0 offen {K1ST}")
    if not T2E:
        t2_out(1)
    o("    s_cmp_eq_u64 s[54:55], 0")
    o("    s_cbranch_scc1 K1_NOKEY2")
    o("    s_waitcnt lgkmcnt(0)")
    o("    buffer_store_dword v20, v1, s[40:43], 0 offen")
    L("K1_NOKEY2")
    if XEND == "end2":
        xtouch()
    if XEND == "end":
        xtouch()
    stamp(6, SV)
    if STAMP:
        o("    s_waitcnt vmcnt(0)")
    stamp(7, SV)
    stamp_dump(16, 17, 50, 10, 64 << 20, SV)
    L("K1_END")
    o("    s_endpgm")
    L("K1_AUX")
    if "auxoff" in EXP:
        o("    s_endpgm")
    o("    s_load_dwordx2 s[18:19], s[0:1], 40   ; w_rad")
    o("    s_load_dwordx4 s[12:15], s[0:1], 48")
    o("    v_and_b32 v0, 63, v0")
    o("    s_barrier")
    o("    s_waitcnt lgkmcnt(0)")
    if CPF == 3:
        o("    s_getpc_b64 s[66:67]")
        L("K1_PC")
        o("    s_lshr_b32 s68, s2, 3")
        o("    s_lshl_b32 s68, s68, 9")
        o("    s_min_u32 s68, s68, CODE_END-K1_PC-452")
        for i in range(8):
            o(f"    s_load_dword s{32+i}, s[66:67], s68")
            o("    s_add_u32 s68, s68, 64")
    if TLBW & 1:
        o("    s_load_dword s29, s[18:19], 0")
        o("    s_load_dword s30, s[12:13], 0")
        o("    s_load_dword s31, s[14:15], 0")
    o("    s_barrier")
    o("    s_cmp_ge_u32 s2, 45")
    o("    s_cbranch_scc1 K1_END")
    srd(44, 16, 17, WS_END)
    o("    s_cmp_ge_u32 s2, 40")
    o("    s_cbranch_scc1 K1_AUXR")
    o("    s_mul_i32 s51, s2, 26")
    o("    s_lshr_b32 s51, s51, 8                ; t")
    o("    s_mul_i32 s52, s51, 10")
    o("    s_sub_u32 s52, s2, s52                ; q")
    o("    s_cmp_lt_u32 s52, 4")
    o("    s_cselect_b32 s56, s12, s14")
    o("    s_cselect_b32 s57, s13, s15")
    o("    s_movk_i32 s58, 16384")
    o("    s_cselect_b32 s58, s58, 24576")
    o("    s_and_b32 s57, s57, 0xffff")
    o("    s_mov_b32 s59, 0x00020000")
    o("    v_lshrrev_b32 v70, 4, v0              ; g'")
    o("    v_and_b32 v71, 15, v0")
    o("    v_lshlrev_b32 v71, 1, v71")
    o("    s_lshl_b32 s53, s51, 5")
    o("    v_add_u32 v71, s53, v71               ; (16t+m)*2")
    o("    s_cmp_ge_u32 s52, 8")
    o("    s_cbranch_scc1 K1_FRAGX")
    o("    s_and_b32 s53, s52, 1")
    o("    s_lshl_b32 s53, s53, 5")
    o("    s_bfe_u32 s55, s52, 0x10001           ; (q>>1)&1")
    o("    s_add_u32 s53, s53, s55")
    o("    s_lshl_b32 s53, s53, 7")
    o("    v_lshl_add_u32 v71, v70, 10, v71")
    o("    v_add_u32 v71, s53, v71")
    o("    v_add_u32 v72, 8192, v71")
    for i in range(8):
        o(f"    buffer_load_ushort v{WFR+i}, v{71+(i&1)}, s[56:59], 0 offen offset:{(i>>1)*256}")
    o("    s_branch K1_FRAGW")
    L("K1_FRAGX")
    o("    s_and_b32 s53, s52, 1")
    o("    s_add_u32 s53, s53, 128")
    o("    s_lshl_b32 s53, s53, 7")
    o("    v_lshl_add_u32 v71, v70, 11, v71")
    o("    v_add_u32 v71, s53, v71")
    for i in range(8):
        o(f"    buffer_load_ushort v{WFR+i}, v71, s[56:59], 0 offen offset:{i*256}")
    L("K1_FRAGW")
    for _ in range(1 + T2E):
        o("    s_barrier")
    o("    s_waitcnt vmcnt(0)")
    for p in range(4):
        o(f"    v_lshl_or_b32 v{WFR+p}, v{WFR+2*p+1}, 16, v{WFR+2*p}")
    o("    s_branch K1_AUXS")
    L("K1_AUXR")
    srd(56, 18, 19, 2560)
    o("    v_and_b32 v70, 31, v0")
    o("    v_lshrrev_b32 v71, 5, v0")
    o("    v_lshlrev_b32 v70, 2, v70")
    o("    v_lshl_add_u32 v70, v71, 1, v70")
    o("    s_sub_u32 s52, s2, 40")
    o("    s_lshl_b32 s52, s52, 7")
    o("    v_add_u32 v70, s52, v70")
    for d in range(4):
        o(f"    buffer_load_ushort v{WFR+d}, v70, s[56:59], 0 offen offset:{d*640}")
    for _ in range(1 + T2E):
        o("    s_barrier")
    o("    s_waitcnt vmcnt(0)")
    for d in range(4):
        o(f"    v_lshlrev_b32 v{WFR+d}, 16, v{WFR+d}")
    L("K1_AUXS")
    o("    s_lshl_b32 s52, s2, 10")
    o(f"    s_add_u32 s52, s52, {WS_WF}")
    o("    v_lshlrev_b32 v70, 4, v0")
    o(f"    buffer_store_dwordx4 {vr(WFR,4)}, v70, s[44:47], s52 offen {K1ST}")
    o("    s_endpgm")

def gen_k2():
    B, ACC, S, W = 0, 64, 128, 184
    A = [204, 208]
    VO = [212, 220]
    LT, AM1, AM2 = 228, 232, 236
    RR = 240
    ZR = 244
    vA, vV, vRaw, vCw, vVw, vN4, vMask, vEnds, vPar, vIdx = range(246, 256)
    vLane = 125
    TT = 128
    vD4, vD2, vSa = 139, 140, 141
    TC = AM1
    WF = 144
    sX, sWS, sOUT, sWR = 12, 16, 20, 24
    sBin, sNN, sWave, sMode, sJlo, sMax = 28, 29, 30, 31, 32, 33
    sNs, sGen, sCnt, sSeg, sK, sLo, sHi, sRel, sRet, sRem = range(34, 44)
    sD0, sD1, sD2 = 44, 45, 46
    sEnd, sNext = 54, 55
    sWFl = 88
    sLeft, sPT = 89, 90
    sFast = 38
    sT, sT2, sT3 = 47, 48, 49
    sSave = 50
    sAny2 = 52
    sM1 = 56
    sM2 = 72
    sLM = 24
    sOv = 26

    def accr(v, u, d):
        cc = 2 * (d >> 1) + (u >> 1)
        e = 2 * (u & 1) + (d & 1)
        return ACC + 16 * v + 4 * cc + e
    def wreg(p, d):
        return W + 4 * p + d

    o(".globl tp_main_kernel")
    o(f".p2align {os.environ.get('K2AL', '8')}")
    o(".type tp_main_kernel,@function")
    L("tp_main_kernel")
    o(f"    s_cmp_ge_u32 s2, {NWG}")
    o("    s_cbranch_scc1 K2_END")
    stamp(0)
    o("    s_load_dwordx2 s[4:5], s[0:1], 0      ; x")
    o("    s_load_dwordx2 s[8:9], s[0:1], 72     ; out")
    o("    s_load_dwordx2 s[10:11], s[0:1], 88   ; ws")
    o("    v_lshrrev_b32 v1, 6, v0")
    o(f"    v_and_b32 v{vLane}, 63, v0")
    o(f"    v_readfirstlane_b32 s{sWave}, v1")
    o(f"    s_and_b32 s{sBin}, s2, 7")
    o(f"    s_lshl_b32 s{sBin}, s{sBin}, 5")
    o(f"    s_lshr_b32 s{sT}, s2, 3")
    o(f"    s_add_u32 s{sBin}, s{sBin}, s{sT}")
    HD, KY, RK1, RK2, AD1, AD2, RO, TM = 64, 72, 80, 88, 96, 104, 112, 120
    vW0, vJ = 126, 127

    def prefetch0():
        o(f"    s_lshr_b32 s{sT}, s2, 3")
        o(f"    s_lshl_b32 s{sT}, s{sT}, 3")
        o(f"    s_add_u32 s{sT}, s{sT}, s{sWave}")
        o(f"    s_lshl_b32 s{sT}, s{sT}, 13")
        o(f"    v_lshl_add_u32 v143, v{vLane}, 7, s{sT}")
        if PFL < 64:
            o(f"    s_mov_b64 exec, {hex((1 << PFL) - 1)}")
        for i in range(PF0):
            o(f"    buffer_load_dword v143, v143, {sr(sX,4)}, 0 offen")
            if i + 1 < PF0:
                o(f"    v_add_u32 v143, {256*8192}, v143")
    def w_loads():
        if WLDS:
            return
        o(f"    s_mov_b32 s{sT}, {WS_WR}")
        for p in range(5):
            if p == 4:
                o(f"    s_add_u32 s{sT}, s{sT}, 4096")
            o(f"    buffer_load_dwordx4 {vr(W+4*p,4)}, v{TM+1}, {sr(sWS,4)}, s{sT} offen offset:{(p%4)*1024}")
    def dump_addr():
        o(f"    s_mul_i32 s{sT}, s{sWave}, {SDS}")
        o(f"    s_add_u32 s{sT}, s{sT}, {SD}")
        o(f"    v_lshl_add_u32 v{vD4}, v{vLane}, 2, s{sT}")
        o(f"    s_add_u32 s{sT}, s{sT}, 1024")
        o(f"    v_lshl_add_u32 v{vD2}, v{vLane}, 1, s{sT}")
        o(f"    s_mul_i32 s{sT}, s{sBin}, 40")
        o(f"    s_add_u32 s{sT}, s{sT}, s{sWave}")
        o(f"    s_mul_i32 s{sT}, s{sT}, 2816")
        o(f"    s_add_u32 s{sT}, s{sT}, {WS_S32}")
        o(f"    v_lshl_add_u32 v{vSa}, v{vLane}, 2, s{sT}")
    def wf_loads(tmp):
        o(f"    v_mbcnt_lo_u32_b32 v{tmp}, -1, 0")
        o(f"    v_mbcnt_hi_u32_b32 v{tmp}, -1, v{tmp}")
        o(f"    s_mul_i32 s{sT}, s{sWave}, 10240")
        o(f"    v_lshlrev_b32 v{tmp}, 4, v{tmp}")
        o(f"    s_add_u32 s{sT}, s{sT}, {WS_WF}")
        for f in range(10):
            if f == 4 or f == 8:
                o(f"    s_add_u32 s{sT}, s{sT}, 4096")
            o(f"    buffer_load_dwordx4 {vr(WF+4*f,4)}, v{tmp}, {sr(sWS,4)}, s{sT} offen offset:{(f%4)*1024}")
        o(f"    s_mov_b32 s{sWFl}, 1")
    def lane_id():
        o(f"    v_mbcnt_lo_u32_b32 v{vLane}, -1, 0")
        o(f"    v_mbcnt_hi_u32_b32 v{vLane}, -1, v{vLane}")
    def lane_prep():
        o(f"    v_lshrrev_b32 v{vW0}, 4, v{vLane}")
        o(f"    s_lshl_b32 s{sT}, s{sWave}, 5")
        o(f"    v_add_u32 v{vW0}, s{sT}, v{vW0}")
        o(f"    v_and_b32 v{vJ}, 15, v{vLane}")
        o(f"    v_lshlrev_b32 v{TM}, 10, v{vW0}")
    def hdr_loads():
        o(f"    s_lshl_b32 s{sT}, s{sBin}, 2")
        o(f"    s_add_u32 s{sT}, s{sT}, {WS_TAB}")
        for i in range(8):
            o(f"    buffer_load_dword v{HD+i}, v{TM}, {sr(sWS,4)}, s{sT} offen")
            if i < 7:
                o(f"    s_add_u32 s{sT}, s{sT}, 4096")
    lane_prep()
    o(f"    v_lshlrev_b32 v{TM+1}, 13, v{vW0}")
    o(f"    v_lshl_add_u32 v{TM+1}, v{vJ}, 1, v{TM+1}")
    o(f"    s_lshl_b32 s{sT}, s{sBin}, 5")
    o(f"    s_add_u32 s{sT}, s{sT}, {WS_T2}")
    o("    s_waitcnt lgkmcnt(0)")
    stamp(1)
    srd(sWS, 10, 11, WS_END)
    for i in range(8):
        o(f"    buffer_load_ushort v{KY+i}, v{TM+1}, {sr(sWS,4)}, s{sT} offen")
        if i < 7:
            o(f"    s_add_u32 s{sT}, s{sT}, 32768")
    if WLDS:
        o(f"    v_lshlrev_b32 v{W+4}, 4, v0                 ; tid*16")
        o(f"    v_min_u32 v{W+4}, 5104, v{W+4}")
        o(f"    s_mov_b32 s{sT}, {WS_WR}")
        o(f"    buffer_load_dwordx4 {vr(W,4)}, v{W+4}, {sr(sWS,4)}, s{sT} offen")
    srd(sX, 4, 5, N * 512)
    if PFA:
        o(f"    s_lshr_b32 s{sT}, s2, 3")
        o(f"    s_lshl_b32 s{sT}, s{sT}, 3")
        o(f"    s_add_u32 s{sT}, s{sT}, s{sWave}")
        o(f"    s_lshl_b32 s{sT}, s{sT}, 13")
        o(f"    s_add_u32 s{sT}, s{sT}, 4096")
        o(f"    v_lshl_add_u32 v143, v{vLane}, 7, s{sT}")
        o(f"    s_mov_b64 exec, {hex((1 << PFA) - 1)}")
        o(f"    buffer_load_dword v143, v143, {sr(sX,4)}, 0 offen")
        o("    s_mov_b64 exec, -1")
    o(f"    v_and_b32 v{TM+2}, 31, v{vLane}")
    o(f"    v_lshlrev_b32 v{vN4}, 2, v{TM+2}")
    o(f"    v_lshrrev_b32 v{TM+3}, 5, v{vLane}      ; g = l>>5")
    o(f"    s_lshl_b32 s{sT}, s{sBin}, 16")
    o(f"    s_add_u32 s{sT}, s{sT}, {BINM-1}")
    o(f"    s_mul_hi_u32 s{sT2}, s{sT}, 0x27144e     ; n0")
    o(f"    s_add_u32 s{sT}, s{sT}, 0x10000")
    o(f"    s_mul_hi_u32 s{sT}, s{sT}, 0x27144e")
    o(f"    s_min_u32 s{sT}, s{sT}, {N}")
    o(f"    s_sub_u32 s{sNN}, s{sT}, s{sT2}")
    o(f"    s_lshl_b32 s{sT}, s{sT2}, 9")
    o(f"    s_add_u32 s{sOUT}, s8, s{sT}")
    o(f"    s_addc_u32 s{sOUT+1}, s9, 0")
    o(f"    s_and_b32 s{sOUT+1}, s{sOUT+1}, 0xffff")
    o(f"    s_lshl_b32 s{sOUT+2}, s{sNN}, 9")
    o(f"    s_mov_b32 s{sOUT+3}, 0x00020000")
    o(f"    s_mov_b32 s{sMode}, 0")
    o(f"    s_mov_b32 s{sFast}, 0")
    o(f"    s_lshr_b32 s{sWFl}, s{sWave}, 2")
    o(f"    s_mov_b32 s{sJlo}, 0")
    o("    v_lshrrev_b32 v5, 3, v0               ; e")
    o("    v_and_b32 v6, 7, v0")
    o("    v_lshlrev_b32 v6, 1, v6               ; 8ha+2p")
    o("    v_sub_u32 v5, v5, v6                  ; e-(8ha+2p)")
    o("    v_med3_i32 v5, v5, 0, 2")
    o("    v_lshlrev_b32 v5, 4, v5")
    o("    v_mov_b32 v6, -1")
    o("    v_mov_b32 v7, 0")
    o("    v_lshlrev_b64 v[6:7], v5, v[6:7]")
    o("    v_cmp_gt_u32 vcc, 256, v0")
    o("    v_lshlrev_b32 v3, 2, v0")
    o(f"    v_add_u32 v3, {MASK}, v3")
    o("    v_cndmask_b32 v2, 0, v7, vcc")
    o("    ds_write_b32 v3, v2")
    o("    v_mov_b32 v2, 0")
    o(f"    v_mov_b32 v3, {MISC}")
    o("    ds_write2_b32 v3, v2, v2 offset0:0 offset1:1")
    o("    ds_write_b32 v3, v2 offset:8")
    o(f"    v_mov_b32 v{ZR}, 0")
    o(f"    v_mov_b32 v{ZR+1}, 0")
    o(f"    v_and_b32 v4, 1, v{vLane}")
    o(f"    v_sub_u32 v{vPar}, 0, v4")
    o(f"    v_bfe_u32 v4, v{vLane}, 2, 1")
    o(f"    v_mul_u32_u24 v{vIdx}, 0x5555, v4")
    o(f"    v_add_u32 v{vIdx}, 0x8888, v{vIdx}       ; 0x8888 / 0xdddd")
    o(f"    v_lshlrev_b32 v{vMask}, 4, v{TM+3}")
    o(f"    v_add_u32 v{vMask}, {MASK}, v{vMask}")
    o("    s_waitcnt lgkmcnt(0)")
    o(f"    s_movk_i32 s{sT}, {CH}")
    o(f"    v_mad_u32_u24 v{TM+2}, v{vW0}, s{sT}, v{vJ}   ; w0*2500 + j")
    o(f"    s_mov_b32 s{sLM}, 0x7fff7fff")
    o(f"    s_mov_b32 s{sLM+1}, 0x7fff7fff")
    o(f"    s_mov_b64 {sr(sOv,2)}, -1")
    o(f"    s_mov_b64 {sr(sAny2,2)}, 0")
    o(f"    v_mov_b32 v{TM+4}, {CNT}")
    o(f"    v_lshlrev_b32 v{TM+1}, 4, v{vLane}")
    o("    s_barrier")
    def rec_load(i):
        o(f"    s_mov_b32 s{sT}, {i*4*CH*16}")
        if "onelane" in EXP:
            o("    s_mov_b64 exec, 1")
        elif RMASK:
            o(f"    s_or_b64 exec, {sr(sM1+2*i,2)}, 1")
        o(f"    buffer_load_dwordx4 {vr(4*i,4)}, v{RO+i}, {sr(sWS,4)}, s{sT} offen")
        if RMASK:
            o("    s_mov_b64 exec, -1")
    o(f"    v_mov_b32 v{TM}, 1")
    for i in range(8):
        o(f"    s_waitcnt vmcnt({7 - i + min(i, NEARLY) + WLDS + (1 if PFA else 0)})")
        if i == 0:
            stamp(2)
        o(f"    v_mov_b32_dpp v{RO+i}, v{KY+i} row_newbcast:15 row_mask:0xf bank_mask:0xf")
        o(f"    v_and_b32 v{AD1+i}, 0xff, v{KY+i}")
        o(f"    v_and_b32 v{RO+i}, 0xfff, v{RO+i}")
        o(f"    v_cmp_gt_u32 vcc, 0x80, v{AD1+i}")
        o(f"    v_add_lshl_u32 v{RO+i}, v{RO+i}, v{TM+2}, 4")
        o(f"    v_lshl_add_u32 v{AD1+i}, v{AD1+i}, 2, v{TM+4}")
        o(f"    s_and_b64 {sr(sM1+2*i,2)}, vcc, {sr(sLM,2)}")
        if i < NEARLY:
            rec_load(i)
        o(f"    v_cmp_gt_u32 vcc, 0x8000, v{KY+i}")
        o(f"    s_mov_b64 exec, {sr(sM1+2*i,2)}")
        o(f"    ds_add_rtn_u32 v{RK1+i}, v{AD1+i}, v{TM}")
        o("    s_mov_b64 exec, -1")
        o(f"    s_and_b64 {sr(sM2+2*i,2)}, vcc, {sr(sLM,2)}")
        o(f"    s_and_b64 {sr(sOv,2)}, {sr(sOv,2)}, vcc")
        o(f"    s_or_b64 {sr(sAny2,2)}, {sr(sAny2,2)}, {sr(sM2+2*i,2)}")
    o("    s_cbranch_scc0 K2_NO2B")
    o("    s_waitcnt lgkmcnt(4)")
    for i in range(8):
        o(f"    s_mov_b64 exec, {sr(sM2+2*i,2)}")
        o(f"    s_cbranch_execz K2_NK2{i}")
        o(f"    v_lshrrev_b32 v{AD2+i}, 8, v{KY+i}")
        o(f"    v_lshl_add_u32 v{AD2+i}, v{AD2+i}, 2, v{TM+4}")
        o(f"    ds_add_rtn_u32 v{RK2+i}, v{AD2+i}, v{TM}")
        L(f"K2_NK2{i}")
    o("    s_mov_b64 exec, -1")
    L("K2_NO2B")
    if WLDS:
        o(f"    v_add_u32 v{W+4}, {WST}, v{W+4}")
    o(f"    s_or_b64 {sr(sOv,2)}, {sr(sOv,2)}, {sr(sLM,2)}")
    o(f"    s_cmp_eq_u64 {sr(sOv,2)}, -1")
    o("    s_cbranch_scc1 K2_RANKD")
    o(f"    v_mov_b32 v{TM}, {MISC}")
    o(f"    ds_write_b32 v{TM}, v{TM}")
    L("K2_RANKD")
    c0, c1, i0, i1, tt0, tt1, e0, e1, p0, p1, a0, a1, b0, b1, ad, mx = range(204, 220)
    o(f"    v_lshlrev_b32 v{ad}, 2, v{vLane}")
    o(f"    v_add_u32 v{ad}, {CNT}, v{ad}")
    o(f"    v_mov_b32 v{mx}, {MISC}")
    o("    s_waitcnt lgkmcnt(0)")
    o("    s_barrier")
    stamp(3)
    o(f"    ds_read2st64_b32 v[{c0}:{c1}], v{ad} offset0:0 offset1:1")
    o(f"    ds_read_b32 v{mx}, v{mx}")
    o(f"    s_cmp_lg_u32 s{sMode}, 0")
    o("    s_cbranch_scc1 K2_NOLATE")
    for i in range(NEARLY, NEARLY + 2):
        rec_load(i)
    L("K2_NOLATE")
    o("    s_waitcnt lgkmcnt(0)")
    o(f"    v_mov_b32 v{i0}, v{c0}")
    o(f"    v_mov_b32 v{i1}, v{c1}")
    o(f"    v_readfirstlane_b32 s{sT3}, v{mx}")
    for sh in (1, 2, 4, 8):
        o(f"    v_add_u32_dpp v{i0}, v{i0}, v{i0} row_shr:{sh} row_mask:0xf bank_mask:0xf bound_ctrl:0")
        o(f"    v_add_u32_dpp v{i1}, v{i1}, v{i1} row_shr:{sh} row_mask:0xf bank_mask:0xf bound_ctrl:0")
        o("    s_nop 0")
    o(f"    v_mov_b32_dpp v{tt0}, v{i0} row_newbcast:15 row_mask:0xf bank_mask:0xf")
    o(f"    v_mov_b32_dpp v{tt1}, v{i1} row_newbcast:15 row_mask:0xf bank_mask:0xf")
    o(f"    v_add_u32 v{e0}, 15, v{tt0}")
    o(f"    v_add_u32 v{e1}, 15, v{tt1}")
    o(f"    v_and_b32 v{e0}, -16, v{e0}")
    o(f"    v_and_b32 v{e1}, -16, v{e1}")
    o(f"    v_mov_b32 v{p0}, v{e0}")
    o(f"    v_mov_b32 v{p1}, v{e1}")
    o(f"    v_add_u32_dpp v{e0}, v{e0}, v{e0} row_bcast:15 row_mask:0xa bank_mask:0xf")
    o(f"    v_add_u32_dpp v{e1}, v{e1}, v{e1} row_bcast:15 row_mask:0xa bank_mask:0xf")
    o("    s_nop 0")
    o(f"    v_add_u32_dpp v{e0}, v{e0}, v{e0} row_bcast:31 row_mask:0xc bank_mask:0xf")
    o(f"    v_add_u32_dpp v{e1}, v{e1}, v{e1} row_bcast:31 row_mask:0xc bank_mask:0xf")
    o("    s_nop 0")
    o(f"    v_readlane_b32 s{sT}, v{e0}, 63")
    o(f"    v_readlane_b32 s{sT2}, v{e1}, 63")
    o(f"    v_sub_u32 v{a0}, v{e0}, v{tt0}")
    o(f"    v_add_u32 v{e1}, s{sT}, v{e1}")
    o(f"    v_add_u32 v{a0}, v{a0}, v{i0}            ; absolute end slot of entry")
    o(f"    v_sub_u32 v{a1}, v{e1}, v{tt1}")
    o(f"    v_add_u32 v{a1}, v{a1}, v{i1}")
    o(f"    v_sub_u32 v{b0}, v{a0}, v{c0}")
    o(f"    v_sub_u32 v{b1}, v{a1}, v{c1}")
    o(f"    ds_write2st64_b32 v{ad}, v{b0}, v{b1} offset0:2 offset1:3")
    o(f"    s_add_u32 s{sT}, s{sT}, s{sT2}")
    o(f"    s_cmp_gt_u32 s{sT}, {SLOTCAP-96}")
    o(f"    s_cselect_b32 s{sT}, 1, 0")
    o(f"    s_cmp_lg_u32 s{sT3}, 0")
    o(f"    s_cselect_b32 s{sT}, 1, s{sT}")
    o(f"    s_cmp_gt_u32 s{sT}, s{sMode}")
    o("    s_cbranch_scc1 K2_GOSLOW")
    for i in range(8):
        o(f"    ds_read_b32 v{AD1+i}, v{AD1+i} offset:512")
    o(f"    s_cmp_lg_u32 s{sMode}, 0")
    o("    s_cbranch_scc1 K2_NO2C")
    for i in range(NEARLY + 2, 8):
        rec_load(i)
    w_loads()
    o(f"    s_cmp_eq_u64 {sr(sAny2,2)}, 0")
    o("    s_cbranch_scc1 K2_NO2C")
    o("    s_waitcnt lgkmcnt(4)")
    for i in range(8):
        o(f"    s_mov_b64 exec, {sr(sM2+2*i,2)}")
        o(f"    s_cbranch_execz K2_NR2{i}")
        o(f"    s_mov_b32 s{sT}, {i*4*CH*16}")
        o(f"    buffer_load_dwordx4 {vr(32+4*i,4)}, v{RO+i}, {sr(sWS,4)}, s{sT} offen offset:240")
        o(f"    ds_read_b32 v{AD2+i}, v{AD2+i} offset:512")
        L(f"K2_NR2{i}")
    o("    s_mov_b64 exec, -1")
    L("K2_NO2C")
    o(f"    s_cmp_lt_u32 s{sWave}, 4")
    o("    s_cselect_b64 vcc, -1, 0")
    o(f"    v_cndmask_b32 v{a0}, v{a1}, v{a0}, vcc")
    o(f"    v_cndmask_b32 v{e0}, v{e1}, v{e0}, vcc")
    o(f"    v_cndmask_b32 v{p0}, v{p1}, v{p0}, vcc")
    o(f"    v_cndmask_b32 v{tt0}, v{tt1}, v{tt0}, vcc")
    o(f"    s_and_b32 s{sSeg}, s{sWave}, 3")
    o(f"    s_lshl_b32 s{sSeg}, s{sSeg}, 4")
    o("    s_nop 0")
    o(f"    v_readlane_b32 s{sT}, v{e0}, s{sSeg}")
    o(f"    v_readlane_b32 s{sT2}, v{p0}, s{sSeg}")
    o(f"    v_readlane_b32 s{sT3}, v{tt0}, s{sSeg}")
    o(f"    v_and_b32 v{b0}, 15, v{vLane}")
    o(f"    v_cmp_le_u32 vcc, {5*ZZ}, v{b0}")
    o(f"    v_mov_b32 v{b0}, 0x7fffffff")
    o(f"    s_sub_u32 s{sT}, s{sT}, s{sT2}")
    o(f"    s_sub_u32 s{sLo}, s{sT2}, s{sT3}         ; pad")
    o(f"    s_lshr_b32 s{sNs}, s{sT2}, 4")
    o(f"    v_subrev_u32 v{vEnds}, s{sT}, v{a0}")
    o(f"    v_cndmask_b32 v{vEnds}, v{vEnds}, v{b0}, vcc")
    o(f"    v_lshrrev_b32 v{vRaw}, 1, v{vLane}")
    o(f"    v_add_u32 v{vRaw}, s{sT}, v{vRaw}")
    o(f"    v_lshlrev_b32 v{vRaw}, 4, v{vRaw}")
    if RAW:
        o(f"    v_add_u32 v{vRaw}, {RAW}, v{vRaw}")
    o(f"    s_mul_i32 s{sT}, s{sWave}, {3*RBLK}")
    o(f"    s_add_u32 s{sT}, s{sT}, {RING}")
    o(f"    s_add_u32 s{sT2}, s{sT}, 1024")
    o(f"    v_lshrrev_b32 v{b0}, 5, v{vLane}         ; ha / g")
    o(f"    v_bfe_u32 v{b1}, v{vLane}, 2, 2          ; rho")
    o(f"    v_lshl_add_u32 v{b1}, v{b0}, 3, v{b1}")
    o(f"    v_bfe_u32 v{c0}, v{vLane}, 1, 1")
    o(f"    v_bfe_u32 v{c1}, v{vLane}, 4, 1")
    o(f"    v_lshl_add_u32 v{c0}, v{c1}, 1, v{c0}")
    o(f"    v_lshl_add_u32 v{c0}, v{c0}, 3, s{sT}")
    o(f"    v_lshl_add_u32 v{vA}, v{b1}, 5, v{c0}")
    o(f"    v_lshl_add_u32 v{vV}, v{b0}, 4, s{sT2}")
    o(f"    v_lshl_add_u32 v{vCw}, v{vLane}, 4, s{sT}")
    o(f"    v_lshrrev_b32 v{b0}, 1, v{vLane}")
    o(f"    v_lshl_add_u32 v{vVw}, v{b0}, 2, s{sT2}")
    dump_addr()
    o("    s_waitcnt lgkmcnt(0)")
    for i in range(8):
        o(f"    v_add_lshl_u32 v{AD1+i}, v{AD1+i}, v{RK1+i}, 4")
    stamp(4)
    for i in range(8):
        o(f"    s_mov_b64 exec, {sr(sM1+2*i,2)}")
        o(f"    s_waitcnt vmcnt({(7 if WLDS else 12)-i + (PF0 if PFPOS == 'd' and i > PFI else 0)})")
        if "noscat" not in EXP:
            o(f"    ds_write_b128 v{AD1+i}, {vr(4*i,4)} offset:{RAW}")
        if PF0 and PFPOS == "d" and i == PFI:
            o("    s_mov_b64 exec, -1")
            prefetch0()
    o(f"    s_waitcnt vmcnt({PF0 if PFPOS == 'd' else 0})")
    if PF0 and PFPOS == "c":
        o("    s_mov_b64 exec, -1")
        prefetch0()
    o(f"    s_cmp_eq_u64 {sr(sAny2,2)}, 0")
    o("    s_cbranch_scc1 K2_NO2D")
    for i in range(8):
        o(f"    s_mov_b64 exec, {sr(sM2+2*i,2)}")
        o(f"    s_cbranch_execz K2_NS2{i}")
        o(f"    v_add_lshl_u32 v{AD2+i}, v{AD2+i}, v{RK2+i}, 4")
        o(f"    ds_write_b128 v{AD2+i}, {vr(32+4*i,4)} offset:{RAW}")
        L(f"K2_NS2{i}")
    L("K2_NO2D")
    o("    s_mov_b64 exec, -1")
    if WLDS:
        o(f"    v_lshlrev_b32 v{TT}, 4, v{vLane}")
        o(f"    v_add_u32 v{TT}, {WST}, v{TT}")
        o(f"    s_cmp_lg_u32 s{sMode}, 0")
        o("    s_cbranch_scc1 K2_NOWST")
        o(f"    ds_write_b128 v{W+4}, {vr(W,4)}")
        L("K2_NOWST")
    o("    s_waitcnt lgkmcnt(0)")
    o("    s_barrier")
    stamp(5)
    if STAMP:
        o("    s_memtime s[100:101]")
        o("    s_waitcnt lgkmcnt(0)")
        o(f"    v_writelane_b32 v{STV}, s100, 12")
    if "prio" in EXP:
        o(f"    s_cmp_lt_u32 s{sWave}, 4")
        o("    s_cbranch_scc1 K2_NOPRIO")
        o("    s_setprio 1")
        L("K2_NOPRIO")

    def convert(ct, rr=RR, off=0):
        CO = AM1
        a0_, a1_, y0, y1, y2, m0, m1, vo = range(ct, ct + 8)
        o(f"    v_bitop3_b32 v{CO}, v{vPar}, v{rr+1}, v{rr} bitop3:0xca")
        o(f"    v_lshlrev_b32 v{y0}, 16, v{rr+2}")
        o(f"    v_lshlrev_b32 v{a0_}, 16, v{CO}")
        o(f"    v_and_b32 v{a1_}, 0xffff0000, v{CO}")
        o(f"    v_and_b32 v{y1}, 0xffff0000, v{rr+2}")
        o(f"    v_lshlrev_b32 v{y2}, 16, v{rr+3}")
        for u, y in enumerate((y0, y1, y2)):
            o(f"    v_mul_f32 v{m0}, v{a0_}, v{y}")
            o(f"    v_mul_f32 v{m1}, v{a1_}, v{y}")
            o(f"    v_cvt_pk_bf16_f32 v{CO+1+u}, v{m0}, v{m1}")
        o(f"    v_lshrrev_b32 v{vo}, 7, v{rr+3}")
        o(f"    v_and_b32 v{vo}, {hex(int(os.environ.get('SRCMASK','0x1fffe00'),16))}, v{vo}")
        o(f"    ds_write_b128 v{vCw}, {vr(CO,4)} offset:{off}")
        o(f"    ds_write_b32 v{vVw}, v{vo} offset:{off}")

    def loads_tile(x, v, vo):
        for r in range(8):
            o(f"    buffer_load_dword v{B+32*x+8*v+r}, v{vo+r}, {sr(sX,4)}, 0 offen offset:{v*128}")
    def smf(x, v, areg):
        if "q1" in EXP and v != 0:
            return
        if "q2" in EXP and v >= 2:
            return
        if "nomfma" not in EXP:
            o(f"    v_smfmac_f32_32x32x32_bf16 {vr(ACC+16*v,16)}, {vr(areg,4)}, {vr(B+32*x+8*v,8)}, v{vIdx}")
    def zero_tile(v):
        if "nomfma" not in EXP or "keepz" in EXP:
            o(f"    v_mfma_f32_32x32x8_bf16 {vr(ACC+16*v,16)}, {vr(ZR,2)}, {vr(ZR,2)}, 0")
    def mask_read(dst, sreg, tmp):
        o(f"    s_lshl_b32 s{sT}, s{sreg}, 5")
        o(f"    v_add_u32 v{tmp}, s{sT}, v{vMask}")
        o(f"    ds_read_b128 {vr(dst,4)}, v{tmp}")
    terms = [(0, 0, 0, 0, 1)] + [(2 + j, 2, 0, j + 1, 1) for j in range(3)]
    cross = {(2, 3): (0, 1), (3, 2): (0, -1), (3, 1): (1, 1), (1, 3): (1, -1), (1, 2): (2, 1), (2, 1): (2, -1)}
    for v in range(1, 4):
        terms.append((5 + v - 1, 3, v, 0, 1))
        for u in range(1, 4):
            if u == v:
                terms.append((1, 1, v, u, 1))
            else:
                i, sg = cross[(u, v)]
                terms.append((8 + i, 4, v, u, sg))
    first_v = {}
    for (si, p, v_, u, sg) in terms:
        first_v.setdefault(si, (v_, u))
    def fmas(v):
        if "noepi" in EXP:
            return
        tv = [t for t in terms if t[2] == v]
        if PK:
            for dh in range(2):
                for (si, p, v_, u, sg) in tv:
                    t = vr(TT + si, 2)
                    neg3 = " neg_lo:[1,0,0] neg_hi:[1,0,0]" if sg < 0 else ""
                    neg2 = " neg_lo:[1,0] neg_hi:[1,0]" if sg < 0 else ""
                    if dh == 0 and first_v[si] == (v_, u):
                        o(f"    v_pk_mul_f32 {t}, {vr(wreg(p,0),2)}, {vr(accr(v,u,0),2)}{neg2}")
                    else:
                        o(f"    v_pk_fma_f32 {t}, {vr(wreg(p,2*dh),2)}, {vr(accr(v,u,2*dh),2)}, {t}{neg3}")
        else:
            for d in range(4):
                for (si, p, v_, u, sg) in tv:
                    t = TT + si
                    ng = "-" if sg < 0 else ""
                    if d == 0 and first_v[si] == (v_, u):
                        o(f"    v_mul_f32 v{t}, {ng}v{wreg(p,d)}, v{accr(v,u,d)}")
                    elif sg > 0:
                        o(f"    v_fmac_f32 v{t}, v{wreg(p,d)}, v{accr(v,u,d)}")
                    else:
                        o(f"    v_fma_f32 v{t}, -v{wreg(p,d)}, v{accr(v,u,d)}, v{t}")
    def fold():
        if PK:
            for si in range(11):
                o(f"    v_add_f32 v{TT+si}, v{TT+si}, v{TT+si+1}")
    def commit_lds():
        t = lambda si: TT + si
        o(f"    v_cvt_pk_bf16_f32 v{TC}, v{t(0)}, v{t(1)}")
        for j in range(3):
            o(f"    v_cvt_pk_bf16_f32 v{TC+1+j}, v{t(2+j)}, v{t(5+j)}")
        o(f"    v_cvt_pk_bf16_f32 v{TC+4}, v{t(8)}, v{t(9)}")
        o(f"    v_cvt_pk_bf16_f32 v{TC+5}, v{t(10)}, v{t(10)}")
        o(f"    ds_write2st64_b32 v{vD4}, v{TC}, v{TC+1} offset0:0 offset1:1")
        o(f"    ds_write2st64_b32 v{vD4}, v{TC+2}, v{TC+3} offset0:2 offset1:3")
        o(f"    ds_write_b16 v{vD2}, v{TC+4}")
        o(f"    ds_write_b16_d16_hi v{vD2}, v{TC+4} offset:128")
        o(f"    ds_write_b16 v{vD2}, v{TC+5} offset:256")
        o(f"    v_add_u32 v{vD4}, {8*SDS}, v{vD4}")
        o(f"    v_add_u32 v{vD2}, {8*SDS}, v{vD2}")
    def signal4():
        o(f"    v_mov_b32 v{AM2+2}, {MISC+8}")
        o(f"    v_mov_b32 v{AM2+3}, 1")
        o("    s_mov_b64 exec, 1")
        o(f"    ds_add_u32 v{AM2+2}, v{AM2+3}")
        o("    s_mov_b64 exec, -1")
    pcnt = [0]
    def prio_step():
        pcnt[0] += 1
        o(f"    s_and_b32 s{sT}, s{sSeg}, 15")
        o(f"    s_cmp_lg_u32 s{sT}, 4")
        o(f"    s_cbranch_scc1 K2_PR{pcnt[0]}")
        signal4()
        L(f"K2_PR{pcnt[0]}")
        if PRIO:
            o(f"    s_and_b32 s{sT}, s{sSeg}, 15")
            for lvl, th in zip((2, 1, 0), PRIO):
                pcnt[0] += 1
                o(f"    s_cmp_lg_u32 s{sT}, {th*ZZ+ZZ-1}")
                o(f"    s_cbranch_scc1 K2_PR{pcnt[0]}")
                o(f"    s_setprio {lvl}")
                L(f"K2_PR{pcnt[0]}")
    def schedule_next():
        o(f"    s_sub_u32 s{sT}, s{sEnd}, 1")
        o(f"    s_and_b32 s{sHi}, s{sT}, 15")
        o(f"    s_add_u32 s{sHi}, s{sHi}, 1")
        o(f"    s_lshr_b32 s{sT}, s{sT}, 4")
        o(f"    s_sub_i32 s{sT2}, s{sNs}, 2")
        o(f"    s_add_u32 s{sT3}, s{sGen}, 1")
        o(f"    s_max_i32 s{sT2}, s{sT2}, s{sT3}")
        o(f"    s_min_u32 s{sGen}, s{sT}, s{sT2}")
        o(f"    s_sub_u32 s{sCnt}, s{sGen}, s{sT3}")

    o(f"    s_cmp_eq_u32 s{sNs}, 0")
    o("    s_cbranch_scc1 K2_EMPTY")
    o(f"    ds_read_b128 {vr(RR,4)}, v{vRaw}")
    o(f"    ds_read_b128 {vr(A[0],4)}, v{vRaw} offset:512")
    if PRIO or RP:
        o("    s_setprio 3")
    if RP:
        o(f"    s_mov_b32 s{sLeft}, s{sNs}")
        o(f"    s_mov_b32 s{sPT}, {RP[0]}")
    o(f"    s_mov_b32 s{sD0}, {RBLK}                ; delta for vA at end of this batch")
    o(f"    s_mov_b32 s{sD1}, {RBLK}")
    o(f"    s_mov_b32 s{sD2}, {-2*RBLK}")
    for v in range(4):
        zero_tile(v)
    o("    s_waitcnt lgkmcnt(1)")
    convert(VO[1])
    o(f"    ds_read_b128 {vr(VO[0],4)}, v{vV}")
    o(f"    ds_read_b128 {vr(VO[0]+4,4)}, v{vV} offset:32")
    if not ST2:
        o("    s_waitcnt lgkmcnt(4)")
        convert(VO[1], A[0], RBLK)
    o(f"    ds_read_b128 {vr(VO[1],4)}, v{vV} offset:64")
    o(f"    ds_read_b128 {vr(VO[1]+4,4)}, v{vV} offset:96")
    o(f"    v_add_u32 v{vRaw}, 1024, v{vRaw}")
    if not ST2:
        o(f"    v_add_u32 v{vCw}, {2*RBLK}, v{vCw}")
        o(f"    v_add_u32 v{vVw}, {2*RBLK}, v{vVw}")
    o(f"    v_add_u32 v{vV}, {RBLK}, v{vV}")
    o(f"    s_waitcnt lgkmcnt({2 if ST2 else 4})")
    for r in range(8):
        o(f"    v_add_u32 v{VO[0]+r}, v{VO[0]+r}, v{vN4}")
    for r in range(8):
        thr = 8 * (r >> 2) + (r & 3) + 4
        if thr < 15:
            o(f"    s_cmp_gt_u32 s{sLo}, {thr}")
            o(f"    s_cbranch_scc1 K2_IZ{r}")
        for v in range(4):
            o(f"    buffer_load_dword v{B+8*v+r}, v{VO[0]+r}, {sr(sX,4)}, 0 offen offset:{v*128}")
        L(f"K2_IN{r}")
    o(f"    s_cmp_eq_u32 s{sNs}, 1")
    o("    s_cbranch_scc1 K2_INITD")
    o("    s_waitcnt lgkmcnt(0)")
    for r in range(8):
        o(f"    v_add_u32 v{VO[1]+r}, v{VO[1]+r}, v{vN4}")
    for v in range(4):
        if v == 3:
            o("    s_waitcnt vmcnt(55)")
        loads_tile(1, v, VO[1])
    L("K2_INITD")
    if ST2:
        o("    s_waitcnt lgkmcnt(0)")
        convert(VO[1], A[0], RBLK)
        o(f"    v_add_u32 v{vCw}, {2*RBLK}, v{vCw}")
        o(f"    v_add_u32 v{vVw}, {2*RBLK}, v{vVw}")
    if ZZ > 1:
        o(f"    s_add_u32 s{sSeg}, s{sSeg}, {ZZ-1}")
    if WLDS:
        for p in range(5):
            o(f"    ds_read_b128 {vr(W+4*p,4)}, v{TT} offset:{p*1024}")
    o(f"    v_readlane_b32 s{sEnd}, v{vEnds}, s{sSeg}")
    o(f"    ds_read_b64_tr_b16 {vr(A[0],2)}, v{vA}")
    o(f"    ds_read_b64_tr_b16 {vr(A[0]+2,2)}, v{vA} offset:128")
    o(f"    ds_read_b128 {vr(VO[0],4)}, v{vV}")
    o(f"    ds_read_b128 {vr(VO[0]+4,4)}, v{vV} offset:32")
    o(f"    s_mov_b32 s{sGen}, 0")
    o(f"    s_mov_b32 s{sCnt}, 0")

    o(".p2align 3")
    L("K2_LOOP")
    for x in range(2):
        a_cur, a_nxt = A[x], A[x ^ 1]
        v_cur, v_nxt = VO[x], VO[x ^ 1]
        if x == 1:
            o(f"    v_add_u32 v{vA}, s{sD0}, v{vA}")
            o(f"    v_add_u32 v{vV}, s{sD1}, v{vV}")
        nx = x ^ 1
        if x == 0:
            o(f"    ds_read_b128 {vr(RR,4)}, v{vRaw}")
        o(f"    ds_read_b64_tr_b16 {vr(a_nxt,2)}, v{vA} offset:{nx*512}")
        o(f"    ds_read_b64_tr_b16 {vr(a_nxt+2,2)}, v{vA} offset:{nx*512+128}")
        o(f"    ds_read_b128 {vr(v_nxt,4)}, v{vV} offset:{nx*64}")
        o(f"    ds_read_b128 {vr(v_nxt+4,4)}, v{vV} offset:{nx*64+32}")
        o(f"    s_sub_u32 s{sCnt}, s{sCnt}, 1")
        o(f"    s_waitcnt lgkmcnt({5 if x == 0 else 4})")
        for r in range(8):
            o(f"    v_add_u32 v{v_cur+r}, v{v_cur+r}, v{vN4}")
        o(f"    s_cbranch_scc1 K2_SP{x}")
        for v in range(4):
            o("    s_waitcnt vmcnt(55)")
            smf(x, v, a_cur)
            loads_tile(x, v, v_cur)
        L(f"K2_NEXT{x}")
        if RP:
            o(f"    s_sub_u32 s{sLeft}, s{sLeft}, 1")
            o(f"    s_cmp_le_i32 s{sLeft}, s{sPT}")
            o(f"    s_cbranch_scc1 K2_RP{x}")
            L(f"K2_RPB{x}")
        if x == 0:
            o("    s_waitcnt lgkmcnt(4)")
            convert(v_cur)
            o(f"    v_add_u32 v{vRaw}, 512, v{vRaw}")
            o(f"    v_add_u32 v{vCw}, s{sD2}, v{vCw}")
            o(f"    v_add_u32 v{vVw}, s{sD2}, v{vVw}")
        else:
            o(f"    s_mov_b32 s{sT}, s{sD0}")
            o(f"    s_mov_b32 s{sD0}, s{sD1}")
            o(f"    s_mov_b32 s{sD1}, s{sD2}")
            o(f"    s_mov_b32 s{sD2}, s{sT}")
            o("    s_branch K2_LOOP")

    for x in range(2):
        a_cur = A[x]
        v_cur = VO[x]
        L(f"K2_SP{x}")
        o(f"    s_add_u32 s{sT}, s{sSeg}, {ZZ}")
        if ZZ == 3:
            o(f"    s_or_b32 s{sT2}, s{sSeg}, 15")
            o(f"    s_min_u32 s{sT}, s{sT}, s{sT2}")
        o(f"    v_readlane_b32 s{sNext}, v{vEnds}, s{sT}")
        o(f"    s_sub_u32 s{sRem}, s{sNs}, s{sGen}")
        o(f"    s_lshl_b32 s{sT3}, s{sGen}, 4")
        o(f"    s_cmp_le_u32 s{sRem}, 2")
        o(f"    s_cbranch_scc1 K2_GEN{x}")
        o(f"    s_cmp_le_u32 s{sGen}, s{sFast}")
        o(f"    s_cbranch_scc1 K2_GEN{x}")
        o(f"    s_add_u32 s{sT2}, s{sT3}, 16")
        o(f"    s_cmp_le_u32 s{sNext}, s{sT2}")
        o(f"    s_cbranch_scc1 K2_GEN{x}")
        for r in range(4):
            o(f"    v_and_b32 v{AM1+r}, v{a_cur+r}, v{LT+r}")
        for r in range(4):
            o(f"    v_bitop3_b32 v{AM2+r}, v{a_cur+r}, v{LT+r}, v{LT+r} bitop3:0x30")
        o("    s_waitcnt vmcnt(31)")
        for v in range(4):
            smf(x, v, AM1)
        o(f"    s_mov_b32 s{sSeg}, s{sT}")
        o(f"    s_mov_b32 s{sEnd}, s{sNext}")
        schedule_next()
        mask_read(LT, sHi, a_cur)
        for v in range(4):
            fmas(v)
            zero_tile(v)
            smf(x, v, AM2)
            loads_tile(x, v, v_cur)
        fold()
        commit_lds()
        prio_step()
        o(f"    s_branch K2_NEXT{x}")
        L(f"K2_GEN{x}")
        o(f"    s_cmp_ge_u32 s{sRem}, 2")
        o(f"    s_cbranch_scc1 K2_GW{x}")
        o("    s_waitcnt vmcnt(0)")
        L(f"K2_GW{x}")
        o(f"    s_cmp_eq_u32 s{sGen}, 0")
        o(f"    s_cselect_b32 s{sLo}, s{sLo}, 0")
        L(f"K2_GL{x}")
        o(f"    s_sub_u32 s{sRel}, s{sEnd}, s{sT3}")
        o(f"    s_min_u32 s{sHi}, s{sRel}, 16")
        mask_read(LT, sHi, AM1)
        mask_read(AM2, sLo, AM1 + 1)
        o("    s_waitcnt vmcnt(31) lgkmcnt(0)")
        for r in range(4):
            o(f"    v_bitop3_b32 v{AM1+r}, v{a_cur+r}, v{LT+r}, v{AM2+r} bitop3:0x40")
        o("    s_nop 1")
        for v in range(4):
            smf(x, v, AM1)
        o(f"    s_cmp_gt_u32 s{sRel}, 16")
        o(f"    s_cbranch_scc1 K2_GD{x}")
        o(f"    s_mov_b32 s{sRet}, {x}")
        o("    s_branch K2_EPI")
        L(f"K2_GD{x}")
        o(f"    s_cmp_le_u32 s{sRem}, 2")
        o(f"    s_cbranch_scc1 K2_NL{x}")
        for v in range(4):
            loads_tile(x, v, v_cur)
        if WFE:
            o(f"    s_branch K2_NL2{x}")
        L(f"K2_NL{x}")
        if WFE:
            o(f"    s_cmp_lg_u32 s{sWFl}, 0")
            o(f"    s_cbranch_scc1 K2_NL2{x}")
            wf_loads(AM2)
            L(f"K2_NL2{x}")
        o(f"    s_cmp_eq_u32 s{sRem}, 1")
        o("    s_cbranch_scc1 K2_STREAM_DONE")
        schedule_next()
        mask_read(LT, sHi, AM1)
        o(f"    s_branch K2_NEXT{x}")

    if RP:
        for x in range(2):
            L(f"K2_RP{x}")
            for lvl in range(3):
                if lvl < 2:
                    o(f"    s_cmp_lg_u32 s{sPT}, {RP[lvl]}")
                    o(f"    s_cbranch_scc1 K2_RP{x}_{lvl}")
                o(f"    s_setprio {2-lvl}")
                o(f"    s_mov_b32 s{sPT}, {RP[lvl+1] if lvl < 2 else -1}")
                o(f"    s_branch K2_RPB{x}")
                if lvl < 2:
                    L(f"K2_RP{x}_{lvl}")
    L("K2_EPI")
    if ZZ == 3:
        o(f"    s_or_b32 s{sT2}, s{sSeg}, 15")
    o(f"    s_add_u32 s{sSeg}, s{sSeg}, {ZZ}")
    if ZZ == 3:
        o(f"    s_min_u32 s{sSeg}, s{sSeg}, s{sT2}")
    o(f"    s_mov_b32 s{sLo}, s{sHi}")
    o(f"    v_readlane_b32 s{sEnd}, v{vEnds}, s{sSeg}")
    o("    s_nop 7")
    for v in range(4):
        fmas(v)
        zero_tile(v)
    fold()
    o(f"    s_cmp_lg_u32 s{sMode}, 0")
    o("    s_cbranch_scc1 K2_EPS")
    commit_lds()
    prio_step()
    L("K2_EPR")
    if EEX:
        o(f"    s_cmp_eq_u32 s{sEnd}, 0x7fffffff")
        o("    s_cbranch_scc1 K2_STREAM_DONE")
    o(f"    s_cmp_eq_u32 s{sRet}, 0")
    o("    s_cbranch_scc1 K2_GL0")
    o("    s_branch K2_GL1")
    L("K2_EPS")
    o("    s_waitcnt vmcnt(31)")
    for si in range(11):
        o(f"    buffer_atomic_add_f32 v{TT+si}, v{vSa}, {sr(sWS,4)}, 0 offen offset:{si*256}")
    o(f"    v_add_u32 v{vSa}, {8*2816}, v{vSa}")
    o("    s_waitcnt vmcnt(0)")
    o("    s_branch K2_EPR")
    for r in range(7):
        L(f"K2_IZ{r}")
        for v in range(4):
            o(f"    v_mov_b32 v{B+8*v+r}, 0")
        o(f"    s_branch K2_IN{r}")
    L("K2_EMPTY")
    o(f"    s_cmp_lg_u32 s{sMode}, 0")
    o("    s_cbranch_scc1 K2_STREAM_DONE")
    for si in range(11):
        o(f"    v_mov_b32 v{TT+si}, 0")
    o(f"    s_mov_b32 s{sT2}, 5")
    L("K2_EMPTYL")
    commit_lds()
    o(f"    s_sub_u32 s{sT2}, s{sT2}, 1")
    o(f"    s_cmp_lg_u32 s{sT2}, 0")
    o("    s_cbranch_scc1 K2_EMPTYL")
    signal4()
    o("    s_branch K2_POSTG")

    L("K2_GOSLOW")
    o(f"    s_mov_b32 s{sMode}, 1")
    o(f"    s_mov_b32 s{sFast}, -1")
    w_loads()
    if WLDS:
        o("    s_waitcnt vmcnt(0)")
        o(f"    ds_write_b128 v{W+4}, {vr(W,4)}")
    dump_addr()
    o(f"    v_mov_b32 v{TT}, 0")
    for k in range(5):
        for si in range(11):
            o(f"    buffer_store_dword v{TT}, v{vSa}, {sr(sWS,4)}, 0 offen offset:{si*256} sc1")
        o(f"    v_add_u32 v{vSa}, {8*2816}, v{vSa}")
        o("    s_waitcnt vmcnt(0)")
    o("    s_waitcnt vmcnt(0)")
    L("K2_SLOW_ROUND")
    o("    s_waitcnt lgkmcnt(0)")
    o("    s_barrier")
    o("    s_nop 7")
    lane_id()
    o(f"    v_lshlrev_b32 v2, 2, v{vLane}")
    o(f"    v_add_u32 v2, {CNT}, v2")
    o("    v_mov_b32 v3, 0")
    o("    ds_write2st64_b32 v2, v3, v3 offset0:0 offset1:1")
    lane_prep()
    hdr_loads()
    o(f"    v_add_u32 v{TM+1}, s{sJlo}, v{vJ}")
    o(f"    s_movk_i32 s{sT}, {CH}")
    o(f"    v_mad_u32_u24 v{TM+2}, v{vW0}, s{sT}, v{TM+1}")
    o(f"    v_cmp_gt_u32 {sr(sSave,2)}, 8, v{vJ}")
    o(f"    s_mov_b64 {sr(sAny2,2)}, 0")
    o(f"    v_mov_b32 v{TM+3}, 0")
    o(f"    v_lshlrev_b32 v{KY}, 1, v{TM+1}")
    o(f"    v_subrev_u32 v{KY+1}, 29, v{KY}")
    o(f"    v_min_u32 v{KY}, v{KY}, v{KY+1}")
    o(f"    v_lshl_add_u32 v{KY}, v{vW0}, 13, v{KY}")
    o(f"    s_lshl_b32 s{sT}, s{sBin}, 5")
    o(f"    s_add_u32 s{sT}, s{sT}, {WS_T2}")
    o(f"    v_add_u32 v{KY}, s{sT}, v{KY}")
    o("    s_waitcnt vmcnt(0)")
    for i in range(8):
        o(f"    v_lshrrev_b32 v{TM}, 16, v{HD+i}")
        o(f"    v_and_b32 v{AD2+i}, 0xffff, v{HD+i}")
        o(f"    v_cmp_lt_u32 vcc, v{TM+1}, v{TM}")
        o(f"    v_add_u32 v{AD2+i}, v{AD2+i}, v{TM+2}")
        o(f"    v_lshlrev_b32 v{RO+i}, 4, v{AD2+i}")
        o(f"    v_max_u32 v{TM+3}, v{TM+3}, v{TM}")
        o(f"    v_mov_b32 v{AD1+i}, 0")
        o(f"    s_and_b64 {sr(sM1+2*i,2)}, vcc, {sr(sSave,2)}")
        o(f"    s_mov_b64 exec, {sr(sM1+2*i,2)}")
        o(f"    s_cbranch_execz K2_SR{i}")
        o(f"    s_mov_b32 s{sT}, {i*4*CH*16}")
        o(f"    buffer_load_dwordx4 {vr(4*i,4)}, v{RO+i}, {sr(sWS,4)}, s{sT} offen")
        o(f"    v_cmp_lt_u32 vcc, 30, v{TM}")
        o(f"    v_add_u32 v{AD2+i}, {WS_KEY + i*4*CH}, v{AD2+i}")
        o(f"    v_add_u32 v{TM}, {i*32768}, v{KY}")
        o(f"    v_cndmask_b32 v{AD2+i}, v{TM}, v{AD2+i}, vcc")
        o(f"    buffer_load_ubyte v{AD1+i}, v{AD2+i}, {sr(sWS,4)}, 0 offen")
        L(f"K2_SR{i}")
        o("    s_mov_b64 exec, -1")
    o(f"    v_mov_b32 v{TM}, {MISC+4}")
    o(f"    ds_max_u32 v{TM}, v{TM+3}")
    o(f"    v_mov_b32 v{TM+4}, {CNT}")
    o("    s_waitcnt vmcnt(0) lgkmcnt(0)")
    o("    s_barrier")
    o(f"    ds_read_b32 v{TM}, v{TM}")
    o("    s_waitcnt lgkmcnt(0)")
    o(f"    v_readfirstlane_b32 s{sMax}, v{TM}")
    o(f"    v_mov_b32 v{TM}, 1")
    for i in range(8):
        o(f"    v_lshl_add_u32 v{AD1+i}, v{AD1+i}, 2, v{TM+4}")
    for i in range(8):
        o(f"    s_mov_b64 exec, {sr(sM1+2*i,2)}")
        o(f"    ds_add_rtn_u32 v{RK1+i}, v{AD1+i}, v{TM}")
    o("    s_mov_b64 exec, -1")
    o("    s_branch K2_RANKD")

    L("K2_STREAM_DONE")
    o(f"    s_cmp_eq_u32 s{sMode}, 0")
    o("    s_cbranch_scc1 K2_POSTG")
    o(f"    s_add_u32 s{sJlo}, s{sJlo}, 8")
    o(f"    s_cmp_lt_u32 s{sJlo}, s{sMax}")
    o("    s_cbranch_scc1 K2_SLOW_ROUND")
    o("    s_nop 7")
    lane_id()
    dump_addr()
    o(f"    s_mov_b32 s{sT2}, 5")
    L("K2_SLOWL")
    for si in range(11):
        o(f"    buffer_load_dword v{TT+si}, v{vSa}, {sr(sWS,4)}, 0 offen offset:{si*256} sc1")
    o(f"    v_add_u32 v{vSa}, {8*2816}, v{vSa}")
    o("    s_waitcnt vmcnt(0)")
    commit_lds()
    o(f"    s_sub_u32 s{sT2}, s{sT2}, 1")
    o(f"    s_cmp_lg_u32 s{sT2}, 0")
    o("    s_cbranch_scc1 K2_SLOWL")
    signal4()

    L("K2_POSTG")
    stamp(6)
    if STAMP:
        o("    s_memtime s[100:101]")
        o("    s_waitcnt lgkmcnt(0)")
        o(f"    v_writelane_b32 v{STV}, s100, 13")
    t0, t1 = 226, 227
    vLane = 246
    o(f"    s_cmp_lg_u32 s{sWFl}, 0")
    o("    s_cbranch_scc1 K2_NOWF")
    wf_loads(t0)
    L("K2_NOWF")
    o(f"    v_mbcnt_lo_u32_b32 v{vLane}, -1, 0")
    o(f"    v_mbcnt_hi_u32_b32 v{vLane}, -1, v{vLane}")
    o(f"    s_cmp_ge_u32 s{sWave}, 4")
    o("    s_cbranch_scc1 K2_GADDR")
    vB_, vOt, vB2, vB2x, vB0, vO2 = 220, 221, 222, 223, 224, 225
    o(f"    v_and_b32 v{t0}, 15, v{vLane}                ; nn")
    o(f"    v_lshrrev_b32 v{t1}, 4, v{vLane}             ; g")
    o(f"    v_mul_u32_u24 v{vB_}, {SDS}, v{t0}")
    o(f"    v_lshl_add_u32 v{vB_}, v{t1}, 4, v{vB_}")
    o(f"    v_add_u32 v{vB_}, {SD}, v{vB_}")
    o(f"    s_lshl_b32 s{sT3}, s{sWave}, 5               ; t*32 bytes")
    o(f"    s_add_u32 s{sT}, s{sT3}, {OUTT}")
    o(f"    v_mul_u32_u24 v{vOt}, {OUT_STRIDE}, v{t0}")
    o(f"    v_lshl_add_u32 v{vOt}, v{t1}, 3, v{vOt}")
    o(f"    v_add_u32 v{vOt}, s{sT}, v{vOt}")
    o(f"    v_and_b32 v0, 7, v{t0}")
    o(f"    v_lshrrev_b32 v1, 3, v{t0}")
    o(f"    v_mul_u32_u24 v{vB0}, {SDS}, v0")
    o(f"    v_lshl_add_u32 v{vB0}, v{t1}, 4, v{vB0}")
    o(f"    v_add_u32 v{vB0}, {SD + 32*SDS}, v{vB0}")
    o(f"    v_lshl_add_u32 v{vB2}, v1, 8, v{vB0}")
    o(f"    v_lshl_add_u32 v{vB2x}, v1, 7, v{vB0}")
    o(f"    v_cmp_eq_u32 {sr(sSave,2)}, 1, v1")
    o(f"    v_mul_u32_u24 v{vO2}, {OUT_STRIDE}, v0")
    o(f"    v_lshl_add_u32 v{vO2}, v{t1}, 3, v{vO2}")
    o(f"    s_add_u32 s{sT}, s{sT3}, {OUTT + 32*OUT_STRIDE}")
    o(f"    v_add_u32 v{vO2}, s{sT}, v{vO2}")
    o(f"    v_lshl_add_u32 v{t0}, v1, 7, v{vO2}")
    o(f"    v_mul_u32_u24 v1, 384, v1")
    o(f"    v_sub_u32 v{t1}, v{vO2}, v1")
    G = 184
    o(f"    v_mov_b32 v{G+12}, 0xbfb8aa3b           ; -log2(e)")
    BB = 64
    NB_ = 16
    DEPTH = 12
    DD = 0
    RS = 198
    def gemm(seq, work, wr, tail_ins):
        n = len(seq)
        def bread(i):
            o(f"    ds_read_b128 {vr(BB+4*(i%NB_),4)}, v{seq[i][2]} offset:{seq[i][3]}")
        for i in range(min(DEPTH, n)):
            bread(i)
        o("    s_waitcnt vmcnt(0)")
        for i, (di, f, ar, off, first) in enumerate(seq):
            if i % 2 == 0:
                cnt = min(i + DEPTH, n) - 2 - i
                o(f"    s_waitcnt lgkmcnt({max(cnt,0)})")
            d = vr(DD + 4 * di, 4)
            o(f"    v_mfma_f32_16x16x32_bf16 {d}, {vr(WF+4*f,4)}, {vr(BB+4*(i%NB_),4)}, {'0' if first else d}")
            if i + DEPTH < n:
                bread(i + DEPTH)
            k = 0
            while work and work[0][0] <= i and k < (2 if i + DEPTH < n else 3):
                o(work.pop(0)[1]); k += 1
        early = [w for w in work if w[0] <= n - 1]
        late = [w for w in work if w[0] > n - 1]
        for w in early:
            o(w[1])
        for x_ in wr:
            o(x_)
        pad = 9 - len(early) - len(wr)
        if pad > 0:
            o(f"    s_nop {pad-1}")
        for w in late:
            o(w[1])
        for x_ in tail_ins:
            o(x_)
    def gate_work(Ts, start):
        w = []
        for op in ("v_mul_f32 v{g}, v{c}, v{d}", "v_exp_f32 v{g}, v{g}", "v_add_f32 v{g}, 1.0, v{g}", "v_rcp_f32 v{g}, v{g}"):
            for T in Ts:
                w += [(start, "    " + op.format(g=G + 4 * T + r, c=G + 12, d=DD + 4 * T + r)) for r in range(4)]
        for T in Ts:
            w += [(start, f"    v_cvt_pk_bf16_f32 v{RS+2*T}, v{DD+4*T}, v{DD+4*T+1}"), (start, f"    v_cvt_pk_bf16_f32 v{RS+2*T+1}, v{DD+4*T+2}, v{DD+4*T+3}")]
        return w
    def fin(di, last):
        g0 = G + 4 * min((di - 3) // 3, 2)
        ins = [f"    v_mul_f32 v{DD+4*di+r}, v{DD+4*di+r}, v{g0+r}" for r in range(4)]
        ins += [f"    v_cvt_pk_bf16_f32 v{RS+2*di}, v{DD+4*di}, v{DD+4*di+1}", f"    v_cvt_pk_bf16_f32 v{RS+2*di+1}, v{DD+4*di+2}, v{DD+4*di+3}"]
        return [(last + 5, x) for x in ins]
    if GPRI:
        o("    s_setprio 0")
    o(f"    v_mov_b32 v2, {MISC+8}")
    o(f"    s_mov_b32 s{sT2}, 0")
    L("K2_SPIN")
    o("    ds_read_b32 v3, v2")
    o(f"    s_add_u32 s{sT2}, s{sT2}, 1")
    o("    s_waitcnt lgkmcnt(0)")
    o(f"    v_readfirstlane_b32 s{sT}, v3")
    o("    s_nop 3")
    o(f"    s_cmp_ge_u32 s{sT}, 8")
    o("    s_cbranch_scc1 K2_SPIND")
    o(f"    s_cmp_gt_u32 s{sT2}, 0x400000")
    o("    s_cbranch_scc1 K2_SPIND")
    o("    s_sleep 1")
    o("    s_branch K2_SPIN")
    L("K2_SPIND")
    seq = []
    for T in range(2):
        for ks in range(4):
            seq.append((T, ks, vB_, T * 16 * SDS + 64 * ks, ks == 0))
    work = gate_work((0, 1), 12)
    for T in range(2):
        for blk in range(1, 4):
            di = 3 + 3 * T + blk - 1
            for ks in range(4):
                seq.append((di, 4 + ks, vB_, T * 16 * SDS + blk * 256 + 64 * ks, ks == 0))
            for ks in range(2):
                seq.append((di, 8 + ks, vB_, T * 16 * SDS + 1024 + 128 * (blk - 1) + 64 * ks, False))
            work += fin(di, len(seq) - 1)
    wr = []
    for T in range(2):
        wr.append(f"    ds_write_b64 v{vOt}, {vr(RS+2*T,2)} offset:{T*16*OUT_STRIDE}")
        for blk in range(1, 4):
            wr.append(f"    ds_write_b64 v{vOt}, {vr(RS+2*(3+3*T+blk-1),2)} offset:{T*16*OUT_STRIDE+blk*128}")
    gemm(seq, work, wr[:-1], wr[-1:])
    L("K2_GADDR")
    vC, vS = 228, 229
    o(f"    s_and_b32 s{sT}, s{sWave}, 3")
    o(f"    s_lshl_b32 s{sT}, s{sT}, 6")
    o(f"    v_add_u32 v{vS}, s{sT}, v{vLane}            ; 0..255")
    o(f"    v_lshrrev_b32 v{vC}, 5, v{vS}")
    o(f"    v_and_b32 v230, 31, v{vS}")
    o(f"    v_mul_u32_u24 v{vC}, {OUT_STRIDE}, v{vC}")
    o(f"    v_lshl_add_u32 v{vC}, v230, 4, v{vC}")
    o(f"    v_add_u32 v{vC}, {OUTT}, v{vC}")
    o(f"    v_lshlrev_b32 v{vS}, 4, v{vS}")
    o("    s_waitcnt lgkmcnt(0)")
    o("    s_barrier")
    stamp(7)
    o(f"    s_cmp_lt_u32 s{sWave}, 4")
    o("    s_cbranch_scc1 K2_GEMM2")
    for r in range(4):
        o(f"    ds_read_b128 {vr(4+4*r,4)}, v{vC} offset:{r*8*OUT_STRIDE}")
    for r in range(1, 4):
        o(f"    v_add_u32 v{vS+1+r}, {r*4096}, v{vS}")
    for r in range(4):
        o(f"    s_waitcnt lgkmcnt({3-r})")
        o(f"    buffer_store_dwordx4 {vr(4+4*r,4)}, v{vS if r == 0 else vS+1+r}, {sr(sOUT,4)}, 0 offen {OUTST}")
    o("    s_barrier                             ; B6")
    stamp(8)
    o("    s_branch K2_FIN")
    L("K2_GEMM2")
    seq = [(2, ks, vB0, 64 * ks, ks == 0) for ks in range(4)]
    work = gate_work((2,), 9)
    for ks in range(4):
        seq.append((9, 4 + ks, vB2, 256 + 64 * ks, ks == 0))
    for ks in range(2):
        seq.append((9, 8 + ks, vB2x, 1024 + 64 * ks, False))
    work += fin(9, len(seq) - 1)
    for ks in range(4):
        seq.append((10, 4 + ks, vB0, 768 + 64 * ks, ks == 0))
    for ks in range(2):
        seq.append((10, 8 + ks, vB0, 1024 + 256 + 64 * ks, False))
    work += fin(10, len(seq) - 1)
    gemm(seq, work, [f"    ds_write_b64 v{t0}, {vr(RS+18,2)} offset:128"],
         [f"    v_cndmask_b32 v{RS+20}, v{RS+20}, v{RS+4}, {sr(sSave,2)}",
          f"    v_cndmask_b32 v{RS+21}, v{RS+21}, v{RS+5}, {sr(sSave,2)}",
          f"    ds_write_b64 v{t1}, {vr(RS+20,2)} offset:384"])
    o(f"    v_add_u32 v{vS}, 16384, v{vS}")
    o("    s_waitcnt lgkmcnt(0)")
    o("    s_barrier                             ; B6: tail tile staged (waves 4..7 have ended)")
    stamp(8)
    o(f"    ds_read_b128 v[4:7], v{vC} offset:{32*OUT_STRIDE}")
    o("    s_waitcnt lgkmcnt(0)")
    o(f"    buffer_store_dwordx4 v[4:7], v{vS}, {sr(sOUT,4)}, 0 offen {OUTST}")
    L("K2_FIN")
    if STAMP:
        o("    s_waitcnt vmcnt(0)")
    stamp(9)
    stamp_dump(sWS, sWS + 1, sWave, 8, 65 << 20)
    L("K2_END")
    o("    s_endpgm")
    L("CODE_END")

gen_k1()
gen_k2()

o('.section .rodata,"a"')
def kd(name, vgpr, sgpr):
    o(".p2align 6")
    o(f".amdhsa_kernel {name}")
    o(f"  .amdhsa_next_free_vgpr {vgpr}")
    o(f"  .amdhsa_next_free_sgpr {sgpr}")
    o(f"  .amdhsa_accum_offset {(vgpr+3)//4*4}")
    o("  .amdhsa_group_segment_fixed_size 0")
    o("  .amdhsa_kernarg_size 96")
    o("  .amdhsa_user_sgpr_count 2")
    o("  .amdhsa_user_sgpr_kernarg_segment_ptr 1")
    o("  .amdhsa_system_sgpr_workgroup_id_x 1")
    o("  .amdhsa_float_denorm_mode_32 3")
    o(".end_amdhsa_kernel")
kd("tp_part_kernel", 80, 102 if STAMP else 72)
kd("tp_main_kernel", 256, 102 if STAMP else 92)

open(OUTFILE, "w").write("\n".join(lines) + "\n")
print("wrote", OUTFILE, len(lines), "lines; K2 LDS", K2_LDS)
```
